```python
import torch

def _softmax(x, axis=-1):
    return torch.softmax(x, dim=axis)
def _gelu(x):
    return torch.nn.functional.gelu(x, approximate="tanh")
def _silu(x):
    return torch.nn.functional.silu(x)
def _sigmoid(x):
    return torch.sigmoid(x)
def _layernorm(x, axis=-1, eps=1e-5):
    m = x.mean(dim=axis, keepdim=True)
    v = x.var(dim=axis, keepdim=True, unbiased=False)
    return (x - m) / torch.sqrt(v + eps)
def _scatter_add(tgt, idx, src, axis=0):
    return tgt.clone().index_add_(axis, idx, src)
def _segment_sum(src, seg, n):
    out = torch.zeros((n,) + src.shape[1:], dtype=src.dtype)
    return out.index_add_(0, seg, src)
def _pad(x, pw):
    flat = tuple(v for pair in reversed(pw) for v in pair)
    return torch.nn.functional.pad(x, flat)

kernel_name = 'parallel_sum__spectral_gfnet__glu_gated_geglu__prompt'

def setup_inputs():

    _w = (lambda a: (lambda t: t.to(torch.bfloat16) if t.is_floating_point() else t)(torch.as_tensor(a)))
    def _A_setup():
        B, S, D = 1, 2048, 1024
        Df = D // 2 + 1
        return {
            "x": _w((lambda *s: torch.randn(*s, dtype=torch.bfloat16) * 0.05)(B, S, D)),
            "w_r": _w((lambda *s: torch.randn(*s, dtype=torch.bfloat16) * 0.8)(S, Df) * 0.02),
            "w_i": _w((lambda *s: torch.randn(*s, dtype=torch.bfloat16) * 0.8)(S, Df) * 0.02),
        }
    _A_in = _A_setup()

    def _B_setup():
        B, S, Dm, Df = 1, 2048, 1024, 3584
        return {
            "x": _w((lambda *s: torch.randn(*s, dtype=torch.bfloat16) * 0.05)(B, S, Dm)),
            "w_gate": _w((lambda *s: torch.randn(*s, dtype=torch.bfloat16) * 0.4)(Dm, Df) * (Dm ** -0.5)),
            "w_up": _w((lambda *s: torch.randn(*s, dtype=torch.bfloat16) * 0.4)(Dm, Df) * (Dm ** -0.5)),
            "w_down": _w((lambda *s: torch.randn(*s, dtype=torch.bfloat16) * 0.4)(Df, Dm) * (Df ** -0.5)),
        }
    _B_in = _B_setup()

    return {
        "A_x": _A_in["x"],
        "A_w_r": _A_in["w_r"],
        "A_w_i": _A_in["w_i"],
        "B_x": _B_in["x"],
        "B_w_gate": _B_in["w_gate"],
        "B_w_up": _B_in["w_up"],
        "B_w_down": _B_in["w_down"],
    }

def reference(A_x, A_w_r, A_w_i, B_x, B_w_gate, B_w_up, B_w_down):
    def _A_ref(x, w_r, w_i):
        B, S, D = x.shape
        X = (lambda x, axes=(-2,-1): torch.fft.rfft2(x.float(), dim=axes))(x, axes=(-2, -1))
        W = w_r + 1j * w_i
        X = X * W
        y = (lambda x, s, axes=(-2,-1): torch.fft.irfft2(x, s=s, dim=axes).to(torch.bfloat16))(X, (S, D), axes=(-2, -1))
        return y

    def _B_ref(x, w_gate, w_up, w_down):
        g = torch.einsum("bsd,df->bsf", x, w_gate)
        u = torch.einsum("bsd,df->bsf", x, w_up)
        h = _gelu(g) * u
        return torch.einsum("bsf,fd->bsd", h, w_down)

    x = A_x
    xn = _layernorm(x, axis=-1)
    return x + _A_ref(xn, A_w_r, A_w_i) + _B_ref(xn, B_w_gate, B_w_up, B_w_down)
```

```python
class Asm:
    def __init__(self):
        self.lines = []
        self.nlabel = 0
    def __call__(self, s):
        self.lines.append("    " + s)
    def raw(self, s):
        self.lines.append(s)
    def label(self, name):
        self.lines.append(name + ":")
    def newlabel(self, pfx="L"):
        self.nlabel += 1
        return f"{pfx}_{self.nlabel}"
    def comment(self, s):
        self.lines.append("    ; " + s)
    def text(self):
        return "\n".join(self.lines) + "\n"

def v(i, n=1):
    return f"v{i}" if n == 1 else f"v[{i}:{i+n-1}]"
def a(i, n=1):
    return f"a{i}" if n == 1 else f"a[{i}:{i+n-1}]"
def s(i, n=1):
    return f"s{i}" if n == 1 else f"s[{i}:{i+n-1}]"

import struct
def f32(x):
    return "0x%08x" % struct.unpack("<I", struct.pack("<f", x))[0]

def kernel_begin(A, name):
    A.raw(f".globl {name}")
    A.raw(".p2align 8")
    A.raw(f".type {name},@function")
    A.label(name)

def kernel_desc(name, vgpr, sgpr=102, accum=None):
    if accum is None:
        accum = (min(vgpr,256) + 3) // 4 * 4
    return f""".p2align 6
.amdhsa_kernel {name}
  .amdhsa_next_free_vgpr {vgpr}
  .amdhsa_next_free_sgpr {sgpr}
  .amdhsa_accum_offset {accum}
  .amdhsa_group_segment_fixed_size 0
  .amdhsa_kernarg_size 80
  .amdhsa_user_sgpr_count 2
  .amdhsa_user_sgpr_kernarg_segment_ptr 1
  .amdhsa_system_sgpr_workgroup_id_x 1
  .amdhsa_float_denorm_mode_32 3
  .amdhsa_float_denorm_mode_16_64 3
.end_amdhsa_kernel
"""

def make_srd(A, d, lo, hi, nbytes, add=0):
    if add > 0:
        A(f"s_add_u32 {s(d)}, {s(lo)}, {hex(add)}")
        A(f"s_addc_u32 {s(d+1)}, {s(hi)}, 0")
    elif add < 0:
        A(f"s_sub_u32 {s(d)}, {s(lo)}, {hex(-add)}")
        A(f"s_subb_u32 {s(d+1)}, {s(hi)}, 0")
    else:
        A(f"s_mov_b32 {s(d)}, {s(lo)}")
        A(f"s_mov_b32 {s(d+1)}, {s(hi)}")
    A(f"s_and_b32 {s(d+1)}, {s(d+1)}, 0xffff")
    A(f"s_mov_b32 {s(d+2)}, {hex(nbytes)}")
    A(f"s_mov_b32 {s(d+3)}, 0x20000")

def interleave(mf, fillers, slots):
    out = []
    byslot = {}
    for f, sl in zip(fillers, slots):
        byslot.setdefault(sl, []).append(f)
    out += byslot.get(-1, [])
    for i, m in enumerate(mf):
        out.append(m)
        out += byslot.get(i, [])
    return out
```

```python
from asmlib import *
from fftcommon import *
from layout import *

MF = "v_mfma_f32_32x32x16_bf16"

class ColFFT:
    C32, S32, N32 = 0+8, 16, 24
    C64, S64 = 32, 64
    SA = 96
    SB = 128
    ACC = 176
    TMP = 240
    vL, vOff, vTw = 1, 2, 3
    TW1, TW2 = 0, 16384
    def __init__(self, A, opts):
        self.A = A; self.opts = opts
    def accr(self, t): return self.ACC + 16*t
    def acci(self, t): return self.ACC + 32 + 16*t

    def gen_consts(self, sWave, nwaves, ldsbase=0):
        A = self.A; vL = self.vL
        T = self.TMP
        vI, vH4, vI2, vH42 = T+8, T+9, T+10, T+11
        tmp = [T, T+1, T+2, T+3, T+4, T+5]
        A(f"v_and_b32 {v(vI)}, 31, {v(vL)}")
        A(f"v_lshrrev_b32 {v(T+12)}, 5, {v(vL)}")
        A(f"v_lshlrev_b32 {v(T+12)}, 2, {v(T+12)}")
        A(f"v_mul_u32_u24 {v(vH4)}, {v(T+12)}, {v(vI)}")
        A(f"v_add_u32 {v(vI2)}, 32, {v(vI)}")
        A(f"v_mul_u32_u24 {v(vH42)}, {v(T+12)}, {v(vI2)}")
        A(f"v_lshlrev_b32 {v(self.vTw)}, 4, {v(vL)}")
        if ldsbase: A(f"v_add_u32 {v(self.vTw)}, {ldsbase}, {v(self.vTw)}")
        skip = A.newlabel("cf_twdone")
        CC, SS = self.ACC, self.ACC+16
        for job in range(4):
            nxt = A.newlabel("cf_tw")
            A(f"s_cmp_lg_u32 {s(sWave)}, {job % nwaves}")
            A(f"s_cbranch_scc1 {nxt}")
            if job < 2:
                gen_twiddle(A, CC, SS, vI, vH4, 2048, tmp[0], base=32*job, neg_sin=True)
            elif job == 2:
                gen_twiddle(A, CC, SS, vI, vH4, 2048, tmp[0], scale=2.0**-20)
            else:
                gen_twiddle(A, CC, SS, vI2, vH42, 2048, tmp[0], scale=2.0**-20)
            A("s_nop 0")
            for q in range(8):
                A(f"ds_write_b128 {v(self.vTw)}, {v(CC+4*q,4)} offset:{job*8192 + q*1024}")
            A.label(nxt)
        gen_trig_operand(A, self.C32, self.S32, 2, vI, vH4, 32, tmp, dst_nsin=self.N32)
        gen_trig_operand(A, self.C64, self.S64, 4, vI, vH4, 64, tmp)
        gen_trig_operand(A, self.C64+16, self.S64+16, 4, vI2, vH42, 64, tmp)
        A(f"v_lshlrev_b32 {v(self.vOff)}, 4, {v(vL)}")
        A("s_waitcnt lgkmcnt(0)")
        A("s_barrier")

    def load_P(self, sYT, sRe, sIm, flags=""):
        A = self.A
        for c, so in enumerate((sRe, sIm)):
            for q in range(4):
                A(f"buffer_load_dwordx4 {v(self.SA + c*16 + q*4, 4)}, {v(self.vOff)}, {s(sYT,4)}, {s(so)} offen offset:{q*1024}{flags}")

    def twiddle_pack(self, table, neg, dst):
        A = self.A; T = self.TMP
        for t in range(2):
            ar, ai = self.accr(t), self.acci(t)
            for half in range(2):
                for q in range(2):
                    A(f"ds_read_b128 {v(T+4*q,4)}, {v(self.vTw)} offset:{table + t*8192 + (2*half+q)*1024}")
                    A(f"ds_read_b128 {v(T+8+4*q,4)}, {v(self.vTw)} offset:{table + t*8192 + (4+2*half+q)*1024}")
                A("s_waitcnt lgkmcnt(0)")
                self.cmul_pack(ar+8*half, ai+8*half, T, T+8, dst, t*8+half*4, neg)
    def cmul_pack(self, ar, ai, c, sn, dst, po, neg):
        A = self.A
        X = 4
        for b in range(2):
            o = 4*b
            for r in range(4): A(f"v_mul_f32 {v(X+r)}, {v(ar+o+r)}, {v(c+o+r)}")
            for r in range(4): A(f"v_mul_f32 {v(ar+o+r)}, {v(ar+o+r)}, {v(sn+o+r)}")
            for r in range(4): A(f"v_fma_f32 {v(X+r)}, -{v(ai+o+r)}, {v(sn+o+r)}, {v(X+r)}")
            for r in range(4): A(f"v_fma_f32 {v(ai+o+r)}, {v(ai+o+r)}, {v(c+o+r)}, {v(ar+o+r)}")
            for p in range(2):
                A(f"v_cvt_pk_bf16_f32 {v(dst+po+2*b+p)}, {v(X+2*p)}, {v(X+2*p+1)}")
                if neg == 'r': A(f"v_cvt_pk_bf16_f32 {v(dst+32+po+2*b+p)}, -{v(X+2*p)}, -{v(X+2*p+1)}")
            for p in range(2):
                A(f"v_cvt_pk_bf16_f32 {v(dst+16+po+2*b+p)}, {v(ai+o+2*p)}, {v(ai+o+2*p+1)}")
                if neg == 'i': A(f"v_cvt_pk_bf16_f32 {v(dst+32+po+2*b+p)}, -{v(ai+o+2*p)}, -{v(ai+o+2*p+1)}")

    def column(self, sWT, sWo, sZT, sRe, sIm, ldsbase=0, stflags=""):
        A = self.A; SA, SB = self.SA, self.SB
        Pr = lambda it, u: SA + (it*2+u)*4
        Pi = lambda it, u: SA + 16 + (it*2+u)*4
        A("s_waitcnt vmcnt(0)")
        for u in range(2):
            for it in range(2):
                c = "0" if u == 0 else v(self.accr(it),16)
                A(f"{MF} {v(self.accr(it),16)}, {v(Pr(it,u),4)}, {v(self.C32+4*u,4)}, {c}")
                c = "0" if u == 0 else v(self.acci(it),16)
                A(f"{MF} {v(self.acci(it),16)}, {v(Pi(it,u),4)}, {v(self.C32+4*u,4)}, {c}")
        for u in range(2):
            for it in range(2):
                A(f"{MF} {v(self.accr(it),16)}, {v(Pi(it,u),4)}, {v(self.S32+4*u,4)}, {v(self.accr(it),16)}")
                A(f"{MF} {v(self.acci(it),16)}, {v(Pr(it,u),4)}, {v(self.N32+4*u,4)}, {v(self.acci(it),16)}")
        A("s_nop 7"); A("s_nop 7")
        for q in range(8):
            A(f"buffer_load_dwordx4 {v(SA+4*q,4)}, {v(self.vOff)}, {s(sWT,4)}, {s(sWo + (q//4))} offen offset:{(q%4)*1024}")
        self.twiddle_pack(self.TW1, 'r', SB)
        Ur = lambda w: SB + 4*w; Ui = lambda w: SB + 16 + 4*w; Un = lambda w: SB + 32 + 4*w
        A("s_nop 1")
        for w in range(4):
            for it in range(2):
                c = "0" if w == 0 else v(self.accr(it),16)
                A(f"{MF} {v(self.accr(it),16)}, {v(self.C64+16*it+4*w,4)}, {v(Ur(w),4)}, {c}")
                c = "0" if w == 0 else v(self.acci(it),16)
                A(f"{MF} {v(self.acci(it),16)}, {v(self.C64+16*it+4*w,4)}, {v(Ui(w),4)}, {c}")
        for w in range(4):
            for it in range(2):
                A(f"{MF} {v(self.accr(it),16)}, {v(self.S64+16*it+4*w,4)}, {v(Ui(w),4)}, {v(self.accr(it),16)}")
                A(f"{MF} {v(self.acci(it),16)}, {v(self.S64+16*it+4*w,4)}, {v(Un(w),4)}, {v(self.acci(it),16)}")
        A("s_waitcnt vmcnt(0)")
        A("s_nop 7"); A("s_nop 7")
        T = self.TMP
        for it in range(2):
            for u in range(2):
                wr = SA + (it*2+u)*4; wi = SA + 16 + (it*2+u)*4
                for p in range(4):
                    A(f"v_lshlrev_b32 {v(T+2*p)}, 16, {v(wr+p)}")
                    A(f"v_and_b32 {v(T+2*p+1)}, 0xffff0000, {v(wr+p)}")
                    A(f"v_lshlrev_b32 {v(T+8+2*p)}, 16, {v(wi+p)}")
                    A(f"v_and_b32 {v(T+8+2*p+1)}, 0xffff0000, {v(wi+p)}")
                self.cmul_pack(self.accr(it)+8*u, self.acci(it)+8*u, T, T+8, SB, it*8+u*4, 'i')
        A("s_nop 1")
        for w in range(4):
            for jt in range(2):
                c = "0" if w == 0 else v(self.accr(jt),16)
                A(f"{MF} {v(self.accr(jt),16)}, {v(Ur(w),4)}, {v(self.C64+16*jt+4*w,4)}, {c}")
                c = "0" if w == 0 else v(self.acci(jt),16)
                A(f"{MF} {v(self.acci(jt),16)}, {v(Ui(w),4)}, {v(self.C64+16*jt+4*w,4)}, {c}")
        for w in range(4):
            for jt in range(2):
                A(f"{MF} {v(self.accr(jt),16)}, {v(Un(w),4)}, {v(self.S64+16*jt+4*w,4)}, {v(self.accr(jt),16)}")
                A(f"{MF} {v(self.acci(jt),16)}, {v(Ur(w),4)}, {v(self.S64+16*jt+4*w,4)}, {v(self.acci(jt),16)}")
        A("s_nop 7"); A("s_nop 7")
        self.twiddle_pack(self.TW2, None, SA)
        A("s_nop 1")
        for u in range(2):
            for jt in range(2):
                c = "0" if u == 0 else v(self.accr(jt),16)
                A(f"{MF} {v(self.accr(jt),16)}, {v(self.C32+4*u,4)}, {v(Pr(jt,u),4)}, {c}")
                c = "0" if u == 0 else v(self.acci(jt),16)
                A(f"{MF} {v(self.acci(jt),16)}, {v(self.C32+4*u,4)}, {v(Pi(jt,u),4)}, {c}")
        for u in range(2):
            for jt in range(2):
                A(f"{MF} {v(self.accr(jt),16)}, {v(self.N32+4*u,4)}, {v(Pi(jt,u),4)}, {v(self.accr(jt),16)}")
                A(f"{MF} {v(self.acci(jt),16)}, {v(self.S32+4*u,4)}, {v(Pr(jt,u),4)}, {v(self.acci(jt),16)}")
        A("s_nop 7"); A("s_nop 7")
        for c in range(2):
            for jt in range(2):
                base = (self.accr(jt) if c == 0 else self.acci(jt))
                for p in range(8):
                    A(f"v_cvt_pk_bf16_f32 {v(SB + c*16 + jt*8 + p)}, {v(base+2*p)}, {v(base+2*p+1)}")
        for c, so in enumerate((sRe, sIm)):
            for q in range(4):
                A(f"buffer_store_dwordx4 {v(SB + c*16 + q*4, 4)}, {v(self.vOff)}, {s(sZT,4)}, {s(so)} offen offset:{q*1024}{stflags}")

def col_params(A, sCol, sRe, sIm, sWo, sT):
    BIG = 0x40000000
    A(f"s_lshl_b32 {s(sRe)}, {s(sCol)}, 13")
    A(f"s_add_u32 {s(sIm)}, {s(sRe)}, 4096")
    A(f"s_mov_b32 {s(sWo)}, {s(sRe)}")
    A(f"s_add_u32 {s(sWo+1)}, {s(sRe)}, 4096")
    A(f"s_cmp_eq_u32 {s(sCol)}, 0")
    A(f"s_cselect_b32 {s(sIm)}, {hex(BIG)}, {s(sIm)}")
    A(f"s_cmp_eq_u32 {s(sCol)}, 512")
    A(f"s_cselect_b32 {s(sIm)}, {hex(BIG)}, {s(sIm)}")
    A(f"s_cselect_b32 {s(sRe)}, 4096, {s(sRe)}")

def gen_k3(A, name, opts):
    kernel_begin(A, name)
    done = A.newlabel("k3_done")
    F = ColFFT(A, opts)
    sYT, sZT, sWT = 8, 12, 16
    sWS = 28; sWave = 40; sCol, sRe, sIm, sWo = 30, 31, 32, 34
    A("s_cmp_ge_u32 s2, 129")
    A(f"s_cbranch_scc1 {done}")
    A(f"s_load_dwordx2 {s(sWS,2)}, s[0:1], 72")
    A("v_lshrrev_b32 v2, 6, v0")
    A(f"v_and_b32 {v(F.vL)}, 63, v0")
    A("s_nop 0")
    A(f"v_readfirstlane_b32 {s(sWave)}, v2")
    A("s_nop 3")
    A(f"s_lshl_b32 {s(sCol)}, s2, 2")
    A(f"s_add_u32 {s(sCol)}, {s(sCol)}, {s(sWave)}")
    col_params(A, sCol, sRe, sIm, sWo, 36)
    A("s_waitcnt lgkmcnt(0)")
    make_srd(A, sYT, sWS, sWS+1, 4 << 20, add=WS_YT)
    make_srd(A, sZT, sWS, sWS+1, 4 << 20, add=WS_ZT)
    make_srd(A, sWT, sWS, sWS+1, 513*8192, add=WS_WT)
    A(f"v_lshlrev_b32 {v(F.vOff)}, 4, {v(F.vL)}")
    F.load_P(sYT, sRe, sIm)
    F.gen_consts(sWave, 4)
    A(f"s_cmp_gt_u32 {s(sCol)}, 512")
    A(f"s_cbranch_scc1 {done}")
    F.column(sWT, sWo, sZT, sRe, sIm)
    A.label(done)
    A("s_endpgm")
```

```python
from asmlib import *
import math

def gen_trig_operand(A, dst_cos, dst_sin, nsteps, vIdx, vH4, mod, tmp, neg_sin=False, vPhase=None, dst_nsin=None, base=0):
    t0, t1, c0, c1, s0, s1 = tmp[:6]
    for u in range(nsteps):
        for p in range(4):
            for k, (tt, cc, ss) in enumerate(((t0, c0, s0), (t1, c1, s1))):
                e = 2*p + k
                b0 = base + 16*u + 8*(e//4) + (e % 4)
                if b0 <= 64:
                    A(f"v_mad_u32_u24 {v(tt)}, {b0}, {v(vIdx)}, {v(vH4)}")
                else:
                    A(f"v_mul_u32_u24 {v(tt)}, {b0}, {v(vIdx)}")
                    A(f"v_add_u32 {v(tt)}, {v(tt)}, {v(vH4)}")
                A(f"v_and_b32 {v(tt)}, {mod-1}, {v(tt)}")
                A(f"v_cvt_f32_u32 {v(tt)}, {v(tt)}")
                if vPhase is None:
                    A(f"v_mul_f32 {v(tt)}, {f32(1.0/mod)}, {v(tt)}")
                else:
                    A(f"v_fmamk_f32 {v(tt)}, {v(tt)}, {f32(1.0/mod)}, {v(vPhase)}")
            A(f"v_cos_f32 {v(c0)}, {v(t0)}")
            A(f"v_cos_f32 {v(c1)}, {v(t1)}")
            A(f"v_sin_f32 {v(s0)}, {v(t0)}")
            A(f"v_sin_f32 {v(s1)}, {v(t1)}")
            A(f"v_cvt_pk_bf16_f32 {v(dst_cos + u*4 + p)}, {v(c0)}, {v(c1)}")
            if dst_sin is not None:
                if neg_sin:
                    A(f"v_cvt_pk_bf16_f32 {v(dst_sin + u*4 + p)}, -{v(s0)}, -{v(s1)}")
                else:
                    A(f"v_cvt_pk_bf16_f32 {v(dst_sin + u*4 + p)}, {v(s0)}, {v(s1)}")
            if dst_nsin is not None:
                A(f"v_cvt_pk_bf16_f32 {v(dst_nsin + u*4 + p)}, -{v(s0)}, -{v(s1)}")

def gen_twiddle(A, dst_cos, dst_sin, vIdx, vH4, mod, tmp, base=0, neg_sin=False, scale=None):
    t0 = tmp
    for r in range(16):
        b0 = base + 8*(r//4) + (r % 4)
        if b0 <= 64:
            A(f"v_mad_u32_u24 {v(t0)}, {b0}, {v(vIdx)}, {v(vH4)}")
        else:
            A(f"v_mul_u32_u24 {v(t0)}, {b0}, {v(vIdx)}")
            A(f"v_add_u32 {v(t0)}, {v(t0)}, {v(vH4)}")
        A(f"v_and_b32 {v(t0)}, {mod-1}, {v(t0)}")
        A(f"v_cvt_f32_u32 {v(t0)}, {v(t0)}")
        A(f"v_mul_f32 {v(t0)}, {f32((-1.0 if neg_sin else 1.0)/mod)}, {v(t0)}")
        A(f"v_cos_f32 {v(dst_cos + r)}, {v(t0)}")
        A(f"v_sin_f32 {v(dst_sin + r)}, {v(t0)}")
    if scale is not None:
        A("s_nop 0")
        for r in range(16):
            A(f"v_mul_f32 {v(dst_cos + r)}, {f32(scale)}, {v(dst_cos + r)}")
            A(f"v_mul_f32 {v(dst_sin + r)}, {f32(scale)}, {v(dst_sin + r)}")

def wave_allreduce_add(A, x, t):
    A("s_nop 1")
    A(f"v_add_f32_dpp {v(x)}, {v(x)}, {v(x)} quad_perm:[1,0,3,2] row_mask:0xf bank_mask:0xf")
    A("s_nop 1")
    A(f"v_add_f32_dpp {v(x)}, {v(x)}, {v(x)} quad_perm:[2,3,0,1] row_mask:0xf bank_mask:0xf")
    A("s_nop 1")
    A(f"v_add_f32_dpp {v(x)}, {v(x)}, {v(x)} row_half_mirror row_mask:0xf bank_mask:0xf")
    A("s_nop 1")
    A(f"v_add_f32_dpp {v(x)}, {v(x)}, {v(x)} row_mirror row_mask:0xf bank_mask:0xf")
    A(f"v_mov_b32 {v(t)}, {v(x)}")
    A("s_nop 1")
    A(f"v_permlane16_swap_b32 {v(x)}, {v(t)}")
    A("s_nop 0")
    A(f"v_add_f32 {v(x)}, {v(x)}, {v(t)}")
    A(f"v_mov_b32 {v(t)}, {v(x)}")
    A("s_nop 1")
    A(f"v_permlane32_swap_b32 {v(x)}, {v(t)}")
    A("s_nop 0")
    A(f"v_add_f32 {v(x)}, {v(x)}, {v(t)}")

def wave_allreduce_add2(A, xs, ts):
    def each(fmt, nop):
        for x, t in zip(xs, ts):
            A(fmt.format(x=v(x), t=v(t)))
        if len(xs) < nop + 1:
            A(f"s_nop {nop - len(xs) + 0}") if nop - len(xs) >= 0 else None
    A("s_nop 1")
    for pat in ("quad_perm:[1,0,3,2]", "quad_perm:[2,3,0,1]", "row_half_mirror", "row_mirror"):
        for x in xs:
            A(f"v_add_f32_dpp {v(x)}, {v(x)}, {v(x)} {pat} row_mask:0xf bank_mask:0xf")
        A("s_nop 1")
    for op in ("v_permlane16_swap_b32", "v_permlane32_swap_b32"):
        for x, t in zip(xs, ts): A(f"v_mov_b32 {v(t)}, {v(x)}")
        A("s_nop 1")
        for x, t in zip(xs, ts): A(f"{op} {v(x)}, {v(t)}")
        A("s_nop 1")
        for x, t in zip(xs, ts): A(f"v_add_f32 {v(x)}, {v(x)}, {v(t)}")

def round_bf16(A, x):
    A(f"v_cvt_pk_bf16_f32 {v(x)}, {v(x)}, {v(x)}")
    A(f"v_and_b32 {v(x)}, 0xffff0000, {v(x)}")
```

```python
from asmlib import *
import math

from layout import *

def stamp(A, opts, i):
    if opts.get("stamp"):
        A(f"s_memtime s[{56+4*i}:{57+4*i}]")
        A(f"s_memrealtime s[{58+4*i}:{59+4*i}]")
def stamp_store(A, opts, n, sWS, vtmp, sWave):
    if not opts.get("stamp"): return
    A("s_waitcnt lgkmcnt(0)")
    make_srd(A, 48, sWS, sWS+1, 0x100000, add=WS_DBG)
    A(f"s_lshl_b32 s52, s2, 11")
    A(f"s_lshl_b32 s53, {s(sWave)}, 8")
    A(f"s_add_u32 s52, s52, s53")
    A(f"v_mov_b32 {v(vtmp)}, s52")
    for i in range(n):
        for j in range(4):
            A(f"v_mov_b32 {v(vtmp+2+j)}, s{56+4*i+j}")
        A(f"buffer_store_dwordx4 {v(vtmp+2,4)}, {v(vtmp)}, s[48:51], 0 offen offset:{16*i}")
        A("s_nop 1")

class GemmCore:
    def __init__(self, A, T, NWM, NWN, TM, TN, nseg, NS, ksteps, ldx, ldw, opts):
        self.A = A; self.T = T; self.NWM = NWM; self.NWN = NWN; self.TM = TM; self.TN = TN
        self.nseg = nseg; self.NS = NS; self.ksteps = ksteps; self.ldx = ldx; self.ldw = ldw; self.opts = opts
        self.NW = NWM*NWN
        self.BM = NWM*TM*T; self.BN = NWN*TN*T
        assert self.BN == nseg*128
        self.XB = self.BM*64
        self.WB = nseg*32*256
        self.SLOT = self.XB + self.WB
        self.XI = self.XB//1024//self.NW
        self.WI = self.WB//1024//self.NW
        assert self.XI*self.NW*1024 == self.XB and self.WI*self.NW*1024 == self.WB
        assert self.XI <= 4 and self.WI <= 4
        self.KK = 2 if T == 32 else 1
        self.accn = 16 if T == 32 else 4
        self.nacc = TM*TN*self.accn
        self.opn = (TM+TN)*4*self.KK
    def acc(self, i, j):
        return self.ACC + (i*self.TN + j)*self.accn
    def accs(self, i, j):
        r = self.acc(i, j)
        if r >= 256: return a(r-256, self.accn)
        return v(r, self.accn)
    def opX(self, rs, kk, i): return self.R[rs] + (kk*(self.TM+self.TN) + i)*4
    def opW(self, rs, kk, j): return self.R[rs] + (kk*(self.TM+self.TN) + self.TM + j)*4
    def rn(self, r, n):
        if r >= 256: return a(r-256, n)
        return v(r, n)

    def setup(self, sregs, vbase, accbase, opbase):
        A = self.A; T = self.T
        self.__dict__.update(sregs)
        self.ACC = accbase
        self.R = [opbase, opbase + self.opn]
        nsg = (self.NS*self.SLOT + 65535)//65536
        self.nsg = nsg
        p = vbase
        self.vXa = [[p + kk*nsg + g for g in range(nsg)] for kk in range(self.KK)]; p += self.KK*nsg
        self.vWa = [p + g for g in range(nsg)]; p += nsg
        self.vDx = [p + i for i in range(self.XI)]; p += self.XI
        self.vDw = [p + i for i in range(self.WI)]; p += self.WI
        t0, t1, t2, t3 = p, p+1, p+2, p+3
        self.vend = p
        vL = self.vL; sTmp = self.sTmp; sWave = self.sWave
        for i in range(self.WI):
            A(f"s_mul_i32 {s(sTmp)}, {s(sWave)}, {self.WI}")
            A(f"s_add_u32 {s(sTmp)}, {s(sTmp)}, {i}")
            A(f"s_and_b32 {s(sTmp)}, {s(sTmp)}, 7")
            A(f"v_lshrrev_b32 {v(t0)}, 4, {v(vL)}")
            if T == 32:
                A(f"v_lshlrev_b32 {v(t1)}, 2, {v(t0)}")
            else:
                A(f"s_lshl_b32 {s(sTmp+1)}, {s(sTmp)}, 1")
                A(f"s_and_b32 {s(sTmp+1)}, {s(sTmp+1)}, 4")
                A(f"v_or_b32 {v(t1)}, {s(sTmp+1)}, {v(t0)}")
                A(f"v_lshlrev_b32 {v(t1)}, 1, {v(t1)}")
            A(f"v_and_b32 {v(t2)}, 15, {v(vL)}")
            A(f"v_xor_b32 {v(t2)}, {v(t2)}, {v(t1)}")
            A(f"v_lshlrev_b32 {v(t2)}, 4, {v(t2)}")
            A(f"s_lshl_b32 {s(sTmp)}, {s(sTmp)}, 2")
            A(f"v_add_u32 {v(t0)}, {s(sTmp)}, {v(t0)}")
            A(f"v_mul_u32_u24 {v(t0)}, {self.ldw}, {v(t0)}")
            A(f"v_add_u32 {v(t0)}, {v(t0)}, {v(t2)}")
            A(f"s_add_u32 {s(sTmp)}, {s(self.sCol0)}, {4096 - 1024*i}")
            A(f"v_add_u32 {v(self.vDw[i])}, {s(sTmp)}, {v(t0)}")
        kst = self.ldx // 64
        A(f"v_lshlrev_b32 {v(t0)}, 4, {v(vL)}")
        A(f"s_lshr_b32 {s(sTmp)}, {s(self.sRow0)}, 4")
        A(f"s_mul_i32 {s(sTmp+1)}, {s(sWave)}, {self.XI}")
        A(f"s_add_u32 {s(sTmp)}, {s(sTmp)}, {s(sTmp+1)}")
        A(f"s_mul_i32 {s(sTmp)}, {s(sTmp)}, {kst*1024}")
        A(f"v_add_u32 {v(t0)}, {s(sTmp)}, {v(t0)}")
        for i in range(self.XI):
            A(f"v_add_u32 {v(self.vDx[i])}, {hex(self.xoff + i*kst*1024 - 1024*i)}, {v(t0)}")
        if T == 32:
            A(f"v_and_b32 {v(t0)}, 31, {v(vL)}")
            A(f"v_lshlrev_b32 {v(t0)}, 6, {v(t0)}")
            A(f"v_lshrrev_b32 {v(t1)}, 5, {v(vL)}")
            A(f"v_lshrrev_b32 {v(t2)}, 2, {v(vL)}")
            A(f"v_and_b32 {v(t2)}, 3, {v(t2)}")
            A(f"v_xor_b32 {v(t2)}, {v(t2)}, {v(t1)}")
            A(f"v_lshlrev_b32 {v(t2)}, 4, {v(t2)}")
            A(f"v_add_u32 {v(t0)}, {v(t0)}, {v(t2)}")
            A(f"s_mul_i32 {s(sTmp)}, {s(self.sWm)}, {self.TM*32*64}")
            A(f"v_add_u32 {v(self.vXa[0][0])}, {s(sTmp)}, {v(t0)}")
            A(f"v_xor_b32 {v(self.vXa[1][0])}, 32, {v(self.vXa[0][0])}")
        else:
            A(f"v_and_b32 {v(t0)}, 15, {v(vL)}")
            A(f"v_lshlrev_b32 {v(t0)}, 6, {v(t0)}")
            A(f"v_lshrrev_b32 {v(t1)}, 4, {v(vL)}")
            A(f"v_lshrrev_b32 {v(t2)}, 2, {v(vL)}")
            A(f"v_and_b32 {v(t2)}, 2, {v(t2)}")
            A(f"v_xor_b32 {v(t2)}, {v(t2)}, {v(t1)}")
            A(f"v_lshlrev_b32 {v(t2)}, 4, {v(t2)}")
            A(f"v_add_u32 {v(t0)}, {v(t0)}, {v(t2)}")
            A(f"s_mul_i32 {s(sTmp)}, {s(self.sWm)}, {self.TM*16*64}")
            A(f"v_add_u32 {v(self.vXa[0][0])}, {s(sTmp)}, {v(t0)}")
        for kk in range(self.KK):
            for sg in range(1, nsg):
                A(f"v_add_u32 {v(self.vXa[kk][sg])}, {hex(65536*sg)}, {v(self.vXa[kk][0])}")
        tps = self.TN // self.nseg
        self.tps = tps
        A(f"v_lshrrev_b32 {v(t2)}, 2, {v(vL)}")
        A(f"v_and_b32 {v(t2)}, 3, {v(t2)}")
        if T == 32:
            assert tps in (1, 2, 4)
            A(f"v_lshrrev_b32 {v(t1)}, 5, {v(vL)}")
            A(f"v_lshlrev_b32 {v(t0)}, 11, {v(t1)}")
            A(f"v_lshlrev_b32 {v(t3)}, 8, {v(t2)}")
            A(f"v_add_u32 {v(t0)}, {v(t0)}, {v(t3)}")
            A(f"s_mul_i32 {s(sTmp)}, {s(self.sWn)}, {tps}")
            A(f"v_xor_b32 {v(t3)}, {s(sTmp)}, {v(t2)}")
            A(f"v_lshlrev_b32 {v(t3)}, 6, {v(t3)}")
            A(f"v_add_u32 {v(t0)}, {v(t0)}, {v(t3)}")
            A(f"v_and_b32 {v(t3)}, 1, {v(vL)}")
            A(f"v_lshlrev_b32 {v(t3)}, 5, {v(t3)}")
            A(f"v_add_u32 {v(t0)}, {v(t0)}, {v(t3)}")
            A(f"v_and_b32 {v(t3)}, 16, {v(vL)}")
            A(f"v_add_u32 {v(t0)}, {v(t0)}, {v(t3)}")
            A(f"v_and_b32 {v(t3)}, 2, {v(vL)}")
            A(f"v_lshlrev_b32 {v(t3)}, 2, {v(t3)}")
            A(f"v_add_u32 {v(t0)}, {v(t0)}, {v(t3)}")
            self.wxor = 64
        else:
            A(f"v_lshrrev_b32 {v(t1)}, 4, {v(vL)}")
            A(f"v_lshlrev_b32 {v(t0)}, 11, {v(t1)}")
            A(f"v_lshlrev_b32 {v(t3)}, 8, {v(t2)}")
            A(f"v_add_u32 {v(t0)}, {v(t0)}, {v(t3)}")
            A(f"v_and_b32 {v(t3)}, 1, {v(t1)}")
            A(f"v_lshlrev_b32 {v(t3)}, 2, {v(t3)}")
            A(f"v_or_b32 {v(t3)}, {v(t3)}, {v(t2)}")
            A(f"s_mul_i32 {s(sTmp)}, {s(self.sWn)}, {tps}")
            A(f"v_xor_b32 {v(t3)}, {s(sTmp)}, {v(t3)}")
            A(f"v_lshlrev_b32 {v(t3)}, 5, {v(t3)}")
            A(f"v_add_u32 {v(t0)}, {v(t0)}, {v(t3)}")
            A(f"v_and_b32 {v(t3)}, 3, {v(vL)}")
            A(f"v_lshlrev_b32 {v(t3)}, 3, {v(t3)}")
            A(f"v_add_u32 {v(t0)}, {v(t0)}, {v(t3)}")
            self.wxor = 32
        self.vWj = [[None]*nsg for _ in range(tps)]
        q = self.vend
        A(f"v_add_u32 {v(self.vWa[0])}, {hex(self.XB)}, {v(t0)}")
        self.vWj[0][0] = self.vWa[0]
        for sg in range(1, nsg):
            A(f"v_add_u32 {v(self.vWa[sg])}, {hex(65536*sg)}, {v(self.vWa[0])}")
            self.vWj[0][sg] = self.vWa[sg]
        for jt in range(1, tps):
            for sg in range(nsg):
                A(f"v_xor_b32 {v(q)}, {jt*self.wxor}, {v(self.vWa[sg])}")
                self.vWj[jt][sg] = q; q += 1
        self.vend = q
        A(f"s_mul_i32 {s(self.sM0x)}, {s(sWave)}, {1024*self.XI}")
        A(f"s_mul_i32 {s(self.sM0w)}, {s(sWave)}, {1024*self.WI}")
        A(f"s_add_u32 {s(self.sM0w)}, {s(self.sM0w)}, {self.XB}")

    def dma(self, slot):
        o = []
        o.append(f"s_add_u32 m0, {s(self.sM0w)}, {hex(slot*self.SLOT)}")
        o.append("s_nop 0")
        for i in range(self.WI):
            o.append(f"buffer_load_dwordx4 {v(self.vDw[i])}, {s(self.sW,4)}, {s(self.sKw)} offen offset:{1024*i} lds")
        o.append(f"s_add_u32 m0, {s(self.sM0x)}, {hex(slot*self.SLOT)}")
        o.append(f"s_add_u32 {s(self.sKw)}, {s(self.sKw)}, {32*self.ldw}")
        for i in range(self.XI):
            o.append(f"buffer_load_dwordx4 {v(self.vDx[i])}, {s(self.sX,4)}, {s(self.sKx)} offen offset:{1024*i} lds")
        o.append(f"s_add_u32 {s(self.sKx)}, {s(self.sKx)}, 1024")
        return o
    def reads(self, slot, rs):
        sg, so = divmod(slot*self.SLOT, 65536)
        T = self.T
        out = []
        for kk in range(self.KK):
            X = [f"ds_read_b128 {self.rn(self.opX(rs,kk,i),4)}, {v(self.vXa[kk][sg])} offset:{so + i*T*64}" for i in range(self.TM)]
            W = []
            for j in range(self.TN):
                seg, jt = divmod(j, self.tps)
                for e in range(2):
                    off = so + seg*8192 + (16*kk + 4*e)*256
                    W.append(f"ds_read_b64_tr_b16 {self.rn(self.opW(rs,kk,j)+2*e,2)}, {v(self.vWj[jt][sg])} offset:{off}")
            out += W + X
        for o in out:
            off = int(o.split("offset:")[1]); assert off < 65536
        return out
    def mfmas(self, rs, first=False):
        out = []
        op = "v_mfma_f32_32x32x16_bf16" if self.T == 32 else "v_mfma_f32_16x16x32_bf16"
        order = self.opts.get("order", "xs")
        for kk in range(self.KK):
            if order == "xs":
                ij = [(i, j) for i in range(self.TM) for j in range(self.TN)]
            elif order == "ws":
                ij = [(i, j) for j in range(self.TN) for i in range(self.TM)]
            elif order == "snake":
                ij = [(i, j if i % 2 == 0 else self.TN-1-j) for i in range(self.TM) for j in range(self.TN)]
            for (i, j) in ij:
                c = "0" if (first and kk == 0) else self.accs(i, j)
                out.append(f"{op} {self.accs(i,j)}, {self.rn(self.opW(rs,kk,j),4)}, {self.rn(self.opX(rs,kk,i),4)}, {c}")
        return out

    def mainloop(self):
        A = self.A; NS = self.NS; KS = self.ksteps; opts = self.opts
        nd = self.XI + self.WI
        for t in range(NS):
            for ins in self.dma(t): A(ins)
        A(f"s_waitcnt vmcnt({nd*(NS-1)})")
        A(f"s_barrier")
        stamp(A, opts, 1)
        for ins in self.reads(0, 0): A(ins)
        if opts.get("no_reads"):
            A(f"s_waitcnt vmcnt(0)"); A("s_barrier")
            for ins in self.reads(1, 1): A(ins)
        if opts.get("prio") is not None:
            lp = A.newlabel("prio")
            A(f"s_cmp_ge_u32 {s(self.sWave)}, {self.NW//2}")
            A(f"s_cbranch_scc{opts.get('prio')} {lp}")
            A(f"s_setprio 1")
            A.label(lp)
        def step(t, first=False, do_dma=True, last=False, vm=None):
            slot = t % NS; rs = t % 2
            mf = self.mfmas(rs, first)
            if opts.get("no_mfma"): mf = ["s_nop 0"]*len(mf)
            n = len(mf)
            if last:
                A(f"s_waitcnt lgkmcnt(0)")
                for ins in mf: A(ins)
                return
            if opts.get("no_dma"): do_dma = False; vm = 0
            A(f"s_waitcnt vmcnt({vm}) lgkmcnt(0)")
            if not opts.get("no_bar"): A(f"s_barrier")
            fl = []; sl = []
            if not opts.get("no_reads"):
                rd = self.reads((t+1) % NS, 1-rs)
                r0, r1 = opts.get("rspan", (0.0, 0.6))
                for q, ins in enumerate(rd):
                    fl.append(ins); sl.append(int((r0 + (r1-r0)*q/len(rd))*n))
            if do_dma:
                dm = self.dma(slot)
                d0, d1 = opts.get("dspan", (0.1, 0.9))
                for q, ins in enumerate(dm):
                    fl.append(ins); sl.append(int((d0 + (d1-d0)*q/len(dm))*n))
            for ins in interleave(mf, fl, sl): A(ins)
        U = NS if NS % 2 == 0 else 2*NS
        ndma = KS - NS
        step(0, first=True, vm=nd*(NS-2))
        t = 1
        nl = (ndma - 1)//U
        if opts.get("tl"): nl = 0
        if nl > 0:
            lp = A.newlabel("loop")
            A(f"s_mov_b32 {s(self.sLoop)}, {nl}")
            A.label(lp)
            for j in range(U):
                step(t+j, vm=nd*(NS-2))
            A(f"s_sub_u32 {s(self.sLoop)}, {s(self.sLoop)}, 1")
            A(f"s_cmp_lg_u32 {s(self.sLoop)}, 0")
            A(f"s_cbranch_scc1 {lp}")
            t += nl*U
        while t < KS:
            lastissued = min(t+NS-1, KS-1)
            vm = nd*max(0, lastissued-(t+1))
            if opts.get("tl") and t % 4 == 0: stamp(A, opts, 3 + t//4)
            step(t, do_dma=(t < ndma), last=(t == KS-1), vm=vm)
            t += 1

def gen_gemm1(A, name, cfg, opts):
    T = cfg["T"]; NWM = cfg["NWM"]; NWN = cfg["NWN"]
    TM = 256//NWM//T; TN = 256//NWN//T
    G = GemmCore(A, T, NWM, NWN, TM, TN, 2, cfg["NS"], 32, 2048, 7168, opts)
    NW = NWM*NWN
    kernel_begin(A, name)
    sX, sW, sH = 8, 12, 20
    sWS = 24; sTmp = 26
    sWave, sWm, sWn = 30, 31, 32
    sMt, sNt = 37, 38
    done = A.newlabel("g1_done")
    A(f"s_cmp_ge_u32 s2, 256")
    A(f"s_cbranch_scc1 {done}")
    stamp(A, opts, 0)
    A(f"s_load_dwordx4 s[4:7], s[0:1], 32")
    A(f"s_load_dwordx2 {s(sWS,2)}, s[0:1], 72")
    A(f"s_and_b32 {s(sTmp)}, s2, 7")
    A(f"s_lshr_b32 {s(sTmp+1)}, s2, 3")
    A(f"s_cmp_ge_u32 {s(sTmp+1)}, {opts.get('maxidx', 28)}")
    A(f"s_cbranch_scc1 {done}")
    A(f"s_cmp_ge_u32 {s(sTmp)}, {opts.get('maxxcd', 8)}")
    A(f"s_cbranch_scc1 {done}")
    A(f"s_and_b32 {s(sMt)}, {s(sTmp)}, 1")
    A(f"s_lshl_b32 {s(sMt)}, {s(sMt)}, 2")
    A(f"s_and_b32 {s(sTmp+2)}, {s(sTmp+1)}, 3")
    A(f"s_add_u32 {s(sMt)}, {s(sMt)}, {s(sTmp+2)}")
    A(f"s_lshr_b32 {s(sNt)}, {s(sTmp)}, 1")
    A(f"s_mul_i32 {s(sNt)}, {s(sNt)}, 7")
    A(f"s_lshr_b32 {s(sTmp+2)}, {s(sTmp+1)}, 2")
    A(f"s_add_u32 {s(sNt)}, {s(sNt)}, {s(sTmp+2)}")
    if NW == 8:
        accbase = 0; opbase = 128; vbase = 128 + 2*G.opn
    else:
        accbase = 256; opbase = 0; vbase = 2*G.opn
    vL = vbase; vbase += 1
    A(f"v_lshrrev_b32 {v(vbase)}, 6, v0")
    A(f"v_and_b32 {v(vL)}, 63, v0")
    A(f"s_nop 0")
    A(f"v_readfirstlane_b32 {s(sWave)}, {v(vbase)}")
    A(f"s_nop 3")
    lg = int(math.log2(NWN))
    A(f"s_lshr_b32 {s(sWm)}, {s(sWave)}, {lg}")
    A(f"s_and_b32 {s(sWn)}, {s(sWave)}, {NWN-1}")
    A(f"s_waitcnt lgkmcnt(0)")
    make_srd(A, sX, sWS, sWS+1, WS_XN + 2048*1024*2)
    A(f"s_cmp_ge_u32 {s(sWave)}, {NW//2}")
    A(f"s_cselect_b32 s4, s6, s4")
    A(f"s_cselect_b32 s5, s7, s5")
    make_srd(A, sW, 4, 5, 1024*3584*2 + 4096, add=-4096)
    make_srd(A, sH, sWS, sWS+1, 2048*3584*2, add=WS_H)
    sRow0, sCol0 = 39, 40
    A(f"s_lshl_b32 {s(sRow0)}, {s(sMt)}, 8")
    A(f"s_lshl_b32 {s(sCol0)}, {s(sNt)}, 8")
    G.setup(dict(sX=sX, sW=sW, sWave=sWave, sWm=sWm, sWn=sWn, sRow0=sRow0, sCol0=sCol0, xoff=WS_XN, vL=vL, sTmp=sTmp,
                 sM0x=33, sM0w=34, sKx=35, sKw=36, sLoop=41), vbase, accbase, opbase)
    A(f"s_mov_b32 {s(G.sKx)}, 0")
    A(f"s_mov_b32 {s(G.sKw)}, 0")
    G.mainloop()
    stamp(A, opts, 2)
    if not opts.get("no_epi"):
        A(f"s_nop 15")
        E = opbase
        e0, e1, vSt, vK0 = E, E+1, E+2, E+3
        Tm = E+4; P = E+20; GB = E+28; UB = E+44
        assert T == 16
        tps = G.tps
        A(f"v_and_b32 {v(e0)}, 15, {v(vL)}")
        A(f"v_lshlrev_b32 {v(e0)}, 6, {v(e0)}")
        A(f"v_lshrrev_b32 {v(e1)}, 5, {v(vL)}")
        A(f"v_lshrrev_b32 {v(vSt)}, 3, {v(vL)}")
        A(f"v_and_b32 {v(vSt)}, 2, {v(vSt)}")
        A(f"v_or_b32 {v(e1)}, {v(e1)}, {v(vSt)}")
        A(f"v_lshrrev_b32 {v(vSt)}, 2, {v(vL)}")
        A(f"v_and_b32 {v(vSt)}, 2, {v(vSt)}")
        A(f"v_xor_b32 {v(e1)}, {v(e1)}, {v(vSt)}")
        A(f"v_lshlrev_b32 {v(e1)}, 4, {v(e1)}")
        A(f"v_add_u32 {v(e0)}, {v(e0)}, {v(e1)}")
        A(f"s_lshl_b32 {s(sTmp)}, {s(sMt)}, 4")
        A(f"s_mul_i32 {s(sTmp+1)}, {s(sWm)}, {TM}")
        A(f"s_add_u32 {s(sTmp)}, {s(sTmp)}, {s(sTmp+1)}")
        A(f"s_mul_i32 {s(sTmp)}, {s(sTmp)}, 112")
        A(f"s_lshl_b32 {s(sTmp+1)}, {s(sNt)}, 2")
        A(f"s_add_u32 {s(sTmp)}, {s(sTmp)}, {s(sTmp+1)}")
        A(f"s_mul_i32 {s(sTmp+1)}, {s(sWn)}, {tps//2}")
        A(f"s_add_u32 {s(sTmp)}, {s(sTmp)}, {s(sTmp+1)}")
        A(f"s_lshl_b32 {s(sTmp)}, {s(sTmp)}, 10")
        A(f"v_add_u32 {v(vSt)}, {s(sTmp)}, {v(e0)}")
        k0 = -2.0*math.log2(math.e)*math.sqrt(2.0/math.pi)
        k1 = k0*0.044715
        sK1, sRow = 42, 43
        A(f"s_mov_b32 {s(sK1)}, {f32(k1)}")
        A(f"v_mov_b32 {v(vK0)}, {f32(k0)}")
        groups = []
        if T == 32:
            for i in range(TM):
                for jt in range(tps):
                    groups.append((i, jt, [G.acc(i, jt)+r for r in range(16)], [G.acc(i, tps+jt)+r for r in range(16)]))
        else:
            for i in range(0, TM, 2):
                for jt in range(0, tps, 2):
                    gr = []; ur = []
                    for ii in (i, i+1):
                        for jj in (jt, jt+1):
                            gr += [G.acc(ii, jj)+r for r in range(4)]
                            ur += [G.acc(ii, tps+jj)+r for r in range(4)]
                    groups.append((i, jt, gr, ur))
        for gi, (i, jt, gr, ur) in enumerate(groups):
            if accbase >= 256:
                for r in range(16):
                    A(f"v_accvgpr_read_b32 {v(GB+r)}, {a(gr[r]-256)}")
                    A(f"v_accvgpr_read_b32 {v(UB+r)}, {a(ur[r]-256)}")
                gr = [GB+r for r in range(16)]; ur = [UB+r for r in range(16)]
            for half in range(2):
                rr = range(half*8, half*8+8)
                for r in rr: A(f"v_mul_f32 {v(Tm+r)}, {v(gr[r])}, {v(gr[r])}")
                for r in rr: A(f"v_fma_f32 {v(Tm+r)}, {v(Tm+r)}, {s(sK1)}, {v(vK0)}")
                for r in rr: A(f"v_mul_f32 {v(Tm+r)}, {v(Tm+r)}, {v(gr[r])}")
                for r in rr: A(f"v_exp_f32 {v(Tm+r)}, {v(Tm+r)}")
                for r in rr: A(f"v_mul_f32 {v(ur[r])}, {v(ur[r])}, {v(gr[r])}")
                for r in rr: A(f"v_add_f32 {v(Tm+r)}, 1.0, {v(Tm+r)}")
                for r in rr: A(f"v_rcp_f32 {v(Tm+r)}, {v(Tm+r)}")
                A("s_nop 0")
                for r in rr: A(f"v_mul_f32 {v(Tm+r)}, {v(Tm+r)}, {v(ur[r])}")
                for r in range(half*8, half*8+8, 2):
                    A(f"v_cvt_pk_bf16_f32 {v(P + r//2)}, {v(Tm+r)}, {v(Tm+r+1)}")
            if T == 32:
                A(f"s_mov_b32 {s(sRow)}, {i*32*7168 + jt*64}")
                for uu in range(2):
                    A(f"buffer_store_dwordx4 {v(P+4*uu,4)}, {v(vSt)}, {s(sH,4)}, {s(sRow)} offen offset:{uu*16}")
            else:
                A("s_nop 1")
                for ii in range(2):
                    b = P + 4*ii
                    A(f"v_permlane16_swap_b32 {v(b)}, {v(b+2)}")
                    A(f"v_permlane16_swap_b32 {v(b+1)}, {v(b+3)}")
                for ii in range(2):
                    A(f"s_mov_b32 {s(sRow)}, {((i+ii)*112 + jt//2)*1024}")
                    A(f"buffer_store_dwordx4 {v(P+4*ii,4)}, {v(vSt)}, {s(sH,4)}, {s(sRow)} offen")
            A("s_nop 1")
    if opts.get("stamp"):
        A("s_waitcnt vmcnt(0)")
        stamp(A, opts, 3)
        stamp_store(A, opts, 11, sWS, opbase, sWave)
    A.label(done)
    A("s_endpgm")
    return G

def gen_gemm2(A, name, cfg, opts):
    T = 16; NWM = cfg["NWM"]; NWN = cfg["NWN"]; BM = cfg["BM"]
    TM = BM//NWM//T; TN = 128//NWN//T
    G = GemmCore(A, T, NWM, NWN, TM, TN, 1, cfg["NS"], 112, 7168, 2048, opts)
    NW = NWM*NWN
    nmt = 2048//BM
    nwg = nmt*8
    kernel_begin(A, name)
    sX, sW, sO, sXY = 8, 12, 16, 20
    sWS = 24; sTmp = 26
    sWave, sWm, sWn = 30, 31, 32
    sMt, sNt = 37, 38
    done = A.newlabel("g2_done")
    A(f"s_cmp_ge_u32 s2, {nwg}")
    A(f"s_cbranch_scc1 {done}")
    stamp(A, opts, 0)
    A(f"s_load_dwordx4 s[4:7], s[0:1], 48")
    A(f"s_load_dwordx2 {s(sWS,2)}, s[0:1], 72")
    A(f"s_and_b32 {s(sTmp)}, s2, 7")
    A(f"s_lshr_b32 {s(sTmp+1)}, s2, 3")
    A(f"s_and_b32 {s(sNt)}, {s(sTmp)}, 1")
    A(f"s_lshl_b32 {s(sNt)}, {s(sNt)}, 2")
    A(f"s_and_b32 {s(sTmp+2)}, {s(sTmp+1)}, 3")
    A(f"s_add_u32 {s(sNt)}, {s(sNt)}, {s(sTmp+2)}")
    A(f"s_lshr_b32 {s(sMt)}, {s(sTmp)}, 1")
    A(f"s_mul_i32 {s(sMt)}, {s(sMt)}, {nmt//4}")
    A(f"s_lshr_b32 {s(sTmp+2)}, {s(sTmp+1)}, 2")
    A(f"s_add_u32 {s(sMt)}, {s(sMt)}, {s(sTmp+2)}")
    accbase = 0; opbase = G.nacc; XYR = opbase + 2*G.opn; nxy = TM*TN*2
    vbase = XYR + nxy
    vL = vbase; vSt = vbase+1; vbase += 2
    A(f"v_lshrrev_b32 {v(vbase)}, 6, v0")
    A(f"v_and_b32 {v(vL)}, 63, v0")
    A(f"s_nop 0")
    A(f"v_readfirstlane_b32 {s(sWave)}, {v(vbase)}")
    A(f"s_nop 3")
    lg = int(math.log2(NWN))
    A(f"s_lshr_b32 {s(sWm)}, {s(sWave)}, {lg}")
    A(f"s_and_b32 {s(sWn)}, {s(sWave)}, {NWN-1}")
    sRow0, sCol0 = 39, 40
    A(f"s_mul_i32 {s(sRow0)}, {s(sMt)}, {BM}")
    A(f"s_lshl_b32 {s(sCol0)}, {s(sNt)}, 8")
    e0, e1 = vbase, vbase+1
    A(f"v_and_b32 {v(e0)}, 15, {v(vL)}")
    A(f"s_mul_i32 {s(sTmp)}, {s(sWm)}, {TM*16}")
    A(f"s_add_u32 {s(sTmp)}, {s(sTmp)}, {s(sRow0)}")
    A(f"v_add_u32 {v(e0)}, {s(sTmp)}, {v(e0)}")
    A(f"v_lshlrev_b32 {v(e0)}, 11, {v(e0)}")
    A(f"v_lshrrev_b32 {v(e1)}, 5, {v(vL)}")
    A(f"v_lshlrev_b32 {v(e1)}, 4, {v(e1)}")
    A(f"v_add_u32 {v(e0)}, {v(e0)}, {v(e1)}")
    A(f"v_and_b32 {v(e1)}, 16, {v(vL)}")
    A(f"v_lshlrev_b32 {v(e1)}, 1, {v(e1)}")
    A(f"v_add_u32 {v(e0)}, {v(e0)}, {v(e1)}")
    A(f"s_mul_i32 {s(sTmp)}, {s(sWn)}, {TN*32}")
    A(f"s_add_u32 {s(sTmp)}, {s(sTmp)}, {s(sCol0)}")
    A(f"v_add_u32 {v(vSt)}, {s(sTmp)}, {v(e0)}")
    A(f"s_waitcnt lgkmcnt(0)")
    make_srd(A, sX, sWS, sWS+1, WS_H + 2048*3584*2)
    make_srd(A, sW, 4, 5, 3584*1024*2 + 4096, add=-4096)
    make_srd(A, sO, 6, 7, 2048*1024*2)
    make_srd(A, sXY, sWS, sWS+1, 2048*1024*2, add=WS_XY)
    G.setup(dict(sX=sX, sW=sW, sWave=sWave, sWm=sWm, sWn=sWn, sRow0=sRow0, sCol0=sCol0, xoff=WS_H, vL=vL, sTmp=sTmp,
                 sM0x=33, sM0w=34, sKx=35, sKw=36, sLoop=41), vbase, accbase, opbase)
    A(f"s_mov_b32 {s(G.sKx)}, 0")
    A(f"s_mov_b32 {s(G.sKw)}, 0")
    sRow = 43
    for i in range(TM):
        A(f"s_mov_b32 {s(sRow+i)}, {i*16*2048}")
    for i in range(TM):
        for jp in range(TN//2):
            A(f"buffer_load_dwordx4 {v(XYR + (i*(TN//2)+jp)*4, 4)}, {v(vSt)}, {s(sXY,4)}, {s(sRow+i)} offen offset:{jp*64}")
    G.mainloop()
    stamp(A, opts, 2)
    A("s_nop 7")
    E = opbase
    for i in range(TM):
        for jp in range(TN//2):
            P = E + ((i*(TN//2)+jp) % 2)*24; Tm = P + 4
            a0 = G.acc(i, 2*jp); a1 = G.acc(i, 2*jp+1)
            A(f"v_cvt_pk_bf16_f32 {v(P)}, {v(a0)}, {v(a0+1)}")
            A(f"v_cvt_pk_bf16_f32 {v(P+1)}, {v(a0+2)}, {v(a0+3)}")
            A(f"v_cvt_pk_bf16_f32 {v(P+2)}, {v(a1)}, {v(a1+1)}")
            A(f"v_cvt_pk_bf16_f32 {v(P+3)}, {v(a1+2)}, {v(a1+3)}")
            xy = XYR + (i*(TN//2)+jp)*4
            for p in range(4):
                A(f"v_lshlrev_b32 {v(Tm+8+2*p)}, 16, {v(xy+p)}")
                A(f"v_and_b32 {v(Tm+8+2*p+1)}, 0xffff0000, {v(xy+p)}")
            A(f"v_permlane16_swap_b32 {v(P)}, {v(P+2)}")
            A(f"v_permlane16_swap_b32 {v(P+1)}, {v(P+3)}")
            A("s_nop 0")
            for p in range(4):
                A(f"v_lshlrev_b32 {v(Tm+2*p)}, 16, {v(P+p)}")
                A(f"v_and_b32 {v(Tm+2*p+1)}, 0xffff0000, {v(P+p)}")
            for r in range(8):
                A(f"v_add_f32 {v(Tm+r)}, {v(Tm+r)}, {v(Tm+8+r)}")
            for p in range(4):
                A(f"v_cvt_pk_bf16_f32 {v(xy+p)}, {v(Tm+2*p)}, {v(Tm+2*p+1)}")
            A(f"buffer_store_dwordx4 {v(xy,4)}, {v(vSt)}, {s(sO,4)}, {s(sRow+i)} offen offset:{jp*64}")
    if opts.get("stamp"):
        A("s_waitcnt vmcnt(0)")
        stamp(A, opts, 3)
        stamp_store(A, opts, 11, sWS, opbase, sWave)
    A.label(done)
    A("s_endpgm")
    return G

def parse_opts(args):
    opts = {}
    for o in args:
        if "=" in o:
            k, val = o.split("=", 1)
            try: opts[k] = eval(val)
            except Exception: opts[k] = val
        else: opts[o] = True
    return opts

if __name__ == "__main__":
    import sys
    opts = parse_opts(sys.argv[2:])
    cfg = dict(T=opts.get("T", 16), NWM=opts.get("NWM", 2), NWN=opts.get("NWN", 4), NS=opts.get("NS", 4))
    NW = cfg["NWM"]*cfg["NWN"]
    A = Asm()
    A.raw(f"; @launch kernel=g1_kernel grid=(256,1,1) block=({NW*64},1,1) lds={cfg['NS']*32768}")
    A.raw('.amdgcn_target "amdgcn-amd-amdhsa--gfx950"')
    A.raw(".text")
    G = gen_gemm1(A, "g1_kernel", cfg, opts)
    print("vend", G.vend)
    A.raw('.section .rodata,"a"')
    A.raw(kernel_desc("g1_kernel", 256 if NW == 8 else 512, accum=256))
    open(sys.argv[1], "w").write(A.text())
```

```python
from asmlib import *
from fftcommon import *
from layout import *

def gen_k1(A, name, opts, GT=16):
    kernel_begin(A, name)
    done = A.newlabel("k1_done"); wtr = A.newlabel("k1_wtr")
    sX, sXN, sYT, sW, sWT = 8, 12, 16, 20, 24
    sWS = 28; sT = 30
    sWave = 40
    A("s_cmp_ge_u32 s2, 400")
    A(f"s_cbranch_scc1 {done}")
    A("s_load_dwordx2 s[4:5], s[0:1], 0")
    A("s_load_dwordx4 s[44:47], s[0:1], 8")
    A(f"s_load_dwordx2 {s(sWS,2)}, s[0:1], 72")
    vL = 1
    A("v_lshrrev_b32 v2, 6, v0")
    A(f"v_and_b32 {v(vL)}, 63, v0")
    A("s_nop 0")
    A(f"v_readfirstlane_b32 {s(sWave)}, v2")
    A("s_cmp_ge_u32 s2, 256")
    A(f"s_cbranch_scc1 {wtr}")
    sB7, sN2, sN1, sS0, sChunk = sT, sT+1, sT+2, sT+3, sT+4
    A(f"s_and_b32 {s(sB7)}, s2, 7")
    A(f"s_lshr_b32 {s(sN2)}, s2, 3")
    A(f"s_lshl_b32 {s(sChunk)}, {s(sB7)}, 5")
    A(f"s_add_u32 {s(sChunk)}, {s(sChunk)}, {s(sN2)}")
    A(f"s_lshr_b32 {s(sT+5)}, {s(sB7)}, 2")
    A(f"s_lshl_b32 {s(sT+5)}, {s(sT+5)}, 5")
    A(f"s_add_u32 {s(sN2)}, {s(sN2)}, {s(sT+5)}")
    A(f"s_and_b32 {s(sN1)}, {s(sB7)}, 2")
    A(f"s_lshl_b32 {s(sN1)}, {s(sN1)}, 3")
    A(f"s_and_b32 {s(sT+5)}, {s(sB7)}, 1")
    A(f"s_lshl_b32 {s(sT+5)}, {s(sT+5)}, 2")
    A(f"s_add_u32 {s(sN1)}, {s(sN1)}, {s(sT+5)}")
    A(f"s_lshr_b32 {s(sT+5)}, {s(sWave)}, 1")
    A(f"s_lshl_b32 {s(sT+5)}, {s(sT+5)}, 3")
    A(f"s_add_u32 {s(sN1)}, {s(sN1)}, {s(sT+5)}")
    A(f"s_and_b32 {s(sT+5)}, {s(sWave)}, 1")
    A(f"s_lshl_b32 {s(sT+5)}, {s(sT+5)}, 1")
    A(f"s_add_u32 {s(sN1)}, {s(sN1)}, {s(sT+5)}")
    A(f"s_lshl_b32 {s(sS0)}, {s(sN1)}, 6")
    A(f"s_add_u32 {s(sS0)}, {s(sS0)}, {s(sN2)}")
    A("s_waitcnt lgkmcnt(0)")
    make_srd(A, sX, 4, 5, 2048*1024*2)
    RAW = [4, 12]
    vOff = 2
    A(f"v_lshlrev_b32 {v(vOff)}, 4, {v(vL)}")
    A(f"s_lshl_b32 {s(sT+5)}, {s(sS0)}, 11")
    A(f"s_add_u32 {s(sT+6)}, {s(sT+5)}, {64*2048}")
    for rw in range(2):
        so = sT+5+rw
        A(f"buffer_load_dwordx4 {v(RAW[rw],4)}, {v(vOff)}, {s(sX,4)}, {s(so)} offen")
        A(f"buffer_load_dwordx4 {v(RAW[rw]+4,4)}, {v(vOff)}, {s(sX,4)}, {s(so)} offen offset:1024")
    make_srd(A, sXN, sWS, sWS+1, 2048*1024*2, add=WS_XN)
    make_srd(A, sYT, sWS, sWS+1, 2048*1024*2, add=WS_YT)
    B1C, B1S, A2R, A2I, TWC, TWS = 64, 72, 80, 88, 96, 112
    vK1, vH4, vK2, vH4b, vPh = 20, 21, 22, 23, 24
    tmp = [26, 27, 28, 29, 30, 31]
    A(f"v_and_b32 {v(vK1)}, 31, {v(vL)}")
    A(f"v_lshrrev_b32 {v(vH4)}, 5, {v(vL)}")
    A(f"v_lshlrev_b32 {v(vH4)}, 2, {v(vH4)}")
    A(f"v_and_b32 {v(vK2)}, 15, {v(vL)}")
    A(f"v_mul_u32_u24 {v(vH4b)}, {v(vH4)}, {v(vK2)}")
    A(f"v_mul_u32_u24 {v(vH4)}, {v(vH4)}, {v(vK1)}")
    A(f"v_bfe_u32 {v(vPh)}, {v(vL)}, 4, 1")
    A(f"v_cvt_f32_u32 {v(vPh)}, {v(vPh)}")
    A(f"v_mul_f32 {v(vPh)}, 0.25, {v(vPh)}") if False else A(f"v_mul_f32 {v(vPh)}, {f32(0.25)}, {v(vPh)}")
    gen_trig_operand(A, B1C, B1S, 2, vK1, vH4, 32, tmp, neg_sin=True)
    gen_trig_operand(A, A2R, A2I, 2, vK2, vH4b, 32, tmp, vPhase=vPh)
    gen_twiddle(A, TWC, TWS, vK1, vH4, 1024, tmp[0], neg_sin=True)
    vDC = 25
    A(f"v_cmp_eq_u32 vcc, 0, {v(vL)}")
    A(f"v_mov_b32 {v(vDC)}, 1.0")
    A(f"v_mov_b32 {v(tmp[0])}, 0.5")
    A(f"v_cndmask_b32 {v(vDC)}, {v(vDC)}, {v(tmp[0])}, vcc")
    A(f"s_mov_b64 s[48:49], vcc")
    vXo = [32, 33]
    for rw in range(2):
        A(f"s_add_u32 {s(sT+5)}, {s(sS0)}, {64*rw}")
        A(f"s_lshr_b32 {s(sT+6)}, {s(sT+5)}, 4")
        A(f"s_lshl_b32 {s(sT+6)}, {s(sT+6)}, 15")
        A(f"s_and_b32 {s(sT+5)}, {s(sT+5)}, 15")
        A(f"s_lshr_b32 {s(sT+7)}, {s(sT+5)}, 2")
        A(f"s_and_b32 {s(sT+7)}, {s(sT+7)}, 2")
        A(f"s_lshl_b32 {s(sT+5)}, {s(sT+5)}, 6")
        A(f"s_add_u32 {s(sT+6)}, {s(sT+6)}, {s(sT+5)}")
        A(f"v_and_b32 {v(tmp[0])}, 3, {v(vL)}")
        A(f"v_xor_b32 {v(tmp[0])}, {s(sT+7)}, {v(tmp[0])}")
        A(f"v_lshlrev_b32 {v(tmp[0])}, 4, {v(tmp[0])}")
        A(f"v_lshrrev_b32 {v(tmp[1])}, 2, {v(vL)}")
        A(f"v_lshlrev_b32 {v(tmp[1])}, 10, {v(tmp[1])}")
        A(f"v_add3_u32 {v(vXo[rw])}, {v(tmp[0])}, {v(tmp[1])}, {s(sT+6)}")
    vLw, vLr = 34, 35
    A(f"s_lshl_b32 {s(sT+5)}, {s(sWave)}, 12")
    A(f"v_add_u32 {v(vLw)}, {s(sT+5)}, {v(vOff)}")
    A(f"v_lshrrev_b32 {v(tmp[0])}, 5, {v(vL)}")
    A(f"v_lshlrev_b32 {v(tmp[0])}, 8, {v(tmp[0])}")
    A(f"v_bfe_u32 {v(tmp[1])}, {v(vL)}, 2, 2")
    A(f"v_lshlrev_b32 {v(tmp[1])}, 6, {v(tmp[1])}")
    A(f"v_and_b32 {v(tmp[2])}, 16, {v(vL)}")
    A(f"v_lshlrev_b32 {v(tmp[2])}, 1, {v(tmp[2])}")
    A(f"v_add3_u32 {v(tmp[0])}, {v(tmp[0])}, {v(tmp[1])}, {v(tmp[2])}")
    A(f"v_and_b32 {v(tmp[1])}, 3, {v(vL)}")
    A(f"v_lshlrev_b32 {v(tmp[1])}, 3, {v(tmp[1])}")
    A(f"v_add3_u32 {v(vLr)}, {v(tmp[0])}, {v(tmp[1])}, {s(sT+5)}")
    F = [128, 144]
    SUM = [36, 37]; TT = [38, 39]; MB = [40, 41]; RS = [42, 43]
    A("s_waitcnt vmcnt(0)")
    for rw in range(2):
        for i in range(8):
            A(f"v_lshlrev_b32 {v(F[rw]+2*i)}, 16, {v(RAW[rw]+i)}")
            A(f"v_and_b32 {v(F[rw]+2*i+1)}, 0xffff0000, {v(RAW[rw]+i)}")
    for rw in range(2):
        A(f"v_add_f32 {v(SUM[rw])}, {v(F[rw])}, {v(F[rw]+1)}")
        A(f"v_add_f32 {v(TT[rw])}, {v(F[rw]+2)}, {v(F[rw]+3)}")
        for i in range(4, 16, 2):
            A(f"v_add_f32 {v(SUM[rw])}, {v(SUM[rw])}, {v(F[rw]+i)}")
            A(f"v_add_f32 {v(TT[rw])}, {v(TT[rw])}, {v(F[rw]+i+1)}")
        A(f"v_add_f32 {v(SUM[rw])}, {v(SUM[rw])}, {v(TT[rw])}")
    wave_allreduce_add2(A, SUM, TT)
    for rw in range(2):
        A(f"v_mul_f32 {v(MB[rw])}, {f32(1/1024)}, {v(SUM[rw])}")
    D = [160, 176]
    for rw in range(2):
        for i in range(16):
            A(f"v_sub_f32 {v(D[rw]+i)}, {v(F[rw]+i)}, {v(MB[rw])}")
        A(f"v_mul_f32 {v(SUM[rw])}, {v(D[rw])}, {v(D[rw])}")
        A(f"v_mul_f32 {v(TT[rw])}, {v(D[rw]+1)}, {v(D[rw]+1)}")
        for i in range(2, 16, 2):
            A(f"v_fmac_f32 {v(SUM[rw])}, {v(D[rw]+i)}, {v(D[rw]+i)}")
            A(f"v_fmac_f32 {v(TT[rw])}, {v(D[rw]+i+1)}, {v(D[rw]+i+1)}")
        A(f"v_add_f32 {v(SUM[rw])}, {v(SUM[rw])}, {v(TT[rw])}")
    wave_allreduce_add2(A, SUM, TT)
    for rw in range(2):
        A(f"v_mul_f32 {v(RS[rw])}, {f32(1/1024)}, {v(SUM[rw])}")
        round_bf16(A, RS[rw])
        A(f"v_add_f32 {v(RS[rw])}, {f32(1e-5)}, {v(RS[rw])}")
        round_bf16(A, RS[rw])
        A(f"v_sqrt_f32 {v(RS[rw])}, {v(RS[rw])}")
        round_bf16(A, MB[rw])
        round_bf16(A, RS[rw])
        A(f"v_rcp_f32 {v(RS[rw])}, {v(RS[rw])}")
    for rw in range(2):
        for i in range(16):
            A(f"v_sub_f32 {v(D[rw]+i)}, {v(F[rw]+i)}, {v(MB[rw])}")
        for i in range(8):
            A(f"v_cvt_pk_bf16_f32 {v(RAW[rw]+i)}, {v(D[rw]+2*i)}, {v(D[rw]+2*i+1)}")
        for i in range(8):
            A(f"v_lshlrev_b32 {v(D[rw]+2*i)}, 16, {v(RAW[rw]+i)}")
            A(f"v_and_b32 {v(D[rw]+2*i+1)}, 0xffff0000, {v(RAW[rw]+i)}")
        for i in range(16):
            A(f"v_mul_f32 {v(D[rw]+i)}, {v(D[rw]+i)}, {v(RS[rw])}")
        for i in range(8):
            A(f"v_cvt_pk_bf16_f32 {v(RAW[rw]+i)}, {v(D[rw]+2*i)}, {v(D[rw]+2*i+1)}")
        A(f"ds_write_b128 {v(vLw)}, {v(RAW[rw],4)} offset:{rw*2048}")
        A(f"ds_write_b128 {v(vLw)}, {v(RAW[rw]+4,4)} offset:{rw*2048+1024}")
        A(f"s_mov_b32 {s(sT+5)}, {16*1024}")
        A(f"buffer_store_dwordx4 {v(RAW[rw],4)}, {v(vXo[rw])}, {s(sXN,4)}, 0 offen")
        A(f"buffer_store_dwordx4 {v(RAW[rw]+4,4)}, {v(vXo[rw])}, {s(sXN,4)}, {s(sT+5)} offen")
    OP = [44, 52]
    A("s_waitcnt lgkmcnt(0)")
    for rw in range(2):
        for u in range(2):
            for e in range(2):
                A(f"ds_read_b64_tr_b16 {v(OP[rw]+4*u+2*e,2)}, {v(vLr)} offset:{rw*2048 + (16*u+8*e)*64}")
    TR = [128, 160]; TI = [144, 176]
    A("s_waitcnt lgkmcnt(0)")
    for rw in range(2):
        for u in range(2):
            c = "0" if u == 0 else v(TR[rw],16)
            A(f"v_mfma_f32_32x32x16_bf16 {v(TR[rw],16)}, {v(OP[rw]+4*u,4)}, {v(B1C+4*u,4)}, {c}")
            c = "0" if u == 0 else v(TI[rw],16)
            A(f"v_mfma_f32_32x32x16_bf16 {v(TI[rw],16)}, {v(OP[rw]+4*u,4)}, {v(B1S+4*u,4)}, {c}")
    A("s_nop 7")
    A("s_nop 7")
    NY = [36, 37]; NT = [38, 39]
    UR = [192, 208]; UI = [200, 216]
    WK = 224
    for rw in range(2):
        A(f"v_sub_f32 {v(NY[rw])}, {v(TR[rw])}, {v(TR[rw]+1)}")
        A(f"v_sub_f32 {v(NT[rw])}, {v(TR[rw]+2)}, {v(TR[rw]+3)}")
        for r in range(4, 16, 4):
            A(f"v_add_f32 {v(NY[rw])}, {v(NY[rw])}, {v(TR[rw]+r)}")
            A(f"v_add_f32 {v(NT[rw])}, {v(NT[rw])}, {v(TR[rw]+r+2)}")
            A(f"v_sub_f32 {v(NY[rw])}, {v(NY[rw])}, {v(TR[rw]+r+1)}")
            A(f"v_sub_f32 {v(NT[rw])}, {v(NT[rw])}, {v(TR[rw]+r+3)}")
        A(f"v_add_f32 {v(NY[rw])}, {v(NY[rw])}, {v(NT[rw])}")
        A(f"v_mov_b32 {v(NT[rw])}, {v(NY[rw])}")
        for r in range(16):
            A(f"v_mul_f32 {v(WK+r)}, {v(TR[rw]+r)}, {v(TWC+r)}")
            A(f"v_mul_f32 {v(WK+16+r)}, {v(TR[rw]+r)}, {v(TWS+r)}")
        for r in range(16):
            A(f"v_fma_f32 {v(WK+r)}, -{v(TI[rw]+r)}, {v(TWS+r)}, {v(WK+r)}")
            A(f"v_fmac_f32 {v(WK+16+r)}, {v(TI[rw]+r)}, {v(TWC+r)}")
        for p in range(8):
            A(f"v_cvt_pk_bf16_f32 {v(UR[rw]+p)}, {v(WK+2*p)}, {v(WK+2*p+1)}")
            A(f"v_cvt_pk_bf16_f32 {v(UI[rw]+p)}, {v(WK+16+2*p)}, {v(WK+16+2*p+1)}")
        A(f"v_permlane32_swap_b32 {v(NY[rw])}, {v(NT[rw])}")
        A("s_nop 1")
        A(f"v_add_f32 {v(NY[rw])}, {v(NY[rw])}, {v(NT[rw])}")
        A(f"v_mul_f32 {v(NY[rw])}, 0.5, {v(NY[rw])}")
    Y = [128, 160]
    for rw in range(2):
        A(f"v_mfma_f32_32x32x16_bf16 {v(Y[rw],16)}, {v(A2R,4)}, {v(UR[rw],4)}, 0")
    for rw in range(2):
        A(f"v_mfma_f32_32x32x16_bf16 {v(Y[rw],16)}, {v(A2R+4,4)}, {v(UR[rw]+4,4)}, {v(Y[rw],16)}")
    for u in range(2):
        for rw in range(2):
            A(f"v_mfma_f32_32x32x16_bf16 {v(Y[rw],16)}, {v(A2I+4*u,4)}, {v(UI[rw]+4*u,4)}, {v(Y[rw],16)}")
    vTw = 34
    A(f"v_lshrrev_b32 {v(tmp[0])}, 5, {v(vL)}")
    A(f"v_lshlrev_b32 {v(tmp[0])}, 11, {v(tmp[0])}")
    A(f"v_lshlrev_b32 {v(tmp[1])}, 4, {v(vK1)}")
    A(f"s_lshl_b32 {s(sT+5)}, {s(sWave)}, 2")
    A(f"s_add_u32 {s(sT+5)}, {s(sT+5)}, 16384")
    A(f"v_add3_u32 {v(vTw)}, {v(tmp[0])}, {v(tmp[1])}, {s(sT+5)}")
    A("s_nop 7")
    A("s_nop 3")
    for rw in range(2):
        A(f"v_mul_f32 {v(Y[rw])}, {v(Y[rw])}, {v(vDC)}")
        A(f"v_cndmask_b32 {v(Y[rw]+8)}, {v(Y[rw]+8)}, {v(NY[rw])}, s[48:49]")
    for r in range(16):
        A(f"v_cvt_pk_bf16_f32 {v(WK+r)}, {v(Y[0]+r)}, {v(Y[1]+r)}")
    for r in range(16):
        c = r >> 3; k2 = 8*((r >> 2) & 1) + (r & 3)
        A(f"ds_write_b32 {v(vTw)}, {v(WK+r)} offset:{(c*16+k2)*512}")
    A("s_waitcnt lgkmcnt(0)")
    A("s_barrier")
    A(f"v_lshlrev_b32 {v(tmp[0])}, 4, v0")
    A(f"v_lshlrev_b32 {v(tmp[1])}, 13, v0")
    A(f"s_lshl_b32 {s(sT+5)}, {s(sChunk)}, 4")
    A(f"v_add_u32 {v(tmp[1])}, {s(sT+5)}, {v(tmp[1])}")
    for i in range(4):
        A(f"ds_read_b128 {v(128+4*i,4)}, {v(tmp[0])} offset:{16384 + i*4096}")
    for i in range(4):
        A(f"s_mov_b32 {s(sT+6+i)}, {(i&1)*256*8192 + (i>>1)*4096}")
    for i in range(4):
        A(f"s_waitcnt lgkmcnt({3-i})")
        A(f"buffer_store_dwordx4 {v(128+4*i,4)}, {v(tmp[1])}, {s(sYT,4)}, {s(sT+6+i)} offen")
    A(f"s_branch {done}")
    A.label(wtr)
    sId, sCombo, sKr = sT, sT+1, sT+2
    A(f"s_sub_u32 {s(sId)}, s2, 256")
    A(f"s_mul_i32 {s(sCombo)}, {s(sId)}, 7282")
    A(f"s_lshr_b32 {s(sCombo)}, {s(sCombo)}, 16")
    A(f"s_mul_i32 {s(sT+3)}, {s(sCombo)}, 9")
    A(f"s_sub_u32 {s(sKr)}, {s(sId)}, {s(sT+3)}")
    A("s_waitcnt lgkmcnt(0)")
    A(f"s_cmp_ge_u32 {s(sCombo)}, 8")
    A("s_cselect_b32 s44, s46, s44")
    A("s_cselect_b32 s45, s47, s45")
    make_srd(A, sW, 44, 45, 2048*513*2)
    make_srd(A, sWT, sWS, sWS+1, 513*8192, add=WS_WT)
    A(f"s_lshr_b32 {s(sT+3)}, {s(sCombo)}, 1")
    A(f"s_and_b32 {s(sT+3)}, {s(sT+3)}, 3")
    A(f"s_lshl_b32 {s(sT+3)}, {s(sT+3)}, 4")
    A(f"s_and_b32 {s(sT+4)}, {s(sCombo)}, 1")
    A(f"s_lshl_b32 {s(sT+4)}, {s(sT+4)}, 2")
    A(f"s_add_u32 {s(sT+3)}, {s(sT+3)}, {s(sT+4)}")
    A(f"s_lshl_b32 {s(sT+3)}, {s(sT+3)}, 5")
    A(f"s_lshl_b32 {s(sT+4)}, {s(sWave)}, 3")
    A(f"s_add_u32 {s(sT+3)}, {s(sT+3)}, {s(sT+4)}")
    A(f"s_mul_i32 {s(sT+3)}, {s(sT+3)}, 1026")
    A(f"s_lshl_b32 {s(sT+4)}, {s(sKr)}, 7")
    A(f"s_add_u32 {s(sT+3)}, {s(sT+3)}, {s(sT+4)}")
    A(f"v_lshlrev_b32 v2, 1, {v(vL)}")
    A(f"v_add_u32 v2, {s(sT+3)}, v2")
    A(f"s_lshl_b32 {s(sT+4)}, {s(sKr)}, 6")
    A(f"v_add_u32 v3, {s(sT+4)}, {v(vL)}")
    A(f"v_lshlrev_b32 v3, 13, v3")
    A(f"s_lshl_b32 {s(sT+4)}, {s(sCombo)}, 5")
    A(f"s_lshl_b32 {s(sT+5)}, {s(sWave)}, 3")
    A(f"s_add_u32 {s(sT+4)}, {s(sT+4)}, {s(sT+5)}")
    A(f"s_lshl_b32 {s(sT+4)}, {s(sT+4)}, 4")
    A(f"v_add_u32 v3, {s(sT+4)}, v3")
    for e in range(8):
        A(f"s_mov_b32 {s(50+e)}, {32*(8*(e//4) + e % 4)*1026}")
        A(f"s_add_u32 {s(58+e)}, {s(50+e)}, {4*1026}")
    for i in range(8):
        for e in range(8):
            so = (50 if i < 4 else 58) + e
            A(f"buffer_load_ushort {v(8+i*8+e)}, v2, {s(sW,4)}, {s(so)} offen offset:{(i%4)*1026}")
    for i in range(8):
        A(f"s_waitcnt vmcnt({min(63, 8*(7-i) + i)})")
        for p in range(4):
            A(f"v_lshl_or_b32 {v(72+i*4+p)}, {v(8+i*8+2*p+1)}, 16, {v(8+i*8+2*p)}")
        A(f"buffer_store_dwordx4 {v(72+i*4,4)}, v3, {s(sWT,4)}, 0 offen offset:{i*16}")
    A.label(done)
    A("s_endpgm")

if __name__ == "__main__":
    import sys
    from gemm import parse_opts
    opts = parse_opts(sys.argv[2:])
    A = Asm()
    A.raw(f"; @launch kernel=k1_kernel grid=(400,1,1) block=(256,1,1) lds=32768")
    A.raw('.amdgcn_target "amdgcn-amd-amdhsa--gfx950"')
    A.raw(".text")
    gen_k1(A, "k1_kernel", opts)
    A.raw('.section .rodata,"a"')
    A.raw(kernel_desc("k1_kernel", 256))
    open(sys.argv[1], "w").write(A.text())
```

```python
from asmlib import *
from fftcommon import *
from layout import *
MF = "v_mfma_f32_32x32x16_bf16"

class RowIFFT:
    B1R, B1I, B2C, B2N, TWC, TWS = 64, 72, 80, 88, 96, 112
    vL = 1
    def __init__(self, A, opts): self.A = A; self.opts = opts
    def gen_consts(self):
        A = self.A; vL = self.vL
        vN2, vH4, vN1, vH4b = 20, 21, 22, 23
        tmp = [26, 27, 28, 29, 30, 31]
        A(f"v_bfe_u32 {v(tmp[0])}, {v(vL)}, 2, 1")
        A(f"v_lshlrev_b32 {v(tmp[0])}, 4, {v(tmp[0])}")
        A(f"v_bfe_u32 {v(tmp[1])}, {v(vL)}, 3, 2")
        A(f"v_lshlrev_b32 {v(tmp[1])}, 2, {v(tmp[1])}")
        A(f"v_and_b32 {v(tmp[2])}, 3, {v(vL)}")
        A(f"v_add3_u32 {v(vN2)}, {v(tmp[0])}, {v(tmp[1])}, {v(tmp[2])}")
        A(f"v_lshrrev_b32 {v(tmp[0])}, 5, {v(vL)}")
        A(f"v_lshlrev_b32 {v(tmp[0])}, 2, {v(tmp[0])}")
        A(f"v_mul_u32_u24 {v(vH4)}, {v(tmp[0])}, {v(vN2)}")
        A(f"v_and_b32 {v(vN1)}, 31, {v(vL)}")
        A(f"v_mul_u32_u24 {v(vH4b)}, {v(tmp[0])}, {v(vN1)}")
        gen_trig_operand(A, self.B1R, self.B1I, 1, vN2, vH4, 32, tmp, dst_nsin=self.B1R+4)
        for p in range(4): A(f"v_mov_b32 {v(self.B1I+4+p)}, {v(self.B1R+p)}")
        gen_trig_operand(A, self.B2C, self.B2N, 2, vN1, vH4b, 32, tmp, neg_sin=True)
        gen_twiddle(A, self.TWC, self.TWS, vN2, vH4, 1024, tmp[0])
    def rows(self, sWave, sS0, sX, sXY, lds, sT):
        A = self.A; vL = self.vL
        tmp = [26, 27, 28, 29, 30, 31]
        vXo = 32
        A(f"v_and_b32 {v(tmp[0])}, 31, {v(vL)}")
        A(f"v_lshlrev_b32 {v(tmp[0])}, 6, {v(tmp[0])}")
        A(f"v_and_b32 {v(tmp[1])}, 32, {v(vL)}")
        A(f"v_add_u32 {v(vXo)}, {v(tmp[0])}, {v(tmp[1])}")
        A(f"s_lshl_b32 {s(sT)}, {s(sS0)}, 11")
        A(f"s_add_u32 {s(sT+1)}, {s(sT)}, {64*2048}")
        XR = [4, 12]
        for rw in range(2):
            A(f"buffer_load_dwordx4 {v(XR[rw],4)}, {v(vXo)}, {s(sX,4)}, {s(sT+rw)} offen")
            A(f"buffer_load_dwordx4 {v(XR[rw]+4,4)}, {v(vXo)}, {s(sX,4)}, {s(sT+rw)} offen offset:16")
        vRd = 33
        A(f"v_lshrrev_b32 {v(tmp[0])}, 5, {v(vL)}")
        A(f"v_lshlrev_b32 {v(tmp[0])}, 11, {v(tmp[0])}")
        A(f"v_and_b32 {v(tmp[1])}, 31, {v(vL)}")
        A(f"v_lshlrev_b32 {v(tmp[1])}, 4, {v(tmp[1])}")
        A(f"s_lshl_b32 {s(sT+2)}, {s(sWave)}, 2")
        A(f"s_add_u32 {s(sT+2)}, {s(sT+2)}, {lds}")
        A(f"v_add3_u32 {v(vRd)}, {v(tmp[0])}, {v(tmp[1])}, {s(sT+2)}")
        A(f"v_mov_b32 {v(34)}, {s(sT+2)}")
        RD = 224
        for r in range(16):
            c = r >> 3; k2 = 8*((r >> 2) & 1) + (r & 3)
            A(f"ds_read_b32 {v(RD+r)}, {v(vRd)} offset:{(c*16+k2)*512}")
        NYQ = 35
        A(f"ds_read_b32 {v(NYQ)}, {v(34)} offset:{16*512}")
        A(f"s_mov_b32 {s(sT+3)}, 0x05040100")
        A(f"s_mov_b32 {s(sT+4)}, 0x07060302")
        A("s_waitcnt lgkmcnt(0)")
        OP = [44, 52]
        for p in range(8):
            A(f"v_perm_b32 {v(OP[0]+p)}, {v(RD+2*p+1)}, {v(RD+2*p)}, {s(sT+3)}")
            A(f"v_perm_b32 {v(OP[1]+p)}, {v(RD+2*p+1)}, {v(RD+2*p)}, {s(sT+4)}")
        NP = [36, 37]; NM = [38, 39]
        A(f"v_lshlrev_b32 {v(NP[0])}, 16, {v(NYQ)}")
        A(f"v_and_b32 {v(NP[1])}, 0xffff0000, {v(NYQ)}")
        TR = [128, 160]; TI = [144, 176]
        for u in range(2):
            for rw in range(2):
                c = "0" if u == 0 else v(TR[rw],16)
                A(f"{MF} {v(TR[rw],16)}, {v(OP[rw]+4*u,4)}, {v(self.B1R+4*u,4)}, {c}")
                c = "0" if u == 0 else v(TI[rw],16)
                A(f"{MF} {v(TI[rw],16)}, {v(OP[rw]+4*u,4)}, {v(self.B1I+4*u,4)}, {c}")
        A("s_nop 7"); A("s_nop 7")
        UR = [192, 208]; UI = [200, 216]; WK = 224
        TWC, TWS = self.TWC, self.TWS
        for rw in range(2):
            for r in range(16):
                A(f"v_mul_f32 {v(WK+r)}, {v(TR[rw]+r)}, {v(TWC+r)}")
                A(f"v_mul_f32 {v(WK+16+r)}, {v(TR[rw]+r)}, {v(TWS+r)}")
            for r in range(16):
                A(f"v_fma_f32 {v(WK+r)}, -{v(TI[rw]+r)}, {v(TWS+r)}, {v(WK+r)}")
                A(f"v_fmac_f32 {v(WK+16+r)}, {v(TI[rw]+r)}, {v(TWC+r)}")
            for p in range(8):
                A(f"v_cvt_pk_bf16_f32 {v(UR[rw]+p)}, {v(WK+2*p)}, {v(WK+2*p+1)}")
                A(f"v_cvt_pk_bf16_f32 {v(UI[rw]+p)}, {v(WK+16+2*p)}, {v(WK+16+2*p+1)}")
        Y = [128, 160]
        for rw in range(2):
            for r in range(16):
                if r % 2 == 0: A(f"v_mov_b32 {v(Y[rw]+r)}, {v(NP[rw])}")
                else: A(f"v_xor_b32 {v(Y[rw]+r)}, 0x80000000, {v(NP[rw])}")
        A("s_nop 1")
        for u in range(2):
            for rw in range(2):
                A(f"{MF} {v(Y[rw],16)}, {v(UR[rw]+4*u,4)}, {v(self.B2C+4*u,4)}, {v(Y[rw],16)}")
        for u in range(2):
            for rw in range(2):
                A(f"{MF} {v(Y[rw],16)}, {v(UI[rw]+4*u,4)}, {v(self.B2N+4*u,4)}, {v(Y[rw],16)}")
        A("s_waitcnt vmcnt(0)")
        A("s_nop 7"); A("s_nop 7")
        for rw in range(2):
            for p in range(8):
                A(f"v_cvt_pk_bf16_f32 {v(WK+p)}, {v(Y[rw]+2*p)}, {v(Y[rw]+2*p+1)}")
            for p in range(8):
                A(f"v_lshlrev_b32 {v(Y[rw]+2*p)}, 16, {v(WK+p)}")
                A(f"v_and_b32 {v(Y[rw]+2*p+1)}, 0xffff0000, {v(WK+p)}")
                A(f"v_lshlrev_b32 {v(WK+8+2*p)}, 16, {v(XR[rw]+p)}")
                A(f"v_and_b32 {v(WK+8+2*p+1)}, 0xffff0000, {v(XR[rw]+p)}")
            for r in range(16):
                A(f"v_add_f32 {v(Y[rw]+r)}, {v(Y[rw]+r)}, {v(WK+8+r)}")
            for p in range(8):
                A(f"v_cvt_pk_bf16_f32 {v(XR[rw]+p)}, {v(Y[rw]+2*p)}, {v(Y[rw]+2*p+1)}")
            A(f"buffer_store_dwordx4 {v(XR[rw],4)}, {v(vXo)}, {s(sXY,4)}, {s(sT+rw)} offen")
            A(f"buffer_store_dwordx4 {v(XR[rw]+4,4)}, {v(vXo)}, {s(sXY,4)}, {s(sT+rw)} offen offset:16")

def chunk_rows(A, sChunk, sWave, sS0, sT):
    A(f"s_and_b32 {s(sS0)}, {s(sChunk)}, 31")
    A(f"s_lshr_b32 {s(sT)}, {s(sChunk)}, 7")
    A(f"s_lshl_b32 {s(sT)}, {s(sT)}, 5")
    A(f"s_add_u32 {s(sS0)}, {s(sS0)}, {s(sT)}")
    A(f"s_bfe_u32 {s(sT)}, {s(sChunk)}, 0x10006")
    A(f"s_lshl_b32 {s(sT)}, {s(sT)}, 10")
    A(f"s_add_u32 {s(sS0)}, {s(sS0)}, {s(sT)}")
    A(f"s_bfe_u32 {s(sT)}, {s(sChunk)}, 0x10005")
    A(f"s_lshl_b32 {s(sT)}, {s(sT)}, 8")
    A(f"s_add_u32 {s(sS0)}, {s(sS0)}, {s(sT)}")
    A(f"s_bfe_u32 {s(sT)}, {s(sWave)}, 0x10001")
    A(f"s_lshl_b32 {s(sT)}, {s(sT)}, 9")
    A(f"s_add_u32 {s(sS0)}, {s(sS0)}, {s(sT)}")
    A(f"s_and_b32 {s(sT)}, {s(sWave)}, 1")
    A(f"s_lshl_b32 {s(sT)}, {s(sT)}, 7")
    A(f"s_add_u32 {s(sS0)}, {s(sS0)}, {s(sT)}")

def gen_k4(A, name, opts):
    kernel_begin(A, name)
    done = A.newlabel("k4_done")
    R = RowIFFT(A, opts)
    sX, sZT, sXY = 8, 12, 16
    sWS = 28; sWave = 40; sChunk, sS0, sT = 30, 31, 32
    A("s_cmp_ge_u32 s2, 256")
    A(f"s_cbranch_scc1 {done}")
    A("s_load_dwordx2 s[4:5], s[0:1], 0")
    A(f"s_load_dwordx2 {s(sWS,2)}, s[0:1], 72")
    A("v_lshrrev_b32 v2, 6, v0")
    A(f"v_and_b32 {v(R.vL)}, 63, v0")
    A("s_nop 0")
    A(f"v_readfirstlane_b32 {s(sWave)}, v2")
    A(f"s_and_b32 {s(sChunk)}, s2, 7")
    A(f"s_lshl_b32 {s(sChunk)}, {s(sChunk)}, 5")
    A(f"s_lshr_b32 {s(sT)}, s2, 3")
    A(f"s_add_u32 {s(sChunk)}, {s(sChunk)}, {s(sT)}")
    chunk_rows(A, sChunk, sWave, sS0, sT)
    A("s_waitcnt lgkmcnt(0)")
    make_srd(A, sX, 4, 5, 4 << 20)
    make_srd(A, sZT, sWS, sWS+1, 4 << 20, add=WS_ZT)
    make_srd(A, sXY, sWS, sWS+1, 4 << 20, add=WS_XY)
    A(f"v_lshlrev_b32 v2, 13, v0")
    A(f"s_lshl_b32 {s(sT)}, {s(sChunk)}, 4")
    A(f"v_add_u32 v2, {s(sT)}, v2")
    A(f"s_lshl_b32 {s(sT+1)}, {s(sWave)}, 10")
    for i in range(4):
        A(f"s_add_u32 m0, {s(sT+1)}, {i*4096}")
        A(f"s_mov_b32 {s(sT+2)}, {(i&1)*256*8192 + (i>>1)*4096}")
        A(f"buffer_load_dwordx4 v2, {s(sZT,4)}, {s(sT+2)} offen lds")
    R.gen_consts()
    A("s_waitcnt vmcnt(0)")
    A("s_barrier")
    R.rows(sWave, sS0, sX, sXY, 0, sT)
    A.label(done)
    A("s_endpgm")
```

```python
import sys
from asmlib import *
from gemm import parse_opts, gen_gemm1, gen_gemm2
from k1 import gen_k1
from colfft import gen_k3
from rowifft import gen_k4
opts = parse_opts(sys.argv[2:])
A = Asm()
c1 = dict(T=16, NWM=2, NWN=4, NS=4)
c2 = dict(NWM=2, NWN=2, BM=64, NS=8)
hdr = open("parallel_sum__spectral_gfnet__glu_gated_geglu__prompt.s.ref").read().split("; Override launch")[0]
A.raw(hdr.rstrip())
A.raw(f"; @launch kernel=k1_kernel grid=(400,1,1) block=(256,1,1) lds=32768")
A.raw(f"; @launch kernel=g1_kernel grid=(256,1,1) block=(512,1,1) lds=131072")
A.raw(f"; @launch kernel=k3_kernel grid=(129,1,1) block=(256,1,1) lds=32768")
A.raw(f"; @launch kernel=k4_kernel grid=(256,1,1) block=(256,1,1) lds=16384")
A.raw(f"; @launch kernel=g2_kernel grid=(256,1,1) block=(256,1,1) lds={8*12288}")
A.raw('.amdgcn_target "amdgcn-amd-amdhsa--gfx950"')
A.raw(".text")
gen_k1(A, "k1_kernel", opts)
gen_gemm1(A, "g1_kernel", c1, opts)
gen_k3(A, "k3_kernel", opts)
gen_k4(A, "k4_kernel", opts)
G2 = gen_gemm2(A, "g2_kernel", c2, opts)
print("g2 vend", G2.vend)
A.raw('.section .rodata,"a"')
for k in ("k1_kernel", "g1_kernel", "k3_kernel", "k4_kernel"):
    A.raw(kernel_desc(k, 256))
A.raw(kernel_desc("g2_kernel", 128))
open(sys.argv[1], "w").write(A.text())
```

```python
from asmlib import *
from fftcommon import *
from layout import *

MF = "v_mfma_f32_32x32x16_bf16"

class ColFFT:
    C32, S32, N32 = 0+8, 16, 24
    C64, S64 = 32, 64
    SA = 96
    SB = 128
    ACC = 176
    TMP = 240
    vL, vOff, vTw = 1, 2, 3
    TW1, TW2 = 0, 16384
    def __init__(self, A, opts):
        self.A = A; self.opts = opts
    def accr(self, t): return self.ACC + 16*t
    def acci(self, t): return self.ACC + 32 + 16*t

    def gen_consts(self, sWave, nwaves, ldsbase=0):
        A = self.A; vL = self.vL
        T = self.TMP
        vI, vH4, vI2, vH42 = T+8, T+9, T+10, T+11
        tmp = [T, T+1, T+2, T+3, T+4, T+5]
        A(f"v_and_b32 {v(vI)}, 31, {v(vL)}")
        A(f"v_lshrrev_b32 {v(T+12)}, 5, {v(vL)}")
        A(f"v_lshlrev_b32 {v(T+12)}, 2, {v(T+12)}")
        A(f"v_mul_u32_u24 {v(vH4)}, {v(T+12)}, {v(vI)}")
        A(f"v_add_u32 {v(vI2)}, 32, {v(vI)}")
        A(f"v_mul_u32_u24 {v(vH42)}, {v(T+12)}, {v(vI2)}")
        A(f"v_lshlrev_b32 {v(self.vTw)}, 4, {v(vL)}")
        if ldsbase: A(f"v_add_u32 {v(self.vTw)}, {ldsbase}, {v(self.vTw)}")
        skip = A.newlabel("cf_twdone")
        CC, SS = self.ACC, self.ACC+16
        for job in range(4):
            nxt = A.newlabel("cf_tw")
            A(f"s_cmp_lg_u32 {s(sWave)}, {job % nwaves}")
            A(f"s_cbranch_scc1 {nxt}")
            if job < 2:
                gen_twiddle(A, CC, SS, vI, vH4, 2048, tmp[0], base=32*job, neg_sin=True)
            elif job == 2:
                gen_twiddle(A, CC, SS, vI, vH4, 2048, tmp[0], scale=2.0**-20)
            else:
                gen_twiddle(A, CC, SS, vI2, vH42, 2048, tmp[0], scale=2.0**-20)
            A("s_nop 0")
            for q in range(8):
                A(f"ds_write_b128 {v(self.vTw)}, {v(CC+4*q,4)} offset:{job*8192 + q*1024}")
            A.label(nxt)
        gen_trig_operand(A, self.C32, self.S32, 2, vI, vH4, 32, tmp, dst_nsin=self.N32)
        gen_trig_operand(A, self.C64, self.S64, 4, vI, vH4, 64, tmp)
        gen_trig_operand(A, self.C64+16, self.S64+16, 4, vI2, vH42, 64, tmp)
        A(f"v_lshlrev_b32 {v(self.vOff)}, 4, {v(vL)}")
        A("s_waitcnt lgkmcnt(0)")
        A("s_barrier")

    def load_P(self, sYT, sRe, sIm, flags=""):
        A = self.A
        for c, so in enumerate((sRe, sIm)):
            for q in range(4):
                A(f"buffer_load_dwordx4 {v(self.SA + c*16 + q*4, 4)}, {v(self.vOff)}, {s(sYT,4)}, {s(so)} offen offset:{q*1024}{flags}")

    def twiddle_pack(self, table, neg, dst):
        A = self.A; T = self.TMP
        for t in range(2):
            ar, ai = self.accr(t), self.acci(t)
            for half in range(2):
                for q in range(2):
                    A(f"ds_read_b128 {v(T+4*q,4)}, {v(self.vTw)} offset:{table + t*8192 + (2*half+q)*1024}")
                    A(f"ds_read_b128 {v(T+8+4*q,4)}, {v(self.vTw)} offset:{table + t*8192 + (4+2*half+q)*1024}")
                A("s_waitcnt lgkmcnt(0)")
                self.cmul_pack(ar+8*half, ai+8*half, T, T+8, dst, t*8+half*4, neg)
    def cmul_pack(self, ar, ai, c, sn, dst, po, neg):
        A = self.A
        X = 4
        for b in range(2):
            o = 4*b
            for r in range(4): A(f"v_mul_f32 {v(X+r)}, {v(ar+o+r)}, {v(c+o+r)}")
            for r in range(4): A(f"v_mul_f32 {v(ar+o+r)}, {v(ar+o+r)}, {v(sn+o+r)}")
            for r in range(4): A(f"v_fma_f32 {v(X+r)}, -{v(ai+o+r)}, {v(sn+o+r)}, {v(X+r)}")
            for r in range(4): A(f"v_fma_f32 {v(ai+o+r)}, {v(ai+o+r)}, {v(c+o+r)}, {v(ar+o+r)}")
            for p in range(2):
                A(f"v_cvt_pk_bf16_f32 {v(dst+po+2*b+p)}, {v(X+2*p)}, {v(X+2*p+1)}")
                if neg == 'r': A(f"v_cvt_pk_bf16_f32 {v(dst+32+po+2*b+p)}, -{v(X+2*p)}, -{v(X+2*p+1)}")
            for p in range(2):
                A(f"v_cvt_pk_bf16_f32 {v(dst+16+po+2*b+p)}, {v(ai+o+2*p)}, {v(ai+o+2*p+1)}")
                if neg == 'i': A(f"v_cvt_pk_bf16_f32 {v(dst+32+po+2*b+p)}, -{v(ai+o+2*p)}, -{v(ai+o+2*p+1)}")

    def column(self, sWT, sWo, sZT, sRe, sIm, ldsbase=0, stflags=""):
        A = self.A; SA, SB = self.SA, self.SB
        Pr = lambda it, u: SA + (it*2+u)*4
        Pi = lambda it, u: SA + 16 + (it*2+u)*4
        A("s_waitcnt vmcnt(0)")
        for u in range(2):
            for it in range(2):
                c = "0" if u == 0 else v(self.accr(it),16)
                A(f"{MF} {v(self.accr(it),16)}, {v(Pr(it,u),4)}, {v(self.C32+4*u,4)}, {c}")
                c = "0" if u == 0 else v(self.acci(it),16)
                A(f"{MF} {v(self.acci(it),16)}, {v(Pi(it,u),4)}, {v(self.C32+4*u,4)}, {c}")
        for u in range(2):
            for it in range(2):
                A(f"{MF} {v(self.accr(it),16)}, {v(Pi(it,u),4)}, {v(self.S32+4*u,4)}, {v(self.accr(it),16)}")
                A(f"{MF} {v(self.acci(it),16)}, {v(Pr(it,u),4)}, {v(self.N32+4*u,4)}, {v(self.acci(it),16)}")
        A("s_nop 7"); A("s_nop 7")
        for q in range(8):
            A(f"buffer_load_dwordx4 {v(SA+4*q,4)}, {v(self.vOff)}, {s(sWT,4)}, {s(sWo + (q//4))} offen offset:{(q%4)*1024}")
        self.twiddle_pack(self.TW1, 'r', SB)
        Ur = lambda w: SB + 4*w; Ui = lambda w: SB + 16 + 4*w; Un = lambda w: SB + 32 + 4*w
        A("s_nop 1")
        for w in range(4):
            for it in range(2):
                c = "0" if w == 0 else v(self.accr(it),16)
                A(f"{MF} {v(self.accr(it),16)}, {v(self.C64+16*it+4*w,4)}, {v(Ur(w),4)}, {c}")
                c = "0" if w == 0 else v(self.acci(it),16)
                A(f"{MF} {v(self.acci(it),16)}, {v(self.C64+16*it+4*w,4)}, {v(Ui(w),4)}, {c}")
        for w in range(4):
            for it in range(2):
                A(f"{MF} {v(self.accr(it),16)}, {v(self.S64+16*it+4*w,4)}, {v(Ui(w),4)}, {v(self.accr(it),16)}")
                A(f"{MF} {v(self.acci(it),16)}, {v(self.S64+16*it+4*w,4)}, {v(Un(w),4)}, {v(self.acci(it),16)}")
        A("s_waitcnt vmcnt(0)")
        A("s_nop 7"); A("s_nop 7")
        T = self.TMP
        for it in range(2):
            for u in range(2):
                wr = SA + (it*2+u)*4; wi = SA + 16 + (it*2+u)*4
                for p in range(4):
                    A(f"v_lshlrev_b32 {v(T+2*p)}, 16, {v(wr+p)}")
                    A(f"v_and_b32 {v(T+2*p+1)}, 0xffff0000, {v(wr+p)}")
                    A(f"v_lshlrev_b32 {v(T+8+2*p)}, 16, {v(wi+p)}")
                    A(f"v_and_b32 {v(T+8+2*p+1)}, 0xffff0000, {v(wi+p)}")
                self.cmul_pack(self.accr(it)+8*u, self.acci(it)+8*u, T, T+8, SB, it*8+u*4, 'i')
        A("s_nop 1")
        for w in range(4):
            for jt in range(2):
                c = "0" if w == 0 else v(self.accr(jt),16)
                A(f"{MF} {v(self.accr(jt),16)}, {v(Ur(w),4)}, {v(self.C64+16*jt+4*w,4)}, {c}")
                c = "0" if w == 0 else v(self.acci(jt),16)
                A(f"{MF} {v(self.acci(jt),16)}, {v(Ui(w),4)}, {v(self.C64+16*jt+4*w,4)}, {c}")
        for w in range(4):
            for jt in range(2):
                A(f"{MF} {v(self.accr(jt),16)}, {v(Un(w),4)}, {v(self.S64+16*jt+4*w,4)}, {v(self.accr(jt),16)}")
                A(f"{MF} {v(self.acci(jt),16)}, {v(Ur(w),4)}, {v(self.S64+16*jt+4*w,4)}, {v(self.acci(jt),16)}")
        A("s_nop 7"); A("s_nop 7")
        self.twiddle_pack(self.TW2, None, SA)
        A("s_nop 1")
        for u in range(2):
            for jt in range(2):
                c = "0" if u == 0 else v(self.accr(jt),16)
                A(f"{MF} {v(self.accr(jt),16)}, {v(self.C32+4*u,4)}, {v(Pr(jt,u),4)}, {c}")
                c = "0" if u == 0 else v(self.acci(jt),16)
                A(f"{MF} {v(self.acci(jt),16)}, {v(self.C32+4*u,4)}, {v(Pi(jt,u),4)}, {c}")
        for u in range(2):
            for jt in range(2):
                A(f"{MF} {v(self.accr(jt),16)}, {v(self.N32+4*u,4)}, {v(Pi(jt,u),4)}, {v(self.accr(jt),16)}")
                A(f"{MF} {v(self.acci(jt),16)}, {v(self.S32+4*u,4)}, {v(Pr(jt,u),4)}, {v(self.acci(jt),16)}")
        A("s_nop 7"); A("s_nop 7")
        for c in range(2):
            for jt in range(2):
                base = (self.accr(jt) if c == 0 else self.acci(jt))
                for p in range(8):
                    A(f"v_cvt_pk_bf16_f32 {v(SB + c*16 + jt*8 + p)}, {v(base+2*p)}, {v(base+2*p+1)}")
        for c, so in enumerate((sRe, sIm)):
            for q in range(4):
                A(f"buffer_store_dwordx4 {v(SB + c*16 + q*4, 4)}, {v(self.vOff)}, {s(sZT,4)}, {s(so)} offen offset:{q*1024}{stflags}")

def col_params(A, sCol, sRe, sIm, sWo, sZ=None):
    BIG = 0x40000000
    A(f"s_mul_i32 {s(sRe)}, {s(sCol)}, {2*YP}")
    A(f"s_add_u32 {s(sIm)}, {s(sRe)}, {YP}")
    A(f"s_mul_i32 {s(sWo)}, {s(sCol)}, {WP}")
    A(f"s_add_u32 {s(sWo+1)}, {s(sWo)}, 4096")
    A(f"s_cmp_eq_u32 {s(sCol)}, 0")
    A(f"s_cselect_b32 {s(sIm)}, {hex(BIG)}, {s(sIm)}")
    A(f"s_cmp_eq_u32 {s(sCol)}, 512")
    A(f"s_cselect_b32 {s(sIm)}, {hex(BIG)}, {s(sIm)}")
    A(f"s_cselect_b32 {s(sRe)}, {YP}, {s(sRe)}")

def gen_k3(A, name, opts):
    kernel_begin(A, name)
    done = A.newlabel("k3_done")
    F = ColFFT(A, opts)
    sYT, sZT, sWT = 8, 12, 16
    sWS = 28; sWave = 40; sCol, sRe, sIm, sWo = 30, 31, 32, 34
    A("s_cmp_ge_u32 s2, 129")
    A(f"s_cbranch_scc1 {done}")
    A(f"s_load_dwordx2 {s(sWS,2)}, s[0:1], 72")
    A("v_lshrrev_b32 v2, 6, v0")
    A(f"v_and_b32 {v(F.vL)}, 63, v0")
    A("s_nop 0")
    A(f"v_readfirstlane_b32 {s(sWave)}, v2")
    A("s_nop 3")
    A(f"s_lshl_b32 {s(sCol)}, s2, 2")
    A(f"s_add_u32 {s(sCol)}, {s(sCol)}, {s(sWave)}")
    col_params(A, sCol, sRe, sIm, sWo, 36)
    A("s_waitcnt lgkmcnt(0)")
    make_srd(A, sYT, sWS, sWS+1, 4 << 20, add=WS_YT)
    make_srd(A, sZT, sWS, sWS+1, 4 << 20, add=WS_ZT)
    make_srd(A, sWT, sWS, sWS+1, 513*8192, add=WS_WT)
    A(f"v_lshlrev_b32 {v(F.vOff)}, 4, {v(F.vL)}")
    F.load_P(sYT, sRe, sIm)
    F.gen_consts(sWave, 4)
    A(f"s_cmp_gt_u32 {s(sCol)}, 512")
    A(f"s_cbranch_scc1 {done}")
    F.column(sWT, sWo, sZT, sRe, sIm)
    A.label(done)
    A("s_endpgm")
```

```python
from asmlib import *
from layout import *
def dbg_init(A, opts, launch_idx):
    if not opts.get("tldbg"): return
    A("s_load_dwordx2 s[100:101], s[0:1], 72")
    A("s_waitcnt lgkmcnt(0)")
    A(f"s_add_u32 s100, s100, {hex(WS_DBG)}")
    A("s_addc_u32 s101, s101, 0")
def dbg_mark(A, opts, word, va, neg=False):
    if not opts.get("tldbg"): return
    A("s_memrealtime s[98:99]")
    A("s_waitcnt lgkmcnt(0)")
    if neg: A("s_not_b32 s98, s98")
    A(f"s_lshl_b32 s99, s2, 2")
    A(f"s_add_u32 s99, s99, {word*4096}")
    A(f"v_mov_b32 {v(va)}, s99")
    A(f"v_mov_b32 {v(va+1)}, s98")
    A("s_mov_b64 s[98:99], exec")
    A("s_mov_b64 exec, 1")
    A(f"global_store_dword {v(va)}, {v(va+1)}, s[100:101]")
    A("s_mov_b64 exec, s[98:99]")
def gen_dbg_kernel(A, name, ranges):
    kernel_begin(A, name)
    A("s_cmp_ge_u32 s2, 1"); A(f"s_cbranch_scc1 {name}_done")
    A("s_load_dwordx4 s[4:7], s[0:1], 64")
    A("s_waitcnt lgkmcnt(0)")
    for word, (lo, hi) in ranges.items():
        make_srd(A, 8, 6, 7, (hi-lo)*4, add=WS_DBG + (13 if word == 14 else word)*4096 + lo*4)
        A("v_lshlrev_b32 v1, 2, v0")
        for i in range(9):
            A(f"buffer_load_dword v{4+i}, v1, s[8:11], 0 offen offset:{i*256}")
        A("s_waitcnt vmcnt(0)")
        for i in range(1, 9): A(f"v_max_u32 v4, v4, v{4+i}")
        A(f"v_mov_b32 v2, {word*4}")
        A("s_nop 1")
        A("global_atomic_umax v2, v4, s[4:5]")
        A("s_waitcnt vmcnt(0)")
    A.label(f"{name}_done")
    A("s_endpgm")
```

```python
from asmlib import *
from layout import *
from dbgstamp import *
from gemm import stamp, stamp_store
from colfft import col_params
from rowifft import chunk_rows
MF = "v_mfma_f32_32x32x16_bf16"

def pk(op, d, *srcs, neg=None):
    ss = ", ".join(v(x, 2) for x in srcs)
    m = ""
    if neg:
        bits = ",".join("1" if i in neg else "0" for i in range(len(srcs)))
        m = f" neg_lo:[{bits}] neg_hi:[{bits}]"
    return f"v_pk_{op}_f32 {v(d,2)}, {ss}{m}"

USE_PK = False
def pk2(A, op, n, d, *srcs, neg=None):
    if USE_PK:
        for r in range(0, n, 2): A(pk(op, d+r, *[x+r for x in srcs], neg=neg))
        return
    for r in range(n):
        ss = [("-" if (neg and i in neg) else "") + v(x+r) for i, x in enumerate(srcs)]
        A(f"v_{op}_f32 {v(d+r)}, " + ", ".join(ss))

def angle(A, t, b0, vIdx, vH4, mod, sign=1.0, vPhase=None):
    if b0 <= 64:
        A(f"v_mad_u32_u24 {v(t)}, {b0}, {v(vIdx)}, {v(vH4)}")
    else:
        A(f"v_mul_u32_u24 {v(t)}, {b0}, {v(vIdx)}")
        A(f"v_add_u32 {v(t)}, {v(t)}, {v(vH4)}")
    A(f"v_and_b32 {v(t)}, {mod-1}, {v(t)}")
    A(f"v_cvt_f32_u32 {v(t)}, {v(t)}")
    if vPhase is None:
        A(f"v_mul_f32 {v(t)}, {f32(sign/mod)}, {v(t)}")
    else:
        A(f"v_fmamk_f32 {v(t)}, {v(t)}, {f32(sign/mod)}, {v(vPhase)}")

def job_trig(A, b0s, vIdx, vH4, mod, W, vAddr, outs, vPhase=None):
    T, C, S, O = W, W+8, W+16, W+24
    for e in range(8): angle(A, T+e, b0s[e], vIdx, vH4, mod, vPhase=vPhase)
    for e in range(8): A(f"v_cos_f32 {v(C+e)}, {v(T+e)}")
    for e in range(8): A(f"v_sin_f32 {v(S+e)}, {v(T+e)}")
    A("s_nop 0")
    for k, (kind, off) in enumerate(outs):
        o = O + 4*k
        for p in range(4):
            if kind == 'c': A(f"v_cvt_pk_bf16_f32 {v(o+p)}, {v(C+2*p)}, {v(C+2*p+1)}")
            if kind == 's': A(f"v_cvt_pk_bf16_f32 {v(o+p)}, {v(S+2*p)}, {v(S+2*p+1)}")
            if kind == 'n': A(f"v_cvt_pk_bf16_f32 {v(o+p)}, -{v(S+2*p)}, -{v(S+2*p+1)}")
        A(f"ds_write_b128 {v(vAddr)}, {v(o,4)} offset:{off}")

def job_tw(A, b0s, vIdx, vH4, mod, W, vAddr, offc, offs, sign=1.0, scale=None):
    T, C, S = W, W+8, W+16
    for e in range(8): angle(A, T+e, b0s[e], vIdx, vH4, mod, sign=sign)
    for e in range(8): A(f"v_cos_f32 {v(C+e)}, {v(T+e)}")
    for e in range(8): A(f"v_sin_f32 {v(S+e)}, {v(T+e)}")
    A("s_nop 0")
    if scale is not None:
        for e in range(16): A(f"v_mul_f32 {v(C+e)}, {f32(scale)}, {v(C+e)}")
    for q in range(2):
        A(f"ds_write_b128 {v(vAddr)}, {v(C+4*q,4)} offset:{offc+q*1024}")
        A(f"ds_write_b128 {v(vAddr)}, {v(S+4*q,4)} offset:{offs+q*1024}")

def run_jobs(A, jobs, sWave, nw):
    load = [0]*nw; asg = [[] for _ in range(nw)]
    for cost, fn in sorted(jobs, key=lambda x: -x[0]):
        w = load.index(min(load)); load[w] += cost; asg[w].append(fn)
    end = A.newlabel("jobs_end")
    for w in range(nw):
        if not asg[w]: continue
        nxt = A.newlabel("jobs")
        A(f"s_cmp_lg_u32 {s(sWave)}, {w}")
        A(f"s_cbranch_scc1 {nxt}")
        for fn in asg[w]: fn()
        A(f"s_branch {end}")
        A.label(nxt)
    A.label(end)

PI = lambda u, base=0: [base + 16*u + 8*(e//4) + e % 4 for e in range(8)]
EO = lambda it, par: [32*it + 8*(e//2) + 2*(e % 2) + par for e in range(8)]
DR = lambda half, base=0: [base + 8*(r//4) + r % 4 for r in range(8*half, 8*half+8)]

def cmul_pk(A, ar, ai, c, sn, X):
    for r in range(0, 8, 2): A(pk("mul", X+r, ar+r, c+r))
    for r in range(0, 8, 2): A(pk("mul", ar+r, ar+r, sn+r))
    for r in range(0, 8, 2): A(pk("fma", X+r, ai+r, sn+r, X+r, neg=[0]))
    for r in range(0, 8, 2): A(pk("fma", ai+r, ai+r, c+r, ar+r))

def gen_fft_role2(A, opts, sFid, done, NF=32):
    vL, vOff, vTw = 1, 2, 3
    ROFF = [8, 9, 10, 11, 16, 17, 18, 19]
    C32, S32, N32 = 8, 16, 24
    K64 = 32
    def k64(par, kind, it): return K64 + ((par*3 + 'csn'.index(kind))*2 + it)*4
    SX, SY, SZ = 80, 112, 144
    ACC = 176
    TMP = 240
    XS = 0
    accr = lambda t: ACC + 16*t
    acci = lambda t: ACC + 32 + 16*t
    TW1, TW2, CC, RC = 0, 16384, 32768, 32768 + 18*1024
    sYT, sZT, sWT, sX, sXY = 8, 12, 16, 20, 44
    sWS = 24; sDbg = 26; sWave = 40; sCol, sRe, sIm, sWo = 30, 31, 32, 34
    sRe2, sIm2 = 36, 37
    sT = 48
    stamp(A, opts, 0)
    A(f"s_load_dwordx2 s[4:5], s[0:1], 0")
    A(f"s_load_dwordx2 s[6:7], s[0:1], 48")
    A(f"s_load_dwordx4 {s(sT,4)}, s[0:1], 64")
    A("v_lshrrev_b32 v2, 6, v0")
    A(f"v_and_b32 {v(vL)}, 63, v0")
    A("s_nop 0")
    A(f"v_readfirstlane_b32 {s(sWave)}, v2")
    A("s_nop 3")
    A(f"s_lshl_b32 {s(sCol)}, {s(sFid)}, 3")
    A(f"s_add_u32 {s(sCol)}, {s(sCol)}, {s(sWave)}")
    col_params(A, sCol, sRe, sIm, sWo, 38)
    A(f"v_lshlrev_b32 {v(vOff)}, 4, {v(vL)}")
    A("s_waitcnt lgkmcnt(0)")
    A(f"s_mov_b64 {s(sDbg,2)}, {s(sT,2)}")
    A(f"s_mov_b64 {s(sWS,2)}, {s(sT+2,2)}")
    make_srd(A, sYT, sWS, sWS+1, 4<<20, add=WS_YT)
    make_srd(A, sWT, sWS, sWS+1, 513*WP, add=WS_WT)
    PST = 65536
    vPd, vPr = 252, 253
    def dma_P(rnd):
        for i in range(8):
            A(f"s_add_u32 m0, {s(sM0)}, {i*1024}")
            A(f"s_add_u32 {s(sT)}, {s(sPb)}, {i*4*16384 + rnd*8192}")
            A(f"buffer_load_dwordx4 {v(vPdi[i%4])}, {s(sYT,4)}, {s(sT)} offen lds")
    def read_P():
        for c in range(2):
            for q in range(4):
                A(f"ds_read_b128 {v(SX + c*16 + q*4, 4)}, {v(vPrd[c])} offset:{q*16384}")
    def load_W():
        for q in range(8):
            A(f"buffer_load_dwordx4 {v(SZ+4*q,4)}, {v(vOff)}, {s(sWT,4)}, {s(sWo + (q//4))} offen offset:{(q%4)*1024}")
    sM0, sPb = 41, 43
    vPdi = [SY, SY+1, SY+2, SY+3]
    vPrd = [3, 0]
    def calc_pd():
        A(f"v_lshrrev_b32 {v(SY+4)}, 4, {v(vL)}")
        A(f"v_and_b32 {v(SY+5)}, 15, {v(vL)}")
        A(f"v_xor_b32 {v(SY+5)}, {v(SY+5)}, {v(SY+4)}")
        A(f"v_lshlrev_b32 {v(SY+5)}, 4, {v(SY+5)}")
        A(f"v_lshl_add_u32 {v(vPdi[0])}, {v(SY+4)}, 14, {v(SY+5)}")
        for i in range(1, 4): A(f"v_xor_b32 {v(vPdi[i])}, {i*64}, {v(vPdi[0])}")
    calc_pd()
    A(f"s_lshl_b32 {s(sM0)}, {s(sWave)}, 13")
    A(f"s_add_u32 {s(sM0)}, {s(sM0)}, {PST}")
    A(f"s_lshl_b32 {s(sPb)}, {s(sWave)}, 19")
    A(f"s_lshl_b32 {s(sT)}, {s(sFid)}, 8")
    A(f"s_add_u32 {s(sPb)}, {s(sPb)}, {s(sT)}")
    dma_P(0)
    load_W()
    A(f"s_lshl_b32 {s(sT)}, {s(sWave)}, 1")
    A(f"v_and_b32 v4, 15, {v(vL)}")
    A(f"v_xor_b32 v4, {s(sT)}, v4")
    A(f"v_lshlrev_b32 v4, 4, v4")
    A(f"v_lshl_add_u32 v4, {v(vL)}, 8, v4")
    A(f"v_add_u32 v3, {PST}, v4")
    A(f"v_xor_b32 v0, 16, v3")
    npf = 0
    if not opts.get("nopf"):
        PFK = opts.get("pfk", 256)
        make_srd(A, 92, 84, 85, 1024*3584*2)
        make_srd(A, 96, 86, 87, 1024*3584*2)
        make_srd(A, 88, 6, 7, 1024*3584*2)
        A(f"v_lshlrev_b32 v4, 7, v0")
        A(f"s_lshl_b32 {s(sT)}, {s(sFid)}, 16")
        A(f"s_add_u32 {s(sT+1)}, {s(sT)}, {PFK*7168}")
        nit = -(-(1024-PFK)*7168 // (32 << 16))
        for i in range(nit):
            A(f"buffer_load_dword v3, v4, s[92:95], {s(sT+1)} offen")
            A(f"buffer_load_dword v3, v4, s[96:99], {s(sT+1)} offen")
            A(f"s_add_u32 {s(sT+1)}, {s(sT+1)}, {32<<16}")
            npf += 2
    make_srd(A, sZT, sWS, sWS+1, 1024*YP, add=WS_ZT)
    make_srd(A, sX, 4, 5, 4 << 20)
    make_srd(A, sXY, sWS, sWS+1, 4 << 20, add=WS_XY)
    W = ACC
    vI, vH4, vI2, vH42, vN2, vH4n = TMP, TMP+1, TMP+2, TMP+3, TMP+4, TMP+5
    t0, t1, t2 = TMP+6, TMP+7, TMP+8
    A(f"v_and_b32 {v(vI)}, 31, {v(vL)}")
    A(f"v_lshrrev_b32 {v(t0)}, 5, {v(vL)}")
    A(f"v_lshlrev_b32 {v(t0)}, 2, {v(t0)}")
    A(f"v_mul_u32_u24 {v(vH4)}, {v(t0)}, {v(vI)}")
    A(f"v_add_u32 {v(vI2)}, 32, {v(vI)}")
    A(f"v_mul_u32_u24 {v(vH42)}, {v(t0)}, {v(vI2)}")
    A(f"v_bfe_u32 {v(t1)}, {v(vL)}, 2, 1")
    A(f"v_lshlrev_b32 {v(t1)}, 4, {v(t1)}")
    A(f"v_bfe_u32 {v(t2)}, {v(vL)}, 3, 2")
    A(f"v_lshl_add_u32 {v(t1)}, {v(t2)}, 2, {v(t1)}")
    A(f"v_and_b32 {v(t2)}, 3, {v(vL)}")
    A(f"v_add_u32 {v(vN2)}, {v(t1)}, {v(t2)}")
    A(f"v_mul_u32_u24 {v(vH4n)}, {v(t0)}, {v(vN2)}")
    img = lambda reg: CC + ((reg - 8)//4)*1024
    def rimg(reg):
        if reg < 80: return RC + ((reg - 64)//4)*1024
        if reg < 88: return img(C32 + reg - 80)
        if reg < 96: return img(N32 + reg - 88)
        return RC + (4 + (reg - 96)//4)*1024
    jobs = []
    for u in range(2):
        jobs.append((60, lambda u=u: job_trig(A, PI(u), vI, vH4, 32, W, vOff, [('c', img(C32+4*u)), ('s', img(S32+4*u)), ('n', img(N32+4*u)), ('c', rimg(80+4*u))][:3] + [])))
    for par in range(2):
        for it in range(2):
            jobs.append((60, lambda par=par, it=it: job_trig(A, EO(it, par), vI, vH4, 64, W, vOff, [(k, img(k64(par, k, it))) for k in 'csn'])))
    for t in range(2):
        for half in range(2):
            jobs.append((52, lambda t=t, half=half: job_tw(A, DR(half, 32*t), vI, vH4, 2048, W, vOff, TW1 + t*8192 + half*2048, TW1 + t*8192 + 4096 + half*2048, sign=-1.0)))
            jobs.append((68, lambda t=t, half=half: job_tw(A, DR(half), vI if t == 0 else vI2, vH4 if t == 0 else vH42, 2048, W, vOff, TW2 + t*8192 + half*2048, TW2 + t*8192 + 4096 + half*2048, scale=2.0**-20)))
    jobs.append((64, lambda: job_trig(A, PI(0), vN2, vH4n, 32, W, vOff, [('c', rimg(64)), ('n', rimg(68)), ('s', rimg(72)), ('c', rimg(76))])))
    for half in range(2):
        jobs.append((52, lambda half=half: job_tw(A, DR(half), vN2, vH4n, 1024, W, vOff, rimg(96) + half*2048, rimg(112) + half*2048)))
    run_jobs(A, jobs, sWave, 8)
    fs = dict(stamp=opts.get("stamp") and opts.get("fine"))
    stamp(A, fs, 4)
    A("s_waitcnt vmcnt(8) lgkmcnt(0)")
    A("s_barrier")
    read_P()
    for g in range(18):
        A(f"ds_read_b128 {v(8+4*g,4)}, {v(vOff)} offset:{CC + g*1024}")
    A("s_waitcnt lgkmcnt(0)")
    A("s_barrier")
    dma_P(1)
    def zero_im():
        z = A.newlabel("zim")
        A(f"s_and_b32 {s(sT)}, {s(sCol)}, 511")
        A(f"s_cmp_lg_u32 {s(sT)}, 0")
        A(f"s_cbranch_scc1 {z}")
        for r in range(16): A(f"v_mov_b32 {v(SX+16+r)}, 0")
        A.label(z)
    zero_im()
    XS = TMP + 16 - 16
    Pr = lambda it, u: SX + (it*2+u)*4
    Pi = lambda it, u: SX + 16 + (it*2+u)*4
    Zr = lambda it, u: SZ + (it*2+u)*4
    Zi = lambda it, u: SZ + 16 + (it*2+u)*4
    Yo = lambda c, par, it: SY + ((c*2 + par)*2 + it)*4

    def tw_load(table, g):
        t, q = g >> 2, g & 3
        o = TMP + 8*(g & 1)
        A(f"ds_read_b128 {v(o,4)}, {v(vOff)} offset:{table + t*8192 + q*1024}")
        A(f"ds_read_b128 {v(o+4,4)}, {v(vOff)} offset:{table + t*8192 + (4+q)*1024}")
    def cmul4(g, eo):
        t, q = g >> 2, g & 3
        ar = accr(t) + 4*q; ai = acci(t) + 4*q; c = TMP + 8*(g & 1); sn = c + 4
        pk2(A, "mul", 4, 4, ar, c)
        pk2(A, "mul", 4, ar, ar, sn)
        pk2(A, "fma", 4, 4, ai, sn, 4, neg=[0])
        pk2(A, "fma", 4, ai, ai, c, ar)
        if eo:
            A(f"v_cvt_pk_bf16_f32 {v(Yo(0,0,t)+q)}, v4, v6")
            A(f"v_cvt_pk_bf16_f32 {v(Yo(0,1,t)+q)}, v5, v7")
            A(f"v_cvt_pk_bf16_f32 {v(Yo(1,0,t)+q)}, {v(ai)}, {v(ai+2)}")
            A(f"v_cvt_pk_bf16_f32 {v(Yo(1,1,t)+q)}, {v(ai+1)}, {v(ai+3)}")
        else:
            for p in range(2):
                A(f"v_cvt_pk_bf16_f32 {v(Zr(t,0)+2*q+p)}, {v(4+2*p)}, {v(5+2*p)}")
            for p in range(2):
                A(f"v_cvt_pk_bf16_f32 {v(Zi(t,0)+2*q+p)}, {v(ai+2*p)}, {v(ai+2*p+1)}")
    def tw_phase(table, eo):
        for g in range(8):
            A(f"s_waitcnt lgkmcnt({2 if g < 7 else 0})")
            cmul4(g, eo)
            if g+2 < 8: tw_load(table, g+2)
    def bfly():
        for c in range(2):
            e = ACC + 32*c; o = e + 16
            pk2(A, "add", 16, e, e, o)
            for r in range(16): A(f"v_fma_f32 {v(o+r)}, {v(o+r)}, -2.0, {v(e+r)}")
    A("s_mov_b32 s54, -2.0")
    A("s_mov_b32 s55, -2.0")
    lp = A.newlabel("col_loop"); cend = A.newlabel("col_end"); nopre = A.newlabel("col_nopre"); now = A.newlabel("col_now")
    A("s_nop 1")
    A.label(lp)
    stamp(A, fs, 5)
    tw_load(TW1, 0); tw_load(TW1, 1)
    for it in range(2):
        for u in range(2):
            c = "0" if u == 0 else v(accr(it),16)
            A(f"{MF} {v(accr(it),16)}, {v(Pr(it,u),4)}, {v(C32+4*u,4)}, {c}")
            c = "0" if u == 0 else v(acci(it),16)
            A(f"{MF} {v(acci(it),16)}, {v(Pi(it,u),4)}, {v(C32+4*u,4)}, {c}")
        for u in range(2):
            A(f"{MF} {v(accr(it),16)}, {v(Pi(it,u),4)}, {v(S32+4*u,4)}, {v(accr(it),16)}")
            A(f"{MF} {v(acci(it),16)}, {v(Pr(it,u),4)}, {v(N32+4*u,4)}, {v(acci(it),16)}")
    A(f"s_mov_b32 {s(sRe2)}, {s(sRe)}")
    A(f"s_mov_b32 {s(sIm2)}, {s(sIm)}")
    A(f"s_add_u32 {s(sCol)}, {s(sCol)}, {NF*8}")
    col_params(A, sCol, sRe, sIm, 38, 0)
    tw_phase(TW1, True)
    A("s_nop 1")
    def stage64(fwd):
        for par in range(2):
            for it in range(2):
                for c in range(2):
                    d = (accr if c == 0 else acci)(par)
                    cc = "0" if it == 0 else v(d,16)
                    x, y = v(k64(par,'c',it),4), v(Yo(c,par,it),4)
                    A(f"{MF} {v(d,16)}, {x}, {y}, {cc}" if fwd else f"{MF} {v(d,16)}, {y}, {x}, {cc}")
            for it in range(2):
                for c in range(2):
                    d = (accr if c == 0 else acci)(par)
                    kind = ('s' if c == 0 else 'n') if fwd else ('n' if c == 0 else 's')
                    x, y = v(k64(par,kind,it),4), v(Yo(1-c,par,it),4)
                    A(f"{MF} {v(d,16)}, {x}, {y}, {v(d,16)}" if fwd else f"{MF} {v(d,16)}, {y}, {x}, {v(d,16)}")
    stamp(A, fs, 6)
    stage64(True)
    A("s_waitcnt vmcnt(0)")
    nb = A.newlabel("col_nb")
    A(f"s_cmp_ge_u32 {s(sCol)}, 512")
    A(f"s_cbranch_scc1 {nb}")
    A("s_barrier")
    read_P()
    A.label(nb)
    def wunpack(g):
        t, q = g >> 2, g & 3
        wr = Zr(t,0) + 2*q; wi = Zi(t,0) + 2*q; o = TMP + 8*(g & 1)
        for p in range(2):
            A(f"v_lshlrev_b32 {v(o+2*p)}, 16, {v(wr+p)}")
            A(f"v_and_b32 {v(o+2*p+1)}, 0xffff0000, {v(wr+p)}")
            A(f"v_lshlrev_b32 {v(o+4+2*p)}, 16, {v(wi+p)}")
            A(f"v_and_b32 {v(o+4+2*p+1)}, 0xffff0000, {v(wi+p)}")
    wunpack(0); wunpack(1)
    bfly()
    for g in range(8):
        cmul4(g, True)
        if g+2 < 8: wunpack(g+2)
    tw_load(TW2, 0); tw_load(TW2, 1)
    stamp(A, fs, 7)
    stage64(False)
    A("s_nop 7"); A("s_nop 3")
    bfly()
    tw_phase(TW2, False)
    A("s_nop 1")
    stamp(A, fs, 8)
    for jt in range(2):
        for u in range(2):
            c = "0" if u == 0 else v(accr(jt),16)
            A(f"{MF} {v(accr(jt),16)}, {v(C32+4*u,4)}, {v(Zr(jt,u),4)}, {c}")
            c = "0" if u == 0 else v(acci(jt),16)
            A(f"{MF} {v(acci(jt),16)}, {v(C32+4*u,4)}, {v(Zi(jt,u),4)}, {c}")
        for u in range(2):
            A(f"{MF} {v(accr(jt),16)}, {v(N32+4*u,4)}, {v(Zi(jt,u),4)}, {v(accr(jt),16)}")
            A(f"{MF} {v(acci(jt),16)}, {v(S32+4*u,4)}, {v(Zr(jt,u),4)}, {v(acci(jt),16)}")
    A(f"s_mov_b32 {s(sWo)}, s38")
    A(f"s_mov_b32 {s(sWo+1)}, s39")
    load_W()
    for jt in range(2):
        if jt == 1: A("s_nop 3")
        for c in range(2):
            base = (accr(jt) if c == 0 else acci(jt))
            for p in range(8):
                A(f"v_cvt_pk_bf16_f32 {v(SY + c*16 + jt*8 + p)}, {v(base+2*p)}, {v(base+2*p+1)}")
    for c, so in enumerate((sRe2, sIm2)):
        for q in range(4):
            A(f"buffer_store_dwordx4 {v(SY + c*16 + q*4, 4)}, {v(vOff)}, {s(sZT,4)}, {s(so)} offen offset:{q*1024} sc1")
    A(f"s_cmp_ge_u32 {s(sCol)}, 512")
    A(f"s_cbranch_scc1 {cend}")
    A(f"s_branch {lp}")
    A.label(cend)
    A("s_waitcnt vmcnt(0)")
    ny_done = A.newlabel("ny_done"); norm = A.newlabel("col_norm")
    A(f"s_cmp_eq_u32 {s(sCol)}, 768")
    A(f"s_cbranch_scc1 {ny_done}")
    stamp(A, opts, 1)
    dbg_mark(A, opts, 7, 4)
    A("s_barrier")
    A(f"s_cmp_lg_u32 {s(sCol)}, 512")
    A(f"s_cbranch_scc1 {norm}")
    A(f"v_lshlrev_b32 v4, 14, {v(vL)}")
    for q in range(4):
        A(f"s_mov_b32 {s(sT)}, {q*64*16384 + 16}")
        A(f"buffer_load_dwordx4 {v(SX+q*4,4)}, v4, {s(sYT,4)}, {s(sT)} offen")
    zero_im()
    A("s_waitcnt vmcnt(0)")
    A(f"s_branch {lp}")
    A.label(ny_done)
    A("v_mov_b32 v4, 128")
    A("v_mov_b32 v5, 1")
    A("s_mov_b64 exec, 1")
    A(f"global_store_dword v4, v5, {s(sDbg,2)} sc1")
    A("s_mov_b64 exec, -1")
    A.label(norm)
    A(f"s_lshl_b32 {s(sT)}, {s(sWave)}, 6")
    A(f"v_add_u32 v0, {s(sT)}, {v(vL)}")
    for g in range(16):
        A(f"ds_read_b128 {v(64+4*g,4)}, {v(vOff)} offset:{rimg(64+4*g)}")
    sk = A.newlabel("fft_sig"); pl = A.newlabel("fft_poll")
    A(f"s_cmp_lg_u32 {s(sWave)}, 4")
    A(f"s_cbranch_scc1 {sk}")
    A("v_mov_b32 v4, 0")
    A("v_mov_b32 v5, 1")
    A("s_mov_b64 exec, 1")
    A(f"global_atomic_add v4, v5, {s(sDbg,2)} sc1")
    A.label(pl)
    A("s_sleep 2")
    A(f"global_load_dword v6, v4, {s(sDbg,2)} sc1")
    A("s_waitcnt vmcnt(0)")
    A(f"v_readfirstlane_b32 {s(sT)}, v6")
    A("s_nop 3")
    A(f"s_cmp_lt_u32 {s(sT)}, {NF}")
    A(f"s_cbranch_scc1 {pl}")
    A("s_mov_b64 exec, -1")
    A.label(sk)
    B1R, B1I, B2C, B2N, TWC, TWS = 64, 72, 80, 88, 96, 112
    A("v_lshrrev_b32 v4, 3, v0")
    A(f"v_mul_u32_u24 v5, {2*YP}, v4")
    A("v_and_b32 v6, 7, v0")
    A("v_lshlrev_b32 v7, 4, v6")
    A(f"s_lshl_b32 {s(sT)}, {s(sFid)}, 7")
    A(f"v_add3_u32 v5, v5, v7, {s(sT)}")
    A("v_lshrrev_b32 v7, 1, v4")
    A("v_xor_b32 v7, v7, v6")
    A("v_and_b32 v7, 7, v7")
    A("v_lshlrev_b32 v7, 4, v7")
    A("v_lshl_add_u32 v7, v4, 7, v7")
    A("v_add_u32 v6, 0x10000, v7")
    vXo, vRd, vRd2, vNy = 8, 9, 10, 11
    T0, T1, T2 = 12, 13, 14
    A(f"v_and_b32 {v(T0)}, 31, {v(vL)}")
    A(f"v_lshlrev_b32 {v(T1)}, 6, {v(T0)}")
    A(f"v_and_b32 {v(T2)}, 32, {v(vL)}")
    A(f"v_add_u32 {v(vXo)}, {v(T1)}, {v(T2)}")
    A(f"v_lshlrev_b32 {v(T2)}, 9, {v(T2)}")
    A(f"v_lshl_add_u32 {v(T2)}, {v(T0)}, 7, {v(T2)}")
    A(f"v_bfe_u32 {v(T1)}, {v(vL)}, 1, 3")
    A(f"v_xor_b32 {v(T1)}, {s(sWave)}, {v(T1)}")
    A(f"v_lshl_add_u32 {v(vRd)}, {v(T1)}, 4, {v(T2)}")
    A(f"v_add_u32 {v(vRd2)}, 0x10000, {v(vRd)}")
    A(f"s_lshl_b32 {s(sT)}, {s(sWave)}, 4")
    A(f"s_add_u32 {s(sT)}, {s(sT)}, 0x10000")
    A(f"v_mov_b32 {v(vNy)}, {s(sT)}")
    sChunk, sS0, sZ = 30, 31, 32
    A(f"s_lshl_b32 {s(sChunk)}, {s(sFid)}, 3")
    A(f"s_add_u32 {s(sChunk)}, {s(sChunk)}, {s(sWave)}")
    A(f"s_mov_b32 {s(sZ)}, 0")
    chunk_rows(A, sChunk, sZ, sS0, sT)
    A(f"s_lshl_b32 {s(sS0)}, {s(sS0)}, 11")
    for e in range(8):
        A(f"s_add_u32 {s(ROFF[e])}, {s(sS0)}, {(8*(e>>2) + (e&3))*64*2048}")
    XR = [[16, 24], [32, 40]]
    def xload(p):
        for rw in range(2):
            A(f"buffer_load_dwordx4 {v(XR[p%2][rw],4)}, {v(vXo)}, {s(sX,4)}, {s(ROFF[2*p+rw])} offen")
            A(f"buffer_load_dwordx4 {v(XR[p%2][rw]+4,4)}, {v(vXo)}, {s(sX,4)}, {s(ROFF[2*p+rw])} offen offset:16")
    A("s_waitcnt lgkmcnt(0)")
    A("s_barrier")
    stamp(A, opts, 2)
    for i in range(16):
        A(f"s_mov_b32 {s(sT)}, {(i&7)*64*2*YP + (i>>3)*YP}")
        A(f"buffer_load_dwordx4 {v(128+4*i,4)}, v5, {s(sZT,4)}, {s(sT)} offen sc1")
    ex = 0
    for i in range(16):
        A(f"s_waitcnt vmcnt({15-i+ex})")
        if i == 8:
            A("v_cmp_le_u32 vcc, 8, v0")
            A("s_nop 1")
            for r in range(4): A(f"v_cndmask_b32 {v(128+4*i+r)}, 0, {v(128+4*i+r)}, vcc")
        A(f"ds_write_b128 {'v7' if i < 8 else 'v6'}, {v(128+4*i,4)} offset:{(i&7)*8192}")
    sk2 = A.newlabel("fft_sig2"); pl2 = A.newlabel("fft_poll2")
    A(f"s_cmp_lg_u32 {s(sWave)}, 4")
    A(f"s_cbranch_scc1 {sk2}")
    A("v_mov_b32 v4, 128")
    A.label(pl2)
    A(f"global_load_dword v3, v4, {s(sDbg,2)} sc1")
    A("s_waitcnt vmcnt(0)")
    A(f"v_readfirstlane_b32 {s(sT)}, v3")
    A("s_nop 3")
    A(f"s_cmp_eq_u32 {s(sT)}, 0")
    A(f"s_cbranch_scc1 {pl2}")
    A.label(sk2)
    A(f"s_mov_b32 {s(sT+3)}, 0x05040100")
    A(f"s_mov_b32 {s(sT+4)}, 0x07060302")
    A("s_waitcnt lgkmcnt(0)")
    A("s_barrier")
    A(f"s_lshl_b32 {s(sT)}, {s(sChunk)}, 4")
    A(f"s_add_u32 {s(sT)}, {s(sT)}, {YP}")
    A(f"v_mov_b32 {v(vNy)}, {s(sT)}")
    A(f"buffer_load_dwordx4 v[16:19], {v(vNy)}, {s(sZT,4)}, 0 offen sc1")
    RD = 224
    OP = [48, 56]
    TR = [128, 160]; TI = [144, 176]; UR = [192, 208]; UI = [200, 216]; WK = 240
    OUT = [24, 32]
    def rdload(p):
        for r in range(16):
            c = r >> 3; k2 = 8*((r >> 2) & 1) + (r & 3)
            A(f"ds_read_b32 {v(RD+r)}, {v(vRd if c == 0 else vRd2)} offset:{k2*4096 + p*4}")
    stamp(A, fs, 9)
    rdload(0)
    for p in range(4):
        A("s_waitcnt lgkmcnt(0)")
        for q in range(8):
            A(f"v_perm_b32 {v(OP[0]+q)}, {v(RD+2*q+1)}, {v(RD+2*q)}, {s(sT+3)}")
            A(f"v_perm_b32 {v(OP[1]+q)}, {v(RD+2*q+1)}, {v(RD+2*q)}, {s(sT+4)}")
        A("s_nop 0")
        for rw in range(2):
            for u in range(2):
                c = "0" if u == 0 else v(TR[rw],16)
                A(f"{MF} {v(TR[rw],16)}, {v(OP[rw]+4*u,4)}, {v(B1R+4*u,4)}, {c}")
                c = "0" if u == 0 else v(TI[rw],16)
                A(f"{MF} {v(TI[rw],16)}, {v(OP[rw]+4*u,4)}, {v(B1I+4*u,4)}, {c}")
        if p < 3: rdload(p+1)
        else: A("s_nop 7")
        for rw in range(2):
            pk2(A, "mul", 16, WK, TR[rw], TWC)
            pk2(A, "mul", 16, TR[rw], TR[rw], TWS)
            pk2(A, "fma", 16, WK, TI[rw], TWS, WK, neg=[0])
            pk2(A, "fma", 16, TI[rw], TI[rw], TWC, TR[rw])
            for q in range(8):
                A(f"v_cvt_pk_bf16_f32 {v(UR[rw]+q)}, {v(WK+2*q)}, {v(WK+2*q+1)}")
            for q in range(8):
                A(f"v_cvt_pk_bf16_f32 {v(UI[rw]+q)}, {v(TI[rw]+2*q)}, {v(TI[rw]+2*q+1)}")
            Y = TR[rw]
            A(f"{MF} {v(Y,16)}, {v(UR[rw],4)}, {v(B2C,4)}, 0")
            A(f"{MF} {v(Y,16)}, {v(UR[rw]+4,4)}, {v(B2C+4,4)}, {v(Y,16)}")
            A(f"{MF} {v(Y,16)}, {v(UI[rw],4)}, {v(B2N,4)}, {v(Y,16)}")
            A(f"{MF} {v(Y,16)}, {v(UI[rw]+4,4)}, {v(B2N+4,4)}, {v(Y,16)}")
        if p == 0: A("s_waitcnt vmcnt(0)")
        A(f"v_lshlrev_b32 v4, 16, {v(16+p)}")
        A(f"v_and_b32 v5, 0xffff0000, {v(16+p)}")
        for rw in range(2):
            Y = TR[rw]
            for r in range(16):
                A(f"v_{'add' if r % 2 == 0 else 'sub'}_f32 {v(Y+r)}, {v(Y+r)}, {v(4+rw)}")
            for q in range(8):
                A(f"v_cvt_pk_bf16_f32 {v(OUT[rw]+q)}, {v(Y+2*q)}, {v(Y+2*q+1)}")
            A(f"buffer_store_dwordx4 {v(OUT[rw],4)}, {v(vXo)}, {s(sXY,4)}, {s(ROFF[2*p+rw])} offen")
            A(f"buffer_store_dwordx4 {v(OUT[rw]+4,4)}, {v(vXo)}, {s(sXY,4)}, {s(ROFF[2*p+rw])} offen offset:16")
    if opts.get("stamp"):
        A("s_waitcnt vmcnt(0)")
        stamp(A, opts, 3)
        stamp_store(A, opts, 10, sWS, 128, sWave)
    if not opts.get("nopf"):
        A(f"v_lshlrev_b32 v4, 7, v0")
        A(f"s_lshl_b32 {s(sT)}, {s(sFid)}, 16")
        for i in range(4):
            A(f"buffer_load_dword v3, v4, s[88:91], {s(sT)} offen")
            A(f"s_add_u32 {s(sT)}, {s(sT)}, {32<<16}")
    if opts.get("tldbg"): A("s_waitcnt vmcnt(0)")
    dbg_mark(A, opts, 8, 4)
    A(f"s_branch {done}")
```

```python
from asmlib import *
import math

from layout import *
from dbgstamp import *

def stamp(A, opts, i):
    if opts.get("stamp"):
        A(f"s_memtime s[{56+4*i}:{57+4*i}]")
        A(f"s_memrealtime s[{58+4*i}:{59+4*i}]")
def stamp_store(A, opts, n, sWS, vtmp, sWave):
    if not opts.get("stamp"): return
    A("s_waitcnt lgkmcnt(0)")
    make_srd(A, 48, sWS, sWS+1, 0x100000, add=WS_DBG)
    A(f"s_lshl_b32 s52, s2, 11")
    A(f"s_lshl_b32 s53, {s(sWave)}, 8")
    A(f"s_add_u32 s52, s52, s53")
    A(f"v_mov_b32 {v(vtmp)}, s52")
    for i in range(n):
        for j in range(4):
            A(f"v_mov_b32 {v(vtmp+2+j)}, s{56+4*i+j}")
        A(f"buffer_store_dwordx4 {v(vtmp+2,4)}, {v(vtmp)}, s[48:51], 0 offen offset:{16*i}")
        A("s_nop 1")

class GemmCore:
    def __init__(self, A, T, NWM, NWN, TM, TN, nseg, NS, ksteps, ldx, ldw, opts):
        self.A = A; self.T = T; self.NWM = NWM; self.NWN = NWN; self.TM = TM; self.TN = TN
        self.nseg = nseg; self.NS = NS; self.ksteps = ksteps; self.ldx = ldx; self.ldw = ldw; self.opts = opts
        self.NW = NWM*NWN
        self.BM = NWM*TM*T; self.BN = NWN*TN*T
        assert self.BN == nseg*128
        self.XB = self.BM*64
        self.WB = nseg*32*256
        self.SLOT = self.XB + self.WB
        self.NWD = opts.get("NWD", self.NW)
        self.XI = self.XB//1024//self.NWD
        self.WI = self.WB//1024//self.NWD
        assert self.XI*self.NWD*1024 == self.XB and self.WI*self.NWD*1024 == self.WB
        assert self.XI <= 4 and self.WI <= 4
        self.KK = 2 if T == 32 else 1
        self.accn = 16 if T == 32 else 4
        self.nacc = TM*TN*self.accn
        self.opn = (TM+TN)*4*self.KK
    def acc(self, i, j):
        return self.ACC + (i*self.TN + j)*self.accn
    def accs(self, i, j):
        r = self.acc(i, j)
        if r >= 256: return a(r-256, self.accn)
        return v(r, self.accn)
    def opX(self, rs, kk, i): return self.R[rs] + (kk*(self.TM+self.TN) + i)*4
    def opW(self, rs, kk, j): return self.R[rs] + (kk*(self.TM+self.TN) + self.TM + j)*4
    def rn(self, r, n):
        if r >= 256: return a(r-256, n)
        return v(r, n)

    def setup(self, sregs, vbase, accbase, opbase):
        A = self.A; T = self.T
        self.__dict__.update(sregs)
        self.ACC = accbase
        self.R = [opbase, opbase + self.opn]
        nsg = (self.NS*self.SLOT + 65535)//65536
        self.nsg = nsg
        p = vbase
        self.vXa = [[p + kk*nsg + g for g in range(nsg)] for kk in range(self.KK)]; p += self.KK*nsg
        self.vWa = [p + g for g in range(nsg)]; p += nsg
        self.vDx = [p + i for i in range(self.XI)]; p += self.XI
        self.vDw = [p + i for i in range(self.WI)]; p += self.WI
        t0, t1, t2, t3 = p, p+1, p+2, p+3
        self.vend = p
        vL = self.vL; sTmp = self.sTmp; sWave = self.sWave
        for i in range(self.WI):
            A(f"s_mul_i32 {s(sTmp)}, {s(sWave)}, {self.WI}")
            A(f"s_add_u32 {s(sTmp)}, {s(sTmp)}, {i}")
            A(f"s_and_b32 {s(sTmp)}, {s(sTmp)}, 7")
            A(f"v_lshrrev_b32 {v(t0)}, 4, {v(vL)}")
            if T == 32:
                A(f"v_lshlrev_b32 {v(t1)}, 2, {v(t0)}")
            else:
                A(f"s_lshl_b32 {s(sTmp+1)}, {s(sTmp)}, 1")
                A(f"s_and_b32 {s(sTmp+1)}, {s(sTmp+1)}, 4")
                A(f"v_or_b32 {v(t1)}, {s(sTmp+1)}, {v(t0)}")
                A(f"v_lshlrev_b32 {v(t1)}, 1, {v(t1)}")
            A(f"v_and_b32 {v(t2)}, 15, {v(vL)}")
            A(f"v_xor_b32 {v(t2)}, {v(t2)}, {v(t1)}")
            A(f"v_lshlrev_b32 {v(t2)}, 4, {v(t2)}")
            A(f"s_lshl_b32 {s(sTmp)}, {s(sTmp)}, 2")
            A(f"v_add_u32 {v(t0)}, {s(sTmp)}, {v(t0)}")
            A(f"v_mul_u32_u24 {v(t0)}, {self.ldw}, {v(t0)}")
            A(f"v_add_u32 {v(t0)}, {v(t0)}, {v(t2)}")
            A(f"s_add_u32 {s(sTmp)}, {s(self.sCol0)}, {4096 - 1024*i}")
            A(f"v_add_u32 {v(self.vDw[i])}, {s(sTmp)}, {v(t0)}")
        kst = self.ldx // 64
        A(f"v_lshlrev_b32 {v(t0)}, 4, {v(vL)}")
        A(f"s_mul_i32 {s(sTmp)}, {s(self.sRow0)}, {self.ldx}")
        A(f"s_mul_i32 {s(sTmp+1)}, {s(sWave)}, {self.XI*1024}")
        A(f"s_add_u32 {s(sTmp)}, {s(sTmp)}, {s(sTmp+1)}")
        A(f"v_add_u32 {v(t0)}, {s(sTmp)}, {v(t0)}")
        for i in range(self.XI):
            A(f"v_add_u32 {v(self.vDx[i])}, {hex(self.xoff)}, {v(t0)}")
        if T == 32:
            A(f"v_and_b32 {v(t0)}, 31, {v(vL)}")
            A(f"v_lshlrev_b32 {v(t0)}, 6, {v(t0)}")
            A(f"v_lshrrev_b32 {v(t1)}, 5, {v(vL)}")
            A(f"v_lshrrev_b32 {v(t2)}, 2, {v(vL)}")
            A(f"v_and_b32 {v(t2)}, 3, {v(t2)}")
            A(f"v_xor_b32 {v(t2)}, {v(t2)}, {v(t1)}")
            A(f"v_lshlrev_b32 {v(t2)}, 4, {v(t2)}")
            A(f"v_add_u32 {v(t0)}, {v(t0)}, {v(t2)}")
            A(f"s_mul_i32 {s(sTmp)}, {s(self.sWm)}, {self.TM*32*64}")
            A(f"v_add_u32 {v(self.vXa[0][0])}, {s(sTmp)}, {v(t0)}")
            A(f"v_xor_b32 {v(self.vXa[1][0])}, 32, {v(self.vXa[0][0])}")
        else:
            A(f"v_and_b32 {v(t0)}, 15, {v(vL)}")
            A(f"v_lshlrev_b32 {v(t0)}, 6, {v(t0)}")
            A(f"v_lshrrev_b32 {v(t1)}, 4, {v(vL)}")
            A(f"v_lshrrev_b32 {v(t2)}, 2, {v(vL)}")
            A(f"v_and_b32 {v(t2)}, 2, {v(t2)}")
            A(f"v_xor_b32 {v(t2)}, {v(t2)}, {v(t1)}")
            A(f"v_lshlrev_b32 {v(t2)}, 4, {v(t2)}")
            A(f"v_add_u32 {v(t0)}, {v(t0)}, {v(t2)}")
            A(f"s_mul_i32 {s(sTmp)}, {s(self.sWm)}, {self.TM*16*64}")
            A(f"v_add_u32 {v(self.vXa[0][0])}, {s(sTmp)}, {v(t0)}")
        for kk in range(self.KK):
            for sg in range(1, nsg):
                A(f"v_add_u32 {v(self.vXa[kk][sg])}, {hex(65536*sg)}, {v(self.vXa[kk][0])}")
        tps = self.TN // self.nseg
        self.tps = tps
        A(f"v_lshrrev_b32 {v(t2)}, 2, {v(vL)}")
        A(f"v_and_b32 {v(t2)}, 3, {v(t2)}")
        if T == 32:
            assert tps in (1, 2, 4)
            A(f"v_lshrrev_b32 {v(t1)}, 5, {v(vL)}")
            A(f"v_lshlrev_b32 {v(t0)}, 11, {v(t1)}")
            A(f"v_lshlrev_b32 {v(t3)}, 8, {v(t2)}")
            A(f"v_add_u32 {v(t0)}, {v(t0)}, {v(t3)}")
            A(f"s_mul_i32 {s(sTmp)}, {s(self.sWn)}, {tps}")
            A(f"v_xor_b32 {v(t3)}, {s(sTmp)}, {v(t2)}")
            A(f"v_lshlrev_b32 {v(t3)}, 6, {v(t3)}")
            A(f"v_add_u32 {v(t0)}, {v(t0)}, {v(t3)}")
            A(f"v_and_b32 {v(t3)}, 1, {v(vL)}")
            A(f"v_lshlrev_b32 {v(t3)}, 5, {v(t3)}")
            A(f"v_add_u32 {v(t0)}, {v(t0)}, {v(t3)}")
            A(f"v_and_b32 {v(t3)}, 16, {v(vL)}")
            A(f"v_add_u32 {v(t0)}, {v(t0)}, {v(t3)}")
            A(f"v_and_b32 {v(t3)}, 2, {v(vL)}")
            A(f"v_lshlrev_b32 {v(t3)}, 2, {v(t3)}")
            A(f"v_add_u32 {v(t0)}, {v(t0)}, {v(t3)}")
            self.wxor = 64
        else:
            A(f"v_lshrrev_b32 {v(t1)}, 4, {v(vL)}")
            A(f"v_lshlrev_b32 {v(t0)}, 11, {v(t1)}")
            A(f"v_lshlrev_b32 {v(t3)}, 8, {v(t2)}")
            A(f"v_add_u32 {v(t0)}, {v(t0)}, {v(t3)}")
            A(f"v_and_b32 {v(t3)}, 1, {v(t1)}")
            A(f"v_lshlrev_b32 {v(t3)}, 2, {v(t3)}")
            A(f"v_or_b32 {v(t3)}, {v(t3)}, {v(t2)}")
            A(f"s_mul_i32 {s(sTmp)}, {s(self.sWn)}, {tps}")
            A(f"v_xor_b32 {v(t3)}, {s(sTmp)}, {v(t3)}")
            A(f"v_lshlrev_b32 {v(t3)}, 5, {v(t3)}")
            A(f"v_add_u32 {v(t0)}, {v(t0)}, {v(t3)}")
            A(f"v_and_b32 {v(t3)}, 3, {v(vL)}")
            A(f"v_lshlrev_b32 {v(t3)}, 3, {v(t3)}")
            A(f"v_add_u32 {v(t0)}, {v(t0)}, {v(t3)}")
            self.wxor = 32
        self.vWj = [[None]*nsg for _ in range(tps)]
        q = self.vend
        A(f"v_add_u32 {v(self.vWa[0])}, {hex(self.XB)}, {v(t0)}")
        self.vWj[0][0] = self.vWa[0]
        for sg in range(1, nsg):
            A(f"v_add_u32 {v(self.vWa[sg])}, {hex(65536*sg)}, {v(self.vWa[0])}")
            self.vWj[0][sg] = self.vWa[sg]
        for jt in range(1, tps):
            for sg in range(nsg):
                A(f"v_xor_b32 {v(q)}, {jt*self.wxor}, {v(self.vWa[sg])}")
                self.vWj[jt][sg] = q; q += 1
        self.vend = q
        A(f"s_mul_i32 {s(self.sM0x)}, {s(sWave)}, {1024*self.XI}")
        A(f"s_mul_i32 {s(self.sM0w)}, {s(sWave)}, {1024*self.WI}")
        A(f"s_add_u32 {s(self.sM0w)}, {s(self.sM0w)}, {self.XB}")

    def dma(self, slot):
        o = []
        o.append(f"s_add_u32 m0, {s(self.sM0w)}, {hex(slot*self.SLOT)}")
        o.append("s_nop 0")
        for i in range(self.WI):
            o.append(f"buffer_load_dwordx4 {v(self.vDw[i])}, {s(self.sW,4)}, {s(self.sKw)} offen offset:{1024*i} lds")
        o.append(f"s_add_u32 m0, {s(self.sM0x)}, {hex(slot*self.SLOT)}")
        o.append(f"s_add_u32 {s(self.sKw)}, {s(self.sKw)}, {32*self.ldw}")
        for i in range(self.XI):
            o.append(f"buffer_load_dwordx4 {v(self.vDx[i])}, {s(self.sX,4)}, {s(self.sKx)} offen offset:{1024*i} lds")
        o.append(f"s_add_u32 {s(self.sKx)}, {s(self.sKx)}, {self.XB}")
        return o
    def reads(self, slot, rs):
        sg, so = divmod(slot*self.SLOT, 65536)
        T = self.T
        out = []
        for kk in range(self.KK):
            X = [f"ds_read_b128 {self.rn(self.opX(rs,kk,i),4)}, {v(self.vXa[kk][sg])} offset:{so + i*T*64}" for i in range(self.TM)]
            W = []
            for j in range(self.TN):
                seg, jt = divmod(j, self.tps)
                for e in range(2):
                    off = so + seg*8192 + (16*kk + 4*e)*256
                    W.append(f"ds_read_b64_tr_b16 {self.rn(self.opW(rs,kk,j)+2*e,2)}, {v(self.vWj[jt][sg])} offset:{off}")
            out += W + X
        for o in out:
            off = int(o.split("offset:")[1]); assert off < 65536
        return out
    def mfmas(self, rs, first=False):
        out = []
        op = "v_mfma_f32_32x32x16_bf16" if self.T == 32 else "v_mfma_f32_16x16x32_bf16"
        order = self.opts.get("order", "xs")
        for kk in range(self.KK):
            if order == "xs":
                ij = [(i, j) for i in range(self.TM) for j in range(self.TN)]
            elif order == "ws":
                ij = [(i, j) for j in range(self.TN) for i in range(self.TM)]
            elif order == "snake":
                ij = [(i, j if i % 2 == 0 else self.TN-1-j) for i in range(self.TM) for j in range(self.TN)]
            for (i, j) in ij:
                c = "0" if (first and kk == 0) else self.accs(i, j)
                out.append(f"{op} {self.accs(i,j)}, {self.rn(self.opW(rs,kk,j),4)}, {self.rn(self.opX(rs,kk,i),4)}, {c}")
        return out

    def mainloop(self, role="dma"):
        A = self.A; NS = self.NS; KS = self.ksteps; opts = self.opts
        isd = role == "dma"
        nd = self.XI + self.WI
        if isd:
            for t in range(NS):
                for ins in self.dma(t): A(ins)
            if getattr(self, "late_setup", None): self.late_setup()
            A(f"s_waitcnt vmcnt({nd*(NS-1)})")
        else:
            if getattr(self, "late_setup", None): self.late_setup()
        A(f"s_barrier")
        stamp(A, opts, 1)
        if not isd: dbg_mark(A, opts, 4, 250)
        for ins in self.reads(0, 0): A(ins)
        if not isd:
            for ins in self.pf_init: A(ins)
        def step(t, first=False, do_dma=True, last=False, vm=None):
            slot = t % NS; rs = t % 2
            mf = self.mfmas(rs, first)
            n = len(mf)
            if last:
                A(f"s_waitcnt lgkmcnt(0)")
                for ins in mf: A(ins)
                return
            A(f"s_waitcnt vmcnt({vm}) lgkmcnt(0)" if isd else "s_waitcnt lgkmcnt(0)")
            A(f"s_barrier")
            fl = []; sl = []
            rd = self.reads((t+1) % NS, 1-rs)
            r0, r1 = opts.get("rspan", (0.0, 0.6))
            for q, ins in enumerate(rd):
                fl.append(ins); sl.append(int((r0 + (r1-r0)*q/len(rd))*n))
            dm = (self.dma(slot) if do_dma else []) if isd else self.pfs
            d0, d1 = opts.get("dspan", (0.1, 0.9))
            for q, ins in enumerate(dm):
                fl.append(ins); sl.append(int((d0 + (d1-d0)*q/len(dm))*n))
            for ins in interleave(mf, fl, sl): A(ins)
        U = NS if NS % 2 == 0 else 2*NS
        ndma = KS - NS
        step(0, first=True, vm=nd*(NS-2))
        t = 1
        nl = (ndma - 1)//U
        if nl > 0:
            lp = A.newlabel("loop")
            A(f"s_mov_b32 {s(self.sLoop)}, {nl}")
            A.label(lp)
            for j in range(U):
                step(t+j, vm=nd*(NS-2))
            A(f"s_sub_u32 {s(self.sLoop)}, {s(self.sLoop)}, 1")
            A(f"s_cmp_lg_u32 {s(self.sLoop)}, 0")
            A(f"s_cbranch_scc1 {lp}")
            t += nl*U
        while t < KS:
            lastissued = min(t+NS-1, KS-1)
            vm = nd*max(0, lastissued-(t+1))
            step(t, do_dma=(t < ndma), last=(t == KS-1), vm=vm)
            t += 1

def gen_gemm1(A, name, cfg, opts):
    T = cfg["T"]; NWM = cfg["NWM"]; NWN = cfg["NWN"]
    TM = 256//NWM//T; TN = 256//NWN//T
    G = GemmCore(A, T, NWM, NWN, TM, TN, 2, cfg["NS"], 32, 2048, 7168, dict(opts, NWD=4))
    NW = NWM*NWN
    kernel_begin(A, name)
    sX, sW, sH = 8, 12, 20
    sWS = 24; sTmp = 26
    sWave, sWm, sWn = 30, 31, 32
    sMt, sNt = 37, 38
    done = A.newlabel("g1_done")
    A(f"s_cmp_ge_u32 s2, 256")
    A(f"s_cbranch_scc1 {done}")
    dbg_init(A, opts, 1); dbg_mark(A, opts, 3, 250, neg=True)
    stamp(A, opts, 0)
    A(f"s_load_dwordx4 s[4:7], s[0:1], 32")
    A(f"s_load_dwordx2 s[92:93], s[0:1], 48")
    A(f"s_load_dwordx2 {s(sWS,2)}, s[0:1], 72")
    A(f"s_and_b32 {s(sTmp)}, s2, 7")
    A(f"s_lshr_b32 {s(sTmp+1)}, s2, 3")
    fftl = A.newlabel("g1_fft")
    A(f"s_cmp_ge_u32 {s(sTmp+1)}, 28")
    A(f"s_cbranch_scc1 {fftl if opts.get('fuse') else done}")
    if opts.get('fftonly'): A(f"s_branch {done}")
    A(f"s_and_b32 {s(sMt)}, {s(sTmp)}, 1")
    A(f"s_lshl_b32 {s(sMt)}, {s(sMt)}, 2")
    A(f"s_and_b32 {s(sTmp+2)}, {s(sTmp+1)}, 3")
    A(f"s_add_u32 {s(sMt)}, {s(sMt)}, {s(sTmp+2)}")
    A(f"s_lshr_b32 {s(sNt)}, {s(sTmp)}, 1")
    A(f"s_mul_i32 {s(sNt)}, {s(sNt)}, 7")
    A(f"s_lshr_b32 {s(sTmp+2)}, {s(sTmp+1)}, 2")
    A(f"s_add_u32 {s(sNt)}, {s(sNt)}, {s(sTmp+2)}")
    if opts.get("g1map") == 2:
        A(f"s_lshr_b32 {s(sMt)}, {s(sTmp)}, 1")
        A(f"s_lshl_b32 {s(sMt)}, {s(sMt)}, 1")
        A(f"s_and_b32 {s(sTmp+2)}, {s(sTmp+1)}, 1")
        A(f"s_add_u32 {s(sMt)}, {s(sMt)}, {s(sTmp+2)}")
        A(f"s_and_b32 {s(sNt)}, {s(sTmp)}, 1")
        A(f"s_mul_i32 {s(sNt)}, {s(sNt)}, 14")
        A(f"s_lshr_b32 {s(sTmp+2)}, {s(sTmp+1)}, 1")
        A(f"s_add_u32 {s(sNt)}, {s(sNt)}, {s(sTmp+2)}")
    if NW == 8:
        accbase = 0; opbase = 128; vbase = 128 + 2*G.opn
    else:
        accbase = 256; opbase = 0; vbase = 2*G.opn
    vL = vbase; vbase += 1
    A(f"v_lshrrev_b32 {v(vbase)}, 6, v0")
    A(f"v_and_b32 {v(vL)}, 63, v0")
    A(f"s_nop 0")
    A(f"v_readfirstlane_b32 {s(sWave)}, {v(vbase)}")
    A(f"s_nop 3")
    lg = int(math.log2(NWN))
    A(f"s_lshr_b32 {s(sWm)}, {s(sWave)}, {lg}")
    A(f"s_and_b32 {s(sWn)}, {s(sWave)}, {NWN-1}")
    A(f"s_waitcnt lgkmcnt(0)")
    make_srd(A, sX, sWS, sWS+1, WS_XN + 2048*1024*2)
    A(f"s_bitcmp1_b32 {s(sWave)}, 1")
    A(f"s_cselect_b32 s4, s6, s4")
    A(f"s_cselect_b32 s5, s7, s5")
    make_srd(A, sW, 4, 5, 1024*3584*2 + 4096, add=-4096)
    make_srd(A, sH, sWS, sWS+1, 2048*3584*2, add=WS_H)
    sRow0, sCol0 = 39, 40
    A(f"s_lshl_b32 {s(sRow0)}, {s(sMt)}, 8")
    A(f"s_lshl_b32 {s(sCol0)}, {s(sNt)}, 8")
    G.setup(dict(sX=sX, sW=sW, sWave=sWave, sWm=sWm, sWn=sWn, sRow0=sRow0, sCol0=sCol0, xoff=WS_XN, vL=vL, sTmp=sTmp,
                 sM0x=33, sM0w=34, sKx=35, sKw=36, sLoop=41), vbase, accbase, opbase)
    A(f"s_mov_b32 {s(G.sKx)}, 0")
    A(f"s_mov_b32 {s(G.sKw)}, 0")
    pfl = A.newlabel("g1_pf"); epi = A.newlabel("g1_epi")
    A(f"s_cmp_ge_u32 {s(sWave)}, 4")
    A(f"s_cbranch_scc1 {pfl}")
    G.mainloop("dma")
    A(f"s_branch {epi}")
    A.label(pfl)
    DL = opts.get("pfd", 8); P0 = opts.get("pf0", 4)
    vP = G.vDx[0]; vD = G.vDx[1]; vP2 = G.vDx[2]
    A(f"s_lshl_b32 s44, {s(sMt)}, 2")
    A(f"s_and_b32 s45, {s(sWave)}, 1")
    A(f"s_lshl_b32 s45, s45, 1")
    A(f"s_add_u32 s44, s44, s45")
    A(f"v_lshrrev_b32 {v(vP)}, 5, {v(vL)}")
    A(f"v_add_u32 {v(vP)}, s44, {v(vP)}")
    A(f"v_mul_u32_u24 {v(vP)}, 7168, {v(vP)}")
    A(f"v_and_b32 {v(vD)}, 16, {v(vL)}")
    A(f"v_lshlrev_b32 {v(vD)}, 3, {v(vD)}")
    A(f"s_add_u32 s44, {s(sCol0)}, 4096")
    A(f"v_add3_u32 {v(vP)}, {v(vP)}, {v(vD)}, s44")
    A(f"s_mul_i32 s44, {s(sMt)}, 28")
    A(f"s_add_u32 s44, s44, {s(sNt)}")
    A(f"s_lshl_b32 s44, s44, 2")
    A(f"s_and_b32 s45, {s(sWave)}, 3")
    A(f"s_add_u32 s44, s44, s45")
    A(f"s_lshl_b32 s44, s44, 8")
    A(f"v_lshrrev_b32 {v(vP2)}, 5, {v(vL)}")
    A(f"v_lshlrev_b32 {v(vP2)}, 7, {v(vP2)}")
    A(f"v_add_u32 {v(vP2)}, s44, {v(vP2)}")
    make_srd(A, 16, 92, 93, 1024*3584*2)
    A(f"s_mov_b32 {s(G.sKw)}, {P0*32*7168}")
    G.pf_init = []
    for i in range(P0, 4+DL):
        G.pf_init += [f"buffer_load_dword {v(vD)}, {v(vP)}, {s(sW,4)}, {s(G.sKw)} offen", f"s_add_u32 {s(G.sKw)}, {s(G.sKw)}, {32*7168}"]
    G.pf_init += [f"buffer_load_dword {v(vD)}, {v(vP2)}, s[16:19], {s(G.sKx)} offen", f"s_add_u32 {s(G.sKx)}, {s(G.sKx)}, {32*7168}"]
    G.pfs = [f"buffer_load_dword {v(vD)}, {v(vP)}, {s(sW,4)}, {s(G.sKw)} offen", f"s_add_u32 {s(G.sKw)}, {s(G.sKw)}, {32*7168}",
             f"buffer_load_dword {v(vD)}, {v(vP2)}, s[16:19], {s(G.sKx)} offen", f"s_add_u32 {s(G.sKx)}, {s(G.sKx)}, {32*7168}"]
    if opts.get("nopf"): G.pf_init = []; G.pfs = []
    G.mainloop("pf")
    A.label(epi)
    dbg_mark(A, opts, 5, 250)
    stamp(A, opts, 2)
    if not opts.get("no_epi"):
        A(f"s_nop 15")
        E = opbase
        e0, e1, vSt, vK0 = E, E+1, E+2, E+3
        Tm = E+4; P = E+20; GB = E+28; UB = E+44
        assert T == 16
        tps = G.tps
        A(f"v_and_b32 {v(e0)}, 15, {v(vL)}")
        A(f"v_lshlrev_b32 {v(e0)}, 4, {v(e0)}")
        A(f"v_lshrrev_b32 {v(e1)}, 5, {v(vL)}")
        A(f"v_lshrrev_b32 {v(vSt)}, 3, {v(vL)}")
        A(f"v_and_b32 {v(vSt)}, 2, {v(vSt)}")
        A(f"v_or_b32 {v(e1)}, {v(e1)}, {v(vSt)}")
        A(f"v_lshlrev_b32 {v(e1)}, 8, {v(e1)}")
        A(f"v_add_u32 {v(e0)}, {v(e0)}, {v(e1)}")
        assert TM == 8
        A(f"s_lshl_b32 {s(sTmp)}, {s(sMt)}, 1")
        A(f"s_add_u32 {s(sTmp)}, {s(sTmp)}, {s(sWm)}")
        A(f"s_mul_i32 {s(sTmp)}, {s(sTmp)}, 112")
        A(f"s_lshl_b32 {s(sTmp+1)}, {s(sNt)}, 2")
        A(f"s_add_u32 {s(sTmp)}, {s(sTmp)}, {s(sTmp+1)}")
        A(f"s_mul_i32 {s(sTmp+1)}, {s(sWn)}, {tps//2}")
        A(f"s_add_u32 {s(sTmp)}, {s(sTmp)}, {s(sTmp+1)}")
        A(f"s_lshl_b32 {s(sTmp)}, {s(sTmp)}, 13")
        A(f"v_add_u32 {v(vSt)}, {s(sTmp)}, {v(e0)}")
        k0 = -2.0*math.log2(math.e)*math.sqrt(2.0/math.pi)
        k1 = k0*0.044715
        sK1, sRow = 42, 43
        A(f"s_mov_b32 {s(sK1)}, {f32(k1)}")
        A(f"v_mov_b32 {v(vK0)}, {f32(k0)}")
        groups = []
        if T == 32:
            for i in range(TM):
                for jt in range(tps):
                    groups.append((i, jt, [G.acc(i, jt)+r for r in range(16)], [G.acc(i, tps+jt)+r for r in range(16)]))
        else:
            for i in range(0, TM, 2):
                for jt in range(0, tps, 2):
                    gr = []; ur = []
                    for ii in (i, i+1):
                        for jj in (jt, jt+1):
                            gr += [G.acc(ii, jj)+r for r in range(4)]
                            ur += [G.acc(ii, tps+jj)+r for r in range(4)]
                    groups.append((i, jt, gr, ur))
        for gi, (i, jt, gr, ur) in enumerate(groups):
            if accbase >= 256:
                for r in range(16):
                    A(f"v_accvgpr_read_b32 {v(GB+r)}, {a(gr[r]-256)}")
                    A(f"v_accvgpr_read_b32 {v(UB+r)}, {a(ur[r]-256)}")
                gr = [GB+r for r in range(16)]; ur = [UB+r for r in range(16)]
            for half in range(2):
                rr = range(half*8, half*8+8)
                for r in rr: A(f"v_mul_f32 {v(Tm+r)}, {v(gr[r])}, {v(gr[r])}")
                for r in rr: A(f"v_fma_f32 {v(Tm+r)}, {v(Tm+r)}, {s(sK1)}, {v(vK0)}")
                for r in rr: A(f"v_mul_f32 {v(Tm+r)}, {v(Tm+r)}, {v(gr[r])}")
                for r in rr: A(f"v_exp_f32 {v(Tm+r)}, {v(Tm+r)}")
                for r in rr: A(f"v_mul_f32 {v(ur[r])}, {v(ur[r])}, {v(gr[r])}")
                for r in rr: A(f"v_add_f32 {v(Tm+r)}, 1.0, {v(Tm+r)}")
                for r in rr: A(f"v_rcp_f32 {v(Tm+r)}, {v(Tm+r)}")
                A("s_nop 0")
                for r in rr: A(f"v_mul_f32 {v(Tm+r)}, {v(Tm+r)}, {v(ur[r])}")
                for r in range(half*8, half*8+8, 2):
                    A(f"v_cvt_pk_bf16_f32 {v(P + r//2)}, {v(Tm+r)}, {v(Tm+r+1)}")
            if T == 32:
                A(f"s_mov_b32 {s(sRow)}, {i*32*7168 + jt*64}")
                for uu in range(2):
                    A(f"buffer_store_dwordx4 {v(P+4*uu,4)}, {v(vSt)}, {s(sH,4)}, {s(sRow)} offen offset:{uu*16}")
            else:
                A("s_nop 1")
                for ii in range(2):
                    b = P + 4*ii
                    A(f"v_permlane16_swap_b32 {v(b)}, {v(b+2)}")
                    A(f"v_permlane16_swap_b32 {v(b+1)}, {v(b+3)}")
                for ii in range(2):
                    A(f"s_mov_b32 {s(sRow)}, {(i+ii)*1024 + (jt//2)*8192}")
                    A(f"buffer_store_dwordx4 {v(P+4*ii,4)}, {v(vSt)}, {s(sH,4)}, {s(sRow)} offen {opts.get('hfl','').replace('_',' ')}")
            A("s_nop 1")
    if opts.get("stamp"):
        A("s_waitcnt vmcnt(0)")
        stamp(A, opts, 3)
        stamp_store(A, opts, 11, sWS, opbase, sWave)
    if opts.get("tldbg"): A("s_waitcnt vmcnt(0)")
    dbg_mark(A, opts, 6, 250)
    A.label(done)
    A("s_endpgm")
    if opts.get('fuse'):
        from fft2 import gen_fft_role2 as gen_fft_role
        A.label(fftl)
        A("s_waitcnt lgkmcnt(0)")
        A(f"s_sub_u32 s42, {s(sTmp+1)}, 28")
        A(f"s_lshl_b32 {s(sTmp)}, {s(sTmp)}, 2")
        A(f"s_add_u32 s42, s42, {s(sTmp)}")
        o = dict(opts); o["stamp"] = opts.get("stampf"); o["nopf"] = True
        gen_fft_role(A, o, 42, done)
    return G

def gen_gemm2(A, name, cfg, opts):
    T = 16; NWM = cfg["NWM"]; NWN = cfg["NWN"]; BM = cfg["BM"]
    TM = BM//NWM//T; TN = 128//NWN//T
    G = GemmCore(A, T, NWM, NWN, TM, TN, 1, cfg["NS"], 112, 7168, 2048, opts)
    NW = NWM*NWN
    nmt = 2048//BM
    nwg = nmt*8
    kernel_begin(A, name)
    sX, sW, sO, sXY = 8, 12, 16, 20
    sWS = 24; sTmp = 26
    sWave, sWm, sWn = 30, 31, 32
    sMt, sNt = 37, 38
    done = A.newlabel("g2_done")
    A(f"s_cmp_ge_u32 s2, {nwg}")
    A(f"s_cbranch_scc1 {done}")
    stamp(A, opts, 0)
    A(f"s_load_dwordx4 s[4:7], s[0:1], 48")
    A(f"s_load_dwordx2 {s(sWS,2)}, s[0:1], 72")
    A(f"s_and_b32 {s(sTmp)}, s2, 7")
    A(f"s_lshr_b32 {s(sTmp+1)}, s2, 3")
    A(f"s_and_b32 {s(sNt)}, {s(sTmp)}, 1")
    A(f"s_lshl_b32 {s(sNt)}, {s(sNt)}, 2")
    A(f"s_and_b32 {s(sTmp+2)}, {s(sTmp+1)}, 3")
    A(f"s_add_u32 {s(sNt)}, {s(sNt)}, {s(sTmp+2)}")
    A(f"s_lshr_b32 {s(sMt)}, {s(sTmp)}, 1")
    A(f"s_mul_i32 {s(sMt)}, {s(sMt)}, {nmt//4}")
    A(f"s_lshr_b32 {s(sTmp+2)}, {s(sTmp+1)}, 2")
    A(f"s_add_u32 {s(sMt)}, {s(sMt)}, {s(sTmp+2)}")
    accbase = 0; opbase = G.nacc; XYR = opbase + 2*G.opn; nxy = TM*TN*2
    vbase = XYR + nxy
    vL = vbase; vSt = vbase+1; vbase += 2
    A(f"v_lshrrev_b32 {v(vbase)}, 6, v0")
    A(f"v_and_b32 {v(vL)}, 63, v0")
    A(f"s_nop 0")
    A(f"v_readfirstlane_b32 {s(sWave)}, {v(vbase)}")
    A(f"s_nop 3")
    lg = int(math.log2(NWN))
    A(f"s_lshr_b32 {s(sWm)}, {s(sWave)}, {lg}")
    A(f"s_and_b32 {s(sWn)}, {s(sWave)}, {NWN-1}")
    sRow0, sCol0 = 39, 40
    A(f"s_mul_i32 {s(sRow0)}, {s(sMt)}, {BM}")
    A(f"s_lshl_b32 {s(sCol0)}, {s(sNt)}, 8")
    e0, e1 = vbase, vbase+1
    A(f"v_and_b32 {v(e0)}, 15, {v(vL)}")
    A(f"s_mul_i32 {s(sTmp)}, {s(sWm)}, {TM*16}")
    A(f"s_add_u32 {s(sTmp)}, {s(sTmp)}, {s(sRow0)}")
    A(f"v_add_u32 {v(e0)}, {s(sTmp)}, {v(e0)}")
    A(f"v_lshlrev_b32 {v(e0)}, 11, {v(e0)}")
    A(f"v_lshrrev_b32 {v(e1)}, 5, {v(vL)}")
    A(f"v_lshlrev_b32 {v(e1)}, 4, {v(e1)}")
    A(f"v_add_u32 {v(e0)}, {v(e0)}, {v(e1)}")
    A(f"v_and_b32 {v(e1)}, 16, {v(vL)}")
    A(f"v_lshlrev_b32 {v(e1)}, 1, {v(e1)}")
    A(f"v_add_u32 {v(e0)}, {v(e0)}, {v(e1)}")
    A(f"s_mul_i32 {s(sTmp)}, {s(sWn)}, {TN*32}")
    A(f"s_add_u32 {s(sTmp)}, {s(sTmp)}, {s(sCol0)}")
    A(f"v_add_u32 {v(vSt)}, {s(sTmp)}, {v(e0)}")
    A(f"s_waitcnt lgkmcnt(0)")
    make_srd(A, sX, sWS, sWS+1, WS_H + 2048*3584*2)
    make_srd(A, sW, 4, 5, 3584*1024*2 + 4096, add=-4096)
    make_srd(A, sO, 6, 7, 2048*1024*2)
    make_srd(A, sXY, sWS, sWS+1, 2048*1024*2, add=WS_XY)
    G.setup(dict(sX=sX, sW=sW, sWave=sWave, sWm=sWm, sWn=sWn, sRow0=sRow0, sCol0=sCol0, xoff=WS_H, vL=vL, sTmp=sTmp,
                 sM0x=33, sM0w=34, sKx=35, sKw=36, sLoop=41), vbase, accbase, opbase)
    A(f"s_mov_b32 {s(G.sKx)}, 0")
    A(f"s_mov_b32 {s(G.sKw)}, 0")
    sRow = 43
    for i in range(TM):
        A(f"s_mov_b32 {s(sRow+i)}, {i*16*2048}")
    for i in range(TM):
        for jp in range(TN//2):
            A(f"buffer_load_dwordx4 {v(XYR + (i*(TN//2)+jp)*4, 4)}, {v(vSt)}, {s(sXY,4)}, {s(sRow+i)} offen offset:{jp*64}")
    G.mainloop()
    stamp(A, opts, 2)
    A("s_nop 7")
    E = opbase
    for i in range(TM):
        for jp in range(TN//2):
            P = E + ((i*(TN//2)+jp) % 2)*24; Tm = P + 4
            a0 = G.acc(i, 2*jp); a1 = G.acc(i, 2*jp+1)
            A(f"v_cvt_pk_bf16_f32 {v(P)}, {v(a0)}, {v(a0+1)}")
            A(f"v_cvt_pk_bf16_f32 {v(P+1)}, {v(a0+2)}, {v(a0+3)}")
            A(f"v_cvt_pk_bf16_f32 {v(P+2)}, {v(a1)}, {v(a1+1)}")
            A(f"v_cvt_pk_bf16_f32 {v(P+3)}, {v(a1+2)}, {v(a1+3)}")
            xy = XYR + (i*(TN//2)+jp)*4
            for p in range(4):
                A(f"v_lshlrev_b32 {v(Tm+8+2*p)}, 16, {v(xy+p)}")
                A(f"v_and_b32 {v(Tm+8+2*p+1)}, 0xffff0000, {v(xy+p)}")
            A(f"v_permlane16_swap_b32 {v(P)}, {v(P+2)}")
            A(f"v_permlane16_swap_b32 {v(P+1)}, {v(P+3)}")
            A("s_nop 0")
            for p in range(4):
                A(f"v_lshlrev_b32 {v(Tm+2*p)}, 16, {v(P+p)}")
                A(f"v_and_b32 {v(Tm+2*p+1)}, 0xffff0000, {v(P+p)}")
            for r in range(8):
                A(f"v_add_f32 {v(Tm+r)}, {v(Tm+r)}, {v(Tm+8+r)}")
            for p in range(4):
                A(f"v_cvt_pk_bf16_f32 {v(xy+p)}, {v(Tm+2*p)}, {v(Tm+2*p+1)}")
            A(f"buffer_store_dwordx4 {v(xy,4)}, {v(vSt)}, {s(sO,4)}, {s(sRow+i)} offen offset:{jp*64}")
    if opts.get("stamp"):
        A("s_waitcnt vmcnt(0)")
        stamp(A, opts, 3)
        stamp_store(A, opts, 11, sWS, opbase, sWave)
    A.label(done)
    A("s_endpgm")
    return G

def parse_opts(args):
    opts = {}
    for o in args:
        if "=" in o:
            k, val = o.split("=", 1)
            try: opts[k] = eval(val)
            except Exception: opts[k] = val
        else: opts[o] = True
    return opts

if __name__ == "__main__":
    import sys
    opts = parse_opts(sys.argv[2:])
    cfg = dict(T=opts.get("T", 16), NWM=opts.get("NWM", 2), NWN=opts.get("NWN", 4), NS=opts.get("NS", 4))
    NW = cfg["NWM"]*cfg["NWN"]
    A = Asm()
    A.raw(f"; @launch kernel=g1_kernel grid=(256,1,1) block=({NW*64},1,1) lds={cfg['NS']*32768}")
    A.raw('.amdgcn_target "amdgcn-amd-amdhsa--gfx950"')
    A.raw(".text")
    G = gen_gemm1(A, "g1_kernel", cfg, opts)
    print("vend", G.vend)
    A.raw('.section .rodata,"a"')
    A.raw(kernel_desc("g1_kernel", 256 if NW == 8 else 512, accum=256))
    open(sys.argv[1], "w").write(A.text())
```

```python
from asmlib import *
from layout import *
from dbgstamp import *
from gemm import stamp, stamp_store
import math
MF = "v_mfma_f32_16x16x32_bf16"

def gen_gemm2c(A, name, opts):
    NS = opts.get("NS2", 4); XR = opts.get("XR", 4)
    NT = 14
    PRO = opts.get("PRO", 2)
    SLOT = 32768
    kernel_begin(A, name)
    sX, sW, sO, sXY, sP = 8, 12, 16, 20, 44
    sWS = 24; sTmp = 26
    sWave = 30; sMt, sNt, sHk = 31, 32, 33
    sM0 = 34; sKx, sKw, sKx2 = 35, 36, 37
    sG, sWr = 38, 39
    sFl = 42
    sPs, sPr, sFs, sFr = 48, 49, 50, 51
    ACC = 0
    WOP = [64, 96]
    XRG = 128
    XYR = XRG + XR*16
    b = XYR + 16
    vL, vSt, vXo = b, b+1, b+2
    vDw = [b+4, b+5, b+6, b+7]
    vWa = [list(range(b+8, b+16)), list(range(b+16, b+24))]
    t0, t1, t2, t3 = b+24, b+25, b+26, b+27
    vPo, vPo2, vEx = b+28, b+29, b+30
    assert b+31 <= 256
    def xr(t, kk, i): return v(XRG + (t % XR)*16 + (kk*2+i)*4, 4)
    done = A.newlabel("g2_done")
    A(f"s_cmp_ge_u32 s2, 256")
    A(f"s_cbranch_scc1 {done}")
    dbg_init(A, opts, 2); dbg_mark(A, opts, 9, 250, neg=True)
    stamp(A, opts, 0)
    A(f"s_load_dwordx4 s[4:7], s[0:1], 48")
    A(f"s_load_dwordx2 {s(sWS,2)}, s[0:1], 72")
    A(f"s_load_dwordx2 s[92:93], s[0:1], 0")
    A(f"v_lshrrev_b32 {v(t0)}, 6, v0")
    A(f"v_and_b32 {v(vL)}, 63, v0")
    A(f"s_and_b32 {s(sTmp)}, s2, 7")
    A(f"v_readfirstlane_b32 {s(sWave)}, {v(t0)}")
    A(f"s_lshr_b32 {s(sTmp+1)}, s2, 3")
    A(f"s_and_b32 {s(sHk)}, {s(sTmp)}, 1")
    A(f"s_lshr_b32 {s(sMt)}, {s(sTmp)}, 1")
    A(f"s_lshl_b32 {s(sMt)}, {s(sMt)}, 2")
    A(f"s_and_b32 {s(sTmp+2)}, {s(sTmp+1)}, 3")
    A(f"s_add_u32 {s(sMt)}, {s(sMt)}, {s(sTmp+2)}")
    A(f"s_lshr_b32 {s(sNt)}, {s(sTmp+1)}, 2")
    A(f"s_lshr_b32 {s(sG)}, {s(sWave)}, 2")
    A(f"s_and_b32 {s(sWr)}, {s(sWave)}, 3")
    sWb, sWe, sXb, sXe, sXb2, sXe2 = 52, 53, 54, 55, 40, 41
    ra, rb = opts.get("rot2", (0, 0))
    A(f"s_mul_i32 {s(sWb)}, {s(sHk)}, {14<<18}")
    A(f"s_mul_i32 {s(sXb)}, {s(sHk)}, {14<<15}")
    A(f"s_add_u32 {s(sWe)}, {s(sWb)}, {14<<18}")
    A(f"s_add_u32 {s(sXe)}, {s(sXb)}, {14<<15}")
    A(f"s_add_u32 {s(sXb2)}, {s(sXb)}, 8192")
    A(f"s_add_u32 {s(sXe2)}, {s(sXe)}, 8192")
    A(f"s_xor_b32 {s(sTmp)}, {s(sMt)}, {s(sNt)}")
    A(f"s_and_b32 {s(sTmp+1)}, {s(sTmp)}, 1")
    A(f"s_mul_i32 {s(sTmp+1)}, {s(sTmp+1)}, {ra}")
    A(f"s_bfe_u32 {s(sTmp)}, {s(sTmp)}, 0x10001")
    A(f"s_mul_i32 {s(sTmp)}, {s(sTmp)}, {rb}")
    A(f"s_add_u32 {s(sTmp)}, {s(sTmp)}, {s(sTmp+1)}")
    A(f"s_lshl_b32 {s(sTmp+1)}, {s(sTmp)}, 18")
    A(f"s_add_u32 {s(sKw)}, {s(sWb)}, {s(sTmp+1)}")
    A(f"s_lshl_b32 {s(sTmp+1)}, {s(sTmp)}, 15")
    A(f"s_add_u32 {s(sKx)}, {s(sXb)}, {s(sTmp+1)}")
    A(f"s_add_u32 {s(sKx2)}, {s(sKx)}, 8192")
    wraps = set()
    for o_ in {0, ra, rb, ra+rb}:
        if o_: wraps.add(14 - o_ - 1)
    A(f"v_lshrrev_b32 {v(t0)}, 4, {v(vL)}")
    A(f"v_lshlrev_b32 {v(t1)}, 1, {v(t0)}")
    A(f"v_and_b32 {v(t2)}, 15, {v(vL)}")
    A(f"v_xor_b32 {v(t2)}, {v(t2)}, {v(t1)}")
    A(f"v_lshlrev_b32 {v(t2)}, 4, {v(t2)}")
    A(f"s_lshl_b32 {s(sTmp)}, {s(sWave)}, 4")
    A(f"v_add_u32 {v(t0)}, {s(sTmp)}, {v(t0)}")
    A(f"v_lshlrev_b32 {v(t0)}, 11, {v(t0)}")
    A(f"s_lshl_b32 {s(sTmp)}, {s(sNt)}, 8")
    A(f"v_add3_u32 {v(t0)}, {v(t0)}, {v(t2)}, {s(sTmp)}")
    A(f"v_xor_b32 {v(t1)}, 128, {v(t0)}")
    for i in range(4):
        A(f"v_add_u32 {v(vDw[i])}, {i*4*2048 - i*1024}, {v(t1 if i & 2 else t0)}")
    A(f"s_lshl_b32 {s(sM0)}, {s(sWave)}, 12")
    A(f"s_mul_i32 {s(sTmp)}, {s(sMt)}, {112*8192}")
    A(f"s_lshl_b32 {s(sTmp+1)}, {s(sWr)}, 10")
    A(f"s_add_u32 {s(sTmp)}, {s(sTmp)}, {s(sTmp+1)}")
    A(f"s_lshl_b32 {s(sTmp+1)}, {s(sHk)}, 12")
    A(f"s_add_u32 {s(sTmp)}, {s(sTmp)}, {s(sTmp+1)}")
    A(f"s_lshl_b32 {s(sTmp+1)}, {s(sG)}, 14")
    A(f"s_add_u32 {s(sTmp)}, {s(sTmp)}, {s(sTmp+1)}")
    A(f"v_lshlrev_b32 {v(vPo)}, 4, {v(vL)}")
    A(f"v_add_u32 {v(vXo)}, {s(sTmp)}, {v(vPo)}")
    A(f"v_xor_b32 {v(vXo+1)}, 0x1000, {v(vXo)}")
    A(f"s_waitcnt lgkmcnt(0)")
    make_srd(A, sW, 4, 5, 3584*1024*2)
    make_srd(A, sX, sWS, sWS+1, 2048*3584*2, add=WS_H)
    def dma(t):
        slot = t % NS
        o = [f"s_add_u32 m0, {s(sM0)}, {slot*SLOT}", "s_nop 0"]
        for i in range(4):
            o.append(f"buffer_load_dwordx4 {v(vDw[i])}, {s(sW,4)}, {s(sKw)} offen offset:{1024*i} lds")
        adv = f"s_add_u32 {s(sKw)}, {s(sKw)}, {1<<18}"
        if t in wraps: adv += f"\n    s_cmp_eq_u32 {s(sKw)}, {s(sWe)}\n    s_cselect_b32 {s(sKw)}, {s(sWb)}, {s(sKw)}"
        o.append(adv)
        return o
    def xload(t, kk):
        o = [f"buffer_load_dwordx4 {xr(t,kk,i)}, {v(vXo+i)}, {s(sX,4)}, {s(sKx if kk == 0 else sKx2)} offen" for i in range(2)]
        r = sKx if kk == 0 else sKx2
        adv = f"s_add_u32 {s(r)}, {s(r)}, {1<<15}"
        e_, b_ = (sXe, sXb) if kk == 0 else (sXe2, sXb2)
        if t in wraps: adv += f"\n    s_cmp_eq_u32 {s(r)}, {s(e_)}\n    s_cselect_b32 {s(r)}, {s(b_)}, {s(r)}"
        o.append(adv)
        return o
    def wreads(t, kk):
        sg, so = divmod((t % NS)*SLOT, 65536)
        return [f"ds_read_b64_tr_b16 {v(WOP[kk] + j*4 + 2*e, 2)}, {v(vWa[sg][j])} offset:{so + (32*kk + 4*e)*256}"
                for j in range(8) for e in range(2)]
    log = []
    def emit(ins, tag=None):
        A(ins)
        if ins.startswith("buffer_") or ins.startswith("global_"):
            log.append(tag)
    def cnt_after(tags):
        last = max([i for i, t in enumerate(log) if t in tags] + [-1])
        return min(63, len(log) - 1 - last)
    def group(t):
        o = [(ins, ('w', t)) for ins in dma(t)]
        if t < XR:
            for kk in range(2): o += [(ins, ('x', t, kk)) for ins in xload(t, kk)]
        return o
    for t in range(PRO):
        for ins, tg in group(t): emit(ins, tg)
    pending = []
    for t in range(PRO, NS): pending += group(t)
    make_srd(A, sO, 6, 7, 2048*1024*2)
    make_srd(A, 88, 92, 93, 2048*1024*2)
    make_srd(A, sXY, sWS, sWS+1, 2048*1024*2, add=WS_XY)
    make_srd(A, sP, sWS, sWS+1, 256*32768, add=WS_PART)
    A(f"s_add_u32 {s(sFl)}, {s(sWS)}, {hex(WS_FLAG)}")
    A(f"s_addc_u32 {s(sFl+1)}, {s(sWS+1)}, 0")
    A(f"v_lshrrev_b32 {v(t0)}, 4, {v(vL)}")
    A(f"v_bfe_u32 {v(t1)}, {v(vL)}, 2, 2")
    A(f"v_lshlrev_b32 {v(t2)}, 11, {v(t0)}")
    A(f"v_lshlrev_b32 {v(t3)}, 8, {v(t1)}")
    A(f"s_lshl_b32 {s(sTmp)}, {s(sG)}, 14")
    A(f"v_add3_u32 {v(t2)}, {v(t2)}, {v(t3)}, {s(sTmp)}")
    A(f"v_and_b32 {v(t0)}, 1, {v(t0)}")
    A(f"v_lshl_or_b32 {v(t1)}, {v(t0)}, 2, {v(t1)}")
    A(f"v_lshlrev_b32 {v(t1)}, 5, {v(t1)}")
    A(f"v_and_b32 {v(t3)}, 3, {v(vL)}")
    A(f"v_lshlrev_b32 {v(t3)}, 3, {v(t3)}")
    A(f"v_add3_u32 {v(vWa[0][0])}, {v(t2)}, {v(t1)}, {v(t3)}")
    for j in range(1, 8):
        A(f"v_xor_b32 {v(vWa[0][j])}, {32*j}, {v(vWa[0][0])}")
    for j in range(8):
        A(f"v_add_u32 {v(vWa[1][j])}, 0x10000, {v(vWa[0][j])}")
    A(f"v_and_b32 {v(t0)}, 15, {v(vL)}")
    A(f"s_lshl_b32 {s(sTmp)}, {s(sMt)}, 7")
    A(f"s_lshl_b32 {s(sTmp+1)}, {s(sWr)}, 4")
    A(f"s_add_u32 {s(sTmp)}, {s(sTmp)}, {s(sTmp+1)}")
    A(f"s_lshl_b32 {s(sTmp+1)}, {s(sHk)}, 6")
    A(f"s_add_u32 {s(sTmp)}, {s(sTmp)}, {s(sTmp+1)}")
    A(f"v_add_u32 {v(t0)}, {s(sTmp)}, {v(t0)}")
    A(f"v_lshlrev_b32 {v(t0)}, 11, {v(t0)}")
    A(f"v_lshrrev_b32 {v(t1)}, 5, {v(vL)}")
    A(f"v_lshlrev_b32 {v(t1)}, 4, {v(t1)}")
    A(f"v_and_b32 {v(t2)}, 16, {v(vL)}")
    A(f"v_lshlrev_b32 {v(t2)}, 1, {v(t2)}")
    A(f"v_add3_u32 {v(t0)}, {v(t0)}, {v(t1)}, {v(t2)}")
    A(f"s_lshl_b32 {s(sTmp)}, {s(sNt)}, 8")
    A(f"v_add_u32 {v(vSt)}, {s(sTmp)}, {v(t0)}")
    A(f"s_lshl_b32 {s(sTmp)}, {s(sMt)}, 3")
    A(f"s_add_u32 {s(sTmp)}, {s(sTmp)}, {s(sNt)}")
    A(f"s_lshl_b32 {s(sTmp)}, {s(sTmp)}, 1")
    A(f"s_add_u32 {s(sTmp)}, {s(sTmp)}, {s(sHk)}")
    A(f"s_lshl_b32 {s(sTmp)}, {s(sTmp)}, 2")
    A(f"s_add_u32 {s(sTmp)}, {s(sTmp)}, {s(sWr)}")
    A(f"s_xor_b32 {s(sTmp+1)}, {s(sTmp)}, 4")
    A(f"s_lshl_b32 {s(sPs)}, {s(sTmp)}, 13")
    A(f"s_lshl_b32 {s(sPr)}, {s(sTmp+1)}, 13")
    A(f"s_lshl_b32 {s(sFs)}, {s(sTmp)}, 6")
    A(f"s_lshl_b32 {s(sFr)}, {s(sTmp+1)}, 6")
    A(f"v_add_u32 {v(vPo2)}, 4096, {v(vPo)}")
    A(f"s_lshl_b32 {s(sTmp)}, {s(sWave)}, 13")
    A(f"v_add_u32 {v(vEx)}, {s(sTmp)}, {v(vPo)}")
    A(f"s_waitcnt vmcnt({cnt_after([('w',0)])})")
    A("s_barrier")
    stamp(A, opts, 1)
    for ins in wreads(0, 0): A(ins)
    if opts.get("prio") is not None:
        lp = A.newlabel("prio")
        A(f"s_cmp_ge_u32 {s(sWave)}, 4")
        A(f"s_cbranch_scc{opts.get('prio')} {lp}")
        A(f"s_setprio 1")
        A.label(lp)
    xy_at = NT - XR
    r0, r1 = opts.get("rspan", (0.0, 0.7))
    for t in range(NT):
        for kk in range(2):
            if kk == 0:
                A(f"s_waitcnt vmcnt({cnt_after([('x',t,0)])}) lgkmcnt(0)")
            else:
                need = [('x', t, 1)] + ([('w', t+1)] if t+1 < NT else [])
                A(f"s_waitcnt vmcnt({cnt_after(need)}) lgkmcnt(0)")
                A("s_barrier")
            mf = []; fl = []; sl = []
            order = (1, 0) if (t == NT-1 and kk == 1) else (0, 1)
            for i in order:
                for j in range(8):
                    c = "0" if (t == 0 and kk == 0) else v(ACC+(i*8+j)*4, 4)
                    mf.append(f"{MF} {v(ACC+(i*8+j)*4,4)}, {v(WOP[kk]+j*4,4)}, {xr(t, kk, i)}, {c}")
            n = 16
            if opts.get("no_mfma"): mf = ["s_nop 0"]*n
            def add(ins, pos, tag=None): fl.append((ins, tag)); sl.append(pos)
            rd = wreads(t, 1) if kk == 0 else (wreads(t+1, 0) if t+1 < NT else [])
            if opts.get("no_reads"): rd = []
            for q, ins in enumerate(rd): add(ins, int((r0 + (r1-r0)*q/len(rd))*n))
            if kk == 1 and t+NS < NT:
                pending += [(ins, ('w', t+NS)) for ins in dma(t+NS)]
            npop = min(len(pending), 14)
            for k in range(npop):
                ins, tg = pending.pop(0); add(ins, 1 + (k*14)//npop, tg)
            if t+XR < NT:
                pending += [(ins, ('x', t+XR, kk)) for ins in xload(t+XR, kk)]
            if t == xy_at and kk == 0:
                for jp in range(4):
                    add(f"buffer_load_dwordx4 {v(XYR + jp*4, 4)}, {v(vSt)}, {s(sXY,4)}, 0 offen offset:{jp*64}", 2+3*jp, 'xy')
            for item in interleave(mf, fl, sl):
                if isinstance(item, tuple): emit(item[0], item[1])
                else: A(item)
    stamp(A, opts, 2)
    dbg_mark(A, opts, 11, 250)
    A("s_nop 7")
    g1l = A.newlabel("g2_g1");
    A(f"s_cmp_lg_u32 {s(sG)}, 0")
    A(f"s_cbranch_scc1 {g1l}")
    for j in range(8):
        A(f"ds_write_b128 {v(vEx)}, {v(ACC+(8+j)*4,4)} offset:{j*1024}")
    XX = XRG + 48
    for jp in range(4):
        A(f"buffer_load_dwordx4 {v(XX + jp*4, 4)}, {v(vSt)}, s[88:91], 0 offen offset:{jp*64}")
    A("s_waitcnt lgkmcnt(0)")
    A("s_barrier")
    PR = WOP[0]
    for j in range(8):
        A(f"ds_read_b128 {v(PR+j*4,4)}, {v(vEx)} offset:{32768 + j*1024}")
    pl = A.newlabel("g2_poll")
    A(f"v_mov_b32 {v(t0)}, {s(sFr)}")
    A("s_waitcnt lgkmcnt(0)")
    for r in range(32):
        A(f"v_add_f32 {v(ACC+r)}, {v(ACC+r)}, {v(PR+r)}")
    XF = ACC + 32; YF = WOP[1]
    A("s_waitcnt vmcnt(0)")
    for q in range(16):
        A(f"v_lshlrev_b32 {v(XF+2*q)}, 16, {v(XX+q)}")
        A(f"v_and_b32 {v(XF+2*q+1)}, 0xffff0000, {v(XX+q)}")
        A(f"v_lshlrev_b32 {v(YF+2*q)}, 16, {v(XYR+q)}")
        A(f"v_and_b32 {v(YF+2*q+1)}, 0xffff0000, {v(XYR+q)}")
    for r in range(32):
        A(f"v_add_f32 {v(XF+r)}, {v(XF+r)}, {v(YF+r)}")
    for q in range(16):
        A(f"v_cvt_pk_bf16_f32 {v(XYR+q)}, {v(XF+2*q)}, {v(XF+2*q+1)}")
    for q in range(16):
        A(f"v_lshlrev_b32 {v(XF+2*q)}, 16, {v(XYR+q)}")
        A(f"v_and_b32 {v(XF+2*q+1)}, 0xffff0000, {v(XYR+q)}")
    A.label(pl)
    A(f"global_load_dword {v(t1)}, {v(t0)}, {s(sFl,2)} sc1")
    A("s_waitcnt vmcnt(0)")
    A(f"v_readfirstlane_b32 {s(sTmp)}, {v(t1)}")
    A("s_nop 3")
    A(f"s_cmp_eq_u32 {s(sTmp)}, 0")
    A(f"s_cbranch_scc1 {pl}")
    for j in range(8):
        A(f"buffer_load_dwordx4 {v(PR+j*4,4)}, {v(vPo if j < 4 else vPo2)}, {s(sP,4)}, {s(sPr)} offen offset:{(j%4)*1024} sc1")
    E = XRG
    for jp in range(4):
        P = E + (jp % 2)*24; Tm = P + 4
        a0 = ACC+(2*jp)*4
        xy = XYR + jp*4
        A(f"s_waitcnt vmcnt({6-2*jp + jp})")
        for r in range(8):
            A(f"v_add_f32 {v(a0+r)}, {v(a0+r)}, {v(PR+jp*8+r)}")
        for p in range(4):
            A(f"v_cvt_pk_bf16_f32 {v(P+p)}, {v(a0+2*p)}, {v(a0+2*p+1)}")
        A("s_nop 1")
        A(f"v_permlane16_swap_b32 {v(P)}, {v(P+2)}")
        A(f"v_permlane16_swap_b32 {v(P+1)}, {v(P+3)}")
        A("s_nop 0")
        for p in range(4):
            A(f"v_lshlrev_b32 {v(Tm+2*p)}, 16, {v(P+p)}")
            A(f"v_and_b32 {v(Tm+2*p+1)}, 0xffff0000, {v(P+p)}")
        for r in range(8):
            A(f"v_add_f32 {v(Tm+r)}, {v(Tm+r)}, {v(XF+jp*8+r)}")
        for p in range(4):
            A(f"v_cvt_pk_bf16_f32 {v(xy+p)}, {v(Tm+2*p)}, {v(Tm+2*p+1)}")
        A(f"buffer_store_dwordx4 {v(xy,4)}, {v(vSt)}, {s(sO,4)}, 0 offen offset:{jp*64} {opts.get('ofl','').replace('_',' ')}")
    if opts.get("stamp"):
        A("s_waitcnt vmcnt(0)")
        stamp(A, opts, 3)
        stamp_store(A, opts, 11, sWS, E, sWave)
    if opts.get("tldbg"): A("s_waitcnt vmcnt(0)")
    dbg_mark(A, opts, 12, 250)
    A(f"s_branch {done}")
    A.label(g1l)
    for j in range(8):
        A(f"ds_write_b128 {v(vEx)}, {v(ACC+j*4,4)} offset:{j*1024}")
    A(f"v_subrev_u32 {v(vEx)}, 32768, {v(vEx)}")
    A("s_waitcnt lgkmcnt(0)")
    A("s_barrier")
    for j in range(8):
        A(f"ds_read_b128 {v(PR+j*4,4)}, {v(vEx)} offset:{j*1024}")
    for j in range(8):
        A(f"s_waitcnt lgkmcnt({7-j})")
        for r in range(4):
            A(f"v_add_f32 {v(PR+j*4+r)}, {v(PR+j*4+r)}, {v(ACC+32+j*4+r)}")
        A(f"buffer_store_dwordx4 {v(PR+j*4,4)}, {v(vPo if j < 4 else vPo2)}, {s(sP,4)}, {s(sPs)} offen offset:{(j%4)*1024} sc1")
    A(f"v_mov_b32 {v(t0)}, {s(sFs)}")
    A(f"v_mov_b32 {v(t1)}, 1")
    A("s_waitcnt vmcnt(0)")
    A("s_mov_b64 exec, 1")
    A(f"global_store_dword {v(t0)}, {v(t1)}, {s(sFl,2)} sc1")
    A.label(done)
    A("s_endpgm")
    return dict(vgpr=256, lds=NS*SLOT)
```

```python
import os
from asmlib import *
from layout import *
from dbgstamp import *
from gemm import stamp, stamp_store
from fft2 import job_trig, job_tw, run_jobs, PI, DR
from fftcommon import wave_allreduce_add2, round_bf16
MF = "v_mfma_f32_32x32x16_bf16"
WPW = 8
NWT = 512//WPW
NK1 = 256 + NWT

def gen_k1b(A, name, opts):
    opts = dict(opts); opts["stamp"] = opts.get("stamp1")
    kernel_begin(A, name)
    done = A.newlabel("k1_done"); wtr = A.newlabel("k1_wtr"); w512 = A.newlabel("k1_w512")
    sX, sXN, sYT, sW, sWT = 8, 12, 16, 20, 24
    sWS = 28; sT = 30; sWave = 40
    A(f"s_cmp_ge_u32 s2, {NK1}")
    A(f"s_cbranch_scc1 {done}")
    dbg_init(A, opts, 0); dbg_mark(A, opts, 0, 120, neg=True)
    stamp(A, opts, 0)
    A("s_load_dwordx2 s[4:5], s[0:1], 0")
    A(f"s_load_dwordx2 {s(sWS,2)}, s[0:1], 72")
    A("s_load_dwordx4 s[44:47], s[0:1], 8")
    A("s_load_dwordx4 s[88:91], s[0:1], 32")
    vL = 1; vOff = 2
    A("v_lshrrev_b32 v2, 6, v0")
    A(f"v_and_b32 {v(vL)}, 63, v0")
    A("s_nop 0")
    A(f"v_readfirstlane_b32 {s(sWave)}, v2")
    A(f"v_lshlrev_b32 {v(vOff)}, 4, {v(vL)}")
    A("s_cmp_ge_u32 s2, 256")
    A(f"s_cbranch_scc1 {wtr}")
    sB7, sS, sChunk = sT, sT+1, sT+2
    A(f"s_and_b32 {s(sB7)}, s2, 7")
    A(f"s_lshr_b32 {s(sS)}, s2, 3")
    A(f"s_lshl_b32 {s(sChunk)}, {s(sB7)}, 5")
    A(f"s_add_u32 {s(sChunk)}, {s(sChunk)}, {s(sS)}")
    A(f"s_lshr_b32 {s(sT+3)}, {s(sB7)}, 2")
    A(f"s_lshl_b32 {s(sT+3)}, {s(sT+3)}, 5")
    A(f"s_add_u32 {s(sS)}, {s(sS)}, {s(sT+3)}")
    A(f"s_and_b32 {s(sT+3)}, {s(sB7)}, 2")
    A(f"s_lshl_b32 {s(sT+3)}, {s(sT+3)}, 9")
    A(f"s_add_u32 {s(sS)}, {s(sS)}, {s(sT+3)}")
    A(f"s_and_b32 {s(sT+3)}, {s(sB7)}, 1")
    A(f"s_lshl_b32 {s(sT+3)}, {s(sT+3)}, 8")
    A(f"s_add_u32 {s(sS)}, {s(sS)}, {s(sT+3)}")
    A(f"s_lshr_b32 {s(sT+3)}, {s(sWave)}, 2")
    A(f"s_lshl_b32 {s(sT+3)}, {s(sT+3)}, 9")
    A(f"s_add_u32 {s(sS)}, {s(sS)}, {s(sT+3)}")
    A(f"s_and_b32 {s(sT+3)}, {s(sWave)}, 3")
    A(f"s_lshl_b32 {s(sT+3)}, {s(sT+3)}, 6")
    A(f"s_add_u32 {s(sS)}, {s(sS)}, {s(sT+3)}")
    A(f"s_lshl_b32 {s(sT+3)}, {s(sS)}, 11")
    A("s_waitcnt lgkmcnt(0)")
    make_srd(A, sX, 4, 5, 2048*1024*2)
    RAW = 4
    A(f"buffer_load_dwordx4 {v(RAW,4)}, {v(vOff)}, {s(sX,4)}, {s(sT+3)} offen")
    A(f"buffer_load_dwordx4 {v(RAW+4,4)}, {v(vOff)}, {s(sX,4)}, {s(sT+3)} offen offset:1024")
    nyoung = 0
    PFK = opts.get("pfk", 256)
    if PFK and not opts.get("nopf"):
        A(f"s_cmp_ge_u32 {s(sWave)}, 4")
        A("s_cselect_b32 s88, s90, s88")
        A("s_cselect_b32 s89, s91, s89")
        make_srd(A, 80, 88, 89, PFK*3584*2)
        A(f"s_and_b32 {s(sT+3)}, {s(sWave)}, 3")
        A(f"s_lshl_b32 {s(sT+3)}, {s(sT+3)}, 8")
        A(f"s_add_u32 {s(sT+3)}, {s(sT+3)}, s2")
        A(f"s_lshl_b32 {s(sT+3)}, {s(sT+3)}, 13")
        A(f"v_lshlrev_b32 v3, 7, {v(vL)}")
        A(f"buffer_load_dword v31, v3, s[80:83], {s(sT+3)} offen")
        nyoung += 1
    make_srd(A, sXN, sWS, sWS+1, 65536, add=WS_FLAG)
    A(f"s_lshl_b32 {s(sT+3)}, s2, 8")
    A(f"s_cmp_eq_u32 {s(sWave)}, 7")
    A(f"s_cselect_b32 {s(sT+3)}, {s(sT+3)}, 0x100000")
    A(f"v_lshlrev_b32 v3, 2, {v(vL)}")
    A(f"v_mov_b32 v12, 0")
    A(f"buffer_store_dword v12, v3, {s(sXN,4)}, {s(sT+3)} offen")
    nyoung += 1
    B1C, B1S, A2R, A2I, TWC, TWS = 64, 72, 80, 88, 96, 112
    img = lambda r: ((r-64)//4)*1024
    vK1, vH4, vK2, vH4b, vPh = 12, 13, 14, 15, 16
    W = 64
    A(f"v_and_b32 {v(vK1)}, 31, {v(vL)}")
    A(f"v_lshrrev_b32 {v(vH4)}, 5, {v(vL)}")
    A(f"v_lshlrev_b32 {v(vH4)}, 2, {v(vH4)}")
    A(f"v_and_b32 {v(vK2)}, 15, {v(vL)}")
    A(f"v_mul_u32_u24 {v(vH4b)}, {v(vH4)}, {v(vK2)}")
    A(f"v_mul_u32_u24 {v(vH4)}, {v(vH4)}, {v(vK1)}")
    A(f"v_bfe_u32 {v(vPh)}, {v(vL)}, 4, 1")
    A(f"v_cvt_f32_u32 {v(vPh)}, {v(vPh)}")
    A(f"v_mul_f32 {v(vPh)}, {f32(0.25)}, {v(vPh)}")
    jobs = []
    for u in range(2):
        jobs.append((60, lambda u=u: job_trig(A, PI(u), vK1, vH4, 32, W, vOff, [('c', img(B1C+4*u)), ('n', img(B1S+4*u))])))
        jobs.append((60, lambda u=u: job_trig(A, PI(u), vK2, vH4b, 32, W, vOff, [('c', img(A2R+4*u)), ('s', img(A2I+4*u))], vPhase=vPh)))
        jobs.append((50, lambda u=u: job_tw(A, DR(u), vK1, vH4, 1024, W, vOff, img(TWC)+u*2048, img(TWS)+u*2048, sign=-1.0)))
    run_jobs(A, jobs, sWave, 8)
    make_srd(A, sXN, sWS, sWS+1, 2048*1024*2, add=WS_XN)
    make_srd(A, sYT, sWS, sWS+1, 4<<20, add=WS_YT)
    t0, t1, t2 = 17, 18, 19
    vXo, vLw, vLr, vTw, vDC = 20, 21, 22, 23, 24
    A(f"s_lshr_b32 {s(sT+4)}, {s(sS)}, 8")
    A(f"s_lshl_b32 {s(sT+4)}, {s(sT+4)}, 19")
    A(f"s_and_b32 {s(sT+3)}, {s(sS)}, 255")
    A(f"s_lshr_b32 {s(sT+5)}, {s(sT+3)}, 2")
    A(f"s_and_b32 {s(sT+5)}, {s(sT+5)}, 2")
    A(f"s_lshl_b32 {s(sT+3)}, {s(sT+3)}, 6")
    A(f"s_add_u32 {s(sT+4)}, {s(sT+4)}, {s(sT+3)}")
    A(f"v_and_b32 {v(t2)}, 3, {v(vL)}")
    A(f"v_xor_b32 {v(t0)}, {s(sT+5)}, {v(t2)}")
    A(f"v_lshlrev_b32 {v(t0)}, 4, {v(t0)}")
    A(f"v_lshrrev_b32 {v(t1)}, 2, {v(vL)}")
    A(f"v_lshlrev_b32 {v(t1)}, 14, {v(t1)}")
    A(f"v_add3_u32 {v(vXo)}, {v(t0)}, {v(t1)}, {s(sT+4)}")
    A(f"s_mov_b32 {s(sT+6)}, {16*16384}")
    A(f"s_lshl_b32 {s(sT+3)}, {s(sWave)}, 11")
    A(f"s_add_u32 {s(sT+3)}, {s(sT+3)}, 16384")
    A(f"v_add_u32 {v(vLw)}, {s(sT+3)}, {v(vOff)}")
    A(f"v_lshrrev_b32 {v(t0)}, 5, {v(vL)}")
    A(f"v_lshlrev_b32 {v(vTw)}, 11, {v(t0)}")
    A(f"v_lshlrev_b32 {v(t0)}, 8, {v(t0)}")
    A(f"v_bfe_u32 {v(t1)}, {v(vL)}, 2, 2")
    A(f"v_lshl_add_u32 {v(t0)}, {v(t1)}, 6, {v(t0)}")
    A(f"v_and_b32 {v(t1)}, 16, {v(vL)}")
    A(f"v_lshl_add_u32 {v(t0)}, {v(t1)}, 1, {v(t0)}")
    A(f"v_lshl_add_u32 {v(t0)}, {v(t2)}, 3, {v(t0)}")
    A(f"v_add_u32 {v(vLr)}, {s(sT+3)}, {v(t0)}")
    A(f"v_lshl_add_u32 {v(vTw)}, {v(vK1)}, 4, {v(vTw)}")
    A(f"s_lshl_b32 {s(sT+3)}, {s(sWave)}, 1")
    A(f"s_add_u32 {s(sT+3)}, {s(sT+3)}, 32768")
    A(f"v_add_u32 {v(vTw)}, {s(sT+3)}, {v(vTw)}")
    A(f"v_cmp_eq_u32 s[48:49], 0, {v(vL)}")
    A(f"v_mov_b32 {v(vDC)}, 1.0")
    A("s_waitcnt lgkmcnt(0)")
    A(f"v_cndmask_b32 {v(vDC)}, {v(vDC)}, 0.5, s[48:49]")
    A("s_barrier")
    for g in range(16):
        A(f"ds_read_b128 {v(64+4*g,4)}, {v(vOff)} offset:{g*1024}")
    F = 32; D = 48
    SUM, SQ, T1, T2, MB, RS = 25, 26, 27, 28, 29, 30
    stamp(A, opts, 4)
    A(f"s_waitcnt vmcnt({nyoung})")
    stamp(A, opts, 1)
    for i in range(8):
        A(f"v_lshlrev_b32 {v(F+2*i)}, 16, {v(RAW+i)}")
        A(f"v_and_b32 {v(F+2*i+1)}, 0xffff0000, {v(RAW+i)}")
    A(f"v_readfirstlane_b32 {s(sT+7)}, {v(F)}")
    A("s_nop 1")
    for i in range(16):
        A(f"v_subrev_f32 {v(D+i)}, {s(sT+7)}, {v(F+i)}")
    A(f"v_add_f32 {v(SUM)}, {v(D)}, {v(D+1)}")
    A(f"v_mul_f32 {v(SQ)}, {v(D)}, {v(D)}")
    A(f"v_add_f32 {v(T1)}, {v(D+2)}, {v(D+3)}")
    A(f"v_mul_f32 {v(T2)}, {v(D+1)}, {v(D+1)}")
    for i in range(2, 16, 2):
        if i >= 4:
            A(f"v_add_f32 {v(SUM)}, {v(SUM)}, {v(D+i)}")
            A(f"v_add_f32 {v(T1)}, {v(T1)}, {v(D+i+1)}")
        A(f"v_fmac_f32 {v(SQ)}, {v(D+i)}, {v(D+i)}")
        A(f"v_fmac_f32 {v(T2)}, {v(D+i+1)}, {v(D+i+1)}")
    A(f"v_add_f32 {v(SUM)}, {v(SUM)}, {v(T1)}")
    A(f"v_add_f32 {v(SQ)}, {v(SQ)}, {v(T2)}")
    wave_allreduce_add2(A, [SUM, SQ], [T1, T2])
    A(f"v_mul_f32 {v(MB)}, {f32(1/1024)}, {v(SUM)}")
    A(f"v_mul_f32 {v(RS)}, {f32(1/1024)}, {v(SQ)}")
    A(f"v_fma_f32 {v(RS)}, -{v(MB)}, {v(MB)}, {v(RS)}")
    A(f"v_add_f32 {v(MB)}, {s(sT+7)}, {v(MB)}")
    A(f"v_max_f32 {v(RS)}, 0, {v(RS)}")
    round_bf16(A, RS)
    round_bf16(A, MB)
    A(f"v_add_f32 {v(RS)}, {f32(1e-5)}, {v(RS)}")
    round_bf16(A, RS)
    A(f"v_sqrt_f32 {v(RS)}, {v(RS)}")
    for i in range(16):
        A(f"v_sub_f32 {v(D+i)}, {v(F+i)}, {v(MB)}")
    round_bf16(A, RS)
    A(f"v_rcp_f32 {v(RS)}, {v(RS)}")
    for i in range(8):
        A(f"v_cvt_pk_bf16_f32 {v(RAW+i)}, {v(D+2*i)}, {v(D+2*i+1)}")
    for i in range(8):
        A(f"v_lshlrev_b32 {v(D+2*i)}, 16, {v(RAW+i)}")
        A(f"v_and_b32 {v(D+2*i+1)}, 0xffff0000, {v(RAW+i)}")
    for i in range(16):
        A(f"v_mul_f32 {v(D+i)}, {v(D+i)}, {v(RS)}")
    for i in range(8):
        A(f"v_cvt_pk_bf16_f32 {v(RAW+i)}, {v(D+2*i)}, {v(D+2*i+1)}")
    A(f"ds_write_b128 {v(vLw)}, {v(RAW,4)}")
    A(f"ds_write_b128 {v(vLw)}, {v(RAW+4,4)} offset:1024")
    A(f"buffer_store_dwordx4 {v(RAW,4)}, {v(vXo)}, {s(sXN,4)}, 0 offen {opts.get('xfl','')}")
    A(f"buffer_store_dwordx4 {v(RAW+4,4)}, {v(vXo)}, {s(sXN,4)}, {s(sT+6)} offen {opts.get('xfl','')}")
    OP = 12
    A("s_waitcnt lgkmcnt(0)")
    for u in range(2):
        for e in range(2):
            A(f"ds_read_b64_tr_b16 {v(OP+4*u+2*e,2)}, {v(vLr)} offset:{(16*u+8*e)*64}")
    TR, TI = 32, 48
    A("s_waitcnt lgkmcnt(2)")
    A(f"{MF} {v(TR,16)}, {v(OP,4)}, {v(B1C,4)}, 0")
    A(f"{MF} {v(TI,16)}, {v(OP,4)}, {v(B1S,4)}, 0")
    A("s_waitcnt lgkmcnt(0)")
    A(f"{MF} {v(TR,16)}, {v(OP+4,4)}, {v(B1C+4,4)}, {v(TR,16)}")
    A(f"{MF} {v(TI,16)}, {v(OP+4,4)}, {v(B1S+4,4)}, {v(TI,16)}")
    vRo, vGo = 25, 26
    A(f"v_lshrrev_b32 {v(vRo)}, 1, v0")
    A(f"v_and_b32 {v(vGo)}, 1, v0")
    A(f"v_lshlrev_b32 {v(vRo)}, 4, {v(vRo)}")
    A(f"v_lshl_add_u32 {v(vRo)}, {v(vGo)}, 13, {v(vRo)}")
    A(f"v_lshlrev_b32 {v(vGo)}, 4, v0")
    A(f"s_lshl_b32 {s(sT+3)}, {s(sChunk)}, 14")
    A(f"s_add_u32 {s(sT+4)}, {s(sT+3)}, 8192")
    A("s_nop 4")
    NY, NT = 27, 28
    WK = B1C
    A(f"v_sub_f32 {v(NY)}, {v(TR)}, {v(TR+1)}")
    A(f"v_sub_f32 {v(NT)}, {v(TR+2)}, {v(TR+3)}")
    for r in range(4, 16, 4):
        A(f"v_add_f32 {v(NY)}, {v(NY)}, {v(TR+r)}")
        A(f"v_add_f32 {v(NT)}, {v(NT)}, {v(TR+r+2)}")
        A(f"v_sub_f32 {v(NY)}, {v(NY)}, {v(TR+r+1)}")
        A(f"v_sub_f32 {v(NT)}, {v(NT)}, {v(TR+r+3)}")
    A(f"v_add_f32 {v(NY)}, {v(NY)}, {v(NT)}")
    A(f"v_mov_b32 {v(NT)}, {v(NY)}")
    for r in range(16): A(f"v_mul_f32 {v(WK+r)}, {v(TR+r)}, {v(TWC+r)}")
    for r in range(16): A(f"v_mul_f32 {v(TR+r)}, {v(TR+r)}, {v(TWS+r)}")
    for r in range(16): A(f"v_fma_f32 {v(WK+r)}, -{v(TI+r)}, {v(TWS+r)}, {v(WK+r)}")
    UR, UI = 4, 12
    for p in range(8): A(f"v_cvt_pk_bf16_f32 {v(UR+p)}, {v(WK+2*p)}, {v(WK+2*p+1)}")
    Y = WK
    for r in range(16): A(f"v_fmac_f32 {v(TR+r)}, {v(TI+r)}, {v(TWC+r)}")
    A(f"{MF} {v(Y,16)}, {v(A2R,4)}, {v(UR,4)}, 0")
    A(f"{MF} {v(Y,16)}, {v(A2R+4,4)}, {v(UR+4,4)}, {v(Y,16)}")
    for p in range(8): A(f"v_cvt_pk_bf16_f32 {v(UI+p)}, {v(TR+2*p)}, {v(TR+2*p+1)}")
    A(f"v_permlane32_swap_b32 {v(NY)}, {v(NT)}")
    A("s_nop 0")
    A(f"{MF} {v(Y,16)}, {v(A2I,4)}, {v(UI,4)}, {v(Y,16)}")
    A(f"{MF} {v(Y,16)}, {v(A2I+4,4)}, {v(UI+4,4)}, {v(Y,16)}")
    A(f"v_add_f32 {v(NY)}, {v(NY)}, {v(NT)}")
    A(f"v_mul_f32 {v(NY)}, 0.5, {v(NY)}")
    A("s_nop 9")
    A(f"v_mul_f32 {v(Y)}, {v(Y)}, {v(vDC)}")
    A(f"v_cndmask_b32 {v(Y+8)}, {v(Y+8)}, {v(NY)}, s[48:49]")
    for p in range(8): A(f"v_cvt_pk_bf16_f32 {v(32+p)}, {v(Y+2*p)}, {v(Y+2*p+1)}")
    for r in range(16):
        c = r >> 3; k2 = 8*((r >> 2) & 1) + (r & 3)
        A(f"ds_write_b16{'_d16_hi' if r & 1 else ''} {v(vTw)}, {v(32+r//2)} offset:{(c*16+k2)*512}")
    A("s_waitcnt lgkmcnt(0)")
    A("s_barrier")
    stamp(A, opts, 2)
    for i in range(2):
        A(f"ds_read_b128 {v(40+4*i,4)}, {v(vRo)} offset:{32768 + i*4096}")
    for i in range(2):
        A(f"s_waitcnt lgkmcnt({1-i})")
        A(f"buffer_store_dwordx4 {v(40+4*i,4)}, {v(vGo)}, {s(sYT,4)}, {s(sT+3+i)} offen {opts.get('yfl','')}")
    if opts.get("stamp"):
        A("s_waitcnt vmcnt(0)")
        stamp(A, opts, 3)
        stamp_store(A, opts, 5, sWS, 64, sWave)
    if opts.get("tldbg"): A("s_waitcnt vmcnt(0)")
    dbg_mark(A, opts, 1, 120)
    A("s_endpgm")
    A.label(wtr)
    A(f"s_cmp_ge_u32 {s(sWave)}, {WPW}")
    A(f"s_cbranch_scc1 {done}")
    sTask, sCombo, sT1 = sT, sT+1, sT+2
    A(f"s_sub_u32 {s(sTask)}, s2, 256")
    A(f"s_and_b32 {s(sT+3)}, {s(sTask)}, 7")
    A(f"s_mul_i32 {s(sT+3)}, {s(sT+3)}, {NWT//8}")
    A(f"s_lshr_b32 {s(sTask)}, {s(sTask)}, 3")
    A(f"s_add_u32 {s(sTask)}, {s(sTask)}, {s(sT+3)}")
    A(f"s_mul_i32 {s(sTask)}, {s(sTask)}, {WPW}")
    A(f"s_add_u32 {s(sTask)}, {s(sTask)}, {s(sWave)}")
    A(f"s_lshr_b32 {s(sCombo)}, {s(sTask)}, 5")
    A(f"s_and_b32 {s(sT1)}, {s(sTask)}, 31")
    A(f"s_bfe_u32 {s(sT+3)}, {s(sCombo)}, 0x20001")
    A(f"s_lshl_b32 {s(sT+3)}, {s(sT+3)}, 4")
    A(f"s_and_b32 {s(sT+4)}, {s(sCombo)}, 1")
    A(f"s_lshl_b32 {s(sT+4)}, {s(sT+4)}, 2")
    A(f"s_add_u32 {s(sT+3)}, {s(sT+3)}, {s(sT+4)}")
    A(f"s_lshl_b32 {s(sT+3)}, {s(sT+3)}, 5")
    A(f"s_add_u32 {s(sT+3)}, {s(sT+3)}, {s(sT1)}")
    A(f"s_mul_i32 {s(sT+3)}, {s(sT+3)}, 1026")
    for e in range(8):
        A(f"s_add_u32 {s(50+e)}, {s(sT+3)}, {32*(8*(e//4) + e % 4)*1026}")
    A("s_waitcnt lgkmcnt(0)")
    A(f"s_cmp_ge_u32 {s(sCombo)}, 8")
    A("s_cselect_b32 s44, s46, s44")
    A("s_cselect_b32 s45, s47, s45")
    make_srd(A, sW, 44, 45, 2048*513*2)
    for e in range(8):
        A(f"buffer_load_dwordx4 {v(8+4*e,4)}, {v(vOff)}, {s(sW,4)}, {s(50+e)} offen")
    A(f"v_and_b32 v4, 3, {v(vL)}")
    A(f"v_bfe_u32 v5, {v(vL)}, 2, 1")
    A(f"v_lshl_add_u32 v4, v5, 3, v4")
    A(f"v_mul_u32_u24 v4, {32*1026}, v4")
    A(f"v_lshrrev_b32 v5, 3, {v(vL)}")
    A(f"v_lshlrev_b32 v5, 24, v5")
    A(f"v_add_u32 v4, v4, v5")
    A(f"buffer_load_ushort v6, v4, {s(sW,4)}, {s(sT+3)} offen offset:1024")
    A(f"v_lshl_add_u32 v5, {v(vL)}, 1, v5")
    make_srd(A, sWT, sWS, sWS+1, 513*WP, add=WS_WT)
    A(f"v_and_b32 v3, 7, {v(vL)}")
    A(f"v_xor_b32 v3, {s(sWave)}, v3")
    A(f"v_lshlrev_b32 v3, 4, v3")
    A(f"v_lshl_add_u32 v3, {v(vL)}, 10, v3")
    A(f"s_lshl_b32 {s(sT+4)}, {s(sTask)}, 4")
    A(f"s_mov_b32 {s(sT+5)}, 0x05040100")
    A(f"s_mov_b32 {s(sT+6)}, 0x07060302")
    A(f"s_add_u32 {s(sT+7)}, {s(sT+4)}, {512*WP}")
    A(f"v_and_b32 v7, 7, v0")
    A(f"v_lshrrev_b32 v72, 3, v0")
    A(f"v_xor_b32 v73, {s(sWave)}, v7")
    A(f"v_lshlrev_b32 v73, 4, v73")
    A(f"v_lshl_add_u32 v73, v72, 7, v73")
    A(f"v_mul_u32_u24 v72, {WP}, v72")
    A(f"v_lshl_add_u32 v72, v7, 4, v72")
    A(f"s_andn2_b32 {s(sT+4)}, {s(sT+4)}, 127")
    for i in range(8):
        A(f"s_add_u32 {s(58+i)}, {s(sT+4)}, {i*64*WP}")
    A("s_waitcnt vmcnt(0)")
    A(f"buffer_store_short v6, v5, {s(sWT,4)}, {s(sT+7)} offen")
    for j in range(8):
        for p in range(4):
            A(f"v_perm_b32 {v(40+4*j+p)}, {v(8+4*(2*p+1)+j//2)}, {v(8+4*(2*p)+j//2)}, {s(sT+5+(j&1))}")
        A(f"ds_write_b128 v3, {v(40+4*j,4)} offset:{j*128}")
    A("s_waitcnt lgkmcnt(0)")
    A("s_barrier")
    for i in range(8):
        A(f"ds_read_b128 {v(8+4*i,4)}, v73 offset:{i*8192}")
    for i in range(8):
        A(f"s_waitcnt lgkmcnt({7-i})")
        A(f"buffer_store_dwordx4 {v(8+4*i,4)}, v72, {s(sWT,4)}, {s(58+i)} offen {opts.get('yfl','')}")
    if opts.get("tldbg"): A("s_waitcnt vmcnt(0)")
    dbg_mark(A, opts, 2, 120)
    A("s_endpgm")
    A.label(done)
    A("s_endpgm")
```

```python
WS_XN  = 0x0010000
WS_H   = 0x0800000
WS_YT  = 0x1800000
WS_ZT  = 0x1C00000
WS_WT  = 0x2000000
WS_XY  = 0x2800000
WS_PART= 0x3000000
WS_DBG = 0x8000000
WS_FLAG= 0x3C00000

import os
YP = int(os.environ.get("YP", 4096))
WP = int(os.environ.get("WP", 8192))
WS_YT  = 0x1800000
WS_ZT  = 0x4000000
WS_TAG = 0x3D00000
```

```python
from asmlib import *
from fftcommon import *
from layout import *
MF = "v_mfma_f32_32x32x16_bf16"

class RowIFFT:
    B1R, B1I, B2C, B2N, TWC, TWS = 64, 72, 80, 88, 96, 112
    vL = 1
    def __init__(self, A, opts): self.A = A; self.opts = opts
    def gen_consts(self):
        A = self.A; vL = self.vL
        vN2, vH4, vN1, vH4b = 20, 21, 22, 23
        tmp = [26, 27, 28, 29, 30, 31]
        A(f"v_bfe_u32 {v(tmp[0])}, {v(vL)}, 2, 1")
        A(f"v_lshlrev_b32 {v(tmp[0])}, 4, {v(tmp[0])}")
        A(f"v_bfe_u32 {v(tmp[1])}, {v(vL)}, 3, 2")
        A(f"v_lshlrev_b32 {v(tmp[1])}, 2, {v(tmp[1])}")
        A(f"v_and_b32 {v(tmp[2])}, 3, {v(vL)}")
        A(f"v_add3_u32 {v(vN2)}, {v(tmp[0])}, {v(tmp[1])}, {v(tmp[2])}")
        A(f"v_lshrrev_b32 {v(tmp[0])}, 5, {v(vL)}")
        A(f"v_lshlrev_b32 {v(tmp[0])}, 2, {v(tmp[0])}")
        A(f"v_mul_u32_u24 {v(vH4)}, {v(tmp[0])}, {v(vN2)}")
        A(f"v_and_b32 {v(vN1)}, 31, {v(vL)}")
        A(f"v_mul_u32_u24 {v(vH4b)}, {v(tmp[0])}, {v(vN1)}")
        gen_trig_operand(A, self.B1R, self.B1I, 1, vN2, vH4, 32, tmp, dst_nsin=self.B1R+4)
        for p in range(4): A(f"v_mov_b32 {v(self.B1I+4+p)}, {v(self.B1R+p)}")
        gen_trig_operand(A, self.B2C, self.B2N, 2, vN1, vH4b, 32, tmp, neg_sin=True)
        gen_twiddle(A, self.TWC, self.TWS, vN2, vH4, 1024, tmp[0])
    def rows(self, sWave, sS0, sX, sXY, lds, sT, wide=None):
        A = self.A; vL = self.vL
        tmp = [26, 27, 28, 29, 30, 31]
        vXo = 32
        A(f"v_and_b32 {v(tmp[0])}, 31, {v(vL)}")
        A(f"v_lshlrev_b32 {v(tmp[0])}, 6, {v(tmp[0])}")
        A(f"v_and_b32 {v(tmp[1])}, 32, {v(vL)}")
        A(f"v_add_u32 {v(vXo)}, {v(tmp[0])}, {v(tmp[1])}")
        A(f"s_lshl_b32 {s(sT)}, {s(sS0)}, 11")
        A(f"s_add_u32 {s(sT+1)}, {s(sT)}, {64*2048}")
        XR = [4, 12]
        for rw in range(2):
            A(f"buffer_load_dwordx4 {v(XR[rw],4)}, {v(vXo)}, {s(sX,4)}, {s(sT+rw)} offen")
            A(f"buffer_load_dwordx4 {v(XR[rw]+4,4)}, {v(vXo)}, {s(sX,4)}, {s(sT+rw)} offen offset:16")
        vRd = 33
        RD = 224
        NYQ = 35
        if wide is None:
            A(f"v_lshrrev_b32 {v(tmp[0])}, 5, {v(vL)}")
            A(f"v_lshlrev_b32 {v(tmp[0])}, 11, {v(tmp[0])}")
            A(f"v_and_b32 {v(tmp[1])}, 31, {v(vL)}")
            A(f"v_lshlrev_b32 {v(tmp[1])}, 4, {v(tmp[1])}")
            A(f"s_lshl_b32 {s(sT+2)}, {s(sWave)}, 2")
            A(f"s_add_u32 {s(sT+2)}, {s(sT+2)}, {lds}")
            A(f"v_add3_u32 {v(vRd)}, {v(tmp[0])}, {v(tmp[1])}, {s(sT+2)}")
            A(f"v_mov_b32 {v(34)}, {s(sT+2)}")
            for r in range(16):
                c = r >> 3; k2 = 8*((r >> 2) & 1) + (r & 3)
                A(f"ds_read_b32 {v(RD+r)}, {v(vRd)} offset:{(c*16+k2)*512}")
            A(f"ds_read_b32 {v(NYQ)}, {v(34)} offset:{16*512}")
        else:
            A(f"v_lshrrev_b32 {v(tmp[0])}, 5, {v(vL)}")
            A(f"v_lshlrev_b32 {v(tmp[0])}, 14, {v(tmp[0])}")
            A(f"v_and_b32 {v(tmp[1])}, 31, {v(vL)}")
            A(f"v_lshlrev_b32 {v(tmp[1])}, 7, {v(tmp[1])}")
            A(f"v_bfe_u32 {v(tmp[2])}, {v(vL)}, 1, 3")
            A(f"v_xor_b32 {v(tmp[2])}, {s(wide)}, {v(tmp[2])}")
            A(f"v_lshlrev_b32 {v(tmp[2])}, 4, {v(tmp[2])}")
            A(f"s_lshl_b32 {s(sT+2)}, {s(sWave)}, 2")
            A(f"v_add3_u32 {v(tmp[0])}, {v(tmp[0])}, {v(tmp[1])}, {v(tmp[2])}")
            A(f"v_add_u32 {v(vRd)}, {s(sT+2)}, {v(tmp[0])}")
            A(f"v_add_u32 {v(34)}, 0x10000, {v(vRd)}")
            A(f"s_lshl_b32 {s(sT+3)}, {s(wide)}, 4")
            A(f"s_add_u32 {s(sT+2)}, {s(sT+2)}, {s(sT+3)}")
            A(f"s_add_u32 {s(sT+2)}, {s(sT+2)}, 0x10000")
            A(f"v_mov_b32 {v(tmp[3])}, {s(sT+2)}")
            for r in range(16):
                c = r >> 3; k2 = 8*((r >> 2) & 1) + (r & 3)
                A(f"ds_read_b32 {v(RD+r)}, {v(vRd if c == 0 else 34)} offset:{k2*4096}")
            A(f"ds_read_b32 {v(NYQ)}, {v(tmp[3])}")
        A(f"s_mov_b32 {s(sT+3)}, 0x05040100")
        A(f"s_mov_b32 {s(sT+4)}, 0x07060302")
        A("s_waitcnt lgkmcnt(0)")
        OP = [44, 52]
        for p in range(8):
            A(f"v_perm_b32 {v(OP[0]+p)}, {v(RD+2*p+1)}, {v(RD+2*p)}, {s(sT+3)}")
            A(f"v_perm_b32 {v(OP[1]+p)}, {v(RD+2*p+1)}, {v(RD+2*p)}, {s(sT+4)}")
        NP = [36, 37]; NM = [38, 39]
        A(f"v_lshlrev_b32 {v(NP[0])}, 16, {v(NYQ)}")
        A(f"v_and_b32 {v(NP[1])}, 0xffff0000, {v(NYQ)}")
        TR = [128, 160]; TI = [144, 176]
        for u in range(2):
            for rw in range(2):
                c = "0" if u == 0 else v(TR[rw],16)
                A(f"{MF} {v(TR[rw],16)}, {v(OP[rw]+4*u,4)}, {v(self.B1R+4*u,4)}, {c}")
                c = "0" if u == 0 else v(TI[rw],16)
                A(f"{MF} {v(TI[rw],16)}, {v(OP[rw]+4*u,4)}, {v(self.B1I+4*u,4)}, {c}")
        A("s_nop 7"); A("s_nop 7")
        UR = [192, 208]; UI = [200, 216]; WK = 224
        TWC, TWS = self.TWC, self.TWS
        for rw in range(2):
            for r in range(16):
                A(f"v_mul_f32 {v(WK+r)}, {v(TR[rw]+r)}, {v(TWC+r)}")
                A(f"v_mul_f32 {v(WK+16+r)}, {v(TR[rw]+r)}, {v(TWS+r)}")
            for r in range(16):
                A(f"v_fma_f32 {v(WK+r)}, -{v(TI[rw]+r)}, {v(TWS+r)}, {v(WK+r)}")
                A(f"v_fmac_f32 {v(WK+16+r)}, {v(TI[rw]+r)}, {v(TWC+r)}")
            for p in range(8):
                A(f"v_cvt_pk_bf16_f32 {v(UR[rw]+p)}, {v(WK+2*p)}, {v(WK+2*p+1)}")
                A(f"v_cvt_pk_bf16_f32 {v(UI[rw]+p)}, {v(WK+16+2*p)}, {v(WK+16+2*p+1)}")
        Y = [128, 160]
        for rw in range(2):
            for r in range(16):
                if r % 2 == 0: A(f"v_mov_b32 {v(Y[rw]+r)}, {v(NP[rw])}")
                else: A(f"v_xor_b32 {v(Y[rw]+r)}, 0x80000000, {v(NP[rw])}")
        A("s_nop 1")
        for u in range(2):
            for rw in range(2):
                A(f"{MF} {v(Y[rw],16)}, {v(UR[rw]+4*u,4)}, {v(self.B2C+4*u,4)}, {v(Y[rw],16)}")
        for u in range(2):
            for rw in range(2):
                A(f"{MF} {v(Y[rw],16)}, {v(UI[rw]+4*u,4)}, {v(self.B2N+4*u,4)}, {v(Y[rw],16)}")
        A("s_waitcnt vmcnt(0)")
        A("s_nop 7"); A("s_nop 7")
        for rw in range(2):
            for p in range(8):
                A(f"v_cvt_pk_bf16_f32 {v(WK+p)}, {v(Y[rw]+2*p)}, {v(Y[rw]+2*p+1)}")
            for p in range(8):
                A(f"v_lshlrev_b32 {v(Y[rw]+2*p)}, 16, {v(WK+p)}")
                A(f"v_and_b32 {v(Y[rw]+2*p+1)}, 0xffff0000, {v(WK+p)}")
                A(f"v_lshlrev_b32 {v(WK+8+2*p)}, 16, {v(XR[rw]+p)}")
                A(f"v_and_b32 {v(WK+8+2*p+1)}, 0xffff0000, {v(XR[rw]+p)}")
            for r in range(16):
                A(f"v_add_f32 {v(Y[rw]+r)}, {v(Y[rw]+r)}, {v(WK+8+r)}")
            for p in range(8):
                A(f"v_cvt_pk_bf16_f32 {v(XR[rw]+p)}, {v(Y[rw]+2*p)}, {v(Y[rw]+2*p+1)}")
            A(f"buffer_store_dwordx4 {v(XR[rw],4)}, {v(vXo)}, {s(sXY,4)}, {s(sT+rw)} offen")
            A(f"buffer_store_dwordx4 {v(XR[rw]+4,4)}, {v(vXo)}, {s(sXY,4)}, {s(sT+rw)} offen offset:16")

def chunk_rows(A, sChunk, sWave, sS0, sT):
    A(f"s_and_b32 {s(sS0)}, {s(sChunk)}, 31")
    A(f"s_lshr_b32 {s(sT)}, {s(sChunk)}, 7")
    A(f"s_lshl_b32 {s(sT)}, {s(sT)}, 5")
    A(f"s_add_u32 {s(sS0)}, {s(sS0)}, {s(sT)}")
    A(f"s_bfe_u32 {s(sT)}, {s(sChunk)}, 0x10006")
    A(f"s_lshl_b32 {s(sT)}, {s(sT)}, 10")
    A(f"s_add_u32 {s(sS0)}, {s(sS0)}, {s(sT)}")
    A(f"s_bfe_u32 {s(sT)}, {s(sChunk)}, 0x10005")
    A(f"s_lshl_b32 {s(sT)}, {s(sT)}, 8")
    A(f"s_add_u32 {s(sS0)}, {s(sS0)}, {s(sT)}")
    A(f"s_bfe_u32 {s(sT)}, {s(sWave)}, 0x10001")
    A(f"s_lshl_b32 {s(sT)}, {s(sT)}, 9")
    A(f"s_add_u32 {s(sS0)}, {s(sS0)}, {s(sT)}")
    A(f"s_and_b32 {s(sT)}, {s(sWave)}, 1")
    A(f"s_lshl_b32 {s(sT)}, {s(sT)}, 7")
    A(f"s_add_u32 {s(sS0)}, {s(sS0)}, {s(sT)}")

def gen_k4(A, name, opts):
    kernel_begin(A, name)
    done = A.newlabel("k4_done")
    R = RowIFFT(A, opts)
    sX, sZT, sXY = 8, 12, 16
    sWS = 28; sWave = 40; sChunk, sS0, sT = 30, 31, 32
    A("s_cmp_ge_u32 s2, 256")
    A(f"s_cbranch_scc1 {done}")
    A("s_load_dwordx2 s[4:5], s[0:1], 0")
    A(f"s_load_dwordx2 {s(sWS,2)}, s[0:1], 72")
    A("v_lshrrev_b32 v2, 6, v0")
    A(f"v_and_b32 {v(R.vL)}, 63, v0")
    A("s_nop 0")
    A(f"v_readfirstlane_b32 {s(sWave)}, v2")
    A(f"s_and_b32 {s(sChunk)}, s2, 7")
    A(f"s_lshl_b32 {s(sChunk)}, {s(sChunk)}, 5")
    A(f"s_lshr_b32 {s(sT)}, s2, 3")
    A(f"s_add_u32 {s(sChunk)}, {s(sChunk)}, {s(sT)}")
    chunk_rows(A, sChunk, sWave, sS0, sT)
    A("s_waitcnt lgkmcnt(0)")
    make_srd(A, sX, 4, 5, 4 << 20)
    make_srd(A, sZT, sWS, sWS+1, 4 << 20, add=WS_ZT)
    make_srd(A, sXY, sWS, sWS+1, 4 << 20, add=WS_XY)
    A(f"v_lshlrev_b32 v2, 13, v0")
    A(f"s_lshl_b32 {s(sT)}, {s(sChunk)}, 4")
    A(f"v_add_u32 v2, {s(sT)}, v2")
    A(f"s_lshl_b32 {s(sT+1)}, {s(sWave)}, 10")
    for i in range(4):
        A(f"s_add_u32 m0, {s(sT+1)}, {i*4096}")
        A(f"s_mov_b32 {s(sT+2)}, {(i&1)*256*8192 + (i>>1)*4096}")
        A(f"buffer_load_dwordx4 v2, {s(sZT,4)}, {s(sT+2)} offen lds")
    R.gen_consts()
    A("s_waitcnt vmcnt(0)")
    A("s_barrier")
    R.rows(sWave, sS0, sX, sXY, 0, sT)
    A.label(done)
    A("s_endpgm")
```

```python
import sys
from asmlib import *
from gemm import parse_opts, gen_gemm1, gen_gemm2
from k1b import gen_k1b as gen_k1, NK1
from gemm2c import gen_gemm2c
from colfft import gen_k3
from rowifft import gen_k4
opts = parse_opts(sys.argv[2:])
A = Asm()
c1 = dict(T=16, NWM=2, NWN=4, NS=4)
c2 = dict(NWM=2, NWN=2, BM=64, NS=8)
hdr = open("parallel_sum__spectral_gfnet__glu_gated_geglu__prompt.s.ref").read().split("; Override launch")[0]
A.raw(hdr.rstrip())
if opts.get("pre_empty"): A.raw("; @launch kernel=e_kernel grid=(1,1,1) block=(64,1,1) lds=0")
A.raw(f"; @launch kernel=k1_kernel grid=({NK1},1,1) block=(512,1,1) lds=65536")
A.raw(f"; @launch kernel=g1_kernel grid=(256,1,1) block=(512,1,1) lds=131072")
if not opts.get("fuse"): A.raw(f"; @launch kernel=k3_kernel grid=(129,1,1) block=(256,1,1) lds=32768")
if not opts.get("fuse"): A.raw(f"; @launch kernel=k4_kernel grid=(256,1,1) block=(256,1,1) lds=16384")
A.raw(f"; @launch kernel=g2_kernel grid=(256,1,1) block=(512,1,1) lds={opts.get('NS2',4)*32768}")
if opts.get("post_empty"): A.raw("; @launch kernel=e_kernel grid=(1,1,1) block=(64,1,1) lds=0")
if opts.get("tldbg"): A.raw("; @launch kernel=dbg_kernel grid=(1,1,1) block=(64,1,1) lds=0")
A.raw('.amdgcn_target "amdgcn-amd-amdhsa--gfx950"')
A.raw(".text")
if opts.get("pre_empty") or opts.get("post_empty"):
    kernel_begin(A, "e_kernel"); A("s_endpgm")
gen_k1(A, "k1_kernel", opts)
gen_gemm1(A, "g1_kernel", c1, opts)
if not opts.get("fuse"):
    gen_k3(A, "k3_kernel", opts)
    gen_k4(A, "k4_kernel", opts)
o2 = dict(opts)
o2["stamp"] = opts.get("stamp2")
for k in list(opts):
    if k.startswith("g2_"): o2[k[3:]] = opts[k]
G2 = gen_gemm2c(A, "g2_kernel", o2)
if opts.get("tldbg"):
    from dbgstamp import gen_dbg_kernel
    nk1 = NK1
    gen_dbg_kernel(A, "dbg_kernel", {0:(0,nk1),1:(0,256),2:(256,nk1),3:(0,256),4:(0,224),5:(0,224),6:(0,224),7:(224,256),8:(224,256),9:(0,256),11:(0,256),12:(0,256)})
A.raw('.section .rodata,"a"')
if opts.get("tldbg"): A.raw(kernel_desc("dbg_kernel", 16))
if opts.get("pre_empty") or opts.get("post_empty"): A.raw(kernel_desc("e_kernel", 16))
for k in ("k1_kernel", "g1_kernel") + (() if opts.get("fuse") else ("k3_kernel", "k4_kernel")):
    A.raw(kernel_desc(k, 128 if k == "k1_kernel" else 256))
A.raw(kernel_desc("g2_kernel", G2["vgpr"], accum=256))
open(sys.argv[1], "w").write(A.text())
```

```python
from asmlib import *
from layout import *
from dbgstamp import *
from sync import *
from gemm import stamp, stamp_store
from colfft import col_params
from rowifft import chunk_rows
MF = "v_mfma_f32_32x32x16_bf16"

def pk(op, d, *srcs, neg=None):
    ss = ", ".join(v(x, 2) for x in srcs)
    m = ""
    if neg:
        bits = ",".join("1" if i in neg else "0" for i in range(len(srcs)))
        m = f" neg_lo:[{bits}] neg_hi:[{bits}]"
    return f"v_pk_{op}_f32 {v(d,2)}, {ss}{m}"

USE_PK = False
def pk2(A, op, n, d, *srcs, neg=None):
    if USE_PK:
        for r in range(0, n, 2): A(pk(op, d+r, *[x+r for x in srcs], neg=neg))
        return
    for r in range(n):
        ss = [("-" if (neg and i in neg) else "") + v(x+r) for i, x in enumerate(srcs)]
        A(f"v_{op}_f32 {v(d+r)}, " + ", ".join(ss))

def angle(A, t, b0, vIdx, vH4, mod, sign=1.0, vPhase=None):
    if b0 <= 64:
        A(f"v_mad_u32_u24 {v(t)}, {b0}, {v(vIdx)}, {v(vH4)}")
    else:
        A(f"v_mul_u32_u24 {v(t)}, {b0}, {v(vIdx)}")
        A(f"v_add_u32 {v(t)}, {v(t)}, {v(vH4)}")
    A(f"v_and_b32 {v(t)}, {mod-1}, {v(t)}")
    A(f"v_cvt_f32_u32 {v(t)}, {v(t)}")
    if vPhase is None:
        A(f"v_mul_f32 {v(t)}, {f32(sign/mod)}, {v(t)}")
    else:
        A(f"v_fmamk_f32 {v(t)}, {v(t)}, {f32(sign/mod)}, {v(vPhase)}")

def job_trig(A, b0s, vIdx, vH4, mod, W, vAddr, outs, vPhase=None):
    T, C, S, O = W, W+8, W+16, W+24
    for e in range(8): angle(A, T+e, b0s[e], vIdx, vH4, mod, vPhase=vPhase)
    for e in range(8): A(f"v_cos_f32 {v(C+e)}, {v(T+e)}")
    for e in range(8): A(f"v_sin_f32 {v(S+e)}, {v(T+e)}")
    A("s_nop 0")
    for k, (kind, off) in enumerate(outs):
        o = O + 4*k
        for p in range(4):
            if kind == 'c': A(f"v_cvt_pk_bf16_f32 {v(o+p)}, {v(C+2*p)}, {v(C+2*p+1)}")
            if kind == 's': A(f"v_cvt_pk_bf16_f32 {v(o+p)}, {v(S+2*p)}, {v(S+2*p+1)}")
            if kind == 'n': A(f"v_cvt_pk_bf16_f32 {v(o+p)}, -{v(S+2*p)}, -{v(S+2*p+1)}")
        A(f"ds_write_b128 {v(vAddr)}, {v(o,4)} offset:{off}")

def job_tw(A, b0s, vIdx, vH4, mod, W, vAddr, offc, offs, sign=1.0, scale=None):
    T, C, S = W, W+8, W+16
    for e in range(8): angle(A, T+e, b0s[e], vIdx, vH4, mod, sign=sign)
    for e in range(8): A(f"v_cos_f32 {v(C+e)}, {v(T+e)}")
    for e in range(8): A(f"v_sin_f32 {v(S+e)}, {v(T+e)}")
    A("s_nop 0")
    if scale is not None:
        for e in range(16): A(f"v_mul_f32 {v(C+e)}, {f32(scale)}, {v(C+e)}")
    for q in range(2):
        A(f"ds_write_b128 {v(vAddr)}, {v(C+4*q,4)} offset:{offc+q*1024}")
        A(f"ds_write_b128 {v(vAddr)}, {v(S+4*q,4)} offset:{offs+q*1024}")

def run_jobs(A, jobs, sWave, nw):
    load = [0]*nw; asg = [[] for _ in range(nw)]
    for cost, fn in sorted(jobs, key=lambda x: -x[0]):
        w = load.index(min(load)); load[w] += cost; asg[w].append(fn)
    end = A.newlabel("jobs_end")
    for w in range(nw):
        if not asg[w]: continue
        nxt = A.newlabel("jobs")
        A(f"s_cmp_lg_u32 {s(sWave)}, {w}")
        A(f"s_cbranch_scc1 {nxt}")
        for fn in asg[w]: fn()
        A(f"s_branch {end}")
        A.label(nxt)
    A.label(end)

PI = lambda u, base=0: [base + 16*u + 8*(e//4) + e % 4 for e in range(8)]
EO = lambda it, par: [32*it + 8*(e//2) + 2*(e % 2) + par for e in range(8)]
DR = lambda half, base=0: [base + 8*(r//4) + r % 4 for r in range(8*half, 8*half+8)]

def cmul_pk(A, ar, ai, c, sn, X):
    for r in range(0, 8, 2): A(pk("mul", X+r, ar+r, c+r))
    for r in range(0, 8, 2): A(pk("mul", ar+r, ar+r, sn+r))
    for r in range(0, 8, 2): A(pk("fma", X+r, ai+r, sn+r, X+r, neg=[0]))
    for r in range(0, 8, 2): A(pk("fma", ai+r, ai+r, c+r, ar+r))

def gen_fft_role2(A, opts, sFid, done, NF=32):
    vL, vOff, vTw = 1, 2, 3
    ROFF = [8, 9, 10, 11, 16, 17, 18, 19]
    C32, S32, N32 = 8, 16, 24
    K64 = 32
    def k64(par, kind, it): return K64 + ((par*3 + 'csn'.index(kind))*2 + it)*4
    SX, SY, SZ = 80, 112, 144
    ACC = 176
    TMP = 240
    XS = 0
    accr = lambda t: ACC + 16*t
    acci = lambda t: ACC + 32 + 16*t
    TW1, TW2, CC, RC = 0, 16384, 32768, 32768 + 18*1024
    sYT, sZT, sWT, sX, sXY = 8, 12, 16, 20, 44
    sWS = 24; sDbg = 26; sWave = 40; sCol, sRe, sIm, sWo = 30, 31, 32, 34
    sRe2, sIm2 = 36, 37
    sT = 48
    FU = opts.get("fused")
    LF = " sc1" if FU else ""
    stamp(A, opts, 0)
    if not FU:
        A(f"s_load_dwordx4 {s(sT,4)}, s[0:1], 64")
        A("v_lshrrev_b32 v2, 6, v0")
        A(f"v_and_b32 {v(vL)}, 63, v0")
        A("s_nop 0")
        A(f"v_readfirstlane_b32 {s(sWave)}, v2")
        A("s_nop 3")
    A(f"s_lshl_b32 {s(sCol)}, {s(sFid)}, 3")
    A(f"s_add_u32 {s(sCol)}, {s(sCol)}, {s(sWave)}")
    col_params(A, sCol, sRe, sIm, sWo, 38)
    A(f"v_lshlrev_b32 {v(vOff)}, 4, {v(vL)}")
    if not FU:
        A("s_waitcnt lgkmcnt(0)")
        A(f"s_mov_b64 {s(sDbg,2)}, {s(sT,2)}")
        A(f"s_mov_b64 {s(sWS,2)}, {s(sT+2,2)}")
    make_srd(A, sYT, sWS, sWS+1, 4<<20, add=WS_YT)
    make_srd(A, sWT, sWS, sWS+1, 513*WP, add=WS_WT)
    PST = 65536
    vPd, vPr = 252, 253
    def dma_P(rnd):
        for i in range(8):
            A(f"s_add_u32 m0, {s(sM0)}, {i*1024}")
            A(f"s_add_u32 {s(sT)}, {s(sPb)}, {i*4*16384 + rnd*8192}")
            A(f"buffer_load_dwordx4 {v(vPdi[i%4])}, {s(sYT,4)}, {s(sT)} offen{LF} lds")
    def read_P():
        for c in range(2):
            for q in range(4):
                A(f"ds_read_b128 {v(SX + c*16 + q*4, 4)}, {v(vPrd[c])} offset:{q*16384}")
    def load_W():
        for q in range(8):
            A(f"buffer_load_dwordx4 {v(SZ+4*q,4)}, {v(vOff)}, {s(sWT,4)}, {s(sWo + (q//4))} offen offset:{(q%4)*1024}{LF}")
    sM0, sPb = 41, 43
    vPdi = [SY, SY+1, SY+2, SY+3]
    vPrd = [3, 0]
    def calc_pd():
        A(f"v_lshrrev_b32 {v(SY+4)}, 4, {v(vL)}")
        A(f"v_and_b32 {v(SY+5)}, 15, {v(vL)}")
        A(f"v_xor_b32 {v(SY+5)}, {v(SY+5)}, {v(SY+4)}")
        A(f"v_lshlrev_b32 {v(SY+5)}, 4, {v(SY+5)}")
        A(f"v_lshl_add_u32 {v(vPdi[0])}, {v(SY+4)}, 14, {v(SY+5)}")
        for i in range(1, 4): A(f"v_xor_b32 {v(vPdi[i])}, {i*64}, {v(vPdi[0])}")
    calc_pd()
    A(f"s_lshl_b32 {s(sM0)}, {s(sWave)}, 13")
    A(f"s_add_u32 {s(sM0)}, {s(sM0)}, {PST}")
    A(f"s_lshl_b32 {s(sPb)}, {s(sWave)}, 19")
    A(f"s_lshl_b32 {s(sT)}, {s(sFid)}, 8")
    A(f"s_add_u32 {s(sPb)}, {s(sPb)}, {s(sT)}")
    if not FU:
        dma_P(0)
        load_W()
    A(f"s_lshl_b32 {s(sT)}, {s(sWave)}, 1")
    A(f"v_and_b32 v4, 15, {v(vL)}")
    A(f"v_xor_b32 v4, {s(sT)}, v4")
    A(f"v_lshlrev_b32 v4, 4, v4")
    A(f"v_lshl_add_u32 v4, {v(vL)}, 8, v4")
    A(f"v_add_u32 v3, {PST}, v4")
    A(f"v_xor_b32 v0, 16, v3")
    npf = 0
    if not opts.get("nopf"):
        PFK = opts.get("pfk", 256)
        make_srd(A, 92, 84, 85, 1024*3584*2)
        make_srd(A, 96, 86, 87, 1024*3584*2)
        make_srd(A, 88, 6, 7, 1024*3584*2)
        A(f"v_lshlrev_b32 v4, 7, v0")
        A(f"s_lshl_b32 {s(sT)}, {s(sFid)}, 16")
        A(f"s_add_u32 {s(sT+1)}, {s(sT)}, {PFK*7168}")
        nit = -(-(1024-PFK)*7168 // (32 << 16))
        for i in range(nit):
            A(f"buffer_load_dword v3, v4, s[92:95], {s(sT+1)} offen")
            A(f"buffer_load_dword v3, v4, s[96:99], {s(sT+1)} offen")
            A(f"s_add_u32 {s(sT+1)}, {s(sT+1)}, {32<<16}")
            npf += 2
    make_srd(A, sZT, sWS, sWS+1, 1024*YP, add=WS_ZT)
    make_srd(A, sXY, sWS, sWS+1, 4 << 20, add=WS_XY)
    W = ACC
    vI, vH4, vI2, vH42, vN2, vH4n = TMP, TMP+1, TMP+2, TMP+3, TMP+4, TMP+5
    t0, t1, t2 = TMP+6, TMP+7, TMP+8
    A(f"v_and_b32 {v(vI)}, 31, {v(vL)}")
    A(f"v_lshrrev_b32 {v(t0)}, 5, {v(vL)}")
    A(f"v_lshlrev_b32 {v(t0)}, 2, {v(t0)}")
    A(f"v_mul_u32_u24 {v(vH4)}, {v(t0)}, {v(vI)}")
    A(f"v_add_u32 {v(vI2)}, 32, {v(vI)}")
    A(f"v_mul_u32_u24 {v(vH42)}, {v(t0)}, {v(vI2)}")
    A(f"v_bfe_u32 {v(t1)}, {v(vL)}, 2, 1")
    A(f"v_lshlrev_b32 {v(t1)}, 4, {v(t1)}")
    A(f"v_bfe_u32 {v(t2)}, {v(vL)}, 3, 2")
    A(f"v_lshl_add_u32 {v(t1)}, {v(t2)}, 2, {v(t1)}")
    A(f"v_and_b32 {v(t2)}, 3, {v(vL)}")
    A(f"v_add_u32 {v(vN2)}, {v(t1)}, {v(t2)}")
    A(f"v_mul_u32_u24 {v(vH4n)}, {v(t0)}, {v(vN2)}")
    img = lambda reg: CC + ((reg - 8)//4)*1024
    def rimg(reg):
        if reg < 80: return RC + ((reg - 64)//4)*1024
        if reg < 88: return img(C32 + reg - 80)
        if reg < 96: return img(N32 + reg - 88)
        return RC + (4 + (reg - 96)//4)*1024
    jobs = []
    for u in range(2):
        jobs.append((60, lambda u=u: job_trig(A, PI(u), vI, vH4, 32, W, vOff, [('c', img(C32+4*u)), ('s', img(S32+4*u)), ('n', img(N32+4*u)), ('c', rimg(80+4*u))][:3] + [])))
    for par in range(2):
        for it in range(2):
            jobs.append((60, lambda par=par, it=it: job_trig(A, EO(it, par), vI, vH4, 64, W, vOff, [(k, img(k64(par, k, it))) for k in 'csn'])))
    for t in range(2):
        for half in range(2):
            jobs.append((52, lambda t=t, half=half: job_tw(A, DR(half, 32*t), vI, vH4, 2048, W, vOff, TW1 + t*8192 + half*2048, TW1 + t*8192 + 4096 + half*2048, sign=-1.0)))
            jobs.append((68, lambda t=t, half=half: job_tw(A, DR(half), vI if t == 0 else vI2, vH4 if t == 0 else vH42, 2048, W, vOff, TW2 + t*8192 + half*2048, TW2 + t*8192 + 4096 + half*2048, scale=2.0**-20)))
    jobs.append((64, lambda: job_trig(A, PI(0), vN2, vH4n, 32, W, vOff, [('c', rimg(64)), ('n', rimg(68)), ('s', rimg(72)), ('c', rimg(76))])))
    for half in range(2):
        jobs.append((52, lambda half=half: job_tw(A, DR(half), vN2, vH4n, 1024, W, vOff, rimg(96) + half*2048, rimg(112) + half*2048)))
    run_jobs(A, jobs, sWave, 8)
    fs = dict(stamp=opts.get("stamp") and opts.get("fine"))
    stamp(A, fs, 4)
    if FU:
        A("s_waitcnt vmcnt(0) lgkmcnt(0)")
        A("s_barrier")
        f1 = A.newlabel("ff1"); f2 = A.newlabel("ff2")
        A(f"s_cmp_lg_u32 {s(sWave)}, 4")
        A(f"s_cbranch_scc1 {f1}")
        get_tag(A, sDbg, 90, 4)
        A(f"s_lshl_b32 {s(sT)}, s2, 3")
        A(f"s_add_u32 {s(sT)}, {s(sT)}, 2048")
        set_flag(A, 88, sT, 90, 4)
        A.label(f1)
        A(f"s_cmp_lg_u32 {s(sWave)}, 0")
        A(f"s_cbranch_scc1 {f2}")
        get_tag(A, sDbg, 90, 4)
        A(f"v_lshlrev_b32 v4, 3, {v(vL)}")
        A(f"v_add_u32 v4, 2048, v4")
        poll_flags(A, 88, 4, 4, 90, SX, 92)
        A.label(f2)
        A("s_barrier")
        dma_P(0)
        load_W()
    A("s_waitcnt vmcnt(8) lgkmcnt(0)")
    A("s_barrier")
    read_P()
    for g in range(18):
        A(f"ds_read_b128 {v(8+4*g,4)}, {v(vOff)} offset:{CC + g*1024}")
    A("s_waitcnt lgkmcnt(0)")
    A("s_barrier")
    dma_P(1)
    def zero_im():
        z = A.newlabel("zim")
        A(f"s_and_b32 {s(sT)}, {s(sCol)}, 511")
        A(f"s_cmp_lg_u32 {s(sT)}, 0")
        A(f"s_cbranch_scc1 {z}")
        for r in range(16): A(f"v_mov_b32 {v(SX+16+r)}, 0")
        A.label(z)
    zero_im()
    XS = TMP + 16 - 16
    Pr = lambda it, u: SX + (it*2+u)*4
    Pi = lambda it, u: SX + 16 + (it*2+u)*4
    Zr = lambda it, u: SZ + (it*2+u)*4
    Zi = lambda it, u: SZ + 16 + (it*2+u)*4
    Yo = lambda c, par, it: SY + ((c*2 + par)*2 + it)*4

    def tw_load(table, g):
        t, q = g >> 2, g & 3
        o = TMP + 8*(g & 1)
        A(f"ds_read_b128 {v(o,4)}, {v(vOff)} offset:{table + t*8192 + q*1024}")
        A(f"ds_read_b128 {v(o+4,4)}, {v(vOff)} offset:{table + t*8192 + (4+q)*1024}")
    def cmul4(g, eo):
        t, q = g >> 2, g & 3
        ar = accr(t) + 4*q; ai = acci(t) + 4*q; c = TMP + 8*(g & 1); sn = c + 4
        pk2(A, "mul", 4, 4, ar, c)
        pk2(A, "mul", 4, ar, ar, sn)
        pk2(A, "fma", 4, 4, ai, sn, 4, neg=[0])
        pk2(A, "fma", 4, ai, ai, c, ar)
        if eo:
            A(f"v_cvt_pk_bf16_f32 {v(Yo(0,0,t)+q)}, v4, v6")
            A(f"v_cvt_pk_bf16_f32 {v(Yo(0,1,t)+q)}, v5, v7")
            A(f"v_cvt_pk_bf16_f32 {v(Yo(1,0,t)+q)}, {v(ai)}, {v(ai+2)}")
            A(f"v_cvt_pk_bf16_f32 {v(Yo(1,1,t)+q)}, {v(ai+1)}, {v(ai+3)}")
        else:
            for p in range(2):
                A(f"v_cvt_pk_bf16_f32 {v(Zr(t,0)+2*q+p)}, {v(4+2*p)}, {v(5+2*p)}")
            for p in range(2):
                A(f"v_cvt_pk_bf16_f32 {v(Zi(t,0)+2*q+p)}, {v(ai+2*p)}, {v(ai+2*p+1)}")
    def tw_phase(table, eo):
        for g in range(8):
            A(f"s_waitcnt lgkmcnt({2 if g < 7 else 0})")
            cmul4(g, eo)
            if g+2 < 8: tw_load(table, g+2)
    def bfly():
        for c in range(2):
            e = ACC + 32*c; o = e + 16
            pk2(A, "add", 16, e, e, o)
            for r in range(16): A(f"v_fma_f32 {v(o+r)}, {v(o+r)}, -2.0, {v(e+r)}")
    A("s_mov_b32 s54, -2.0")
    A("s_mov_b32 s55, -2.0")
    lp = A.newlabel("col_loop"); cend = A.newlabel("col_end"); nopre = A.newlabel("col_nopre"); now = A.newlabel("col_now")
    A("s_nop 1")
    A.label(lp)
    stamp(A, fs, 5)
    tw_load(TW1, 0); tw_load(TW1, 1)
    for it in range(2):
        for u in range(2):
            c = "0" if u == 0 else v(accr(it),16)
            A(f"{MF} {v(accr(it),16)}, {v(Pr(it,u),4)}, {v(C32+4*u,4)}, {c}")
            c = "0" if u == 0 else v(acci(it),16)
            A(f"{MF} {v(acci(it),16)}, {v(Pi(it,u),4)}, {v(C32+4*u,4)}, {c}")
        for u in range(2):
            A(f"{MF} {v(accr(it),16)}, {v(Pi(it,u),4)}, {v(S32+4*u,4)}, {v(accr(it),16)}")
            A(f"{MF} {v(acci(it),16)}, {v(Pr(it,u),4)}, {v(N32+4*u,4)}, {v(acci(it),16)}")
    A(f"s_mov_b32 {s(sRe2)}, {s(sRe)}")
    A(f"s_mov_b32 {s(sIm2)}, {s(sIm)}")
    A(f"s_add_u32 {s(sCol)}, {s(sCol)}, {NF*8}")
    col_params(A, sCol, sRe, sIm, 38, 0)
    tw_phase(TW1, True)
    A("s_nop 1")
    def stage64(fwd):
        for par in range(2):
            for it in range(2):
                for c in range(2):
                    d = (accr if c == 0 else acci)(par)
                    cc = "0" if it == 0 else v(d,16)
                    x, y = v(k64(par,'c',it),4), v(Yo(c,par,it),4)
                    A(f"{MF} {v(d,16)}, {x}, {y}, {cc}" if fwd else f"{MF} {v(d,16)}, {y}, {x}, {cc}")
            for it in range(2):
                for c in range(2):
                    d = (accr if c == 0 else acci)(par)
                    kind = ('s' if c == 0 else 'n') if fwd else ('n' if c == 0 else 's')
                    x, y = v(k64(par,kind,it),4), v(Yo(1-c,par,it),4)
                    A(f"{MF} {v(d,16)}, {x}, {y}, {v(d,16)}" if fwd else f"{MF} {v(d,16)}, {y}, {x}, {v(d,16)}")
    stamp(A, fs, 6)
    stage64(True)
    A("s_waitcnt vmcnt(0)")
    nb = A.newlabel("col_nb")
    A(f"s_cmp_ge_u32 {s(sCol)}, 512")
    A(f"s_cbranch_scc1 {nb}")
    A("s_barrier")
    read_P()
    A.label(nb)
    def wunpack(g):
        t, q = g >> 2, g & 3
        wr = Zr(t,0) + 2*q; wi = Zi(t,0) + 2*q; o = TMP + 8*(g & 1)
        for p in range(2):
            A(f"v_lshlrev_b32 {v(o+2*p)}, 16, {v(wr+p)}")
            A(f"v_and_b32 {v(o+2*p+1)}, 0xffff0000, {v(wr+p)}")
            A(f"v_lshlrev_b32 {v(o+4+2*p)}, 16, {v(wi+p)}")
            A(f"v_and_b32 {v(o+4+2*p+1)}, 0xffff0000, {v(wi+p)}")
    wunpack(0); wunpack(1)
    bfly()
    for g in range(8):
        cmul4(g, True)
        if g+2 < 8: wunpack(g+2)
    tw_load(TW2, 0); tw_load(TW2, 1)
    stamp(A, fs, 7)
    stage64(False)
    A("s_nop 7"); A("s_nop 3")
    bfly()
    tw_phase(TW2, False)
    A("s_nop 1")
    stamp(A, fs, 8)
    for jt in range(2):
        for u in range(2):
            c = "0" if u == 0 else v(accr(jt),16)
            A(f"{MF} {v(accr(jt),16)}, {v(C32+4*u,4)}, {v(Zr(jt,u),4)}, {c}")
            c = "0" if u == 0 else v(acci(jt),16)
            A(f"{MF} {v(acci(jt),16)}, {v(C32+4*u,4)}, {v(Zi(jt,u),4)}, {c}")
        for u in range(2):
            A(f"{MF} {v(accr(jt),16)}, {v(N32+4*u,4)}, {v(Zi(jt,u),4)}, {v(accr(jt),16)}")
            A(f"{MF} {v(acci(jt),16)}, {v(S32+4*u,4)}, {v(Zr(jt,u),4)}, {v(acci(jt),16)}")
    A(f"s_mov_b32 {s(sWo)}, s38")
    A(f"s_mov_b32 {s(sWo+1)}, s39")
    load_W()
    for jt in range(2):
        if jt == 1: A("s_nop 3")
        for c in range(2):
            base = (accr(jt) if c == 0 else acci(jt))
            for p in range(8):
                A(f"v_cvt_pk_bf16_f32 {v(SY + c*16 + jt*8 + p)}, {v(base+2*p)}, {v(base+2*p+1)}")
    for c, so in enumerate((sRe2, sIm2)):
        for q in range(4):
            A(f"buffer_store_dwordx4 {v(SY + c*16 + q*4, 4)}, {v(vOff)}, {s(sZT,4)}, {s(so)} offen offset:{q*1024} sc1")
    A(f"s_cmp_ge_u32 {s(sCol)}, 512")
    A(f"s_cbranch_scc1 {cend}")
    A(f"s_branch {lp}")
    A.label(cend)
    A("s_waitcnt vmcnt(0)")
    ny_done = A.newlabel("ny_done"); norm = A.newlabel("col_norm")
    A(f"s_cmp_eq_u32 {s(sCol)}, 768")
    A(f"s_cbranch_scc1 {ny_done}")
    stamp(A, opts, 1)
    dbg_mark(A, opts, 7, 4)
    A("s_barrier")
    A(f"s_cmp_lg_u32 {s(sCol)}, 512")
    A(f"s_cbranch_scc1 {norm}")
    A(f"v_lshlrev_b32 v4, 14, {v(vL)}")
    for q in range(4):
        A(f"s_mov_b32 {s(sT)}, {q*64*16384 + 16}")
        A(f"buffer_load_dwordx4 {v(SX+q*4,4)}, v4, {s(sYT,4)}, {s(sT)} offen{LF}")
    zero_im()
    A("s_waitcnt vmcnt(0)")
    A(f"s_branch {lp}")
    A.label(ny_done)
    A("v_mov_b32 v4, 128")
    A("v_mov_b32 v5, 1")
    A("s_mov_b64 exec, 1")
    A(f"global_store_dword v4, v5, {s(sDbg,2)} sc1")
    A("s_mov_b64 exec, -1")
    A.label(norm)
    A(f"s_lshl_b32 {s(sT)}, {s(sWave)}, 6")
    A(f"v_add_u32 v0, {s(sT)}, {v(vL)}")
    for g in range(16):
        A(f"ds_read_b128 {v(64+4*g,4)}, {v(vOff)} offset:{rimg(64+4*g)}")
    sk = A.newlabel("fft_sig"); pl = A.newlabel("fft_poll")
    A(f"s_cmp_lg_u32 {s(sWave)}, 4")
    A(f"s_cbranch_scc1 {sk}")
    A("v_mov_b32 v4, 0")
    A("v_mov_b32 v5, 1")
    A("s_mov_b64 exec, 1")
    A(f"global_atomic_add v4, v5, {s(sDbg,2)} sc1")
    A.label(pl)
    A("s_sleep 2")
    A(f"global_load_dword v6, v4, {s(sDbg,2)} sc1")
    A("s_waitcnt vmcnt(0)")
    A(f"v_readfirstlane_b32 {s(sT)}, v6")
    A("s_nop 3")
    A(f"s_cmp_lt_u32 {s(sT)}, {NF}")
    A(f"s_cbranch_scc1 {pl}")
    A("s_mov_b64 exec, -1")
    A.label(sk)
    B1R, B1I, B2C, B2N, TWC, TWS = 64, 72, 80, 88, 96, 112
    A("v_lshrrev_b32 v4, 3, v0")
    A(f"v_mul_u32_u24 v5, {2*YP}, v4")
    A("v_and_b32 v6, 7, v0")
    A("v_lshlrev_b32 v7, 4, v6")
    A(f"s_lshl_b32 {s(sT)}, {s(sFid)}, 7")
    A(f"v_add3_u32 v5, v5, v7, {s(sT)}")
    A("v_lshrrev_b32 v7, 1, v4")
    A("v_xor_b32 v7, v7, v6")
    A("v_and_b32 v7, 7, v7")
    A("v_lshlrev_b32 v7, 4, v7")
    A("v_lshl_add_u32 v7, v4, 7, v7")
    A("v_add_u32 v6, 0x10000, v7")
    vXo, vRd, vRd2, vNy = 8, 9, 10, 11
    T0, T1, T2 = 12, 13, 14
    A(f"v_and_b32 {v(T0)}, 31, {v(vL)}")
    A(f"v_lshlrev_b32 {v(T1)}, 6, {v(T0)}")
    A(f"v_and_b32 {v(T2)}, 32, {v(vL)}")
    A(f"v_add_u32 {v(vXo)}, {v(T1)}, {v(T2)}")
    A(f"v_lshlrev_b32 {v(T2)}, 9, {v(T2)}")
    A(f"v_lshl_add_u32 {v(T2)}, {v(T0)}, 7, {v(T2)}")
    A(f"v_bfe_u32 {v(T1)}, {v(vL)}, 1, 3")
    A(f"v_xor_b32 {v(T1)}, {s(sWave)}, {v(T1)}")
    A(f"v_lshl_add_u32 {v(vRd)}, {v(T1)}, 4, {v(T2)}")
    A(f"v_add_u32 {v(vRd2)}, 0x10000, {v(vRd)}")
    A(f"s_lshl_b32 {s(sT)}, {s(sWave)}, 4")
    A(f"s_add_u32 {s(sT)}, {s(sT)}, 0x10000")
    A(f"v_mov_b32 {v(vNy)}, {s(sT)}")
    sChunk, sS0, sZ = 30, 31, 32
    A(f"s_lshl_b32 {s(sChunk)}, {s(sFid)}, 3")
    A(f"s_add_u32 {s(sChunk)}, {s(sChunk)}, {s(sWave)}")
    A(f"s_mov_b32 {s(sZ)}, 0")
    chunk_rows(A, sChunk, sZ, sS0, sT)
    A(f"s_lshl_b32 {s(sS0)}, {s(sS0)}, 11")
    for e in range(8):
        A(f"s_add_u32 {s(ROFF[e])}, {s(sS0)}, {(8*(e>>2) + (e&3))*64*2048}")
    XR = [[16, 24], [32, 40]]
    def xload(p):
        for rw in range(2):
            A(f"buffer_load_dwordx4 {v(XR[p%2][rw],4)}, {v(vXo)}, {s(sX,4)}, {s(ROFF[2*p+rw])} offen")
            A(f"buffer_load_dwordx4 {v(XR[p%2][rw]+4,4)}, {v(vXo)}, {s(sX,4)}, {s(ROFF[2*p+rw])} offen offset:16")
    A("s_waitcnt lgkmcnt(0)")
    A("s_barrier")
    stamp(A, opts, 2)
    for i in range(16):
        A(f"s_mov_b32 {s(sT)}, {(i&7)*64*2*YP + (i>>3)*YP}")
        A(f"buffer_load_dwordx4 {v(128+4*i,4)}, v5, {s(sZT,4)}, {s(sT)} offen sc1")
    ex = 0
    for i in range(16):
        A(f"s_waitcnt vmcnt({15-i+ex})")
        if i == 8:
            A("v_cmp_le_u32 vcc, 8, v0")
            A("s_nop 1")
            for r in range(4): A(f"v_cndmask_b32 {v(128+4*i+r)}, 0, {v(128+4*i+r)}, vcc")
        A(f"ds_write_b128 {'v7' if i < 8 else 'v6'}, {v(128+4*i,4)} offset:{(i&7)*8192}")
    sk2 = A.newlabel("fft_sig2"); pl2 = A.newlabel("fft_poll2")
    A(f"s_cmp_lg_u32 {s(sWave)}, 4")
    A(f"s_cbranch_scc1 {sk2}")
    A("v_mov_b32 v4, 128")
    A.label(pl2)
    A(f"global_load_dword v3, v4, {s(sDbg,2)} sc1")
    A("s_waitcnt vmcnt(0)")
    A(f"v_readfirstlane_b32 {s(sT)}, v3")
    A("s_nop 3")
    A(f"s_cmp_eq_u32 {s(sT)}, 0")
    A(f"s_cbranch_scc1 {pl2}")
    A.label(sk2)
    A(f"s_mov_b32 {s(sT+3)}, 0x05040100")
    A(f"s_mov_b32 {s(sT+4)}, 0x07060302")
    A("s_waitcnt lgkmcnt(0)")
    A("s_barrier")
    A(f"s_lshl_b32 {s(sT)}, {s(sChunk)}, 4")
    A(f"s_add_u32 {s(sT)}, {s(sT)}, {YP}")
    A(f"v_mov_b32 {v(vNy)}, {s(sT)}")
    A(f"buffer_load_dwordx4 v[16:19], {v(vNy)}, {s(sZT,4)}, 0 offen sc1")
    RD = 224
    OP = [48, 56]
    TR = [128, 160]; TI = [144, 176]; UR = [192, 208]; UI = [200, 216]; WK = 240
    OUT = [24, 32]
    def rdload(p):
        for r in range(16):
            c = r >> 3; k2 = 8*((r >> 2) & 1) + (r & 3)
            A(f"ds_read_b32 {v(RD+r)}, {v(vRd if c == 0 else vRd2)} offset:{k2*4096 + p*4}")
    stamp(A, fs, 9)
    rdload(0)
    for p in range(4):
        A("s_waitcnt lgkmcnt(0)")
        for q in range(8):
            A(f"v_perm_b32 {v(OP[0]+q)}, {v(RD+2*q+1)}, {v(RD+2*q)}, {s(sT+3)}")
            A(f"v_perm_b32 {v(OP[1]+q)}, {v(RD+2*q+1)}, {v(RD+2*q)}, {s(sT+4)}")
        A("s_nop 0")
        for rw in range(2):
            for u in range(2):
                c = "0" if u == 0 else v(TR[rw],16)
                A(f"{MF} {v(TR[rw],16)}, {v(OP[rw]+4*u,4)}, {v(B1R+4*u,4)}, {c}")
                c = "0" if u == 0 else v(TI[rw],16)
                A(f"{MF} {v(TI[rw],16)}, {v(OP[rw]+4*u,4)}, {v(B1I+4*u,4)}, {c}")
        if p < 3: rdload(p+1)
        else: A("s_nop 7")
        for rw in range(2):
            pk2(A, "mul", 16, WK, TR[rw], TWC)
            pk2(A, "mul", 16, TR[rw], TR[rw], TWS)
            pk2(A, "fma", 16, WK, TI[rw], TWS, WK, neg=[0])
            pk2(A, "fma", 16, TI[rw], TI[rw], TWC, TR[rw])
            for q in range(8):
                A(f"v_cvt_pk_bf16_f32 {v(UR[rw]+q)}, {v(WK+2*q)}, {v(WK+2*q+1)}")
            for q in range(8):
                A(f"v_cvt_pk_bf16_f32 {v(UI[rw]+q)}, {v(TI[rw]+2*q)}, {v(TI[rw]+2*q+1)}")
            Y = TR[rw]
            A(f"{MF} {v(Y,16)}, {v(UR[rw],4)}, {v(B2C,4)}, 0")
            A(f"{MF} {v(Y,16)}, {v(UR[rw]+4,4)}, {v(B2C+4,4)}, {v(Y,16)}")
            A(f"{MF} {v(Y,16)}, {v(UI[rw],4)}, {v(B2N,4)}, {v(Y,16)}")
            A(f"{MF} {v(Y,16)}, {v(UI[rw]+4,4)}, {v(B2N+4,4)}, {v(Y,16)}")
        if p == 0: A("s_waitcnt vmcnt(0)")
        A(f"v_lshlrev_b32 v4, 16, {v(16+p)}")
        A(f"v_and_b32 v5, 0xffff0000, {v(16+p)}")
        for rw in range(2):
            Y = TR[rw]
            for r in range(16):
                A(f"v_{'add' if r % 2 == 0 else 'sub'}_f32 {v(Y+r)}, {v(Y+r)}, {v(4+rw)}")
            for q in range(8):
                A(f"v_cvt_pk_bf16_f32 {v(OUT[rw]+q)}, {v(Y+2*q)}, {v(Y+2*q+1)}")
            A(f"buffer_store_dwordx4 {v(OUT[rw],4)}, {v(vXo)}, {s(sXY,4)}, {s(ROFF[2*p+rw])} offen")
            A(f"buffer_store_dwordx4 {v(OUT[rw]+4,4)}, {v(vXo)}, {s(sXY,4)}, {s(ROFF[2*p+rw])} offen offset:16")
    if opts.get("stamp"):
        A("s_waitcnt vmcnt(0)")
        stamp(A, opts, 3)
        stamp_store(A, opts, 10, sWS, 128, sWave)
    if not opts.get("nopf"):
        A(f"v_lshlrev_b32 v4, 7, v0")
        A(f"s_lshl_b32 {s(sT)}, {s(sFid)}, 16")
        for i in range(4):
            A(f"buffer_load_dword v3, v4, s[88:91], {s(sT)} offen")
            A(f"s_add_u32 {s(sT)}, {s(sT)}, {32<<16}")
    if opts.get("tldbg"): A("s_waitcnt vmcnt(0)")
    dbg_mark(A, opts, 8, 4)
    A(f"s_branch {done}")
```

```python
from asmlib import *
from layout import *
from dbgstamp import *
from gemm import stamp, stamp_store
import math
MF = "v_mfma_f32_16x16x32_bf16"

def gen_gemm2c(A, name, opts):
    NS = opts.get("NS2", 4); XR = opts.get("XR", 4)
    NT = 14
    PRO = opts.get("PRO", 2)
    SLOT = 32768
    kernel_begin(A, name)
    sX, sW, sO, sXY, sP = 8, 12, 16, 20, 44
    sWS = 24; sTmp = 26
    sWave = 30; sMt, sNt, sHk = 31, 32, 33
    sM0 = 34; sKx, sKw, sKx2 = 35, 36, 37
    sG, sWr = 38, 39
    sFl = 42
    sPs, sPr, sFs, sFr = 48, 49, 50, 51
    ACC = 0
    WOP = [64, 96]
    XRG = 128
    XYR = XRG + XR*16
    b = XYR + 16
    vL, vSt, vXo = b, b+1, b+2
    vDw = [b+4, b+5, b+6, b+7]
    vWa = [list(range(b+8, b+16)), list(range(b+16, b+24))]
    t0, t1, t2, t3 = b+24, b+25, b+26, b+27
    vPo, vPo2, vEx = b+28, b+29, b+30
    assert b+31 <= 256
    def xr(t, kk, i): return v(XRG + (t % XR)*16 + (kk*2+i)*4, 4)
    done = A.newlabel("g2_done")
    A(f"s_cmp_ge_u32 s2, 256")
    A(f"s_cbranch_scc1 {done}")
    dbg_init(A, opts, 2); dbg_mark(A, opts, 9, 250, neg=True)
    stamp(A, opts, 0)
    A(f"s_load_dwordx4 s[4:7], s[0:1], 48")
    A(f"s_load_dwordx2 {s(sWS,2)}, s[0:1], 72")
    A(f"s_load_dwordx2 s[92:93], s[0:1], 0")
    A(f"v_lshrrev_b32 {v(t0)}, 6, v0")
    A(f"v_and_b32 {v(vL)}, 63, v0")
    A(f"s_and_b32 {s(sTmp)}, s2, 7")
    A(f"v_readfirstlane_b32 {s(sWave)}, {v(t0)}")
    A(f"s_lshr_b32 {s(sTmp+1)}, s2, 3")
    A(f"s_and_b32 {s(sHk)}, {s(sTmp)}, 1")
    A(f"s_lshr_b32 {s(sMt)}, {s(sTmp)}, 1")
    A(f"s_lshl_b32 {s(sMt)}, {s(sMt)}, 2")
    A(f"s_and_b32 {s(sTmp+2)}, {s(sTmp+1)}, 3")
    A(f"s_add_u32 {s(sMt)}, {s(sMt)}, {s(sTmp+2)}")
    A(f"s_lshr_b32 {s(sNt)}, {s(sTmp+1)}, 2")
    A(f"s_lshr_b32 {s(sG)}, {s(sWave)}, 2")
    A(f"s_and_b32 {s(sWr)}, {s(sWave)}, 3")
    sWb, sWe, sXb, sXe, sXb2, sXe2 = 52, 53, 54, 55, 40, 41
    ra, rb = opts.get("rot2", (0, 0))
    A(f"s_mul_i32 {s(sWb)}, {s(sHk)}, {14<<18}")
    A(f"s_mul_i32 {s(sXb)}, {s(sHk)}, {14<<15}")
    A(f"s_add_u32 {s(sWe)}, {s(sWb)}, {14<<18}")
    A(f"s_add_u32 {s(sXe)}, {s(sXb)}, {14<<15}")
    A(f"s_add_u32 {s(sXb2)}, {s(sXb)}, 8192")
    A(f"s_add_u32 {s(sXe2)}, {s(sXe)}, 8192")
    A(f"s_xor_b32 {s(sTmp)}, {s(sMt)}, {s(sNt)}")
    A(f"s_and_b32 {s(sTmp+1)}, {s(sTmp)}, 1")
    A(f"s_mul_i32 {s(sTmp+1)}, {s(sTmp+1)}, {ra}")
    A(f"s_bfe_u32 {s(sTmp)}, {s(sTmp)}, 0x10001")
    A(f"s_mul_i32 {s(sTmp)}, {s(sTmp)}, {rb}")
    A(f"s_add_u32 {s(sTmp)}, {s(sTmp)}, {s(sTmp+1)}")
    A(f"s_lshl_b32 {s(sTmp+1)}, {s(sTmp)}, 18")
    A(f"s_add_u32 {s(sKw)}, {s(sWb)}, {s(sTmp+1)}")
    A(f"s_lshl_b32 {s(sTmp+1)}, {s(sTmp)}, 15")
    A(f"s_add_u32 {s(sKx)}, {s(sXb)}, {s(sTmp+1)}")
    A(f"s_add_u32 {s(sKx2)}, {s(sKx)}, 8192")
    wraps = set()
    for o_ in {0, ra, rb, ra+rb}:
        if o_: wraps.add(14 - o_ - 1)
    A(f"v_lshrrev_b32 {v(t0)}, 4, {v(vL)}")
    A(f"v_lshlrev_b32 {v(t1)}, 1, {v(t0)}")
    A(f"v_and_b32 {v(t2)}, 15, {v(vL)}")
    A(f"v_xor_b32 {v(t2)}, {v(t2)}, {v(t1)}")
    A(f"v_lshlrev_b32 {v(t2)}, 4, {v(t2)}")
    A(f"s_lshl_b32 {s(sTmp)}, {s(sWave)}, 4")
    A(f"v_add_u32 {v(t0)}, {s(sTmp)}, {v(t0)}")
    A(f"v_lshlrev_b32 {v(t0)}, 11, {v(t0)}")
    A(f"s_lshl_b32 {s(sTmp)}, {s(sNt)}, 8")
    A(f"v_add3_u32 {v(t0)}, {v(t0)}, {v(t2)}, {s(sTmp)}")
    A(f"v_xor_b32 {v(t1)}, 128, {v(t0)}")
    for i in range(4):
        A(f"v_add_u32 {v(vDw[i])}, {i*4*2048 - i*1024}, {v(t1 if i & 2 else t0)}")
    A(f"s_lshl_b32 {s(sM0)}, {s(sWave)}, 12")
    A(f"s_mul_i32 {s(sTmp)}, {s(sMt)}, {112*8192}")
    A(f"s_lshl_b32 {s(sTmp+1)}, {s(sWr)}, 10")
    A(f"s_add_u32 {s(sTmp)}, {s(sTmp)}, {s(sTmp+1)}")
    A(f"s_lshl_b32 {s(sTmp+1)}, {s(sHk)}, 12")
    A(f"s_add_u32 {s(sTmp)}, {s(sTmp)}, {s(sTmp+1)}")
    A(f"s_lshl_b32 {s(sTmp+1)}, {s(sG)}, 14")
    A(f"s_add_u32 {s(sTmp)}, {s(sTmp)}, {s(sTmp+1)}")
    A(f"v_lshlrev_b32 {v(vPo)}, 4, {v(vL)}")
    A(f"v_add_u32 {v(vXo)}, {s(sTmp)}, {v(vPo)}")
    A(f"v_xor_b32 {v(vXo+1)}, 0x1000, {v(vXo)}")
    A(f"s_waitcnt lgkmcnt(0)")
    make_srd(A, sW, 4, 5, 3584*1024*2)
    make_srd(A, sX, sWS, sWS+1, 2048*3584*2, add=WS_H)
    def dma(t):
        slot = t % NS
        o = [f"s_add_u32 m0, {s(sM0)}, {slot*SLOT}", "s_nop 0"]
        for i in range(4):
            o.append(f"buffer_load_dwordx4 {v(vDw[i])}, {s(sW,4)}, {s(sKw)} offen offset:{1024*i} lds")
        adv = f"s_add_u32 {s(sKw)}, {s(sKw)}, {1<<18}"
        if t in wraps: adv += f"\n    s_cmp_eq_u32 {s(sKw)}, {s(sWe)}\n    s_cselect_b32 {s(sKw)}, {s(sWb)}, {s(sKw)}"
        o.append(adv)
        return o
    def xload(t, kk):
        o = [f"buffer_load_dwordx4 {xr(t,kk,i)}, {v(vXo+i)}, {s(sX,4)}, {s(sKx if kk == 0 else sKx2)} offen" for i in range(2)]
        r = sKx if kk == 0 else sKx2
        adv = f"s_add_u32 {s(r)}, {s(r)}, {1<<15}"
        e_, b_ = (sXe, sXb) if kk == 0 else (sXe2, sXb2)
        if t in wraps: adv += f"\n    s_cmp_eq_u32 {s(r)}, {s(e_)}\n    s_cselect_b32 {s(r)}, {s(b_)}, {s(r)}"
        o.append(adv)
        return o
    def wreads(t, kk):
        sg, so = divmod((t % NS)*SLOT, 65536)
        return [f"ds_read_b64_tr_b16 {v(WOP[kk] + j*4 + 2*e, 2)}, {v(vWa[sg][j])} offset:{so + (32*kk + 4*e)*256}"
                for j in range(8) for e in range(2)]
    log = []
    def emit(ins, tag=None):
        A(ins)
        if ins.startswith("buffer_") or ins.startswith("global_"):
            log.append(tag)
    def cnt_after(tags):
        last = max([i for i, t in enumerate(log) if t in tags] + [-1])
        return min(63, len(log) - 1 - last)
    def group(t):
        o = [(ins, ('w', t)) for ins in dma(t)]
        if t < XR:
            for kk in range(2): o += [(ins, ('x', t, kk)) for ins in xload(t, kk)]
        return o
    for t in range(PRO):
        for ins, tg in group(t): emit(ins, tg)
    pending = []
    for t in range(PRO, NS): pending += group(t)
    make_srd(A, sO, 6, 7, 2048*1024*2)
    make_srd(A, 88, 92, 93, 2048*1024*2)
    make_srd(A, sXY, sWS, sWS+1, 2048*1024*2, add=WS_XY)
    make_srd(A, sP, sWS, sWS+1, 256*32768, add=WS_PART)
    A(f"s_add_u32 {s(sFl)}, {s(sWS)}, {hex(WS_FLAG)}")
    A(f"s_addc_u32 {s(sFl+1)}, {s(sWS+1)}, 0")
    A(f"v_lshrrev_b32 {v(t0)}, 4, {v(vL)}")
    A(f"v_bfe_u32 {v(t1)}, {v(vL)}, 2, 2")
    A(f"v_lshlrev_b32 {v(t2)}, 11, {v(t0)}")
    A(f"v_lshlrev_b32 {v(t3)}, 8, {v(t1)}")
    A(f"s_lshl_b32 {s(sTmp)}, {s(sG)}, 14")
    A(f"v_add3_u32 {v(t2)}, {v(t2)}, {v(t3)}, {s(sTmp)}")
    A(f"v_and_b32 {v(t0)}, 1, {v(t0)}")
    A(f"v_lshl_or_b32 {v(t1)}, {v(t0)}, 2, {v(t1)}")
    A(f"v_lshlrev_b32 {v(t1)}, 5, {v(t1)}")
    A(f"v_and_b32 {v(t3)}, 3, {v(vL)}")
    A(f"v_lshlrev_b32 {v(t3)}, 3, {v(t3)}")
    A(f"v_add3_u32 {v(vWa[0][0])}, {v(t2)}, {v(t1)}, {v(t3)}")
    for j in range(1, 8):
        A(f"v_xor_b32 {v(vWa[0][j])}, {32*j}, {v(vWa[0][0])}")
    for j in range(8):
        A(f"v_add_u32 {v(vWa[1][j])}, 0x10000, {v(vWa[0][j])}")
    if opts.get("rowperm"):
        A(f"v_and_b32 {v(t0)}, 3, {v(vL)}")
        A(f"v_bfe_u32 {v(t1)}, {v(vL)}, 2, 2")
        A(f"v_lshl_add_u32 {v(t0)}, {v(t0)}, 6, {v(t1)}")
        A(f"s_lshr_b32 {s(sTmp)}, {s(sMt)}, 1")
        A(f"s_lshl_b32 {s(sTmp)}, {s(sTmp)}, 8")
        A(f"s_and_b32 {s(sTmp+1)}, {s(sMt)}, 1")
        A(f"s_lshl_b32 {s(sTmp+1)}, {s(sTmp+1)}, 5")
        A(f"s_add_u32 {s(sTmp)}, {s(sTmp)}, {s(sTmp+1)}")
        A(f"s_lshl_b32 {s(sTmp+1)}, {s(sWr)}, 2")
        A(f"s_add_u32 {s(sTmp)}, {s(sTmp)}, {s(sTmp+1)}")
        A(f"s_lshl_b32 {s(sTmp+1)}, {s(sHk)}, 4")
        A(f"s_add_u32 {s(sTmp)}, {s(sTmp)}, {s(sTmp+1)}")
    else:
        A(f"v_and_b32 {v(t0)}, 15, {v(vL)}")
        A(f"s_lshl_b32 {s(sTmp)}, {s(sMt)}, 7")
        A(f"s_lshl_b32 {s(sTmp+1)}, {s(sWr)}, 4")
        A(f"s_add_u32 {s(sTmp)}, {s(sTmp)}, {s(sTmp+1)}")
        A(f"s_lshl_b32 {s(sTmp+1)}, {s(sHk)}, 6")
        A(f"s_add_u32 {s(sTmp)}, {s(sTmp)}, {s(sTmp+1)}")
    A(f"v_add_u32 {v(t0)}, {s(sTmp)}, {v(t0)}")
    A(f"v_lshlrev_b32 {v(t0)}, 11, {v(t0)}")
    A(f"v_lshrrev_b32 {v(t1)}, 5, {v(vL)}")
    A(f"v_lshlrev_b32 {v(t1)}, 4, {v(t1)}")
    A(f"v_and_b32 {v(t2)}, 16, {v(vL)}")
    A(f"v_lshlrev_b32 {v(t2)}, 1, {v(t2)}")
    A(f"v_add3_u32 {v(t0)}, {v(t0)}, {v(t1)}, {v(t2)}")
    A(f"s_lshl_b32 {s(sTmp)}, {s(sNt)}, 8")
    A(f"v_add_u32 {v(vSt)}, {s(sTmp)}, {v(t0)}")
    A(f"s_lshl_b32 {s(sTmp)}, {s(sMt)}, 3")
    A(f"s_add_u32 {s(sTmp)}, {s(sTmp)}, {s(sNt)}")
    A(f"s_lshl_b32 {s(sTmp)}, {s(sTmp)}, 1")
    A(f"s_add_u32 {s(sTmp)}, {s(sTmp)}, {s(sHk)}")
    A(f"s_lshl_b32 {s(sTmp)}, {s(sTmp)}, 2")
    A(f"s_add_u32 {s(sTmp)}, {s(sTmp)}, {s(sWr)}")
    A(f"s_xor_b32 {s(sTmp+1)}, {s(sTmp)}, 4")
    A(f"s_lshl_b32 {s(sPs)}, {s(sTmp)}, 13")
    A(f"s_lshl_b32 {s(sPr)}, {s(sTmp+1)}, 13")
    A(f"s_lshl_b32 {s(sFs)}, {s(sTmp)}, 6")
    A(f"s_lshl_b32 {s(sFr)}, {s(sTmp+1)}, 6")
    A(f"v_add_u32 {v(vPo2)}, 4096, {v(vPo)}")
    A(f"s_lshl_b32 {s(sTmp)}, {s(sWave)}, 13")
    A(f"v_add_u32 {v(vEx)}, {s(sTmp)}, {v(vPo)}")
    A(f"s_waitcnt vmcnt({cnt_after([('w',0)])})")
    A("s_barrier")
    stamp(A, opts, 1)
    for ins in wreads(0, 0): A(ins)
    if opts.get("prio") is not None:
        lp = A.newlabel("prio")
        A(f"s_cmp_ge_u32 {s(sWave)}, 4")
        A(f"s_cbranch_scc{opts.get('prio')} {lp}")
        A(f"s_setprio 1")
        A.label(lp)
    xy_at = NT - XR
    r0, r1 = opts.get("rspan", (0.0, 0.7))
    for t in range(NT):
        for kk in range(2):
            if kk == 0:
                A(f"s_waitcnt vmcnt({cnt_after([('x',t,0)])}) lgkmcnt(0)")
            else:
                need = [('x', t, 1)] + ([('w', t+1)] if t+1 < NT else [])
                A(f"s_waitcnt vmcnt({cnt_after(need)}) lgkmcnt(0)")
                A("s_barrier")
            mf = []; fl = []; sl = []
            order = (1, 0) if (t == NT-1 and kk == 1) else (0, 1)
            for i in order:
                for j in range(8):
                    c = "0" if (t == 0 and kk == 0) else v(ACC+(i*8+j)*4, 4)
                    mf.append(f"{MF} {v(ACC+(i*8+j)*4,4)}, {v(WOP[kk]+j*4,4)}, {xr(t, kk, i)}, {c}")
            n = 16
            if opts.get("no_mfma"): mf = ["s_nop 0"]*n
            def add(ins, pos, tag=None): fl.append((ins, tag)); sl.append(pos)
            rd = wreads(t, 1) if kk == 0 else (wreads(t+1, 0) if t+1 < NT else [])
            if opts.get("no_reads"): rd = []
            for q, ins in enumerate(rd): add(ins, int((r0 + (r1-r0)*q/len(rd))*n))
            if kk == 1 and t+NS < NT:
                pending += [(ins, ('w', t+NS)) for ins in dma(t+NS)]
            npop = min(len(pending), 14)
            for k in range(npop):
                ins, tg = pending.pop(0); add(ins, 1 + (k*14)//npop, tg)
            if t+XR < NT:
                pending += [(ins, ('x', t+XR, kk)) for ins in xload(t+XR, kk)]
            if t == xy_at and kk == 0:
                for jp in range(4):
                    add(f"buffer_load_dwordx4 {v(XYR + jp*4, 4)}, {v(vSt)}, {s(sXY,4)}, 0 offen offset:{jp*64}", 2+3*jp, 'xy')
            for item in interleave(mf, fl, sl):
                if isinstance(item, tuple): emit(item[0], item[1])
                else: A(item)
    stamp(A, opts, 2)
    dbg_mark(A, opts, 11, 250)
    A("s_nop 7")
    g1l = A.newlabel("g2_g1");
    A(f"s_cmp_lg_u32 {s(sG)}, 0")
    A(f"s_cbranch_scc1 {g1l}")
    for j in range(8):
        A(f"ds_write_b128 {v(vEx)}, {v(ACC+(8+j)*4,4)} offset:{j*1024}")
    XX = XRG + 48
    for jp in range(4):
        A(f"buffer_load_dwordx4 {v(XX + jp*4, 4)}, {v(vSt)}, s[88:91], 0 offen offset:{jp*64}")
    A("s_waitcnt lgkmcnt(0)")
    A("s_barrier")
    PR = WOP[0]
    for j in range(8):
        A(f"ds_read_b128 {v(PR+j*4,4)}, {v(vEx)} offset:{32768 + j*1024}")
    pl = A.newlabel("g2_poll")
    A(f"v_mov_b32 {v(t0)}, {s(sFr)}")
    A("s_waitcnt lgkmcnt(0)")
    for r in range(32):
        A(f"v_add_f32 {v(ACC+r)}, {v(ACC+r)}, {v(PR+r)}")
    XF = ACC + 32; YF = WOP[1]
    A("s_waitcnt vmcnt(0)")
    for q in range(16):
        A(f"v_lshlrev_b32 {v(XF+2*q)}, 16, {v(XX+q)}")
        A(f"v_and_b32 {v(XF+2*q+1)}, 0xffff0000, {v(XX+q)}")
        A(f"v_lshlrev_b32 {v(YF+2*q)}, 16, {v(XYR+q)}")
        A(f"v_and_b32 {v(YF+2*q+1)}, 0xffff0000, {v(XYR+q)}")
    for r in range(32):
        A(f"v_add_f32 {v(XF+r)}, {v(XF+r)}, {v(YF+r)}")
    for q in range(16):
        A(f"v_cvt_pk_bf16_f32 {v(XYR+q)}, {v(XF+2*q)}, {v(XF+2*q+1)}")
    for q in range(16):
        A(f"v_lshlrev_b32 {v(XF+2*q)}, 16, {v(XYR+q)}")
        A(f"v_and_b32 {v(XF+2*q+1)}, 0xffff0000, {v(XYR+q)}")
    A.label(pl)
    A(f"global_load_dword {v(t1)}, {v(t0)}, {s(sFl,2)} sc1")
    A("s_waitcnt vmcnt(0)")
    A(f"v_readfirstlane_b32 {s(sTmp)}, {v(t1)}")
    A("s_nop 3")
    A(f"s_cmp_eq_u32 {s(sTmp)}, 0")
    A(f"s_cbranch_scc1 {pl}")
    for j in range(8):
        A(f"buffer_load_dwordx4 {v(PR+j*4,4)}, {v(vPo if j < 4 else vPo2)}, {s(sP,4)}, {s(sPr)} offen offset:{(j%4)*1024} sc1")
    E = XRG
    for jp in range(4):
        P = E + (jp % 2)*24; Tm = P + 4
        a0 = ACC+(2*jp)*4
        xy = XYR + jp*4
        A(f"s_waitcnt vmcnt({6-2*jp + jp})")
        for r in range(8):
            A(f"v_add_f32 {v(a0+r)}, {v(a0+r)}, {v(PR+jp*8+r)}")
        for p in range(4):
            A(f"v_cvt_pk_bf16_f32 {v(P+p)}, {v(a0+2*p)}, {v(a0+2*p+1)}")
        A("s_nop 1")
        A(f"v_permlane16_swap_b32 {v(P)}, {v(P+2)}")
        A(f"v_permlane16_swap_b32 {v(P+1)}, {v(P+3)}")
        A("s_nop 0")
        for p in range(4):
            A(f"v_lshlrev_b32 {v(Tm+2*p)}, 16, {v(P+p)}")
            A(f"v_and_b32 {v(Tm+2*p+1)}, 0xffff0000, {v(P+p)}")
        for r in range(8):
            A(f"v_add_f32 {v(Tm+r)}, {v(Tm+r)}, {v(XF+jp*8+r)}")
        for p in range(4):
            A(f"v_cvt_pk_bf16_f32 {v(xy+p)}, {v(Tm+2*p)}, {v(Tm+2*p+1)}")
        A(f"buffer_store_dwordx4 {v(xy,4)}, {v(vSt)}, {s(sO,4)}, 0 offen offset:{jp*64} {opts.get('ofl','').replace('_',' ')}")
    if opts.get("stamp"):
        A("s_waitcnt vmcnt(0)")
        stamp(A, opts, 3)
        stamp_store(A, opts, 11, sWS, E, sWave)
    if opts.get("tldbg"): A("s_waitcnt vmcnt(0)")
    dbg_mark(A, opts, 12, 250)
    A(f"s_branch {done}")
    A.label(g1l)
    for j in range(8):
        A(f"ds_write_b128 {v(vEx)}, {v(ACC+j*4,4)} offset:{j*1024}")
    A(f"v_subrev_u32 {v(vEx)}, 32768, {v(vEx)}")
    A("s_waitcnt lgkmcnt(0)")
    A("s_barrier")
    for j in range(8):
        A(f"ds_read_b128 {v(PR+j*4,4)}, {v(vEx)} offset:{j*1024}")
    for j in range(8):
        A(f"s_waitcnt lgkmcnt({7-j})")
        for r in range(4):
            A(f"v_add_f32 {v(PR+j*4+r)}, {v(PR+j*4+r)}, {v(ACC+32+j*4+r)}")
        A(f"buffer_store_dwordx4 {v(PR+j*4,4)}, {v(vPo if j < 4 else vPo2)}, {s(sP,4)}, {s(sPs)} offen offset:{(j%4)*1024} sc1")
    A(f"v_mov_b32 {v(t0)}, {s(sFs)}")
    A(f"v_mov_b32 {v(t1)}, 1")
    A("s_waitcnt vmcnt(0)")
    A("s_mov_b64 exec, 1")
    A(f"global_store_dword {v(t0)}, {v(t1)}, {s(sFl,2)} sc1")
    A.label(done)
    A("s_endpgm")
    return dict(vgpr=256, lds=NS*SLOT)
```

```python
from asmlib import *
from layout import *
from dbgstamp import *
from sync import *
from gemm import stamp, stamp_store
from fft2 import job_trig, job_tw, run_jobs, PI, DR
from fftcommon import wave_allreduce_add2, round_bf16
import math
MF = "v_mfma_f32_16x16x32_bf16"
MF32 = "v_mfma_f32_32x32x16_bf16"

def gen_ka(A, name, opts):
    NS = 4; KS = 32; SLOT = 32768; XB = 16384
    FR = opts.get("freerun", 3)
    kernel_begin(A, name)
    sX, sW, sD, sH, sP = 8, 12, 16, 20, 44
    sWS = 24; sT = 26
    sWave, sWm, sWn = 30, 31, 32
    sM0x, sM0w, sKx, sKw = 33, 34, 35, 36
    sMt, sNt, sLoop, sPf = 37, 38, 39, 40
    sDbg, sTag, sFb = 48, 50, 52
    sIdx, sXcd = 54, 55
    sA, sB = 72, 76
    sS, sChunk, sN2, sU = 80, 81, 82, 83
    ACC = 0; R = [128, 176]
    acc = lambda i, j: ACC + (i*4+j)*4
    opX = lambda rs, i: R[rs] + i*4
    opW = lambda rs, j: R[rs] + 32 + j*4
    nsg = 2
    b = 224
    vDw = [b, b+1, b+2, b+3]; vDx = b+4; vL = 1
    vXa = [b+6+g for g in range(nsg)]
    vWa = [[b+9+g for g in range(nsg)], [b+12+g for g in range(nsg)]]
    t0, t1, t2, t3 = b+15, b+16, b+17, b+18
    vSt = b+19; vK = b+20
    vLL = b+5
    done = A.newlabel("ka_done"); fftl = A.newlabel("ka_fft"); pfl = A.newlabel("ka_pf"); epi = A.newlabel("ka_epi")
    A("s_load_dwordx2 s[94:95], s[0:1], 0")
    A(f"s_load_dwordx4 {s(sDbg,4)}, s[0:1], 64")
    A(f"s_load_dwordx4 s[4:7], s[0:1], 32")
    A(f"s_load_dwordx4 s[88:91], s[0:1], 8")
    A(f"s_load_dwordx2 s[92:93], s[0:1], 48")
    A(f"s_cmp_ge_u32 s2, 256")
    A(f"s_cbranch_scc1 {done}")
    dbg_init(A, opts, 0); dbg_mark(A, opts, 0, 250, neg=True)
    stamp(A, dict(stamp=opts.get("stamp") or opts.get("stamp0")), 0)
    vOff = 2
    A(f"v_lshrrev_b32 v2, 6, v0")
    A(f"v_and_b32 {v(vL)}, 63, v0")
    A(f"s_and_b32 {s(sXcd)}, s2, 7")
    A(f"v_readfirstlane_b32 {s(sWave)}, v2")
    A(f"s_lshr_b32 {s(sIdx)}, s2, 3")
    A(f"v_lshlrev_b32 {v(vOff)}, 4, {v(vL)}")
    A(f"v_mov_b32 {v(vLL)}, {v(vL)}")
    A(f"s_lshl_b32 {s(sChunk)}, {s(sXcd)}, 5")
    A(f"s_add_u32 {s(sChunk)}, {s(sChunk)}, {s(sIdx)}")
    A(f"s_lshr_b32 {s(sT)}, {s(sXcd)}, 2")
    A(f"s_lshl_b32 {s(sT)}, {s(sT)}, 5")
    A(f"s_add_u32 {s(sN2)}, {s(sIdx)}, {s(sT)}")
    A(f"s_and_b32 {s(sT)}, {s(sXcd)}, 2")
    A(f"s_lshl_b32 {s(sT)}, {s(sT)}, 1")
    A(f"s_and_b32 {s(sT+1)}, {s(sXcd)}, 1")
    A(f"s_add_u32 {s(sU)}, {s(sT)}, {s(sT+1)}")
    A(f"s_lshr_b32 {s(sT)}, {s(sWave)}, 2")
    A(f"s_lshl_b32 {s(sT)}, {s(sT)}, 1")
    A(f"s_add_u32 {s(sT)}, {s(sT)}, {s(sU)}")
    A(f"s_lshl_b32 {s(sS)}, {s(sT)}, 8")
    A(f"s_and_b32 {s(sWn)}, {s(sWave)}, 3")
    A(f"s_lshl_b32 {s(sT)}, {s(sWn)}, 6")
    A(f"s_add_u32 {s(sS)}, {s(sS)}, {s(sT)}")
    A(f"s_add_u32 {s(sS)}, {s(sS)}, {s(sN2)}")
    A(f"s_lshl_b32 {s(sT)}, {s(sS)}, 11")
    A(f"s_and_b32 {s(sMt)}, {s(sXcd)}, 1")
    A(f"s_lshl_b32 {s(sMt)}, {s(sMt)}, 2")
    A(f"s_and_b32 {s(sT+2)}, {s(sIdx)}, 3")
    A(f"s_add_u32 {s(sMt)}, {s(sMt)}, {s(sT+2)}")
    A(f"s_lshr_b32 {s(sNt)}, {s(sXcd)}, 1")
    A(f"s_mul_i32 {s(sNt)}, {s(sNt)}, 7")
    A(f"s_lshr_b32 {s(sT+2)}, {s(sIdx)}, 2")
    A(f"s_add_u32 {s(sNt)}, {s(sNt)}, {s(sT+2)}")
    A("s_waitcnt lgkmcnt(0)")
    make_srd(A, sA, 94, 95, 2048*1024*2)
    RAW = 4
    A(f"buffer_load_dwordx4 {v(RAW,4)}, {v(vOff)}, {s(sA,4)}, {s(sT)} offen")
    A(f"buffer_load_dwordx4 {v(RAW+4,4)}, {v(vOff)}, {s(sA,4)}, {s(sT)} offen offset:1024")
    A(f"s_mov_b64 {s(sWS,2)}, s[50:51]")
    A(f"s_add_u32 {s(sFb)}, {s(sWS)}, {hex(WS_TAG)}")
    A(f"s_addc_u32 {s(sFb+1)}, {s(sWS+1)}, 0")
    nt_ = A.newlabel("ka_notag")
    A(f"s_lshl_b32 {s(sT)}, s2, 3")
    A(f"s_add_u32 {s(sT)}, {s(sT)}, {s(sWave)}")
    A(f"s_cmp_lg_u32 {s(sT)}, 7")
    A(f"s_cbranch_scc1 {nt_}")
    A(f"s_memrealtime {s(sTag,2)}")
    A("s_waitcnt lgkmcnt(0)")
    A(f"s_or_b32 {s(sTag+1)}, {s(sTag+1)}, 0x80000000")
    A(f"s_mov_b32 {s(sT)}, 64")
    set_flag(A, sDbg, sT, sTag, 12)
    A.label(nt_)
    WR = 128; WO = 160
    nw1 = A.newlabel("ka_now1")
    A("s_cmp_ge_u32 s2, 64")
    A(f"s_cbranch_scc1 {nw1}")
    A(f"s_lshl_b32 {s(sT)}, s2, 3")
    A(f"s_add_u32 {s(sT)}, {s(sT)}, {s(sWave)}")
    A(f"s_bfe_u32 {s(sT+1)}, {s(sT)}, 0x20006")
    A(f"s_lshl_b32 {s(sT+1)}, {s(sT+1)}, 4")
    A(f"s_bfe_u32 {s(sT+2)}, {s(sT)}, 0x10005")
    A(f"s_lshl_b32 {s(sT+2)}, {s(sT+2)}, 2")
    A(f"s_add_u32 {s(sT+1)}, {s(sT+1)}, {s(sT+2)}")
    A(f"s_lshl_b32 {s(sT+1)}, {s(sT+1)}, 5")
    A(f"s_and_b32 {s(sT+2)}, {s(sT)}, 31")
    A(f"s_add_u32 {s(sT+1)}, {s(sT+1)}, {s(sT+2)}")
    A(f"s_mul_i32 {s(sT+1)}, {s(sT+1)}, 1026")
    A("s_cmp_ge_u32 s2, 32")
    A("s_cselect_b32 s88, s90, s88")
    A("s_cselect_b32 s89, s91, s89")
    make_srd(A, sB, 88, 89, 2048*513*2)
    for e in range(8):
        A(f"s_add_u32 {s(sT+2)}, {s(sT+1)}, {32*(8*(e//4) + e % 4)*1026}")
        A(f"buffer_load_dwordx4 {v(WR+4*e,4)}, {v(vOff)}, {s(sB,4)}, {s(sT+2)} offen")
    A(f"v_and_b32 v192, 3, {v(vL)}")
    A(f"v_bfe_u32 v193, {v(vL)}, 2, 1")
    A(f"v_lshl_add_u32 v192, v193, 3, v192")
    A(f"v_mul_u32_u24 v192, {32*1026}, v192")
    A(f"v_lshrrev_b32 v193, 3, {v(vL)}")
    A(f"v_lshlrev_b32 v193, 24, v193")
    A(f"v_add_u32 v192, v192, v193")
    A(f"buffer_load_ushort v194, v192, {s(sB,4)}, {s(sT+1)} offen offset:1024")
    A(f"v_lshl_add_u32 v193, {v(vL)}, 1, v193")
    A.label(nw1)
    A(f"s_bitcmp1_b32 {s(sWave)}, 1")
    A(f"s_cselect_b32 s4, s6, s4")
    A(f"s_cselect_b32 s5, s7, s5")
    make_srd(A, sW, 4, 5, 1024*3584*2)
    def dmaW(slot):
        o = [f"s_add_u32 m0, {s(sM0w)}, {hex(slot*SLOT)}", "s_nop 0"]
        for i in range(4): o.append(f"buffer_load_dwordx4 {v(vDw[i])}, {s(sW,4)}, {s(sKw)} offen offset:{1024*i} lds")
        o.append(f"s_add_u32 {s(sKw)}, {s(sKw)}, {32*7168}")
        return o
    def dmaX(slot):
        o = [f"s_add_u32 m0, {s(sM0x)}, {hex(slot*SLOT)}", "s_nop 0"]
        for i in range(4): o.append(f"buffer_load_dwordx4 {v(vDx)}, {s(sX,4)}, {s(sKx)} offen offset:{1024*i} sc1 lds")
        o.append(f"s_add_u32 {s(sKx)}, {s(sKx)}, {XB}")
        return o
    nd1 = A.newlabel("ka_nodma")
    A(f"v_lshrrev_b32 {v(t0)}, 4, {v(vL)}")
    A(f"v_and_b32 {v(t2)}, 15, {v(vL)}")
    A(f"v_lshlrev_b32 {v(t1)}, 1, {v(t0)}")
    A(f"v_xor_b32 {v(t2)}, {v(t2)}, {v(t1)}")
    A(f"v_mul_u32_u24 {v(t0)}, 7168, {v(t0)}")
    A(f"v_lshl_add_u32 {v(vDw[0])}, {v(t2)}, 4, {v(t0)}")
    A(f"v_xor_b32 {v(t1)}, 128, {v(vDw[0])}")
    for i in range(1, 4): A(f"v_add_u32 {v(vDw[i])}, {i*4*7168 - i*1024}, {v(t1 if i & 2 else vDw[0])}")
    A(f"s_and_b32 {s(sKw)}, {s(sWave)}, 1")
    A(f"s_mul_i32 {s(sKw)}, {s(sKw)}, {16*7168}")
    A(f"s_lshl_b32 {s(sT)}, {s(sNt)}, 8")
    A(f"s_add_u32 {s(sKw)}, {s(sKw)}, {s(sT)}")
    A(f"s_lshl_b32 {s(sM0x)}, {s(sWave)}, 12")
    A(f"s_add_u32 {s(sM0w)}, {s(sM0x)}, {XB}")
    A(f"s_cmp_ge_u32 {s(sIdx)}, 28")
    A(f"s_cbranch_scc1 {nd1}")
    A(f"s_cmp_ge_u32 {s(sWave)}, 4")
    A(f"s_cbranch_scc1 {nd1}")
    for t in range(NS):
        for ins in dmaW(t): A(ins)
    A.label(nd1)
    LC, LS, LT = 0, 32768, 65536
    B1C, B1S, A2R, A2I, TWC, TWS = 64, 72, 80, 88, 96, 112
    img = lambda r: LC + ((r-64)//4)*1024
    vK1, vH4, vK2, vH4b, vPh = 12, 13, 14, 15, 16
    W = 64
    A(f"v_and_b32 {v(vK1)}, 31, {v(vL)}")
    A(f"v_lshrrev_b32 {v(vH4)}, 5, {v(vL)}")
    A(f"v_lshlrev_b32 {v(vH4)}, 2, {v(vH4)}")
    A(f"v_and_b32 {v(vK2)}, 15, {v(vL)}")
    A(f"v_mul_u32_u24 {v(vH4b)}, {v(vH4)}, {v(vK2)}")
    A(f"v_mul_u32_u24 {v(vH4)}, {v(vH4)}, {v(vK1)}")
    A(f"v_bfe_u32 {v(vPh)}, {v(vL)}, 4, 1")
    A(f"v_cvt_f32_u32 {v(vPh)}, {v(vPh)}")
    A(f"v_mul_f32 {v(vPh)}, {f32(0.25)}, {v(vPh)}")
    jobs = []
    for u in range(2):
        jobs.append((60, lambda u=u: job_trig(A, PI(u), vK1, vH4, 32, W, vOff, [('c', img(B1C+4*u)), ('n', img(B1S+4*u))])))
        jobs.append((60, lambda u=u: job_trig(A, PI(u), vK2, vH4b, 32, W, vOff, [('c', img(A2R+4*u)), ('s', img(A2I+4*u))], vPhase=vPh)))
        jobs.append((50, lambda u=u: job_tw(A, DR(u), vK1, vH4, 1024, W, vOff, img(TWC)+u*2048, img(TWS)+u*2048, sign=-1.0)))
    A(f"s_xor_b32 {s(sT+3)}, {s(sWave)}, 4")
    run_jobs(A, jobs, sT+3, 8)
    q0, q1, q2 = 17, 18, 19
    vLw, vLr, vTw, vDC = 21, 22, 23, 24
    A(f"s_lshl_b32 {s(sT)}, {s(sWave)}, 11")
    A(f"s_add_u32 {s(sT)}, {s(sT)}, {LS}")
    A(f"s_lshl_b32 {s(sT+1)}, {s(sWn)}, 6")
    A(f"v_xor_b32 {v(vLw)}, {s(sT+1)}, {v(vOff)}")
    A(f"v_add_u32 {v(vLw)}, {s(sT)}, {v(vLw)}")
    A(f"v_lshrrev_b32 {v(q0)}, 5, {v(vL)}")
    A(f"v_lshlrev_b32 {v(vTw)}, 11, {v(q0)}")
    A(f"v_lshlrev_b32 {v(q0)}, 8, {v(q0)}")
    A(f"v_bfe_u32 {v(q1)}, {v(vL)}, 2, 2")
    A(f"v_lshl_add_u32 {v(q0)}, {v(q1)}, 6, {v(q0)}")
    A(f"v_and_b32 {v(q1)}, 16, {v(vL)}")
    A(f"v_lshl_add_u32 {v(q0)}, {v(q1)}, 1, {v(q0)}")
    A(f"v_and_b32 {v(q2)}, 3, {v(vL)}")
    A(f"v_lshl_add_u32 {v(q0)}, {v(q2)}, 3, {v(q0)}")
    A(f"v_xor_b32 {v(q0)}, {s(sT+1)}, {v(q0)}")
    A(f"v_add_u32 {v(vLr)}, {s(sT)}, {v(q0)}")
    A(f"v_lshl_add_u32 {v(vTw)}, {v(vK1)}, 4, {v(vTw)}")
    A(f"s_lshl_b32 {s(sT)}, {s(sWave)}, 1")
    A(f"s_add_u32 {s(sT)}, {s(sT)}, {LT}")
    A(f"v_add_u32 {v(vTw)}, {s(sT)}, {v(vTw)}")
    A(f"v_cmp_eq_u32 s[96:97], 0, {v(vL)}")
    A(f"v_mov_b32 {v(vDC)}, 1.0")
    make_srd(A, sX, sWS, sWS+1, 2048*1024*2, add=WS_XN)
    A(f"v_cndmask_b32 {v(vDC)}, {v(vDC)}, 0.5, s[96:97]")
    F = 32; D = 48
    SUM, SQ, T1, T2, MB, RS = 25, 26, 27, 28, 29, 30
    w0 = A.newlabel("ka_w"); wd = A.newlabel("ka_wd")
    A(f"s_mov_b32 {s(sT)}, 0")
    A("s_cmp_lt_u32 s2, 64")
    A(f"s_cselect_b32 {s(sT)}, 1, 0")
    A(f"s_cmp_lt_u32 {s(sIdx)}, 28")
    A(f"s_cselect_b32 {s(sT+1)}, 2, 0")
    A(f"s_cmp_lt_u32 {s(sWave)}, 4")
    A(f"s_cselect_b32 {s(sT+1)}, {s(sT+1)}, 0")
    A(f"s_add_u32 {s(sT)}, {s(sT)}, {s(sT+1)}")
    for code, cnt in ((3, 25), (2, 16), (1, 9)):
        nx = A.newlabel("ka_w")
        A(f"s_cmp_lg_u32 {s(sT)}, {code}")
        A(f"s_cbranch_scc1 {nx}")
        A(f"s_waitcnt vmcnt({cnt})")
        A(f"s_branch {wd}")
        A.label(nx)
    A("s_waitcnt vmcnt(0)")
    A.label(wd)
    stamp(A, dict(stamp=opts.get("stamp0")), 1)
    for i in range(8):
        A(f"v_lshlrev_b32 {v(F+2*i)}, 16, {v(RAW+i)}")
        A(f"v_and_b32 {v(F+2*i+1)}, 0xffff0000, {v(RAW+i)}")
    A(f"v_readfirstlane_b32 {s(sT+3)}, {v(F)}")
    A("s_nop 1")
    for i in range(16): A(f"v_subrev_f32 {v(D+i)}, {s(sT+3)}, {v(F+i)}")
    A(f"v_add_f32 {v(SUM)}, {v(D)}, {v(D+1)}")
    A(f"v_mul_f32 {v(SQ)}, {v(D)}, {v(D)}")
    A(f"v_add_f32 {v(T1)}, {v(D+2)}, {v(D+3)}")
    A(f"v_mul_f32 {v(T2)}, {v(D+1)}, {v(D+1)}")
    for i in range(2, 16, 2):
        if i >= 4:
            A(f"v_add_f32 {v(SUM)}, {v(SUM)}, {v(D+i)}")
            A(f"v_add_f32 {v(T1)}, {v(T1)}, {v(D+i+1)}")
        A(f"v_fmac_f32 {v(SQ)}, {v(D+i)}, {v(D+i)}")
        A(f"v_fmac_f32 {v(T2)}, {v(D+i+1)}, {v(D+i+1)}")
    A(f"v_add_f32 {v(SUM)}, {v(SUM)}, {v(T1)}")
    A(f"v_add_f32 {v(SQ)}, {v(SQ)}, {v(T2)}")
    wave_allreduce_add2(A, [SUM, SQ], [T1, T2])
    A(f"v_mul_f32 {v(MB)}, {f32(1/1024)}, {v(SUM)}")
    A(f"v_mul_f32 {v(RS)}, {f32(1/1024)}, {v(SQ)}")
    A(f"v_fma_f32 {v(RS)}, -{v(MB)}, {v(MB)}, {v(RS)}")
    A(f"v_add_f32 {v(MB)}, {s(sT+3)}, {v(MB)}")
    A(f"v_max_f32 {v(RS)}, 0, {v(RS)}")
    round_bf16(A, RS)
    round_bf16(A, MB)
    A(f"v_add_f32 {v(RS)}, {f32(1e-5)}, {v(RS)}")
    round_bf16(A, RS)
    A(f"v_sqrt_f32 {v(RS)}, {v(RS)}")
    for i in range(16): A(f"v_sub_f32 {v(D+i)}, {v(F+i)}, {v(MB)}")
    round_bf16(A, RS)
    A(f"v_rcp_f32 {v(RS)}, {v(RS)}")
    for i in range(8): A(f"v_cvt_pk_bf16_f32 {v(RAW+i)}, {v(D+2*i)}, {v(D+2*i+1)}")
    for i in range(8):
        A(f"v_lshlrev_b32 {v(D+2*i)}, 16, {v(RAW+i)}")
        A(f"v_and_b32 {v(D+2*i+1)}, 0xffff0000, {v(RAW+i)}")
    for i in range(16): A(f"v_mul_f32 {v(D+i)}, {v(D+i)}, {v(RS)}")
    for i in range(8): A(f"v_cvt_pk_bf16_f32 {v(RAW+i)}, {v(D+2*i)}, {v(D+2*i+1)}")
    A(f"ds_write_b128 {v(vLw)}, {v(RAW,4)}")
    A(f"ds_write_b128 {v(vLw)}, {v(RAW+4,4)} offset:1024")
    A("s_waitcnt lgkmcnt(0)")
    A("s_barrier")
    CO = 196
    nco = A.newlabel("ka_nco")
    A(f"s_cmp_lt_u32 {s(sWave)}, 4")
    A(f"s_cbranch_scc1 {nco}")
    A("v_and_b32 v212, 255, v0")
    A("v_bfe_u32 v213, v0, 2, 2")
    A("v_lshrrev_b32 v214, 4, v212")
    A("v_xor_b32 v215, v214, v213")
    A("v_lshlrev_b32 v215, 6, v215")
    A("v_lshl_add_u32 v215, v213, 11, v215")
    A(f"s_and_b32 {s(sT)}, {s(sN2)}, 2")
    A("v_and_b32 v213, 3, v0")
    A(f"v_xor_b32 v213, {s(sT)}, v213")
    A("v_lshl_add_u32 v215, v213, 4, v215")
    for i in range(4):
        A(f"ds_read_b128 {v(CO+4*i,4)}, v215 offset:{LS + (i>>1)*8192 + (i&1)*1024}")
    A("v_and_b32 v213, 15, v0")
    A("v_lshlrev_b32 v213, 4, v213")
    A("v_lshl_add_u32 v213, v214, 14, v213")
    A(f"s_lshl_b32 {s(sT)}, {s(sU)}, 19")
    A(f"s_lshl_b32 {s(sT+1)}, {s(sN2)}, 8")
    A(f"s_add_u32 {s(sT)}, {s(sT)}, {s(sT+1)}")
    for i in range(4):
        A(f"s_add_u32 {s(sT+1)}, {s(sT)}, {(i>>1)*(2<<19) + (i&1)*16*16384}")
        A(f"s_waitcnt lgkmcnt({3-i})")
        A(f"buffer_store_dwordx4 {v(CO+4*i,4)}, v213, {s(sX,4)}, {s(sT+1)} offen sc1")
    A.label(nco)
    OP = 12
    for u in range(2):
        for e in range(2):
            A(f"ds_read_b64_tr_b16 {v(OP+4*u+2*e,2)}, {v(vLr)} offset:{(16*u+8*e)*64}")
    for g in range(16):
        A(f"ds_read_b128 {v(64+4*g,4)}, {v(vOff)} offset:{LC + g*1024}")
    TR, TI = 32, 48
    A("s_waitcnt lgkmcnt(12)")
    A(f"{MF32} {v(TR,16)}, {v(OP,4)}, {v(B1C,4)}, 0")
    A(f"{MF32} {v(TI,16)}, {v(OP,4)}, {v(B1S,4)}, 0")
    A(f"{MF32} {v(TR,16)}, {v(OP+4,4)}, {v(B1C+4,4)}, {v(TR,16)}")
    A(f"{MF32} {v(TI,16)}, {v(OP+4,4)}, {v(B1S+4,4)}, {v(TI,16)}")
    make_srd(A, sA, sWS, sWS+1, 4 << 20, add=WS_YT)
    A("s_waitcnt lgkmcnt(0)")
    A("s_nop 5")
    NY, NT = 27, 28
    WK = B1C
    A(f"v_sub_f32 {v(NY)}, {v(TR)}, {v(TR+1)}")
    A(f"v_sub_f32 {v(NT)}, {v(TR+2)}, {v(TR+3)}")
    for r in range(4, 16, 4):
        A(f"v_add_f32 {v(NY)}, {v(NY)}, {v(TR+r)}")
        A(f"v_add_f32 {v(NT)}, {v(NT)}, {v(TR+r+2)}")
        A(f"v_sub_f32 {v(NY)}, {v(NY)}, {v(TR+r+1)}")
        A(f"v_sub_f32 {v(NT)}, {v(NT)}, {v(TR+r+3)}")
    A(f"v_add_f32 {v(NY)}, {v(NY)}, {v(NT)}")
    A(f"v_mov_b32 {v(NT)}, {v(NY)}")
    def pk(op, d, *srcs, neg=None):
        m = ""
        if neg:
            bits = ",".join("1" if i in neg else "0" for i in range(len(srcs)))
            m = f" neg_lo:[{bits}] neg_hi:[{bits}]"
        A(f"v_pk_{op}_f32 {v(d,2)}, " + ", ".join(v(x,2) for x in srcs) + m)
    for r in range(0, 16, 2): pk("mul", WK+r, TR+r, TWC+r)
    for r in range(0, 16, 2): pk("mul", TR+r, TR+r, TWS+r)
    for r in range(0, 16, 2): pk("fma", WK+r, TI+r, TWS+r, WK+r, neg=[0])
    UR, UI = 4, 12
    for p in range(8): A(f"v_cvt_pk_bf16_f32 {v(UR+p)}, {v(WK+2*p)}, {v(WK+2*p+1)}")
    Y = WK
    for r in range(0, 16, 2): pk("fma", TR+r, TI+r, TWC+r, TR+r)
    A(f"{MF32} {v(Y,16)}, {v(A2R,4)}, {v(UR,4)}, 0")
    A(f"{MF32} {v(Y,16)}, {v(A2R+4,4)}, {v(UR+4,4)}, {v(Y,16)}")
    for p in range(8): A(f"v_cvt_pk_bf16_f32 {v(UI+p)}, {v(TR+2*p)}, {v(TR+2*p+1)}")
    A(f"v_permlane32_swap_b32 {v(NY)}, {v(NT)}")
    A("s_nop 0")
    A(f"{MF32} {v(Y,16)}, {v(A2I,4)}, {v(UI,4)}, {v(Y,16)}")
    A(f"{MF32} {v(Y,16)}, {v(A2I+4,4)}, {v(UI+4,4)}, {v(Y,16)}")
    A(f"v_add_f32 {v(NY)}, {v(NY)}, {v(NT)}")
    A(f"v_mul_f32 {v(NY)}, 0.5, {v(NY)}")
    A("s_nop 9")
    A(f"v_mul_f32 {v(Y)}, {v(Y)}, {v(vDC)}")
    A(f"v_cndmask_b32 {v(Y+8)}, {v(Y+8)}, {v(NY)}, s[96:97]")
    for p in range(8): A(f"v_cvt_pk_bf16_f32 {v(32+p)}, {v(Y+2*p)}, {v(Y+2*p+1)}")
    for r in range(16):
        c = r >> 3; k2 = 8*((r >> 2) & 1) + (r & 3)
        A(f"ds_write_b16{'_d16_hi' if r & 1 else ''} {v(vTw)}, {v(32+r//2)} offset:{(c*16+k2)*512}")
    ng = A.newlabel("ka_ng")
    A(f"s_cmp_lt_u32 {s(sWave)}, 4")
    A(f"s_cbranch_scc1 {ng}")
    get_tag(A, sDbg, sTag, 40)
    A.label(ng)
    A("s_waitcnt lgkmcnt(0)")
    A("s_barrier")
    stamp(A, dict(stamp=opts.get("stamp0")), 2)
    ny = A.newlabel("ka_ny")
    A(f"s_cmp_lt_u32 {s(sWave)}, 4")
    A(f"s_cbranch_scc1 {ny}")
    nf = A.newlabel("ka_nf")
    A(f"s_cmp_lg_u32 {s(sWave)}, 4")
    A(f"s_cbranch_scc1 {nf}")
    A(f"s_and_b32 {s(sT)}, {s(sXcd)}, 3")
    A(f"s_lshl_b32 {s(sT)}, {s(sT)}, 6")
    A(f"s_add_u32 {s(sT)}, {s(sT)}, {s(sN2)}")
    A(f"s_lshl_b32 {s(sT)}, {s(sT)}, 3")
    set_flag(A, sFb, sT, sTag, 40)
    A.label(nf)
    A("v_lshrrev_b32 v213, 1, v212")
    A("v_and_b32 v214, 1, v212")
    A("v_lshlrev_b32 v213, 4, v213")
    A("v_lshl_add_u32 v213, v214, 13, v213")
    A(f"v_add_u32 v213, {LT}, v213")
    for i in range(4): A(f"ds_read_b128 {v(CO+4*i,4)}, v213 offset:{i*2048}")
    A("v_lshlrev_b32 v214, 4, v212")
    A(f"s_lshl_b32 {s(sT)}, {s(sChunk)}, 14")
    for i in range(4):
        A(f"s_add_u32 {s(sT+1)}, {s(sT)}, {i*4096}")
        A(f"s_waitcnt lgkmcnt({3-i})")
        A(f"buffer_store_dwordx4 {v(CO+4*i,4)}, v214, {s(sA,4)}, {s(sT+1)} offen sc1")
    make_srd(A, sB, sWS, sWS+1, 65536, add=WS_FLAG)
    A(f"s_lshl_b32 {s(sT)}, s2, 8")
    A(f"s_cmp_eq_u32 {s(sWave)}, 5")
    A(f"s_cselect_b32 {s(sT)}, {s(sT)}, 0x100000")
    A(f"v_lshlrev_b32 v40, 2, {v(vL)}")
    A(f"v_mov_b32 v41, 0")
    A(f"buffer_store_dword v41, v40, {s(sB,4)}, {s(sT)} offen")
    A.label(ny)
    A(f"s_cmp_ge_u32 {s(sIdx)}, 28")
    A(f"s_cbranch_scc1 {fftl}")
    nw2 = A.newlabel("ka_now2")
    A("s_cmp_ge_u32 s2, 64")
    A(f"s_cbranch_scc1 {nw2}")
    make_srd(A, sB, sWS, sWS+1, 513*WP, add=WS_WT)
    A(f"s_lshl_b32 {s(sT)}, s2, 7")
    A(f"s_lshl_b32 {s(sT+1)}, {s(sWave)}, 4")
    A(f"s_add_u32 {s(sT+1)}, {s(sT+1)}, {s(sT)}")
    A(f"s_add_u32 {s(sT+1)}, {s(sT+1)}, {512*WP}")
    A(f"s_mov_b32 {s(sT+2)}, 0x05040100")
    A(f"s_mov_b32 {s(sT+3)}, 0x07060302")
    A(f"v_and_b32 v40, 7, {v(vL)}")
    A(f"v_xor_b32 v40, {s(sWave)}, v40")
    A(f"v_lshlrev_b32 v40, 4, v40")
    A(f"v_and_b32 v41, 15, {v(vL)}")
    A(f"v_lshl_add_u32 v40, v41, 10, v40")
    A(f"v_lshrrev_b32 v41, 4, {v(vL)}")
    A(f"v_lshl_add_u32 v40, v41, 15, v40")
    wl = A.newlabel("ka_wl")
    A(f"s_cmp_ge_u32 {s(sWave)}, 4")
    A(f"s_cbranch_scc1 {wl}")
    A("s_waitcnt vmcnt(16)")
    A.label(wl)
    for j in range(8):
        for p in range(4):
            A(f"v_perm_b32 {v(WO+4*j+p)}, {v(WR+4*(2*p+1)+j//2)}, {v(WR+4*(2*p)+j//2)}, {s(sT+2+(j&1))}")
    A("s_barrier")
    for j in range(8): A(f"ds_write_b128 v40, {v(WO+4*j,4)} offset:{j*128}")
    A(f"v_lshlrev_b32 v41, 1, {v(vL)}")
    A(f"s_lshl_b32 {s(sT+2)}, {s(sWave)}, 4")
    A(f"s_add_u32 {s(sT+2)}, {s(sT+2)}, {NS*SLOT}")
    A(f"v_add_u32 v41, {s(sT+2)}, v41")
    A("s_mov_b64 exec, 0xff")
    A("ds_write_b16 v41, v194")
    A("s_mov_b64 exec, -1")
    A("s_waitcnt lgkmcnt(0)")
    A("s_barrier")
    A(f"s_cmp_lt_u32 {s(sWave)}, 4")
    A(f"s_cbranch_scc1 {nw2}")
    A("v_and_b32 v40, 7, v212")
    A("v_lshrrev_b32 v41, 3, v212")
    A(f"v_xor_b32 v42, {s(sWn)}, v40")
    A("v_lshlrev_b32 v42, 4, v42")
    A("v_lshl_add_u32 v42, v41, 7, v42")
    A("v_xor_b32 v43, 64, v42")
    A("v_add_u32 v44, 0x10000, v42")
    A("v_add_u32 v45, 0x10000, v43")
    A(f"v_mul_u32_u24 v41, {WP}, v41")
    A("v_lshl_add_u32 v41, v40, 4, v41")
    for i in range(16):
        A(f"ds_read_b128 {v(128+4*i,4)}, {v(42 + (i&1) + 2*(i>>3))} offset:{((i>>2)&1)*32768 + (i&3)*4096}")
    A(f"v_mov_b32 v46, {NS*SLOT}")
    A(f"v_lshl_add_u32 v46, {v(vL)}, 4, v46")
    A("ds_read_b128 v[48:51], v46")
    for i in range(16):
        A(f"s_add_u32 {s(sT+2)}, {s(sT)}, {i*32*WP}")
        A(f"s_waitcnt lgkmcnt({min(15, 16-i)})")
        A(f"buffer_store_dwordx4 {v(128+4*i,4)}, v41, {s(sB,4)}, {s(sT+2)} offen sc1")
    A(f"s_add_u32 {s(sT+2)}, {s(sT)}, {512*WP}")
    A(f"s_cmp_eq_u32 {s(sWave)}, 4")
    A(f"s_cselect_b32 {s(sT+2)}, {s(sT+2)}, 0x40000000")
    A("s_waitcnt lgkmcnt(0)")
    A("s_mov_b64 exec, 0xff")
    A(f"buffer_store_dwordx4 v[48:51], {v(vOff)}, {s(sB,4)}, {s(sT+2)} offen sc1")
    A("s_mov_b64 exec, -1")
    A.label(nw2)

    def common_setup():
        L = vLL
        A(f"s_lshr_b32 {s(sWm)}, {s(sWave)}, 2")
        A(f"v_and_b32 {v(t0)}, 15, {v(L)}")
        A(f"v_lshrrev_b32 {v(t1)}, 4, {v(L)}")
        A(f"v_lshrrev_b32 {v(t2)}, 2, {v(L)}")
        A(f"v_and_b32 {v(t3)}, 2, {v(t2)}")
        A(f"v_xor_b32 {v(t3)}, {v(t3)}, {v(t1)}")
        A(f"v_lshlrev_b32 {v(t3)}, 4, {v(t3)}")
        A(f"v_lshl_add_u32 {v(t3)}, {v(t0)}, 6, {v(t3)}")
        A(f"s_lshl_b32 {s(sT)}, {s(sWm)}, 13")
        A(f"v_add_u32 {v(vXa[0])}, {s(sT)}, {v(t3)}")
        for g in range(1, nsg): A(f"v_add_u32 {v(vXa[g])}, {hex(65536*g)}, {v(vXa[0])}")
        A(f"v_and_b32 {v(t2)}, 3, {v(t2)}")
        A(f"v_lshlrev_b32 {v(t3)}, 11, {v(t1)}")
        A(f"v_lshl_add_u32 {v(t3)}, {v(t2)}, 8, {v(t3)}")
        A(f"v_and_b32 {v(t1)}, 1, {v(t1)}")
        A(f"v_lshl_or_b32 {v(t2)}, {v(t1)}, 2, {v(t2)}")
        A(f"s_lshl_b32 {s(sT)}, {s(sWn)}, 1")
        A(f"v_xor_b32 {v(t2)}, {s(sT)}, {v(t2)}")
        A(f"v_lshl_add_u32 {v(t3)}, {v(t2)}, 5, {v(t3)}")
        A(f"v_and_b32 {v(t2)}, 3, {v(L)}")
        A(f"v_lshl_add_u32 {v(t3)}, {v(t2)}, 3, {v(t3)}")
        A(f"v_add_u32 {v(vWa[0][0])}, {XB}, {v(t3)}")
        A(f"v_xor_b32 {v(vWa[1][0])}, 32, {v(vWa[0][0])}")
        for jt in range(2):
            for g in range(1, nsg): A(f"v_add_u32 {v(vWa[jt][g])}, {hex(65536*g)}, {v(vWa[jt][0])}")
        A(f"v_lshrrev_b32 {v(t1)}, 5, {v(L)}")
        A(f"v_lshrrev_b32 {v(t2)}, 3, {v(L)}")
        A(f"v_and_b32 {v(t2)}, 2, {v(t2)}")
        A(f"v_or_b32 {v(t1)}, {v(t1)}, {v(t2)}")
        A(f"v_lshlrev_b32 {v(t1)}, 8, {v(t1)}")
        A(f"v_lshl_add_u32 {v(t1)}, {v(t0)}, 4, {v(t1)}")
        A(f"s_lshl_b32 {s(sT)}, {s(sMt)}, 1")
        A(f"s_add_u32 {s(sT)}, {s(sT)}, {s(sWm)}")
        A(f"s_mul_i32 {s(sT)}, {s(sT)}, 112")
        A(f"s_lshl_b32 {s(sT+1)}, {s(sNt)}, 2")
        A(f"s_add_u32 {s(sT)}, {s(sT)}, {s(sT+1)}")
        A(f"s_add_u32 {s(sT)}, {s(sT)}, {s(sWn)}")
        A(f"s_lshl_b32 {s(sT)}, {s(sT)}, 13")
        A(f"v_add_u32 {v(vSt)}, {s(sT)}, {v(t1)}")
        k0 = -2.0*math.log2(math.e)*math.sqrt(2.0/math.pi); k1 = k0*0.044715
        for i, c in enumerate((k0, k0, k1, k1, 1.0, 1.0)): A(f"v_mov_b32 {v(vK+i)}, {f32(c)}")
        make_srd(A, sH, sWS, sWS+1, 2048*3584*2, add=WS_H)
    common_setup()
    def reads(slot, rs):
        sg, so = divmod(slot*SLOT, 65536)
        X = [f"ds_read_b128 {v(opX(rs,i),4)}, {v(vXa[sg])} offset:{so + i*1024}" for i in range(8)]
        Wr = [f"ds_read_b64_tr_b16 {v(opW(rs,j)+2*e,2)}, {v(vWa[j%2][sg])} offset:{so + (j//2)*8192 + e*1024}" for j in range(4) for e in range(2)]
        return Wr + X
    def mfmas(rs, first):
        return [f"{MF} {v(acc(i,j),4)}, {v(opW(rs,j),4)}, {v(opX(rs,i),4)}, {'0' if first else v(acc(i,j),4)}" for i in range(8) for j in range(4)]
    def mainloop(isd, pf_init=(), pfs=()):
        A("s_barrier")
        stamp(A, opts, 1)
        if not isd: dbg_mark(A, opts, 4, 250)
        for ins in reads(0, 0): A(ins)
        for ins in pf_init: A(ins)
        def step(t, do_dma=True, vm=None, bar=True):
            slot = t % NS; rs = t % 2
            mf = mfmas(rs, t == 0); n = 32
            A(f"s_waitcnt vmcnt({vm}) lgkmcnt(0)" if (isd and bar) else "s_waitcnt lgkmcnt(0)")
            if bar: A("s_barrier")
            fl = []; sl = []
            if t+1 < KS:
                rd = reads((t+1) % NS, 1-rs)
                r0, r1 = opts.get("rspan", (0.0, 0.6))
                for q, ins in enumerate(rd): fl.append(ins); sl.append(int((r0 + (r1-r0)*q/len(rd))*n))
            dm = ((dmaW(slot) + dmaX(slot)) if do_dma else []) if isd else (pfs if t < KS-1 else [])
            d0, d1 = opts.get("dspan", (0.1, 0.9))
            for q, ins in enumerate(dm): fl.append(ins); sl.append(int((d0 + (d1-d0)*q/len(dm))*n))
            for ins in interleave(mf, fl, sl): A(ins)
        ndma = KS - NS
        step(0, vm=8); step(1, vm=4+8); step(2, vm=16)
        step(3, vm=16); step(4, vm=16)
        t = 5
        nl = (ndma - t)//NS
        lp = A.newlabel("loop")
        A(f"s_mov_b32 {s(sLoop)}, {nl}")
        A.label(lp)
        for j in range(NS): step(t+j, vm=16)
        A(f"s_sub_u32 {s(sLoop)}, {s(sLoop)}, 1")
        A(f"s_cmp_lg_u32 {s(sLoop)}, 0")
        A(f"s_cbranch_scc1 {lp}")
        t += nl*NS
        while t < KS:
            lastissued = min(t+NS-1, KS-1)
            vm = 8*max(0, lastissued-(t+1))
            if t == KS - FR: vm = 0
            step(t, do_dma=(t < ndma), vm=vm, bar=(t <= KS - FR and t < KS-1) or (FR == 0 and t < KS-1))
            t += 1
    A(f"s_cmp_ge_u32 {s(sWave)}, 4")
    A(f"s_cbranch_scc1 {pfl}")
    A(f"v_lshlrev_b32 {v(vDx)}, 4, {v(vLL)}")
    A(f"s_lshl_b32 {s(sKx)}, {s(sMt)}, 19")
    A(f"s_add_u32 {s(sKx)}, {s(sKx)}, {s(sM0x)}")
    npoll = A.newlabel("ka_np")
    A(f"s_cmp_lg_u32 {s(sWave)}, 0")
    A(f"s_cbranch_scc1 {npoll}")
    get_tag(A, sDbg, sTag, 40)
    A(f"s_lshr_b32 {s(sT)}, {s(sMt)}, 2")
    A(f"s_lshl_b32 {s(sT)}, {s(sT)}, 1")
    A(f"s_and_b32 {s(sT+1)}, {s(sMt)}, 1")
    A(f"s_add_u32 {s(sT)}, {s(sT)}, {s(sT+1)}")
    A(f"s_lshl_b32 {s(sT)}, {s(sT)}, 9")
    A(f"v_lshlrev_b32 v44, 3, {v(vLL)}")
    A(f"v_add_u32 v44, {s(sT)}, v44")
    poll_flags(A, sFb, 44, 1, sTag, 40, 96)
    A.label(npoll)
    A("s_barrier")
    stamp(A, dict(stamp=opts.get("stamp0")), 3)
    for t in range(NS):
        for ins in dmaX(t): A(ins)
    A(f"s_waitcnt vmcnt(12)")
    mainloop(True)
    A(f"s_branch {epi}")
    A.label(pfl)
    DL = opts.get("pfd", 8); P0 = 4
    vP, vP2, vD, vS = vDx, b+26, b+27, b+28
    A(f"s_lshl_b32 {s(sT)}, {s(sMt)}, 2")
    A(f"s_and_b32 {s(sT+1)}, {s(sWave)}, 1")
    A(f"s_lshl_b32 {s(sT+1)}, {s(sT+1)}, 1")
    A(f"s_add_u32 {s(sT)}, {s(sT)}, {s(sT+1)}")
    A(f"v_lshrrev_b32 {v(t0)}, 5, {v(vLL)}")
    A(f"v_add_u32 {v(vP)}, {s(sT)}, {v(t0)}")
    A(f"v_mul_u32_u24 {v(vP)}, 7168, {v(vP)}")
    A(f"v_and_b32 {v(t1)}, 16, {v(vLL)}")
    A(f"v_lshl_add_u32 {v(vP)}, {v(t1)}, 3, {v(vP)}")
    A(f"s_lshl_b32 {s(sKw)}, {s(sNt)}, 8")
    A(f"s_add_u32 {s(sKw)}, {s(sKw)}, {P0*32*7168}")
    A(f"s_mul_i32 {s(sT)}, {s(sMt)}, 28")
    A(f"s_add_u32 {s(sT)}, {s(sT)}, {s(sNt)}")
    A(f"s_lshl_b32 {s(sT)}, {s(sT)}, 2")
    A(f"s_add_u32 {s(sT)}, {s(sT)}, {s(sWn)}")
    A(f"s_lshl_b32 {s(sKx)}, {s(sT)}, 8")
    A(f"s_lshl_b32 {s(sPf)}, {s(sT)}, 10")
    A(f"v_lshlrev_b32 {v(vP2)}, 7, {v(t0)}")
    A(f"v_lshlrev_b32 {v(vS)}, 4, {v(vLL)}")
    for i in range(4): A(f"v_mov_b32 {v(vDw[i])}, -1")
    make_srd(A, sD, 92, 93, 1024*3584*2)
    make_srd(A, sP, sWS, sWS+1, 256*32768, add=WS_PART)
    pw = [f"buffer_load_dword {v(vD)}, {v(vP)}, {s(sW,4)}, {s(sKw)} offen", f"s_add_u32 {s(sKw)}, {s(sKw)}, {32*7168}"]
    pd = [f"buffer_load_dword {v(vD)}, {v(vP2)}, {s(sD,4)}, {s(sKx)} offen", f"s_add_u32 {s(sKx)}, {s(sKx)}, {32*7168}"]
    ps = [f"buffer_store_dwordx4 {v(vDw[0],4)}, {v(vS)}, {s(sP,4)}, {s(sPf)} offen sc1", f"s_add_u32 {s(sPf)}, {s(sPf)}, {896*1024}"]
    if opts.get("nopfw"): pw = []
    if not opts.get("sentinel"): ps = []
    A("s_waitcnt vmcnt(0)")
    if opts.get("pfearly", 1):
        for ins in pw*DL: A(ins)
    A("s_barrier")
    nf2 = A.newlabel("ka_nf2")
    A(f"s_cmp_lg_u32 {s(sWave)}, 4")
    A(f"s_cbranch_scc1 {nf2}")
    A(f"s_lshl_b32 {s(sT)}, s2, 3")
    A(f"s_add_u32 {s(sT)}, {s(sT)}, 2048")
    set_flag(A, sFb, sT, sTag, 40)
    A.label(nf2)
    pf_init = ([] if opts.get("pfearly", 1) else pw*DL) + pd
    mainloop(False, pf_init, pw + pd + ps)
    A.label(epi)
    dbg_mark(A, opts, 5, 250)
    stamp(A, opts, 2)
    E = R[0]; sRow = 41
    for i in range(8):
        Tm = E + (i % 2)*16; P = Tm + 8
        g = acc(i, 0); u = acc(i, 2)
        for r in range(0, 8, 2): pk("mul", Tm+r, g+r, g+r)
        for r in range(0, 8, 2): pk("fma", Tm+r, Tm+r, vK+2, vK)
        for r in range(0, 8, 2): pk("mul", Tm+r, Tm+r, g+r)
        for r in range(8): A(f"v_exp_f32 {v(Tm+r)}, {v(Tm+r)}")
        for r in range(0, 8, 2): pk("mul", u+r, u+r, g+r)
        for r in range(0, 8, 2): pk("add", Tm+r, Tm+r, vK+4)
        for r in range(8): A(f"v_rcp_f32 {v(Tm+r)}, {v(Tm+r)}")
        A(f"s_mov_b32 {s(sRow)}, {i*1024}")
        for r in range(0, 8, 2): pk("mul", Tm+r, Tm+r, u+r)
        for r in range(4): A(f"v_cvt_pk_bf16_f32 {v(P+r)}, {v(Tm+2*r)}, {v(Tm+2*r+1)}")
        A("s_nop 1")
        A(f"v_permlane16_swap_b32 {v(P)}, {v(P+2)}")
        A(f"v_permlane16_swap_b32 {v(P+1)}, {v(P+3)}")
        A(f"buffer_store_dwordx4 {v(P,4)}, {v(vSt)}, {s(sH,4)}, {s(sRow)} offen sc1")
    if opts.get("stamp") or opts.get("stamp0"):
        A("s_waitcnt vmcnt(0)")
        stamp(A, opts, 3)
        stamp_store(A, dict(stamp=True), 4, sWS, E, sWave)
    if opts.get("tldbg"): A("s_waitcnt vmcnt(0)")
    dbg_mark(A, opts, 6, 250)
    A.label(done)
    A("s_endpgm")
    from fft2 import gen_fft_role2
    A.label(fftl)
    A(f"s_sub_u32 s42, {s(sIdx)}, 28")
    A(f"s_lshl_b32 {s(sT)}, {s(sXcd)}, 2")
    A(f"s_add_u32 s42, s42, {s(sT)}")
    A(f"s_mov_b32 s40, {s(sWave)}")
    A(f"s_mov_b64 s[26:27], {s(sDbg,2)}")
    A(f"s_mov_b64 s[88:89], {s(sFb,2)}")
    o = dict(opts); o["stamp"] = opts.get("stampf"); o["nopf"] = True; o["fused"] = True
    gen_fft_role2(A, o, 42, done)
    return NS*SLOT + 1024
```

```python
from asmlib import *
from layout import *
def get_tag(A, sDbg, sTag, va):
    lp = A.newlabel("tag")
    A(f"v_mov_b32 {v(va+2)}, 64")
    A.label(lp)
    A(f"global_load_dwordx2 {v(va,2)}, {v(va+2)}, {s(sDbg,2)} sc1")
    A("s_waitcnt vmcnt(0)")
    A(f"v_readfirstlane_b32 {s(sTag)}, {v(va)}")
    A(f"v_readfirstlane_b32 {s(sTag+1)}, {v(va+1)}")
    A("s_nop 3")
    A(f"s_cmp_eq_u32 {s(sTag+1)}, 0")
    A(f"s_cbranch_scc1 {lp}")
def set_flag(A, sFb, sOff, sTag, va):
    A(f"v_mov_b32 {v(va)}, {s(sTag)}")
    A(f"v_mov_b32 {v(va+1)}, {s(sTag+1)}")
    A(f"v_mov_b32 {v(va+2)}, {s(sOff)}")
    A("s_mov_b64 exec, 1")
    A(f"global_store_dwordx2 {v(va+2)}, {v(va,2)}, {s(sFb,2)} sc1")
    A("s_mov_b64 exec, -1")
def poll_flags(A, sFb, vOffs, n, sTag, va, sM, sleep=1):
    lp = A.newlabel("pollf")
    A.label(lp)
    if sleep: A(f"s_sleep {sleep}")
    for i in range(n):
        A(f"global_load_dwordx2 {v(va+2*i,2)}, {v(vOffs)}, {s(sFb,2)} offset:{i*512} sc1")
    A("s_waitcnt vmcnt(0)")
    A(f"v_cmp_eq_u64 vcc, {s(sTag,2)}, {v(va,2)}")
    for i in range(1, n):
        A(f"v_cmp_eq_u64 {s(sM,2)}, {s(sTag,2)}, {v(va+2*i,2)}")
        A("s_nop 1")
        A(f"s_and_b64 vcc, vcc, {s(sM,2)}")
    A("s_nop 1")
    A("s_cmp_eq_u64 vcc, -1")
    A(f"s_cbranch_scc0 {lp}")
```

```python
import sys
from asmlib import *
from gemm import parse_opts
from ka import gen_ka
from gemm2c import gen_gemm2c
opts = parse_opts(sys.argv[2:])
opts.setdefault("ofl", "sc1")
B = Asm()
o1 = dict(opts)
if opts.get("stamp0"): pass
lds1 = gen_ka(B, "ka_kernel", o1)
o2 = dict(opts); o2["stamp"] = opts.get("stamp2"); o2["rowperm"] = True
for k in list(opts):
    if k.startswith("g2_"): o2[k[3:]] = opts[k]
G2 = gen_gemm2c(B, "g2_kernel", o2)
if opts.get("tldbg"):
    from dbgstamp import gen_dbg_kernel
    gen_dbg_kernel(B, "dbg_kernel", {0:(0,256),1:(0,256),2:(0,256),10:(0,256),13:(0,224),3:(0,256),15:(0,224),4:(0,224),5:(0,224),6:(0,224),7:(224,256),8:(224,256),9:(0,256),11:(0,256),12:(0,256)})
A = Asm()
hdr = open("parallel_sum__spectral_gfnet__glu_gated_geglu__prompt.s.ref").read().split("; Override launch")[0]
A.raw(hdr.rstrip())
A.raw(f"; @launch kernel=ka_kernel grid=(256,1,1) block=(512,1,1) lds={lds1}")
A.raw(f"; @launch kernel=g2_kernel grid=(256,1,1) block=(512,1,1) lds={G2['lds']}")
if opts.get("tldbg"): A.raw("; @launch kernel=dbg_kernel grid=(1,1,1) block=(64,1,1) lds=0")
A.raw('.amdgcn_target "amdgcn-amd-amdhsa--gfx950"')
A.raw(".text")
A.lines += B.lines
A.raw('.section .rodata,"a"')
A.raw(kernel_desc("ka_kernel", 256))
A.raw(kernel_desc("g2_kernel", 256))
if opts.get("tldbg"): A.raw(kernel_desc("dbg_kernel", 16))
open(sys.argv[1], "w").write(A.text())
```

```python
from asmlib import *
from layout import *
from dbgstamp import *
from sync import *
from gemm import stamp, stamp_store
from fft2 import job_trig, job_tw, run_jobs, PI, DR
from fftcommon import wave_allreduce_add2, round_bf16
import math
MF = "v_mfma_f32_16x16x32_bf16"
MF32 = "v_mfma_f32_32x32x16_bf16"

def gen_ka(A, name, opts):
    NS = 4; KS = 32; SLOT = 32768; XB = 16384
    FR = opts.get("freerun", 3)
    kernel_begin(A, name)
    sX, sW, sD, sH, sP = 8, 12, 16, 20, 44
    sWS = 24; sT = 26
    sWave, sWm, sWn = 30, 31, 32
    sM0x, sM0w, sKx, sKw = 33, 34, 35, 36
    sMt, sNt, sLoop, sPf = 37, 38, 39, 40
    sDbg, sTag, sFb = 48, 50, 52
    sIdx, sXcd = 54, 55
    sA, sB = 72, 76
    sS, sChunk, sN2, sU = 80, 81, 82, 83
    ACC = 0; R = [128, 176]
    acc = lambda i, j: ACC + (i*4+j)*4
    opX = lambda rs, i: R[rs] + i*4
    opW = lambda rs, j: R[rs] + 32 + j*4
    nsg = 2
    b = 224
    vDw = [b, b+1, b+2, b+3]; vDx = b+4; vL = 1
    vXa = [b+6+g for g in range(nsg)]
    vWa = [[b+9+g for g in range(nsg)], [b+12+g for g in range(nsg)]]
    t0, t1, t2, t3 = b+15, b+16, b+17, b+18
    vSt = b+19; vK = b+20
    vLL = b+5
    done = A.newlabel("ka_done"); fftl = A.newlabel("ka_fft"); pfl = A.newlabel("ka_pf"); epi = A.newlabel("ka_epi")
    A("s_load_dwordx2 s[94:95], s[0:1], 0")
    A(f"s_load_dwordx4 {s(sDbg,4)}, s[0:1], 64")
    A(f"s_load_dwordx4 s[4:7], s[0:1], 32")
    A(f"s_load_dwordx4 s[88:91], s[0:1], 8")
    A(f"s_load_dwordx2 s[92:93], s[0:1], 48")
    A(f"s_cmp_ge_u32 s2, 256")
    A(f"s_cbranch_scc1 {done}")
    dbg_init(A, opts, 0); dbg_mark(A, opts, 0, 254, neg=True)
    stamp(A, dict(stamp=opts.get("stamp") or opts.get("stamp0")), 0)
    vOff = 2
    A(f"v_lshrrev_b32 v2, 6, v0")
    A(f"v_and_b32 {v(vL)}, 63, v0")
    A(f"s_and_b32 {s(sXcd)}, s2, 7")
    A(f"v_readfirstlane_b32 {s(sWave)}, v2")
    A(f"s_lshr_b32 {s(sIdx)}, s2, 3")
    A(f"v_lshlrev_b32 {v(vOff)}, 4, {v(vL)}")
    A(f"v_mov_b32 {v(vLL)}, {v(vL)}")
    A(f"s_lshl_b32 {s(sChunk)}, {s(sXcd)}, 5")
    A(f"s_add_u32 {s(sChunk)}, {s(sChunk)}, {s(sIdx)}")
    A(f"s_lshr_b32 {s(sT)}, {s(sXcd)}, 2")
    A(f"s_lshl_b32 {s(sT)}, {s(sT)}, 5")
    A(f"s_add_u32 {s(sN2)}, {s(sIdx)}, {s(sT)}")
    A(f"s_and_b32 {s(sT)}, {s(sXcd)}, 2")
    A(f"s_lshl_b32 {s(sT)}, {s(sT)}, 1")
    A(f"s_and_b32 {s(sT+1)}, {s(sXcd)}, 1")
    A(f"s_add_u32 {s(sU)}, {s(sT)}, {s(sT+1)}")
    A(f"s_lshr_b32 {s(sT)}, {s(sWave)}, 2")
    A(f"s_lshl_b32 {s(sT)}, {s(sT)}, 1")
    A(f"s_add_u32 {s(sT)}, {s(sT)}, {s(sU)}")
    A(f"s_lshl_b32 {s(sS)}, {s(sT)}, 8")
    A(f"s_and_b32 {s(sWn)}, {s(sWave)}, 3")
    A(f"s_lshl_b32 {s(sT)}, {s(sWn)}, 6")
    A(f"s_add_u32 {s(sS)}, {s(sS)}, {s(sT)}")
    A(f"s_add_u32 {s(sS)}, {s(sS)}, {s(sN2)}")
    A(f"s_lshl_b32 {s(sT)}, {s(sS)}, 11")
    A(f"s_and_b32 {s(sMt)}, {s(sXcd)}, 1")
    A(f"s_lshl_b32 {s(sMt)}, {s(sMt)}, 2")
    A(f"s_and_b32 {s(sT+2)}, {s(sIdx)}, 3")
    A(f"s_add_u32 {s(sMt)}, {s(sMt)}, {s(sT+2)}")
    A(f"s_lshr_b32 {s(sNt)}, {s(sXcd)}, 1")
    A(f"s_mul_i32 {s(sNt)}, {s(sNt)}, 7")
    A(f"s_lshr_b32 {s(sT+2)}, {s(sIdx)}, 2")
    A(f"s_add_u32 {s(sNt)}, {s(sNt)}, {s(sT+2)}")
    A("s_waitcnt lgkmcnt(0)")
    make_srd(A, sA, 94, 95, 2048*1024*2)
    RAW = 4
    A(f"buffer_load_dwordx4 {v(RAW,4)}, {v(vOff)}, {s(sA,4)}, {s(sT)} offen")
    A(f"buffer_load_dwordx4 {v(RAW+4,4)}, {v(vOff)}, {s(sA,4)}, {s(sT)} offen offset:1024")
    A(f"s_mov_b64 {s(sWS,2)}, s[50:51]")
    A(f"s_add_u32 {s(sFb)}, {s(sWS)}, {hex(WS_TAG)}")
    A(f"s_addc_u32 {s(sFb+1)}, {s(sWS+1)}, 0")
    nt_ = A.newlabel("ka_notag")
    A(f"s_lshl_b32 {s(sT)}, s2, 3")
    A(f"s_add_u32 {s(sT)}, {s(sT)}, {s(sWave)}")
    A(f"s_cmp_lg_u32 {s(sT)}, 7")
    A(f"s_cbranch_scc1 {nt_}")
    A(f"s_memrealtime {s(sTag,2)}")
    A("s_waitcnt lgkmcnt(0)")
    A(f"s_or_b32 {s(sTag+1)}, {s(sTag+1)}, 0x80000000")
    A(f"s_mov_b32 {s(sT)}, 64")
    set_flag(A, sDbg, sT, sTag, 12)
    A.label(nt_)
    WR = 128; WO = 160
    nw1 = A.newlabel("ka_now1")
    A("s_cmp_ge_u32 s2, 64")
    A(f"s_cbranch_scc1 {nw1}")
    A(f"s_lshl_b32 {s(sT)}, s2, 3")
    A(f"s_add_u32 {s(sT)}, {s(sT)}, {s(sWave)}")
    A(f"s_bfe_u32 {s(sT+1)}, {s(sT)}, 0x20006")
    A(f"s_lshl_b32 {s(sT+1)}, {s(sT+1)}, 4")
    A(f"s_bfe_u32 {s(sT+2)}, {s(sT)}, 0x10005")
    A(f"s_lshl_b32 {s(sT+2)}, {s(sT+2)}, 2")
    A(f"s_add_u32 {s(sT+1)}, {s(sT+1)}, {s(sT+2)}")
    A(f"s_lshl_b32 {s(sT+1)}, {s(sT+1)}, 5")
    A(f"s_and_b32 {s(sT+2)}, {s(sT)}, 31")
    A(f"s_add_u32 {s(sT+1)}, {s(sT+1)}, {s(sT+2)}")
    A(f"s_mul_i32 {s(sT+1)}, {s(sT+1)}, 1026")
    A("s_cmp_ge_u32 s2, 32")
    A("s_cselect_b32 s88, s90, s88")
    A("s_cselect_b32 s89, s91, s89")
    make_srd(A, sB, 88, 89, 2048*513*2)
    for e in range(8):
        A(f"s_add_u32 {s(sT+2)}, {s(sT+1)}, {32*(8*(e//4) + e % 4)*1026}")
        A(f"buffer_load_dwordx4 {v(WR+4*e,4)}, {v(vOff)}, {s(sB,4)}, {s(sT+2)} offen")
    A(f"v_and_b32 v192, 3, {v(vL)}")
    A(f"v_bfe_u32 v193, {v(vL)}, 2, 1")
    A(f"v_lshl_add_u32 v192, v193, 3, v192")
    A(f"v_mul_u32_u24 v192, {32*1026}, v192")
    A(f"v_lshrrev_b32 v193, 3, {v(vL)}")
    A(f"v_lshlrev_b32 v193, 24, v193")
    A(f"v_add_u32 v192, v192, v193")
    A(f"buffer_load_ushort v194, v192, {s(sB,4)}, {s(sT+1)} offen offset:1024")
    A(f"v_lshl_add_u32 v193, {v(vL)}, 1, v193")
    A.label(nw1)
    A(f"s_bitcmp1_b32 {s(sWave)}, 1")
    A(f"s_cselect_b32 s4, s6, s4")
    A(f"s_cselect_b32 s5, s7, s5")
    make_srd(A, sW, 4, 5, 1024*3584*2)
    def dmaW(slot):
        o = [f"s_add_u32 m0, {s(sM0w)}, {hex(slot*SLOT)}", "s_nop 0"]
        for i in range(4): o.append(f"buffer_load_dwordx4 {v(vDw[i])}, {s(sW,4)}, {s(sKw)} offen offset:{1024*i} lds")
        o.append(f"s_add_u32 {s(sKw)}, {s(sKw)}, {32*7168}")
        return o
    def dmaX(slot):
        o = [f"s_add_u32 m0, {s(sM0x)}, {hex(slot*SLOT)}", "s_nop 0"]
        for i in range(4): o.append(f"buffer_load_dwordx4 {v(vDx)}, {s(sX,4)}, {s(sKx)} offen offset:{1024*i} sc1 lds")
        o.append(f"s_add_u32 {s(sKx)}, {s(sKx)}, {XB}")
        return o
    nd1 = A.newlabel("ka_nodma")
    A(f"v_lshrrev_b32 {v(t0)}, 4, {v(vL)}")
    A(f"v_and_b32 {v(t2)}, 15, {v(vL)}")
    A(f"v_lshlrev_b32 {v(t1)}, 1, {v(t0)}")
    A(f"v_xor_b32 {v(t2)}, {v(t2)}, {v(t1)}")
    A(f"v_mul_u32_u24 {v(t0)}, 7168, {v(t0)}")
    A(f"v_lshl_add_u32 {v(vDw[0])}, {v(t2)}, 4, {v(t0)}")
    A(f"v_xor_b32 {v(t1)}, 128, {v(vDw[0])}")
    for i in range(1, 4): A(f"v_add_u32 {v(vDw[i])}, {i*4*7168 - i*1024}, {v(t1 if i & 2 else vDw[0])}")
    A(f"s_and_b32 {s(sKw)}, {s(sWave)}, 1")
    A(f"s_mul_i32 {s(sKw)}, {s(sKw)}, {16*7168}")
    A(f"s_lshl_b32 {s(sT)}, {s(sNt)}, 8")
    A(f"s_add_u32 {s(sKw)}, {s(sKw)}, {s(sT)}")
    A(f"s_lshl_b32 {s(sM0x)}, {s(sWave)}, 12")
    A(f"s_add_u32 {s(sM0w)}, {s(sM0x)}, {XB}")
    A(f"s_cmp_ge_u32 {s(sIdx)}, 28")
    A(f"s_cbranch_scc1 {nd1}")
    A(f"s_cmp_ge_u32 {s(sWave)}, 4")
    A(f"s_cbranch_scc1 {nd1}")
    for t in range(NS):
        for ins in dmaW(t): A(ins)
    A.label(nd1)
    LC, LS, LT = 0, 32768, 65536
    B1C, B1S, A2R, A2I, TWC, TWS = 64, 72, 80, 88, 96, 112
    img = lambda r: LC + ((r-64)//4)*1024
    vK1, vH4, vK2, vH4b, vPh = 12, 13, 14, 15, 16
    W = 64
    A(f"v_and_b32 {v(vK1)}, 31, {v(vL)}")
    A(f"v_lshrrev_b32 {v(vH4)}, 5, {v(vL)}")
    A(f"v_lshlrev_b32 {v(vH4)}, 2, {v(vH4)}")
    A(f"v_and_b32 {v(vK2)}, 15, {v(vL)}")
    A(f"v_mul_u32_u24 {v(vH4b)}, {v(vH4)}, {v(vK2)}")
    A(f"v_mul_u32_u24 {v(vH4)}, {v(vH4)}, {v(vK1)}")
    A(f"v_bfe_u32 {v(vPh)}, {v(vL)}, 4, 1")
    A(f"v_cvt_f32_u32 {v(vPh)}, {v(vPh)}")
    A(f"v_mul_f32 {v(vPh)}, {f32(0.25)}, {v(vPh)}")
    jobs = []
    for u in range(2):
        jobs.append((60, lambda u=u: job_trig(A, PI(u), vK1, vH4, 32, W, vOff, [('c', img(B1C+4*u)), ('n', img(B1S+4*u))])))
        jobs.append((60, lambda u=u: job_trig(A, PI(u), vK2, vH4b, 32, W, vOff, [('c', img(A2R+4*u)), ('s', img(A2I+4*u))], vPhase=vPh)))
        jobs.append((50, lambda u=u: job_tw(A, DR(u), vK1, vH4, 1024, W, vOff, img(TWC)+u*2048, img(TWS)+u*2048, sign=-1.0)))
    A(f"s_xor_b32 {s(sT+3)}, {s(sWave)}, 4")
    run_jobs(A, jobs, sT+3, 8)
    q0, q1, q2 = 17, 18, 19
    vLw, vLr, vTw, vDC = 21, 22, 23, 24
    A(f"s_lshl_b32 {s(sT)}, {s(sWave)}, 11")
    A(f"s_add_u32 {s(sT)}, {s(sT)}, {LS}")
    A(f"s_lshl_b32 {s(sT+1)}, {s(sWn)}, 6")
    A(f"v_xor_b32 {v(vLw)}, {s(sT+1)}, {v(vOff)}")
    A(f"v_add_u32 {v(vLw)}, {s(sT)}, {v(vLw)}")
    A(f"v_lshrrev_b32 {v(q0)}, 5, {v(vL)}")
    A(f"v_lshlrev_b32 {v(vTw)}, 11, {v(q0)}")
    A(f"v_lshlrev_b32 {v(q0)}, 8, {v(q0)}")
    A(f"v_bfe_u32 {v(q1)}, {v(vL)}, 2, 2")
    A(f"v_lshl_add_u32 {v(q0)}, {v(q1)}, 6, {v(q0)}")
    A(f"v_and_b32 {v(q1)}, 16, {v(vL)}")
    A(f"v_lshl_add_u32 {v(q0)}, {v(q1)}, 1, {v(q0)}")
    A(f"v_and_b32 {v(q2)}, 3, {v(vL)}")
    A(f"v_lshl_add_u32 {v(q0)}, {v(q2)}, 3, {v(q0)}")
    A(f"v_xor_b32 {v(q0)}, {s(sT+1)}, {v(q0)}")
    A(f"v_add_u32 {v(vLr)}, {s(sT)}, {v(q0)}")
    A(f"v_lshl_add_u32 {v(vTw)}, {v(vK1)}, 4, {v(vTw)}")
    A(f"s_lshl_b32 {s(sT)}, {s(sWave)}, 1")
    A(f"s_add_u32 {s(sT)}, {s(sT)}, {LT}")
    A(f"v_add_u32 {v(vTw)}, {s(sT)}, {v(vTw)}")
    A(f"v_cmp_eq_u32 s[96:97], 0, {v(vL)}")
    A(f"v_mov_b32 {v(vDC)}, 1.0")
    make_srd(A, sX, sWS, sWS+1, 2048*1024*2, add=WS_XN)
    A(f"v_cndmask_b32 {v(vDC)}, {v(vDC)}, 0.5, s[96:97]")
    F = 32; D = 48
    SUM, SQ, T1, T2, MB, RS = 25, 26, 27, 28, 29, 30
    w0 = A.newlabel("ka_w"); wd = A.newlabel("ka_wd")
    A(f"s_mov_b32 {s(sT)}, 0")
    A("s_cmp_lt_u32 s2, 64")
    A(f"s_cselect_b32 {s(sT)}, 1, 0")
    A(f"s_cmp_lt_u32 {s(sIdx)}, 28")
    A(f"s_cselect_b32 {s(sT+1)}, 2, 0")
    A(f"s_cmp_lt_u32 {s(sWave)}, 4")
    A(f"s_cselect_b32 {s(sT+1)}, {s(sT+1)}, 0")
    A(f"s_add_u32 {s(sT)}, {s(sT)}, {s(sT+1)}")
    for code, cnt in ((3, 25), (2, 16), (1, 9)):
        nx = A.newlabel("ka_w")
        A(f"s_cmp_lg_u32 {s(sT)}, {code}")
        A(f"s_cbranch_scc1 {nx}")
        A(f"s_waitcnt vmcnt({cnt})")
        A(f"s_branch {wd}")
        A.label(nx)
    A("s_waitcnt vmcnt(0)")
    A.label(wd)
    stamp(A, dict(stamp=opts.get("stamp0")), 1)
    dbg_mark(A, opts, 1, 254)
    for i in range(8):
        A(f"v_lshlrev_b32 {v(F+2*i)}, 16, {v(RAW+i)}")
        A(f"v_and_b32 {v(F+2*i+1)}, 0xffff0000, {v(RAW+i)}")
    A(f"v_readfirstlane_b32 {s(sT+3)}, {v(F)}")
    A("s_nop 1")
    for i in range(16): A(f"v_subrev_f32 {v(D+i)}, {s(sT+3)}, {v(F+i)}")
    A(f"v_add_f32 {v(SUM)}, {v(D)}, {v(D+1)}")
    A(f"v_mul_f32 {v(SQ)}, {v(D)}, {v(D)}")
    A(f"v_add_f32 {v(T1)}, {v(D+2)}, {v(D+3)}")
    A(f"v_mul_f32 {v(T2)}, {v(D+1)}, {v(D+1)}")
    for i in range(2, 16, 2):
        if i >= 4:
            A(f"v_add_f32 {v(SUM)}, {v(SUM)}, {v(D+i)}")
            A(f"v_add_f32 {v(T1)}, {v(T1)}, {v(D+i+1)}")
        A(f"v_fmac_f32 {v(SQ)}, {v(D+i)}, {v(D+i)}")
        A(f"v_fmac_f32 {v(T2)}, {v(D+i+1)}, {v(D+i+1)}")
    A(f"v_add_f32 {v(SUM)}, {v(SUM)}, {v(T1)}")
    A(f"v_add_f32 {v(SQ)}, {v(SQ)}, {v(T2)}")
    wave_allreduce_add2(A, [SUM, SQ], [T1, T2])
    A(f"v_mul_f32 {v(MB)}, {f32(1/1024)}, {v(SUM)}")
    A(f"v_mul_f32 {v(RS)}, {f32(1/1024)}, {v(SQ)}")
    A(f"v_fma_f32 {v(RS)}, -{v(MB)}, {v(MB)}, {v(RS)}")
    A(f"v_add_f32 {v(MB)}, {s(sT+3)}, {v(MB)}")
    A(f"v_max_f32 {v(RS)}, 0, {v(RS)}")
    round_bf16(A, RS)
    round_bf16(A, MB)
    A(f"v_add_f32 {v(RS)}, {f32(1e-5)}, {v(RS)}")
    round_bf16(A, RS)
    A(f"v_sqrt_f32 {v(RS)}, {v(RS)}")
    for i in range(16): A(f"v_sub_f32 {v(D+i)}, {v(F+i)}, {v(MB)}")
    round_bf16(A, RS)
    A(f"v_rcp_f32 {v(RS)}, {v(RS)}")
    for i in range(8): A(f"v_cvt_pk_bf16_f32 {v(RAW+i)}, {v(D+2*i)}, {v(D+2*i+1)}")
    for i in range(8):
        A(f"v_lshlrev_b32 {v(D+2*i)}, 16, {v(RAW+i)}")
        A(f"v_and_b32 {v(D+2*i+1)}, 0xffff0000, {v(RAW+i)}")
    for i in range(16): A(f"v_mul_f32 {v(D+i)}, {v(D+i)}, {v(RS)}")
    for i in range(8): A(f"v_cvt_pk_bf16_f32 {v(RAW+i)}, {v(D+2*i)}, {v(D+2*i+1)}")
    A(f"ds_write_b128 {v(vLw)}, {v(RAW,4)}")
    A(f"ds_write_b128 {v(vLw)}, {v(RAW+4,4)} offset:1024")
    A("s_waitcnt lgkmcnt(0)")
    A("s_barrier")
    dbg_mark(A, opts, 2, 254)
    CO = 196
    nco = A.newlabel("ka_nco")
    A(f"s_cmp_lt_u32 {s(sWave)}, 4")
    A(f"s_cbranch_scc1 {nco}")
    A("v_and_b32 v212, 255, v0")
    A("v_bfe_u32 v213, v0, 2, 2")
    A("v_lshrrev_b32 v214, 4, v212")
    A("v_xor_b32 v215, v214, v213")
    A("v_lshlrev_b32 v215, 6, v215")
    A("v_lshl_add_u32 v215, v213, 11, v215")
    A(f"s_and_b32 {s(sT)}, {s(sN2)}, 2")
    A("v_and_b32 v213, 3, v0")
    A(f"v_xor_b32 v213, {s(sT)}, v213")
    A("v_lshl_add_u32 v215, v213, 4, v215")
    for i in range(4):
        A(f"ds_read_b128 {v(CO+4*i,4)}, v215 offset:{LS + (i>>1)*8192 + (i&1)*1024}")
    A("v_and_b32 v213, 15, v0")
    A("v_lshlrev_b32 v213, 4, v213")
    A("v_lshl_add_u32 v213, v214, 14, v213")
    A(f"s_lshl_b32 {s(sT)}, {s(sU)}, 19")
    A(f"s_lshl_b32 {s(sT+1)}, {s(sN2)}, 8")
    A(f"s_add_u32 {s(sT)}, {s(sT)}, {s(sT+1)}")
    for i in range(4):
        A(f"s_add_u32 {s(sT+1)}, {s(sT)}, {(i>>1)*(2<<19) + (i&1)*16*16384}")
        A(f"s_waitcnt lgkmcnt({3-i})")
        A(f"buffer_store_dwordx4 {v(CO+4*i,4)}, v213, {s(sX,4)}, {s(sT+1)} offen sc1")
    A.label(nco)
    OP = 12
    for u in range(2):
        for e in range(2):
            A(f"ds_read_b64_tr_b16 {v(OP+4*u+2*e,2)}, {v(vLr)} offset:{(16*u+8*e)*64}")
    for g in range(16):
        A(f"ds_read_b128 {v(64+4*g,4)}, {v(vOff)} offset:{LC + g*1024}")
    TR, TI = 32, 48
    A("s_waitcnt lgkmcnt(12)")
    A(f"{MF32} {v(TR,16)}, {v(OP,4)}, {v(B1C,4)}, 0")
    A(f"{MF32} {v(TI,16)}, {v(OP,4)}, {v(B1S,4)}, 0")
    A(f"{MF32} {v(TR,16)}, {v(OP+4,4)}, {v(B1C+4,4)}, {v(TR,16)}")
    A(f"{MF32} {v(TI,16)}, {v(OP+4,4)}, {v(B1S+4,4)}, {v(TI,16)}")
    make_srd(A, sA, sWS, sWS+1, 4 << 20, add=WS_YT)
    A("s_waitcnt lgkmcnt(0)")
    A("s_nop 5")
    NY, NT = 27, 28
    WK = B1C
    A(f"v_sub_f32 {v(NY)}, {v(TR)}, {v(TR+1)}")
    A(f"v_sub_f32 {v(NT)}, {v(TR+2)}, {v(TR+3)}")
    for r in range(4, 16, 4):
        A(f"v_add_f32 {v(NY)}, {v(NY)}, {v(TR+r)}")
        A(f"v_add_f32 {v(NT)}, {v(NT)}, {v(TR+r+2)}")
        A(f"v_sub_f32 {v(NY)}, {v(NY)}, {v(TR+r+1)}")
        A(f"v_sub_f32 {v(NT)}, {v(NT)}, {v(TR+r+3)}")
    A(f"v_add_f32 {v(NY)}, {v(NY)}, {v(NT)}")
    A(f"v_mov_b32 {v(NT)}, {v(NY)}")
    def pk(op, d, *srcs, neg=None):
        m = ""
        if neg:
            bits = ",".join("1" if i in neg else "0" for i in range(len(srcs)))
            m = f" neg_lo:[{bits}] neg_hi:[{bits}]"
        A(f"v_pk_{op}_f32 {v(d,2)}, " + ", ".join(v(x,2) for x in srcs) + m)
    for r in range(0, 16, 2): pk("mul", WK+r, TR+r, TWC+r)
    for r in range(0, 16, 2): pk("mul", TR+r, TR+r, TWS+r)
    for r in range(0, 16, 2): pk("fma", WK+r, TI+r, TWS+r, WK+r, neg=[0])
    UR, UI = 4, 12
    for p in range(8): A(f"v_cvt_pk_bf16_f32 {v(UR+p)}, {v(WK+2*p)}, {v(WK+2*p+1)}")
    Y = WK
    for r in range(0, 16, 2): pk("fma", TR+r, TI+r, TWC+r, TR+r)
    A(f"{MF32} {v(Y,16)}, {v(A2R,4)}, {v(UR,4)}, 0")
    A(f"{MF32} {v(Y,16)}, {v(A2R+4,4)}, {v(UR+4,4)}, {v(Y,16)}")
    for p in range(8): A(f"v_cvt_pk_bf16_f32 {v(UI+p)}, {v(TR+2*p)}, {v(TR+2*p+1)}")
    A(f"v_permlane32_swap_b32 {v(NY)}, {v(NT)}")
    A("s_nop 0")
    A(f"{MF32} {v(Y,16)}, {v(A2I,4)}, {v(UI,4)}, {v(Y,16)}")
    A(f"{MF32} {v(Y,16)}, {v(A2I+4,4)}, {v(UI+4,4)}, {v(Y,16)}")
    A(f"v_add_f32 {v(NY)}, {v(NY)}, {v(NT)}")
    A(f"v_mul_f32 {v(NY)}, 0.5, {v(NY)}")
    A("s_nop 9")
    A(f"v_mul_f32 {v(Y)}, {v(Y)}, {v(vDC)}")
    A(f"v_cndmask_b32 {v(Y+8)}, {v(Y+8)}, {v(NY)}, s[96:97]")
    for p in range(8): A(f"v_cvt_pk_bf16_f32 {v(32+p)}, {v(Y+2*p)}, {v(Y+2*p+1)}")
    for r in range(16):
        c = r >> 3; k2 = 8*((r >> 2) & 1) + (r & 3)
        A(f"ds_write_b16{'_d16_hi' if r & 1 else ''} {v(vTw)}, {v(32+r//2)} offset:{(c*16+k2)*512}")
    ng = A.newlabel("ka_ng")
    A(f"s_cmp_lt_u32 {s(sWave)}, 4")
    A(f"s_cbranch_scc1 {ng}")
    get_tag(A, sDbg, sTag, 40)
    A.label(ng)
    A("s_waitcnt lgkmcnt(0)")
    A("s_barrier")
    stamp(A, dict(stamp=opts.get("stamp0")), 2)
    dbg_mark(A, opts, 10, 254)
    ny = A.newlabel("ka_ny")
    A(f"s_cmp_lt_u32 {s(sWave)}, 4")
    A(f"s_cbranch_scc1 {ny}")
    nf = A.newlabel("ka_nf")
    A(f"s_cmp_lg_u32 {s(sWave)}, 4")
    A(f"s_cbranch_scc1 {nf}")
    A(f"s_and_b32 {s(sT)}, {s(sXcd)}, 3")
    A(f"s_lshl_b32 {s(sT)}, {s(sT)}, 6")
    A(f"s_add_u32 {s(sT)}, {s(sT)}, {s(sN2)}")
    A(f"s_lshl_b32 {s(sT)}, {s(sT)}, 3")
    set_flag(A, sFb, sT, sTag, 40)
    A.label(nf)
    A("v_lshrrev_b32 v213, 1, v212")
    A("v_and_b32 v214, 1, v212")
    A("v_lshlrev_b32 v213, 4, v213")
    A("v_lshl_add_u32 v213, v214, 13, v213")
    A(f"v_add_u32 v213, {LT}, v213")
    for i in range(4): A(f"ds_read_b128 {v(CO+4*i,4)}, v213 offset:{i*2048}")
    A("v_lshlrev_b32 v214, 4, v212")
    A(f"s_lshl_b32 {s(sT)}, {s(sChunk)}, 14")
    for i in range(4):
        A(f"s_add_u32 {s(sT+1)}, {s(sT)}, {i*4096}")
        A(f"s_waitcnt lgkmcnt({3-i})")
        A(f"buffer_store_dwordx4 {v(CO+4*i,4)}, v214, {s(sA,4)}, {s(sT+1)} offen sc1")
    make_srd(A, sB, sWS, sWS+1, 65536, add=WS_FLAG)
    A(f"s_lshl_b32 {s(sT)}, s2, 8")
    A(f"s_cmp_eq_u32 {s(sWave)}, 5")
    A(f"s_cselect_b32 {s(sT)}, {s(sT)}, 0x100000")
    A(f"v_lshlrev_b32 v40, 2, {v(vL)}")
    A(f"v_mov_b32 v41, 0")
    A(f"buffer_store_dword v41, v40, {s(sB,4)}, {s(sT)} offen")
    A.label(ny)
    A(f"s_cmp_ge_u32 {s(sIdx)}, 28")
    A(f"s_cbranch_scc1 {fftl}")
    nw2 = A.newlabel("ka_now2")
    A("s_cmp_ge_u32 s2, 64")
    A(f"s_cbranch_scc1 {nw2}")
    make_srd(A, sB, sWS, sWS+1, 513*WP, add=WS_WT)
    A(f"s_lshl_b32 {s(sT)}, s2, 7")
    A(f"s_lshl_b32 {s(sT+1)}, {s(sWave)}, 4")
    A(f"s_add_u32 {s(sT+1)}, {s(sT+1)}, {s(sT)}")
    A(f"s_add_u32 {s(sT+1)}, {s(sT+1)}, {512*WP}")
    A(f"s_mov_b32 {s(sT+2)}, 0x05040100")
    A(f"s_mov_b32 {s(sT+3)}, 0x07060302")
    A(f"v_and_b32 v40, 7, {v(vL)}")
    A(f"v_xor_b32 v40, {s(sWave)}, v40")
    A(f"v_lshlrev_b32 v40, 4, v40")
    A(f"v_and_b32 v41, 15, {v(vL)}")
    A(f"v_lshl_add_u32 v40, v41, 10, v40")
    A(f"v_lshrrev_b32 v41, 4, {v(vL)}")
    A(f"v_lshl_add_u32 v40, v41, 15, v40")
    wl = A.newlabel("ka_wl")
    A(f"s_cmp_ge_u32 {s(sWave)}, 4")
    A(f"s_cbranch_scc1 {wl}")
    A("s_waitcnt vmcnt(16)")
    A.label(wl)
    for j in range(8):
        for p in range(4):
            A(f"v_perm_b32 {v(WO+4*j+p)}, {v(WR+4*(2*p+1)+j//2)}, {v(WR+4*(2*p)+j//2)}, {s(sT+2+(j&1))}")
    A("s_barrier")
    for j in range(8): A(f"ds_write_b128 v40, {v(WO+4*j,4)} offset:{j*128}")
    A(f"v_lshlrev_b32 v41, 1, {v(vL)}")
    A(f"s_lshl_b32 {s(sT+2)}, {s(sWave)}, 4")
    A(f"s_add_u32 {s(sT+2)}, {s(sT+2)}, {NS*SLOT}")
    A(f"v_add_u32 v41, {s(sT+2)}, v41")
    A("s_mov_b64 exec, 0xff")
    A("ds_write_b16 v41, v194")
    A("s_mov_b64 exec, -1")
    A("s_waitcnt lgkmcnt(0)")
    A("s_barrier")
    A(f"s_cmp_lt_u32 {s(sWave)}, 4")
    A(f"s_cbranch_scc1 {nw2}")
    A("v_and_b32 v40, 7, v212")
    A("v_lshrrev_b32 v41, 3, v212")
    A(f"v_xor_b32 v42, {s(sWn)}, v40")
    A("v_lshlrev_b32 v42, 4, v42")
    A("v_lshl_add_u32 v42, v41, 7, v42")
    A("v_xor_b32 v43, 64, v42")
    A("v_add_u32 v44, 0x10000, v42")
    A("v_add_u32 v45, 0x10000, v43")
    A(f"v_mul_u32_u24 v41, {WP}, v41")
    A("v_lshl_add_u32 v41, v40, 4, v41")
    for i in range(16):
        A(f"ds_read_b128 {v(128+4*i,4)}, {v(42 + (i&1) + 2*(i>>3))} offset:{((i>>2)&1)*32768 + (i&3)*4096}")
    A(f"v_mov_b32 v46, {NS*SLOT}")
    A(f"v_lshl_add_u32 v46, {v(vL)}, 4, v46")
    A("ds_read_b128 v[48:51], v46")
    for i in range(16):
        A(f"s_add_u32 {s(sT+2)}, {s(sT)}, {i*32*WP}")
        A(f"s_waitcnt lgkmcnt({min(15, 16-i)})")
        A(f"buffer_store_dwordx4 {v(128+4*i,4)}, v41, {s(sB,4)}, {s(sT+2)} offen sc1")
    A(f"s_add_u32 {s(sT+2)}, {s(sT)}, {512*WP}")
    A(f"s_cmp_eq_u32 {s(sWave)}, 4")
    A(f"s_cselect_b32 {s(sT+2)}, {s(sT+2)}, 0x40000000")
    A("s_waitcnt lgkmcnt(0)")
    A("s_mov_b64 exec, 0xff")
    A(f"buffer_store_dwordx4 v[48:51], {v(vOff)}, {s(sB,4)}, {s(sT+2)} offen sc1")
    A("s_mov_b64 exec, -1")
    A.label(nw2)

    def common_setup():
        L = vLL
        A(f"s_lshr_b32 {s(sWm)}, {s(sWave)}, 2")
        A(f"v_and_b32 {v(t0)}, 15, {v(L)}")
        A(f"v_lshrrev_b32 {v(t1)}, 4, {v(L)}")
        A(f"v_lshrrev_b32 {v(t2)}, 2, {v(L)}")
        A(f"v_and_b32 {v(t3)}, 2, {v(t2)}")
        A(f"v_xor_b32 {v(t3)}, {v(t3)}, {v(t1)}")
        A(f"v_lshlrev_b32 {v(t3)}, 4, {v(t3)}")
        A(f"v_lshl_add_u32 {v(t3)}, {v(t0)}, 6, {v(t3)}")
        A(f"s_lshl_b32 {s(sT)}, {s(sWm)}, 13")
        A(f"v_add_u32 {v(vXa[0])}, {s(sT)}, {v(t3)}")
        for g in range(1, nsg): A(f"v_add_u32 {v(vXa[g])}, {hex(65536*g)}, {v(vXa[0])}")
        A(f"v_and_b32 {v(t2)}, 3, {v(t2)}")
        A(f"v_lshlrev_b32 {v(t3)}, 11, {v(t1)}")
        A(f"v_lshl_add_u32 {v(t3)}, {v(t2)}, 8, {v(t3)}")
        A(f"v_and_b32 {v(t1)}, 1, {v(t1)}")
        A(f"v_lshl_or_b32 {v(t2)}, {v(t1)}, 2, {v(t2)}")
        A(f"s_lshl_b32 {s(sT)}, {s(sWn)}, 1")
        A(f"v_xor_b32 {v(t2)}, {s(sT)}, {v(t2)}")
        A(f"v_lshl_add_u32 {v(t3)}, {v(t2)}, 5, {v(t3)}")
        A(f"v_and_b32 {v(t2)}, 3, {v(L)}")
        A(f"v_lshl_add_u32 {v(t3)}, {v(t2)}, 3, {v(t3)}")
        A(f"v_add_u32 {v(vWa[0][0])}, {XB}, {v(t3)}")
        A(f"v_xor_b32 {v(vWa[1][0])}, 32, {v(vWa[0][0])}")
        for jt in range(2):
            for g in range(1, nsg): A(f"v_add_u32 {v(vWa[jt][g])}, {hex(65536*g)}, {v(vWa[jt][0])}")
        A(f"v_lshrrev_b32 {v(t1)}, 5, {v(L)}")
        A(f"v_lshrrev_b32 {v(t2)}, 3, {v(L)}")
        A(f"v_and_b32 {v(t2)}, 2, {v(t2)}")
        A(f"v_or_b32 {v(t1)}, {v(t1)}, {v(t2)}")
        A(f"v_lshlrev_b32 {v(t1)}, 8, {v(t1)}")
        A(f"v_lshl_add_u32 {v(t1)}, {v(t0)}, 4, {v(t1)}")
        A(f"s_lshl_b32 {s(sT)}, {s(sMt)}, 1")
        A(f"s_add_u32 {s(sT)}, {s(sT)}, {s(sWm)}")
        A(f"s_mul_i32 {s(sT)}, {s(sT)}, 112")
        A(f"s_lshl_b32 {s(sT+1)}, {s(sNt)}, 2")
        A(f"s_add_u32 {s(sT)}, {s(sT)}, {s(sT+1)}")
        A(f"s_add_u32 {s(sT)}, {s(sT)}, {s(sWn)}")
        A(f"s_lshl_b32 {s(sT)}, {s(sT)}, 13")
        A(f"v_add_u32 {v(vSt)}, {s(sT)}, {v(t1)}")
        k0 = -2.0*math.log2(math.e)*math.sqrt(2.0/math.pi); k1 = k0*0.044715
        for i, c in enumerate((k0, k0, k1, k1, 1.0, 1.0)): A(f"v_mov_b32 {v(vK+i)}, {f32(c)}")
        make_srd(A, sH, sWS, sWS+1, 2048*3584*2, add=WS_H)
    common_setup()
    def reads(slot, rs):
        sg, so = divmod(slot*SLOT, 65536)
        X = [f"ds_read_b128 {v(opX(rs,i),4)}, {v(vXa[sg])} offset:{so + i*1024}" for i in range(8)]
        Wr = [f"ds_read_b64_tr_b16 {v(opW(rs,j)+2*e,2)}, {v(vWa[j%2][sg])} offset:{so + (j//2)*8192 + e*1024}" for j in range(4) for e in range(2)]
        return Wr + X
    def mfmas(rs, first):
        return [f"{MF} {v(acc(i,j),4)}, {v(opW(rs,j),4)}, {v(opX(rs,i),4)}, {'0' if first else v(acc(i,j),4)}" for i in range(8) for j in range(4)]
    def mainloop(isd, pf_init=(), pfs=()):
        A("s_barrier")
        stamp(A, opts, 1)
        if not isd: dbg_mark(A, opts, 4, 254)
        for ins in reads(0, 0): A(ins)
        for ins in pf_init: A(ins)
        def step(t, do_dma=True, vm=None, bar=True):
            slot = t % NS; rs = t % 2
            mf = mfmas(rs, t == 0); n = 32
            A(f"s_waitcnt vmcnt({vm}) lgkmcnt(0)" if (isd and bar) else "s_waitcnt lgkmcnt(0)")
            if bar: A("s_barrier")
            fl = []; sl = []
            if t+1 < KS:
                rd = reads((t+1) % NS, 1-rs)
                r0, r1 = opts.get("rspan", (0.0, 0.6))
                for q, ins in enumerate(rd): fl.append(ins); sl.append(int((r0 + (r1-r0)*q/len(rd))*n))
            dm = ((dmaW(slot) + dmaX(slot)) if do_dma else []) if isd else (pfs if t < KS-1 else [])
            d0, d1 = opts.get("dspan", (0.1, 0.9))
            for q, ins in enumerate(dm): fl.append(ins); sl.append(int((d0 + (d1-d0)*q/len(dm))*n))
            for ins in interleave(mf, fl, sl): A(ins)
        ndma = KS - NS
        step(0, vm=8); step(1, vm=4+8); step(2, vm=16)
        step(3, vm=16); step(4, vm=16)
        t = 5
        nl = (ndma - t)//NS
        lp = A.newlabel("loop")
        A(f"s_mov_b32 {s(sLoop)}, {nl}")
        A.label(lp)
        for j in range(NS): step(t+j, vm=16)
        A(f"s_sub_u32 {s(sLoop)}, {s(sLoop)}, 1")
        A(f"s_cmp_lg_u32 {s(sLoop)}, 0")
        A(f"s_cbranch_scc1 {lp}")
        t += nl*NS
        while t < KS:
            lastissued = min(t+NS-1, KS-1)
            vm = 8*max(0, lastissued-(t+1))
            if t == KS - FR: vm = 0
            step(t, do_dma=(t < ndma), vm=vm, bar=(t <= KS - FR and t < KS-1) or (FR == 0 and t < KS-1))
            t += 1
    A(f"s_cmp_ge_u32 {s(sWave)}, 4")
    A(f"s_cbranch_scc1 {pfl}")
    A(f"v_lshlrev_b32 {v(vDx)}, 4, {v(vLL)}")
    A(f"s_lshl_b32 {s(sKx)}, {s(sMt)}, 19")
    A(f"s_add_u32 {s(sKx)}, {s(sKx)}, {s(sM0x)}")
    npoll = A.newlabel("ka_np")
    A(f"s_cmp_lg_u32 {s(sWave)}, 0")
    A(f"s_cbranch_scc1 {npoll}")
    get_tag(A, sDbg, sTag, 40)
    A(f"s_lshr_b32 {s(sT)}, {s(sMt)}, 2")
    A(f"s_lshl_b32 {s(sT)}, {s(sT)}, 1")
    A(f"s_and_b32 {s(sT+1)}, {s(sMt)}, 1")
    A(f"s_add_u32 {s(sT)}, {s(sT)}, {s(sT+1)}")
    A(f"s_lshl_b32 {s(sT)}, {s(sT)}, 9")
    A(f"v_lshlrev_b32 v44, 3, {v(vLL)}")
    A(f"v_add_u32 v44, {s(sT)}, v44")
    poll_flags(A, sFb, 44, 1, sTag, 40, 96)
    A.label(npoll)
    A("s_barrier")
    stamp(A, dict(stamp=opts.get("stamp0")), 3)
    for t in range(NS):
        for ins in dmaX(t): A(ins)
    A(f"s_waitcnt vmcnt(12)")
    mainloop(True)
    A(f"s_branch {epi}")
    A.label(pfl)
    DL = opts.get("pfd", 8); P0 = 4
    vP, vP2, vD, vS = vDx, b+26, b+27, b+28
    A(f"s_lshl_b32 {s(sT)}, {s(sMt)}, 2")
    A(f"s_and_b32 {s(sT+1)}, {s(sWave)}, 1")
    A(f"s_lshl_b32 {s(sT+1)}, {s(sT+1)}, 1")
    A(f"s_add_u32 {s(sT)}, {s(sT)}, {s(sT+1)}")
    A(f"v_lshrrev_b32 {v(t0)}, 5, {v(vLL)}")
    A(f"v_add_u32 {v(vP)}, {s(sT)}, {v(t0)}")
    A(f"v_mul_u32_u24 {v(vP)}, 7168, {v(vP)}")
    A(f"v_and_b32 {v(t1)}, 16, {v(vLL)}")
    A(f"v_lshl_add_u32 {v(vP)}, {v(t1)}, 3, {v(vP)}")
    A(f"s_lshl_b32 {s(sKw)}, {s(sNt)}, 8")
    A(f"s_add_u32 {s(sKw)}, {s(sKw)}, {P0*32*7168}")
    A(f"s_mul_i32 {s(sT)}, {s(sMt)}, 28")
    A(f"s_add_u32 {s(sT)}, {s(sT)}, {s(sNt)}")
    A(f"s_lshl_b32 {s(sT)}, {s(sT)}, 2")
    A(f"s_add_u32 {s(sT)}, {s(sT)}, {s(sWn)}")
    A(f"s_lshl_b32 {s(sKx)}, {s(sT)}, 8")
    A(f"s_lshl_b32 {s(sPf)}, {s(sT)}, 10")
    A(f"v_lshlrev_b32 {v(vP2)}, 7, {v(t0)}")
    A(f"v_lshlrev_b32 {v(vS)}, 4, {v(vLL)}")
    for i in range(4): A(f"v_mov_b32 {v(vDw[i])}, -1")
    make_srd(A, sD, 92, 93, 1024*3584*2)
    make_srd(A, sP, sWS, sWS+1, 256*32768, add=WS_PART)
    pw = [f"buffer_load_dword {v(vD)}, {v(vP)}, {s(sW,4)}, {s(sKw)} offen", f"s_add_u32 {s(sKw)}, {s(sKw)}, {32*7168}"]
    pd = [f"buffer_load_dword {v(vD)}, {v(vP2)}, {s(sD,4)}, {s(sKx)} offen", f"s_add_u32 {s(sKx)}, {s(sKx)}, {32*7168}"]
    ps = [f"buffer_store_dwordx4 {v(vDw[0],4)}, {v(vS)}, {s(sP,4)}, {s(sPf)} offen sc1", f"s_add_u32 {s(sPf)}, {s(sPf)}, {896*1024}"]
    if opts.get("nopfw"): pw = []
    if not opts.get("sentinel"): ps = []
    A("s_waitcnt vmcnt(0)")
    if opts.get("pfearly", 1):
        for ins in pw*DL: A(ins)
    A("s_barrier")
    dbg_mark(A, opts, 13, 254)
    nf2 = A.newlabel("ka_nf2")
    A(f"s_cmp_lg_u32 {s(sWave)}, 4")
    A(f"s_cbranch_scc1 {nf2}")
    A(f"s_lshl_b32 {s(sT)}, s2, 3")
    A(f"s_add_u32 {s(sT)}, {s(sT)}, 2048")
    set_flag(A, sFb, sT, sTag, 40)
    A.label(nf2)
    pf_init = ([] if opts.get("pfearly", 1) else pw*DL) + pd
    mainloop(False, pf_init, pw + pd + ps)
    A.label(epi)
    dbg_mark(A, opts, 5, 254)
    stamp(A, opts, 2)
    E = R[0]; sRow = 41
    for i in range(8):
        Tm = E + (i % 2)*16; P = Tm + 8
        g = acc(i, 0); u = acc(i, 2)
        for r in range(0, 8, 2): pk("mul", Tm+r, g+r, g+r)
        for r in range(0, 8, 2): pk("fma", Tm+r, Tm+r, vK+2, vK)
        for r in range(0, 8, 2): pk("mul", Tm+r, Tm+r, g+r)
        for r in range(8): A(f"v_exp_f32 {v(Tm+r)}, {v(Tm+r)}")
        for r in range(0, 8, 2): pk("mul", u+r, u+r, g+r)
        for r in range(0, 8, 2): pk("add", Tm+r, Tm+r, vK+4)
        for r in range(8): A(f"v_rcp_f32 {v(Tm+r)}, {v(Tm+r)}")
        A(f"s_mov_b32 {s(sRow)}, {i*1024}")
        for r in range(0, 8, 2): pk("mul", Tm+r, Tm+r, u+r)
        for r in range(4): A(f"v_cvt_pk_bf16_f32 {v(P+r)}, {v(Tm+2*r)}, {v(Tm+2*r+1)}")
        A("s_nop 1")
        A(f"v_permlane16_swap_b32 {v(P)}, {v(P+2)}")
        A(f"v_permlane16_swap_b32 {v(P+1)}, {v(P+3)}")
        A(f"buffer_store_dwordx4 {v(P,4)}, {v(vSt)}, {s(sH,4)}, {s(sRow)} offen sc1")
    if opts.get("stamp") or opts.get("stamp0"):
        A("s_waitcnt vmcnt(0)")
        stamp(A, opts, 3)
        stamp_store(A, dict(stamp=True), 4, sWS, E, sWave)
    if opts.get("tldbg"): A("s_waitcnt vmcnt(0)")
    dbg_mark(A, opts, 6, 254)
    A.label(done)
    A("s_endpgm")
    from fft2 import gen_fft_role2
    A.label(fftl)
    A(f"s_sub_u32 s42, {s(sIdx)}, 28")
    A(f"s_lshl_b32 {s(sT)}, {s(sXcd)}, 2")
    A(f"s_add_u32 s42, s42, {s(sT)}")
    A(f"s_mov_b32 s40, {s(sWave)}")
    A(f"s_mov_b64 s[26:27], {s(sDbg,2)}")
    A(f"s_mov_b64 s[88:89], {s(sFb,2)}")
    o = dict(opts); o["stamp"] = opts.get("stampf"); o["nopf"] = True; o["fused"] = True
    gen_fft_role2(A, o, 42, done)
    return NS*SLOT + 1024
```

```python
from asmlib import *
from layout import *
from dbgstamp import *
from sync import *
from gemm import stamp, stamp_store
from colfft import col_params
from rowifft import chunk_rows
MF = "v_mfma_f32_32x32x16_bf16"

def pk(op, d, *srcs, neg=None):
    ss = ", ".join(v(x, 2) for x in srcs)
    m = ""
    if neg:
        bits = ",".join("1" if i in neg else "0" for i in range(len(srcs)))
        m = f" neg_lo:[{bits}] neg_hi:[{bits}]"
    return f"v_pk_{op}_f32 {v(d,2)}, {ss}{m}"

USE_PK = False
def pk2(A, op, n, d, *srcs, neg=None):
    if USE_PK:
        for r in range(0, n, 2): A(pk(op, d+r, *[x+r for x in srcs], neg=neg))
        return
    for r in range(n):
        ss = [("-" if (neg and i in neg) else "") + v(x+r) for i, x in enumerate(srcs)]
        A(f"v_{op}_f32 {v(d+r)}, " + ", ".join(ss))

def angle(A, t, b0, vIdx, vH4, mod, sign=1.0, vPhase=None):
    if b0 <= 64:
        A(f"v_mad_u32_u24 {v(t)}, {b0}, {v(vIdx)}, {v(vH4)}")
    else:
        A(f"v_mul_u32_u24 {v(t)}, {b0}, {v(vIdx)}")
        A(f"v_add_u32 {v(t)}, {v(t)}, {v(vH4)}")
    A(f"v_and_b32 {v(t)}, {mod-1}, {v(t)}")
    A(f"v_cvt_f32_u32 {v(t)}, {v(t)}")
    if vPhase is None:
        A(f"v_mul_f32 {v(t)}, {f32(sign/mod)}, {v(t)}")
    else:
        A(f"v_fmamk_f32 {v(t)}, {v(t)}, {f32(sign/mod)}, {v(vPhase)}")

def job_trig(A, b0s, vIdx, vH4, mod, W, vAddr, outs, vPhase=None):
    T, C, S, O = W, W+8, W+16, W+24
    for e in range(8): angle(A, T+e, b0s[e], vIdx, vH4, mod, vPhase=vPhase)
    for e in range(8): A(f"v_cos_f32 {v(C+e)}, {v(T+e)}")
    for e in range(8): A(f"v_sin_f32 {v(S+e)}, {v(T+e)}")
    A("s_nop 0")
    for k, (kind, off) in enumerate(outs):
        o = O + 4*k
        for p in range(4):
            if kind == 'c': A(f"v_cvt_pk_bf16_f32 {v(o+p)}, {v(C+2*p)}, {v(C+2*p+1)}")
            if kind == 's': A(f"v_cvt_pk_bf16_f32 {v(o+p)}, {v(S+2*p)}, {v(S+2*p+1)}")
            if kind == 'n': A(f"v_cvt_pk_bf16_f32 {v(o+p)}, -{v(S+2*p)}, -{v(S+2*p+1)}")
        A(f"ds_write_b128 {v(vAddr)}, {v(o,4)} offset:{off}")

def job_tw(A, b0s, vIdx, vH4, mod, W, vAddr, offc, offs, sign=1.0, scale=None):
    T, C, S = W, W+8, W+16
    for e in range(8): angle(A, T+e, b0s[e], vIdx, vH4, mod, sign=sign)
    for e in range(8): A(f"v_cos_f32 {v(C+e)}, {v(T+e)}")
    for e in range(8): A(f"v_sin_f32 {v(S+e)}, {v(T+e)}")
    A("s_nop 0")
    if scale is not None:
        for e in range(16): A(f"v_mul_f32 {v(C+e)}, {f32(scale)}, {v(C+e)}")
    for q in range(2):
        A(f"ds_write_b128 {v(vAddr)}, {v(C+4*q,4)} offset:{offc+q*1024}")
        A(f"ds_write_b128 {v(vAddr)}, {v(S+4*q,4)} offset:{offs+q*1024}")

def run_jobs(A, jobs, sWave, nw):
    load = [0]*nw; asg = [[] for _ in range(nw)]
    for cost, fn in sorted(jobs, key=lambda x: -x[0]):
        w = load.index(min(load)); load[w] += cost; asg[w].append(fn)
    end = A.newlabel("jobs_end")
    for w in range(nw):
        if not asg[w]: continue
        nxt = A.newlabel("jobs")
        A(f"s_cmp_lg_u32 {s(sWave)}, {w}")
        A(f"s_cbranch_scc1 {nxt}")
        for fn in asg[w]: fn()
        A(f"s_branch {end}")
        A.label(nxt)
    A.label(end)

PI = lambda u, base=0: [base + 16*u + 8*(e//4) + e % 4 for e in range(8)]
EO = lambda it, par: [32*it + 8*(e//2) + 2*(e % 2) + par for e in range(8)]
DR = lambda half, base=0: [base + 8*(r//4) + r % 4 for r in range(8*half, 8*half+8)]

def cmul_pk(A, ar, ai, c, sn, X):
    for r in range(0, 8, 2): A(pk("mul", X+r, ar+r, c+r))
    for r in range(0, 8, 2): A(pk("mul", ar+r, ar+r, sn+r))
    for r in range(0, 8, 2): A(pk("fma", X+r, ai+r, sn+r, X+r, neg=[0]))
    for r in range(0, 8, 2): A(pk("fma", ai+r, ai+r, c+r, ar+r))

def gen_fft_role2(A, opts, sFid, done, NF=32):
    vL, vOff, vTw = 1, 2, 3
    ROFF = [8, 9, 10, 11, 16, 17, 18, 19]
    C32, S32, N32 = 8, 16, 24
    K64 = 32
    def k64(par, kind, it): return K64 + ((par*3 + 'csn'.index(kind))*2 + it)*4
    SX, SY, SZ = 80, 112, 144
    ACC = 176
    TMP = 240
    XS = 0
    accr = lambda t: ACC + 16*t
    acci = lambda t: ACC + 32 + 16*t
    TW1, TW2, CC, RC = 0, 16384, 32768, 32768 + 18*1024
    sYT, sZT, sWT, sX, sXY = 8, 12, 16, 20, 44
    sWS = 24; sDbg = 26; sWave = 40; sCol, sRe, sIm, sWo = 30, 31, 32, 34
    sRe2, sIm2 = 36, 37
    sT = 48
    FU = opts.get("fused")
    LF = " sc1" if FU else ""
    stamp(A, opts, 0)
    if not FU:
        A(f"s_load_dwordx4 {s(sT,4)}, s[0:1], 64")
        A("v_lshrrev_b32 v2, 6, v0")
        A(f"v_and_b32 {v(vL)}, 63, v0")
        A("s_nop 0")
        A(f"v_readfirstlane_b32 {s(sWave)}, v2")
        A("s_nop 3")
    A(f"s_lshl_b32 {s(sCol)}, {s(sFid)}, 3")
    A(f"s_add_u32 {s(sCol)}, {s(sCol)}, {s(sWave)}")
    col_params(A, sCol, sRe, sIm, sWo, 38)
    A(f"v_lshlrev_b32 {v(vOff)}, 4, {v(vL)}")
    if not FU:
        A("s_waitcnt lgkmcnt(0)")
        A(f"s_mov_b64 {s(sDbg,2)}, {s(sT,2)}")
        A(f"s_mov_b64 {s(sWS,2)}, {s(sT+2,2)}")
    make_srd(A, sYT, sWS, sWS+1, 4<<20, add=WS_YT)
    make_srd(A, sWT, sWS, sWS+1, 513*WP, add=WS_WT)
    PST = 65536
    vPd, vPr = 252, 253
    def dma_P(rnd):
        for i in range(8):
            A(f"s_add_u32 m0, {s(sM0)}, {i*1024}")
            A(f"s_add_u32 {s(sT)}, {s(sPb)}, {i*4*16384 + rnd*8192}")
            A(f"buffer_load_dwordx4 {v(vPdi[i%4])}, {s(sYT,4)}, {s(sT)} offen{LF} lds")
    def read_P():
        for c in range(2):
            for q in range(4):
                A(f"ds_read_b128 {v(SX + c*16 + q*4, 4)}, {v(vPrd[c])} offset:{q*16384}")
    def load_W():
        for q in range(8):
            A(f"buffer_load_dwordx4 {v(SZ+4*q,4)}, {v(vOff)}, {s(sWT,4)}, {s(sWo + (q//4))} offen offset:{(q%4)*1024}{LF}")
    sM0, sPb = 41, 43
    vPdi = [SY, SY+1, SY+2, SY+3]
    vPrd = [3, 0]
    def calc_pd():
        A(f"v_lshrrev_b32 {v(SY+4)}, 4, {v(vL)}")
        A(f"v_and_b32 {v(SY+5)}, 15, {v(vL)}")
        A(f"v_xor_b32 {v(SY+5)}, {v(SY+5)}, {v(SY+4)}")
        A(f"v_lshlrev_b32 {v(SY+5)}, 4, {v(SY+5)}")
        A(f"v_lshl_add_u32 {v(vPdi[0])}, {v(SY+4)}, 14, {v(SY+5)}")
        for i in range(1, 4): A(f"v_xor_b32 {v(vPdi[i])}, {i*64}, {v(vPdi[0])}")
    calc_pd()
    A(f"s_lshl_b32 {s(sM0)}, {s(sWave)}, 13")
    A(f"s_add_u32 {s(sM0)}, {s(sM0)}, {PST}")
    A(f"s_lshl_b32 {s(sPb)}, {s(sWave)}, 19")
    A(f"s_lshl_b32 {s(sT)}, {s(sFid)}, 8")
    A(f"s_add_u32 {s(sPb)}, {s(sPb)}, {s(sT)}")
    if not FU:
        dma_P(0)
        load_W()
    A(f"s_lshl_b32 {s(sT)}, {s(sWave)}, 1")
    A(f"v_and_b32 v4, 15, {v(vL)}")
    A(f"v_xor_b32 v4, {s(sT)}, v4")
    A(f"v_lshlrev_b32 v4, 4, v4")
    A(f"v_lshl_add_u32 v4, {v(vL)}, 8, v4")
    A(f"v_add_u32 v3, {PST}, v4")
    A(f"v_xor_b32 v0, 16, v3")
    npf = 0
    if not opts.get("nopf"):
        PFK = opts.get("pfk", 256)
        make_srd(A, 92, 84, 85, 1024*3584*2)
        make_srd(A, 96, 86, 87, 1024*3584*2)
        make_srd(A, 88, 6, 7, 1024*3584*2)
        A(f"v_lshlrev_b32 v4, 7, v0")
        A(f"s_lshl_b32 {s(sT)}, {s(sFid)}, 16")
        A(f"s_add_u32 {s(sT+1)}, {s(sT)}, {PFK*7168}")
        nit = -(-(1024-PFK)*7168 // (32 << 16))
        for i in range(nit):
            A(f"buffer_load_dword v3, v4, s[92:95], {s(sT+1)} offen")
            A(f"buffer_load_dword v3, v4, s[96:99], {s(sT+1)} offen")
            A(f"s_add_u32 {s(sT+1)}, {s(sT+1)}, {32<<16}")
            npf += 2
    make_srd(A, sZT, sWS, sWS+1, 1024*YP, add=WS_ZT)
    make_srd(A, sXY, sWS, sWS+1, 4 << 20, add=WS_XY)
    W = ACC
    vI, vH4, vI2, vH42, vN2, vH4n = TMP, TMP+1, TMP+2, TMP+3, TMP+4, TMP+5
    t0, t1, t2 = TMP+6, TMP+7, TMP+8
    A(f"v_and_b32 {v(vI)}, 31, {v(vL)}")
    A(f"v_lshrrev_b32 {v(t0)}, 5, {v(vL)}")
    A(f"v_lshlrev_b32 {v(t0)}, 2, {v(t0)}")
    A(f"v_mul_u32_u24 {v(vH4)}, {v(t0)}, {v(vI)}")
    A(f"v_add_u32 {v(vI2)}, 32, {v(vI)}")
    A(f"v_mul_u32_u24 {v(vH42)}, {v(t0)}, {v(vI2)}")
    A(f"v_bfe_u32 {v(t1)}, {v(vL)}, 2, 1")
    A(f"v_lshlrev_b32 {v(t1)}, 4, {v(t1)}")
    A(f"v_bfe_u32 {v(t2)}, {v(vL)}, 3, 2")
    A(f"v_lshl_add_u32 {v(t1)}, {v(t2)}, 2, {v(t1)}")
    A(f"v_and_b32 {v(t2)}, 3, {v(vL)}")
    A(f"v_add_u32 {v(vN2)}, {v(t1)}, {v(t2)}")
    A(f"v_mul_u32_u24 {v(vH4n)}, {v(t0)}, {v(vN2)}")
    img = lambda reg: CC + ((reg - 8)//4)*1024
    def rimg(reg):
        if reg < 80: return RC + ((reg - 64)//4)*1024
        if reg < 88: return img(C32 + reg - 80)
        if reg < 96: return img(N32 + reg - 88)
        return RC + (4 + (reg - 96)//4)*1024
    jobs = []
    for u in range(2):
        jobs.append((60, lambda u=u: job_trig(A, PI(u), vI, vH4, 32, W, vOff, [('c', img(C32+4*u)), ('s', img(S32+4*u)), ('n', img(N32+4*u)), ('c', rimg(80+4*u))][:3] + [])))
    for par in range(2):
        for it in range(2):
            jobs.append((60, lambda par=par, it=it: job_trig(A, EO(it, par), vI, vH4, 64, W, vOff, [(k, img(k64(par, k, it))) for k in 'csn'])))
    for t in range(2):
        for half in range(2):
            jobs.append((52, lambda t=t, half=half: job_tw(A, DR(half, 32*t), vI, vH4, 2048, W, vOff, TW1 + t*8192 + half*2048, TW1 + t*8192 + 4096 + half*2048, sign=-1.0)))
            jobs.append((68, lambda t=t, half=half: job_tw(A, DR(half), vI if t == 0 else vI2, vH4 if t == 0 else vH42, 2048, W, vOff, TW2 + t*8192 + half*2048, TW2 + t*8192 + 4096 + half*2048, scale=2.0**-20)))
    jobs.append((64, lambda: job_trig(A, PI(0), vN2, vH4n, 32, W, vOff, [('c', rimg(64)), ('n', rimg(68)), ('s', rimg(72)), ('c', rimg(76))])))
    for half in range(2):
        jobs.append((52, lambda half=half: job_tw(A, DR(half), vN2, vH4n, 1024, W, vOff, rimg(96) + half*2048, rimg(112) + half*2048)))
    run_jobs(A, jobs, sWave, 8)
    fs = dict(stamp=opts.get("stamp") and opts.get("fine"))
    stamp(A, fs, 4)
    if FU:
        f2 = A.newlabel("ff2")
        A(f"s_cmp_lg_u32 {s(sWave)}, 0")
        A(f"s_cbranch_scc1 {f2}")
        get_tag(A, sDbg, 90, 4)
        A(f"v_lshlrev_b32 v4, 3, {v(vL)}")
        A(f"v_add_u32 v4, 2048, v4")
        poll_flags(A, 88, 4, 4, 90, SX, 92)
        A.label(f2)
        A("s_waitcnt lgkmcnt(0)")
        A("s_barrier")
        dma_P(0)
        load_W()
    A("s_waitcnt vmcnt(8) lgkmcnt(0)")
    A("s_barrier")
    read_P()
    for g in range(18):
        A(f"ds_read_b128 {v(8+4*g,4)}, {v(vOff)} offset:{CC + g*1024}")
    A("s_waitcnt lgkmcnt(0)")
    A("s_barrier")
    dma_P(1)
    def zero_im():
        z = A.newlabel("zim")
        A(f"s_and_b32 {s(sT)}, {s(sCol)}, 511")
        A(f"s_cmp_lg_u32 {s(sT)}, 0")
        A(f"s_cbranch_scc1 {z}")
        for r in range(16): A(f"v_mov_b32 {v(SX+16+r)}, 0")
        A.label(z)
    zero_im()
    XS = TMP + 16 - 16
    Pr = lambda it, u: SX + (it*2+u)*4
    Pi = lambda it, u: SX + 16 + (it*2+u)*4
    Zr = lambda it, u: SZ + (it*2+u)*4
    Zi = lambda it, u: SZ + 16 + (it*2+u)*4
    Yo = lambda c, par, it: SY + ((c*2 + par)*2 + it)*4

    def tw_load(table, g):
        t, q = g >> 2, g & 3
        o = TMP + 8*(g & 1)
        A(f"ds_read_b128 {v(o,4)}, {v(vOff)} offset:{table + t*8192 + q*1024}")
        A(f"ds_read_b128 {v(o+4,4)}, {v(vOff)} offset:{table + t*8192 + (4+q)*1024}")
    def cmul4(g, eo):
        t, q = g >> 2, g & 3
        ar = accr(t) + 4*q; ai = acci(t) + 4*q; c = TMP + 8*(g & 1); sn = c + 4
        pk2(A, "mul", 4, 4, ar, c)
        pk2(A, "mul", 4, ar, ar, sn)
        pk2(A, "fma", 4, 4, ai, sn, 4, neg=[0])
        pk2(A, "fma", 4, ai, ai, c, ar)
        if eo:
            A(f"v_cvt_pk_bf16_f32 {v(Yo(0,0,t)+q)}, v4, v6")
            A(f"v_cvt_pk_bf16_f32 {v(Yo(0,1,t)+q)}, v5, v7")
            A(f"v_cvt_pk_bf16_f32 {v(Yo(1,0,t)+q)}, {v(ai)}, {v(ai+2)}")
            A(f"v_cvt_pk_bf16_f32 {v(Yo(1,1,t)+q)}, {v(ai+1)}, {v(ai+3)}")
        else:
            for p in range(2):
                A(f"v_cvt_pk_bf16_f32 {v(Zr(t,0)+2*q+p)}, {v(4+2*p)}, {v(5+2*p)}")
            for p in range(2):
                A(f"v_cvt_pk_bf16_f32 {v(Zi(t,0)+2*q+p)}, {v(ai+2*p)}, {v(ai+2*p+1)}")
    def tw_phase(table, eo):
        for g in range(8):
            A(f"s_waitcnt lgkmcnt({2 if g < 7 else 0})")
            cmul4(g, eo)
            if g+2 < 8: tw_load(table, g+2)
    def bfly():
        for c in range(2):
            e = ACC + 32*c; o = e + 16
            pk2(A, "add", 16, e, e, o)
            for r in range(16): A(f"v_fma_f32 {v(o+r)}, {v(o+r)}, -2.0, {v(e+r)}")
    A("s_mov_b32 s54, -2.0")
    A("s_mov_b32 s55, -2.0")
    lp = A.newlabel("col_loop"); cend = A.newlabel("col_end"); nopre = A.newlabel("col_nopre"); now = A.newlabel("col_now")
    A("s_nop 1")
    A.label(lp)
    stamp(A, fs, 5)
    tw_load(TW1, 0); tw_load(TW1, 1)
    for it in range(2):
        for u in range(2):
            c = "0" if u == 0 else v(accr(it),16)
            A(f"{MF} {v(accr(it),16)}, {v(Pr(it,u),4)}, {v(C32+4*u,4)}, {c}")
            c = "0" if u == 0 else v(acci(it),16)
            A(f"{MF} {v(acci(it),16)}, {v(Pi(it,u),4)}, {v(C32+4*u,4)}, {c}")
        for u in range(2):
            A(f"{MF} {v(accr(it),16)}, {v(Pi(it,u),4)}, {v(S32+4*u,4)}, {v(accr(it),16)}")
            A(f"{MF} {v(acci(it),16)}, {v(Pr(it,u),4)}, {v(N32+4*u,4)}, {v(acci(it),16)}")
    A(f"s_mov_b32 {s(sRe2)}, {s(sRe)}")
    A(f"s_mov_b32 {s(sIm2)}, {s(sIm)}")
    A(f"s_add_u32 {s(sCol)}, {s(sCol)}, {NF*8}")
    col_params(A, sCol, sRe, sIm, 38, 0)
    tw_phase(TW1, True)
    A("s_nop 1")
    def stage64(fwd):
        for par in range(2):
            for it in range(2):
                for c in range(2):
                    d = (accr if c == 0 else acci)(par)
                    cc = "0" if it == 0 else v(d,16)
                    x, y = v(k64(par,'c',it),4), v(Yo(c,par,it),4)
                    A(f"{MF} {v(d,16)}, {x}, {y}, {cc}" if fwd else f"{MF} {v(d,16)}, {y}, {x}, {cc}")
            for it in range(2):
                for c in range(2):
                    d = (accr if c == 0 else acci)(par)
                    kind = ('s' if c == 0 else 'n') if fwd else ('n' if c == 0 else 's')
                    x, y = v(k64(par,kind,it),4), v(Yo(1-c,par,it),4)
                    A(f"{MF} {v(d,16)}, {x}, {y}, {v(d,16)}" if fwd else f"{MF} {v(d,16)}, {y}, {x}, {v(d,16)}")
    stamp(A, fs, 6)
    stage64(True)
    A("s_waitcnt vmcnt(0)")
    nb = A.newlabel("col_nb")
    A(f"s_cmp_ge_u32 {s(sCol)}, 512")
    A(f"s_cbranch_scc1 {nb}")
    A("s_barrier")
    read_P()
    A.label(nb)
    def wunpack(g):
        t, q = g >> 2, g & 3
        wr = Zr(t,0) + 2*q; wi = Zi(t,0) + 2*q; o = TMP + 8*(g & 1)
        for p in range(2):
            A(f"v_lshlrev_b32 {v(o+2*p)}, 16, {v(wr+p)}")
            A(f"v_and_b32 {v(o+2*p+1)}, 0xffff0000, {v(wr+p)}")
            A(f"v_lshlrev_b32 {v(o+4+2*p)}, 16, {v(wi+p)}")
            A(f"v_and_b32 {v(o+4+2*p+1)}, 0xffff0000, {v(wi+p)}")
    wunpack(0); wunpack(1)
    bfly()
    for g in range(8):
        cmul4(g, True)
        if g+2 < 8: wunpack(g+2)
    tw_load(TW2, 0); tw_load(TW2, 1)
    stamp(A, fs, 7)
    stage64(False)
    A("s_nop 7"); A("s_nop 3")
    bfly()
    tw_phase(TW2, False)
    A("s_nop 1")
    stamp(A, fs, 8)
    for jt in range(2):
        for u in range(2):
            c = "0" if u == 0 else v(accr(jt),16)
            A(f"{MF} {v(accr(jt),16)}, {v(C32+4*u,4)}, {v(Zr(jt,u),4)}, {c}")
            c = "0" if u == 0 else v(acci(jt),16)
            A(f"{MF} {v(acci(jt),16)}, {v(C32+4*u,4)}, {v(Zi(jt,u),4)}, {c}")
        for u in range(2):
            A(f"{MF} {v(accr(jt),16)}, {v(N32+4*u,4)}, {v(Zi(jt,u),4)}, {v(accr(jt),16)}")
            A(f"{MF} {v(acci(jt),16)}, {v(S32+4*u,4)}, {v(Zr(jt,u),4)}, {v(acci(jt),16)}")
    A(f"s_mov_b32 {s(sWo)}, s38")
    A(f"s_mov_b32 {s(sWo+1)}, s39")
    load_W()
    for jt in range(2):
        if jt == 1: A("s_nop 3")
        for c in range(2):
            base = (accr(jt) if c == 0 else acci(jt))
            for p in range(8):
                A(f"v_cvt_pk_bf16_f32 {v(SY + c*16 + jt*8 + p)}, {v(base+2*p)}, {v(base+2*p+1)}")
    for c, so in enumerate((sRe2, sIm2)):
        for q in range(4):
            A(f"buffer_store_dwordx4 {v(SY + c*16 + q*4, 4)}, {v(vOff)}, {s(sZT,4)}, {s(so)} offen offset:{q*1024} sc1")
    A(f"s_cmp_ge_u32 {s(sCol)}, 512")
    A(f"s_cbranch_scc1 {cend}")
    A(f"s_branch {lp}")
    A.label(cend)
    A("s_waitcnt vmcnt(0)")
    ny_done = A.newlabel("ny_done"); norm = A.newlabel("col_norm")
    A(f"s_cmp_eq_u32 {s(sCol)}, 768")
    A(f"s_cbranch_scc1 {ny_done}")
    stamp(A, opts, 1)
    dbg_mark(A, opts, 7, 4)
    A("s_barrier")
    A(f"s_cmp_lg_u32 {s(sCol)}, 512")
    A(f"s_cbranch_scc1 {norm}")
    A(f"v_lshlrev_b32 v4, 14, {v(vL)}")
    for q in range(4):
        A(f"s_mov_b32 {s(sT)}, {q*64*16384 + 16}")
        A(f"buffer_load_dwordx4 {v(SX+q*4,4)}, v4, {s(sYT,4)}, {s(sT)} offen{LF}")
    zero_im()
    A("s_waitcnt vmcnt(0)")
    A(f"s_branch {lp}")
    A.label(ny_done)
    A("v_mov_b32 v4, 128")
    A("v_mov_b32 v5, 1")
    A("s_mov_b64 exec, 1")
    A(f"global_store_dword v4, v5, {s(sDbg,2)} sc1")
    A("s_mov_b64 exec, -1")
    A.label(norm)
    A(f"s_lshl_b32 {s(sT)}, {s(sWave)}, 6")
    A(f"v_add_u32 v0, {s(sT)}, {v(vL)}")
    for g in range(16):
        A(f"ds_read_b128 {v(64+4*g,4)}, {v(vOff)} offset:{rimg(64+4*g)}")
    sk = A.newlabel("fft_sig"); pl = A.newlabel("fft_poll")
    A(f"s_cmp_lg_u32 {s(sWave)}, 4")
    A(f"s_cbranch_scc1 {sk}")
    A("v_mov_b32 v4, 0")
    A("v_mov_b32 v5, 1")
    A("s_mov_b64 exec, 1")
    A(f"global_atomic_add v4, v5, {s(sDbg,2)} sc1")
    A.label(pl)
    A("s_sleep 2")
    A(f"global_load_dword v6, v4, {s(sDbg,2)} sc1")
    A("s_waitcnt vmcnt(0)")
    A(f"v_readfirstlane_b32 {s(sT)}, v6")
    A("s_nop 3")
    A(f"s_cmp_lt_u32 {s(sT)}, {NF}")
    A(f"s_cbranch_scc1 {pl}")
    A("s_mov_b64 exec, -1")
    A.label(sk)
    B1R, B1I, B2C, B2N, TWC, TWS = 64, 72, 80, 88, 96, 112
    A("v_lshrrev_b32 v4, 3, v0")
    A(f"v_mul_u32_u24 v5, {2*YP}, v4")
    A("v_and_b32 v6, 7, v0")
    A("v_lshlrev_b32 v7, 4, v6")
    A(f"s_lshl_b32 {s(sT)}, {s(sFid)}, 7")
    A(f"v_add3_u32 v5, v5, v7, {s(sT)}")
    A("v_lshrrev_b32 v7, 1, v4")
    A("v_xor_b32 v7, v7, v6")
    A("v_and_b32 v7, 7, v7")
    A("v_lshlrev_b32 v7, 4, v7")
    A("v_lshl_add_u32 v7, v4, 7, v7")
    A("v_add_u32 v6, 0x10000, v7")
    vXo, vRd, vRd2, vNy = 8, 9, 10, 11
    T0, T1, T2 = 12, 13, 14
    A(f"v_and_b32 {v(T0)}, 31, {v(vL)}")
    A(f"v_lshlrev_b32 {v(T1)}, 6, {v(T0)}")
    A(f"v_and_b32 {v(T2)}, 32, {v(vL)}")
    A(f"v_add_u32 {v(vXo)}, {v(T1)}, {v(T2)}")
    A(f"v_lshlrev_b32 {v(T2)}, 9, {v(T2)}")
    A(f"v_lshl_add_u32 {v(T2)}, {v(T0)}, 7, {v(T2)}")
    A(f"v_bfe_u32 {v(T1)}, {v(vL)}, 1, 3")
    A(f"v_xor_b32 {v(T1)}, {s(sWave)}, {v(T1)}")
    A(f"v_lshl_add_u32 {v(vRd)}, {v(T1)}, 4, {v(T2)}")
    A(f"v_add_u32 {v(vRd2)}, 0x10000, {v(vRd)}")
    A(f"s_lshl_b32 {s(sT)}, {s(sWave)}, 4")
    A(f"s_add_u32 {s(sT)}, {s(sT)}, 0x10000")
    A(f"v_mov_b32 {v(vNy)}, {s(sT)}")
    sChunk, sS0, sZ = 30, 31, 32
    A(f"s_lshl_b32 {s(sChunk)}, {s(sFid)}, 3")
    A(f"s_add_u32 {s(sChunk)}, {s(sChunk)}, {s(sWave)}")
    A(f"s_mov_b32 {s(sZ)}, 0")
    chunk_rows(A, sChunk, sZ, sS0, sT)
    A(f"s_lshl_b32 {s(sS0)}, {s(sS0)}, 11")
    for e in range(8):
        A(f"s_add_u32 {s(ROFF[e])}, {s(sS0)}, {(8*(e>>2) + (e&3))*64*2048}")
    XR = [[16, 24], [32, 40]]
    def xload(p):
        for rw in range(2):
            A(f"buffer_load_dwordx4 {v(XR[p%2][rw],4)}, {v(vXo)}, {s(sX,4)}, {s(ROFF[2*p+rw])} offen")
            A(f"buffer_load_dwordx4 {v(XR[p%2][rw]+4,4)}, {v(vXo)}, {s(sX,4)}, {s(ROFF[2*p+rw])} offen offset:16")
    A("s_waitcnt lgkmcnt(0)")
    A("s_barrier")
    stamp(A, opts, 2)
    for i in range(16):
        A(f"s_mov_b32 {s(sT)}, {(i&7)*64*2*YP + (i>>3)*YP}")
        A(f"buffer_load_dwordx4 {v(128+4*i,4)}, v5, {s(sZT,4)}, {s(sT)} offen sc1")
    ex = 0
    for i in range(16):
        A(f"s_waitcnt vmcnt({15-i+ex})")
        if i == 8:
            A("v_cmp_le_u32 vcc, 8, v0")
            A("s_nop 1")
            for r in range(4): A(f"v_cndmask_b32 {v(128+4*i+r)}, 0, {v(128+4*i+r)}, vcc")
        A(f"ds_write_b128 {'v7' if i < 8 else 'v6'}, {v(128+4*i,4)} offset:{(i&7)*8192}")
    sk2 = A.newlabel("fft_sig2"); pl2 = A.newlabel("fft_poll2")
    A(f"s_cmp_lg_u32 {s(sWave)}, 4")
    A(f"s_cbranch_scc1 {sk2}")
    A("v_mov_b32 v4, 128")
    A.label(pl2)
    A(f"global_load_dword v3, v4, {s(sDbg,2)} sc1")
    A("s_waitcnt vmcnt(0)")
    A(f"v_readfirstlane_b32 {s(sT)}, v3")
    A("s_nop 3")
    A(f"s_cmp_eq_u32 {s(sT)}, 0")
    A(f"s_cbranch_scc1 {pl2}")
    A.label(sk2)
    A(f"s_mov_b32 {s(sT+3)}, 0x05040100")
    A(f"s_mov_b32 {s(sT+4)}, 0x07060302")
    A("s_waitcnt lgkmcnt(0)")
    A("s_barrier")
    A(f"s_lshl_b32 {s(sT)}, {s(sChunk)}, 4")
    A(f"s_add_u32 {s(sT)}, {s(sT)}, {YP}")
    A(f"v_mov_b32 {v(vNy)}, {s(sT)}")
    A(f"buffer_load_dwordx4 v[16:19], {v(vNy)}, {s(sZT,4)}, 0 offen sc1")
    RD = 224
    OP = [48, 56]
    TR = [128, 160]; TI = [144, 176]; UR = [192, 208]; UI = [200, 216]; WK = 240
    OUT = [24, 32]
    def rdload(p):
        for r in range(16):
            c = r >> 3; k2 = 8*((r >> 2) & 1) + (r & 3)
            A(f"ds_read_b32 {v(RD+r)}, {v(vRd if c == 0 else vRd2)} offset:{k2*4096 + p*4}")
    stamp(A, fs, 9)
    rdload(0)
    for p in range(4):
        A("s_waitcnt lgkmcnt(0)")
        for q in range(8):
            A(f"v_perm_b32 {v(OP[0]+q)}, {v(RD+2*q+1)}, {v(RD+2*q)}, {s(sT+3)}")
            A(f"v_perm_b32 {v(OP[1]+q)}, {v(RD+2*q+1)}, {v(RD+2*q)}, {s(sT+4)}")
        A("s_nop 0")
        for rw in range(2):
            for u in range(2):
                c = "0" if u == 0 else v(TR[rw],16)
                A(f"{MF} {v(TR[rw],16)}, {v(OP[rw]+4*u,4)}, {v(B1R+4*u,4)}, {c}")
                c = "0" if u == 0 else v(TI[rw],16)
                A(f"{MF} {v(TI[rw],16)}, {v(OP[rw]+4*u,4)}, {v(B1I+4*u,4)}, {c}")
        if p < 3: rdload(p+1)
        else: A("s_nop 7")
        for rw in range(2):
            pk2(A, "mul", 16, WK, TR[rw], TWC)
            pk2(A, "mul", 16, TR[rw], TR[rw], TWS)
            pk2(A, "fma", 16, WK, TI[rw], TWS, WK, neg=[0])
            pk2(A, "fma", 16, TI[rw], TI[rw], TWC, TR[rw])
            for q in range(8):
                A(f"v_cvt_pk_bf16_f32 {v(UR[rw]+q)}, {v(WK+2*q)}, {v(WK+2*q+1)}")
            for q in range(8):
                A(f"v_cvt_pk_bf16_f32 {v(UI[rw]+q)}, {v(TI[rw]+2*q)}, {v(TI[rw]+2*q+1)}")
            Y = TR[rw]
            A(f"{MF} {v(Y,16)}, {v(UR[rw],4)}, {v(B2C,4)}, 0")
            A(f"{MF} {v(Y,16)}, {v(UR[rw]+4,4)}, {v(B2C+4,4)}, {v(Y,16)}")
            A(f"{MF} {v(Y,16)}, {v(UI[rw],4)}, {v(B2N,4)}, {v(Y,16)}")
            A(f"{MF} {v(Y,16)}, {v(UI[rw]+4,4)}, {v(B2N+4,4)}, {v(Y,16)}")
        if p == 0: A("s_waitcnt vmcnt(0)")
        A(f"v_lshlrev_b32 v4, 16, {v(16+p)}")
        A(f"v_and_b32 v5, 0xffff0000, {v(16+p)}")
        for rw in range(2):
            Y = TR[rw]
            for r in range(16):
                A(f"v_{'add' if r % 2 == 0 else 'sub'}_f32 {v(Y+r)}, {v(Y+r)}, {v(4+rw)}")
            for q in range(8):
                A(f"v_cvt_pk_bf16_f32 {v(OUT[rw]+q)}, {v(Y+2*q)}, {v(Y+2*q+1)}")
            A(f"buffer_store_dwordx4 {v(OUT[rw],4)}, {v(vXo)}, {s(sXY,4)}, {s(ROFF[2*p+rw])} offen")
            A(f"buffer_store_dwordx4 {v(OUT[rw]+4,4)}, {v(vXo)}, {s(sXY,4)}, {s(ROFF[2*p+rw])} offen offset:16")
    if opts.get("stamp"):
        A("s_waitcnt vmcnt(0)")
        stamp(A, opts, 3)
        stamp_store(A, opts, 10, sWS, 128, sWave)
    if not opts.get("nopf"):
        A(f"v_lshlrev_b32 v4, 7, v0")
        A(f"s_lshl_b32 {s(sT)}, {s(sFid)}, 16")
        for i in range(4):
            A(f"buffer_load_dword v3, v4, s[88:91], {s(sT)} offen")
            A(f"s_add_u32 {s(sT)}, {s(sT)}, {32<<16}")
    if opts.get("tldbg"): A("s_waitcnt vmcnt(0)")
    dbg_mark(A, opts, 8, 4)
    A(f"s_branch {done}")
```

```python
from asmlib import *
from layout import *
from dbgstamp import *
from sync import *
from gemm import stamp, stamp_store
from fft2 import job_trig, job_tw, run_jobs, PI, DR
from fftcommon import wave_allreduce_add2, round_bf16
import math
MF = "v_mfma_f32_16x16x32_bf16"
MF32 = "v_mfma_f32_32x32x16_bf16"

def gen_ka(A, name, opts):
    NS = 4; KS = 32; SLOT = 32768; XB = 16384
    FR = opts.get("freerun", 3)
    kernel_begin(A, name)
    sX, sW, sD, sH, sP = 8, 12, 16, 20, 44
    sWS = 24; sT = 26
    sWave, sWm, sWn = 30, 31, 32
    sM0x, sM0w, sKx, sKw = 33, 34, 35, 36
    sMt, sNt, sLoop, sPf = 37, 38, 39, 40
    sDbg, sTag, sFb = 48, 50, 52
    sIdx, sXcd = 54, 55
    sA, sB = 72, 76
    sS, sChunk, sN2, sU = 80, 81, 82, 83
    ACC = 0; R = [128, 176]
    acc = lambda i, j: ACC + (i*4+j)*4
    opX = lambda rs, i: R[rs] + i*4
    opW = lambda rs, j: R[rs] + 32 + j*4
    nsg = 2
    b = 224
    vDw = [b, b+1, b+2, b+3]; vDx = b+4; vL = 1
    vXa = [b+6+g for g in range(nsg)]
    vWa = [[b+9+g for g in range(nsg)], [b+12+g for g in range(nsg)]]
    t0, t1, t2, t3 = b+15, b+16, b+17, b+18
    vSt = b+19; vK = b+20
    vLL = b+5
    done = A.newlabel("ka_done"); fftl = A.newlabel("ka_fft"); pfl = A.newlabel("ka_pf"); epi = A.newlabel("ka_epi")
    A("s_load_dwordx2 s[94:95], s[0:1], 0")
    A(f"s_load_dwordx4 {s(sDbg,4)}, s[0:1], 64")
    A(f"s_load_dwordx4 s[4:7], s[0:1], 32")
    A(f"s_load_dwordx4 s[88:91], s[0:1], 8")
    A(f"s_load_dwordx2 s[92:93], s[0:1], 48")
    A(f"s_cmp_ge_u32 s2, 256")
    A(f"s_cbranch_scc1 {done}")
    dbg_init(A, opts, 0); dbg_mark(A, opts, 0, 254, neg=True)
    stamp(A, dict(stamp=opts.get("stamp") or opts.get("stamp0")), 0)
    vOff = 2
    A(f"v_lshrrev_b32 v2, 6, v0")
    A(f"v_and_b32 {v(vL)}, 63, v0")
    A(f"s_and_b32 {s(sXcd)}, s2, 7")
    A(f"v_readfirstlane_b32 {s(sWave)}, v2")
    A(f"s_lshr_b32 {s(sIdx)}, s2, 3")
    A(f"v_lshlrev_b32 {v(vOff)}, 4, {v(vL)}")
    A(f"v_mov_b32 {v(vLL)}, {v(vL)}")
    A(f"s_lshl_b32 {s(sChunk)}, {s(sXcd)}, 5")
    A(f"s_add_u32 {s(sChunk)}, {s(sChunk)}, {s(sIdx)}")
    A(f"s_lshr_b32 {s(sT)}, {s(sXcd)}, 2")
    A(f"s_lshl_b32 {s(sT)}, {s(sT)}, 5")
    A(f"s_add_u32 {s(sN2)}, {s(sIdx)}, {s(sT)}")
    A(f"s_and_b32 {s(sT)}, {s(sXcd)}, 2")
    A(f"s_lshl_b32 {s(sT)}, {s(sT)}, 1")
    A(f"s_and_b32 {s(sT+1)}, {s(sXcd)}, 1")
    A(f"s_add_u32 {s(sU)}, {s(sT)}, {s(sT+1)}")
    A(f"s_lshr_b32 {s(sT)}, {s(sWave)}, 2")
    A(f"s_lshl_b32 {s(sT)}, {s(sT)}, 1")
    A(f"s_add_u32 {s(sT)}, {s(sT)}, {s(sU)}")
    A(f"s_lshl_b32 {s(sS)}, {s(sT)}, 8")
    A(f"s_and_b32 {s(sWn)}, {s(sWave)}, 3")
    A(f"s_lshl_b32 {s(sT)}, {s(sWn)}, 6")
    A(f"s_add_u32 {s(sS)}, {s(sS)}, {s(sT)}")
    A(f"s_add_u32 {s(sS)}, {s(sS)}, {s(sN2)}")
    A(f"s_lshl_b32 {s(sT)}, {s(sS)}, 11")
    A(f"s_and_b32 {s(sMt)}, {s(sXcd)}, 1")
    A(f"s_lshl_b32 {s(sMt)}, {s(sMt)}, 2")
    A(f"s_and_b32 {s(sT+2)}, {s(sIdx)}, 3")
    A(f"s_add_u32 {s(sMt)}, {s(sMt)}, {s(sT+2)}")
    A(f"s_lshr_b32 {s(sNt)}, {s(sXcd)}, 1")
    A(f"s_mul_i32 {s(sNt)}, {s(sNt)}, 7")
    A(f"s_lshr_b32 {s(sT+2)}, {s(sIdx)}, 2")
    A(f"s_add_u32 {s(sNt)}, {s(sNt)}, {s(sT+2)}")
    A("s_waitcnt lgkmcnt(0)")
    make_srd(A, sA, 94, 95, 2048*1024*2)
    RAW = 4
    A(f"buffer_load_dwordx4 {v(RAW,4)}, {v(vOff)}, {s(sA,4)}, {s(sT)} offen")
    A(f"buffer_load_dwordx4 {v(RAW+4,4)}, {v(vOff)}, {s(sA,4)}, {s(sT)} offen offset:1024")
    A(f"s_mov_b64 {s(sWS,2)}, s[50:51]")
    A(f"s_add_u32 {s(sFb)}, {s(sWS)}, {hex(WS_TAG)}")
    A(f"s_addc_u32 {s(sFb+1)}, {s(sWS+1)}, 0")
    nt_ = A.newlabel("ka_notag")
    A(f"s_lshl_b32 {s(sT)}, s2, 3")
    A(f"s_add_u32 {s(sT)}, {s(sT)}, {s(sWave)}")
    A(f"s_cmp_lg_u32 {s(sT)}, 7")
    A(f"s_cbranch_scc1 {nt_}")
    A(f"s_memrealtime {s(sTag,2)}")
    A("s_waitcnt lgkmcnt(0)")
    A(f"s_or_b32 {s(sTag+1)}, {s(sTag+1)}, 0x80000000")
    A(f"s_mov_b32 {s(sT)}, 64")
    set_flag(A, sDbg, sT, sTag, 12)
    A.label(nt_)
    WR = 128
    LWR, LWI, LCNT = 131072, 98304, 147456 + 128
    A(f"s_and_b32 {s(sT)}, s2, 63")
    A(f"s_lshl_b32 {s(sT)}, {s(sT)}, 3")
    A(f"s_add_u32 {s(sT)}, {s(sT)}, {s(sWave)}")
    A(f"s_bfe_u32 {s(sT+1)}, {s(sT)}, 0x20006")
    A(f"s_lshl_b32 {s(sT+1)}, {s(sT+1)}, 4")
    A(f"s_bfe_u32 {s(sT+2)}, {s(sT)}, 0x10005")
    A(f"s_lshl_b32 {s(sT+2)}, {s(sT+2)}, 2")
    A(f"s_add_u32 {s(sT+1)}, {s(sT+1)}, {s(sT+2)}")
    A(f"s_lshl_b32 {s(sT+1)}, {s(sT+1)}, 5")
    A(f"s_and_b32 {s(sT+2)}, {s(sT)}, 31")
    A(f"s_add_u32 {s(sT+1)}, {s(sT+1)}, {s(sT+2)}")
    A(f"s_mul_i32 {s(sT+1)}, {s(sT+1)}, 1026")
    A(f"s_lshr_b32 {s(sT+2)}, s2, 6")
    A(f"s_lshl_b32 {s(sT+2)}, {s(sT+2)}, 8")
    A(f"s_add_u32 {s(sT+2)}, {s(sT+2)}, {s(sT+1)}")
    A(f"s_add_u32 {s(sT+3)}, {s(sT+2)}, {32*8*1026}")
    A("s_bitcmp1_b32 s2, 5")
    A("s_cselect_b32 s88, s90, s88")
    A("s_cselect_b32 s89, s91, s89")
    make_srd(A, sB, 88, 89, 2048*513*2)
    A(f"v_lshrrev_b32 v192, 4, {v(vL)}")
    A(f"v_mul_u32_u24 v192, {32*1026}, v192")
    A(f"v_and_b32 v193, 15, {v(vL)}")
    A(f"v_lshl_add_u32 v192, v193, 4, v192")
    A(f"buffer_load_dwordx4 {v(WR,4)}, v192, {s(sB,4)}, {s(sT+2)} offen")
    A(f"buffer_load_dwordx4 {v(WR+4,4)}, v192, {s(sB,4)}, {s(sT+3)} offen")
    A(f"v_and_b32 v192, 3, {v(vL)}")
    A(f"v_bfe_u32 v193, {v(vL)}, 2, 1")
    A(f"v_lshl_add_u32 v192, v193, 3, v192")
    A(f"v_mul_u32_u24 v192, {32*1026}, v192")
    A(f"v_lshrrev_b32 v193, 3, {v(vL)}")
    A(f"v_lshlrev_b32 v193, 24, v193")
    A(f"v_add_u32 v192, v192, v193")
    A("s_cmp_ge_u32 s2, 192")
    A(f"s_cselect_b32 {s(sT+1)}, {s(sT+1)}, 0x40000000")
    A(f"buffer_load_ushort v194, v192, {s(sB,4)}, {s(sT+1)} offen offset:1024")
    A(f"s_bitcmp1_b32 {s(sWave)}, 1")
    A(f"s_cselect_b32 s4, s6, s4")
    A(f"s_cselect_b32 s5, s7, s5")
    make_srd(A, sW, 4, 5, 1024*3584*2)
    def dmaW(slot):
        o = [f"s_add_u32 m0, {s(sM0w)}, {hex(slot*SLOT)}", "s_nop 0"]
        for i in range(4): o.append(f"buffer_load_dwordx4 {v(vDw[i])}, {s(sW,4)}, {s(sKw)} offen offset:{1024*i} lds")
        o.append(f"s_add_u32 {s(sKw)}, {s(sKw)}, {32*7168}")
        return o
    def dmaX(slot):
        o = [f"s_add_u32 m0, {s(sM0x)}, {hex(slot*SLOT)}", "s_nop 0"]
        for i in range(4): o.append(f"buffer_load_dwordx4 {v(vDx)}, {s(sX,4)}, {s(sKx)} offen offset:{1024*i} sc1 lds")
        o.append(f"s_add_u32 {s(sKx)}, {s(sKx)}, {XB}")
        return o
    nd1 = A.newlabel("ka_nodma")
    A(f"v_lshrrev_b32 {v(t0)}, 4, {v(vL)}")
    A(f"v_and_b32 {v(t2)}, 15, {v(vL)}")
    A(f"v_lshlrev_b32 {v(t1)}, 1, {v(t0)}")
    A(f"v_xor_b32 {v(t2)}, {v(t2)}, {v(t1)}")
    A(f"v_mul_u32_u24 {v(t0)}, 7168, {v(t0)}")
    A(f"v_lshl_add_u32 {v(vDw[0])}, {v(t2)}, 4, {v(t0)}")
    A(f"v_xor_b32 {v(t1)}, 128, {v(vDw[0])}")
    for i in range(1, 4): A(f"v_add_u32 {v(vDw[i])}, {i*4*7168 - i*1024}, {v(t1 if i & 2 else vDw[0])}")
    A(f"s_and_b32 {s(sKw)}, {s(sWave)}, 1")
    A(f"s_mul_i32 {s(sKw)}, {s(sKw)}, {16*7168}")
    A(f"s_lshl_b32 {s(sT)}, {s(sNt)}, 8")
    A(f"s_add_u32 {s(sKw)}, {s(sKw)}, {s(sT)}")
    A(f"s_lshl_b32 {s(sM0x)}, {s(sWave)}, 12")
    A(f"s_add_u32 {s(sM0w)}, {s(sM0x)}, {XB}")
    EW = opts.get("EW", 2)
    sIsD = 84
    A(f"s_cmp_lt_u32 {s(sIdx)}, 28")
    A(f"s_cselect_b32 {s(sIsD)}, 1, 0")
    A(f"s_cmp_lt_u32 {s(sWave)}, 4")
    A(f"s_cselect_b32 {s(sIsD)}, {s(sIsD)}, 0")
    A(f"v_mov_b32 v40, {LCNT}")
    A(f"v_mov_b32 v41, 0")
    A(f"v_mov_b32 v42, 0")
    A(f"ds_write_b64 v40, v[41:42]") if False else None
    A("v_mov_b32 v42, 0"); A("v_mov_b32 v43, 0")
    A("ds_write_b64 v40, v[42:43]")
    LC, LS, LT = 0, 32768, 65536
    B1C, B1S, A2R, A2I, TWC, TWS = 64, 72, 80, 88, 96, 112
    img = lambda r: LC + ((r-64)//4)*1024
    vK1, vH4, vK2, vH4b, vPh = 12, 13, 14, 15, 16
    W = 64
    A(f"v_and_b32 {v(vK1)}, 31, {v(vL)}")
    A(f"v_lshrrev_b32 {v(vH4)}, 5, {v(vL)}")
    A(f"v_lshlrev_b32 {v(vH4)}, 2, {v(vH4)}")
    A(f"v_and_b32 {v(vK2)}, 15, {v(vL)}")
    A(f"v_mul_u32_u24 {v(vH4b)}, {v(vH4)}, {v(vK2)}")
    A(f"v_mul_u32_u24 {v(vH4)}, {v(vH4)}, {v(vK1)}")
    A(f"v_bfe_u32 {v(vPh)}, {v(vL)}, 4, 1")
    A(f"v_cvt_f32_u32 {v(vPh)}, {v(vPh)}")
    A(f"v_mul_f32 {v(vPh)}, {f32(0.25)}, {v(vPh)}")
    jobs = []
    for u in range(2):
        jobs.append((60, lambda u=u: job_trig(A, PI(u), vK1, vH4, 32, W, vOff, [('c', img(B1C+4*u)), ('n', img(B1S+4*u))])))
        jobs.append((60, lambda u=u: job_trig(A, PI(u), vK2, vH4b, 32, W, vOff, [('c', img(A2R+4*u)), ('s', img(A2I+4*u))], vPhase=vPh)))
        jobs.append((50, lambda u=u: job_tw(A, DR(u), vK1, vH4, 1024, W, vOff, img(TWC)+u*2048, img(TWS)+u*2048, sign=-1.0)))
    A(f"s_xor_b32 {s(sT+3)}, {s(sWave)}, 4")
    run_jobs(A, jobs, sT+3, 8)
    q0, q1, q2 = 17, 18, 19
    vLw, vLr, vTw, vDC = 21, 22, 23, 24
    A(f"s_lshl_b32 {s(sT)}, {s(sWave)}, 11")
    A(f"s_add_u32 {s(sT)}, {s(sT)}, {LS}")
    A(f"s_lshl_b32 {s(sT+1)}, {s(sWn)}, 6")
    A(f"v_xor_b32 {v(vLw)}, {s(sT+1)}, {v(vOff)}")
    A(f"v_add_u32 {v(vLw)}, {s(sT)}, {v(vLw)}")
    A(f"v_lshrrev_b32 {v(q0)}, 5, {v(vL)}")
    A(f"v_lshlrev_b32 {v(vTw)}, 11, {v(q0)}")
    A(f"v_lshlrev_b32 {v(q0)}, 8, {v(q0)}")
    A(f"v_bfe_u32 {v(q1)}, {v(vL)}, 2, 2")
    A(f"v_lshl_add_u32 {v(q0)}, {v(q1)}, 6, {v(q0)}")
    A(f"v_and_b32 {v(q1)}, 16, {v(vL)}")
    A(f"v_lshl_add_u32 {v(q0)}, {v(q1)}, 1, {v(q0)}")
    A(f"v_and_b32 {v(q2)}, 3, {v(vL)}")
    A(f"v_lshl_add_u32 {v(q0)}, {v(q2)}, 3, {v(q0)}")
    A(f"v_xor_b32 {v(q0)}, {s(sT+1)}, {v(q0)}")
    A(f"v_add_u32 {v(vLr)}, {s(sT)}, {v(q0)}")
    A(f"v_lshl_add_u32 {v(vTw)}, {v(vK1)}, 4, {v(vTw)}")
    A(f"s_lshl_b32 {s(sT)}, {s(sWave)}, 1")
    A(f"s_add_u32 {s(sT)}, {s(sT)}, {LT}")
    A(f"v_add_u32 {v(vTw)}, {s(sT)}, {v(vTw)}")
    A(f"v_cmp_eq_u32 s[96:97], 0, {v(vL)}")
    A(f"v_mov_b32 {v(vDC)}, 1.0")
    make_srd(A, sX, sWS, sWS+1, 2048*1024*2, add=WS_XN)
    A(f"v_cndmask_b32 {v(vDC)}, {v(vDC)}, 0.5, s[96:97]")
    F = 32; D = 48
    SUM, SQ, T1, T2, MB, RS = 25, 26, 27, 28, 29, 30
    wd = A.newlabel("ka_wd")
    A(f"s_cmp_eq_u32 {s(sIsD)}, 0")
    A(f"s_cbranch_scc1 {nd1}")
    for t in range(EW):
        for ins in dmaW(t): A(ins)
    A(f"s_waitcnt vmcnt({3+4*EW})")
    A(f"s_branch {wd}")
    A.label(nd1)
    A("s_waitcnt vmcnt(3)")
    A.label(wd)
    stamp(A, dict(stamp=opts.get("stamp0")), 1)
    dbg_mark(A, opts, 1, 254)
    for i in range(8):
        A(f"v_lshlrev_b32 {v(F+2*i)}, 16, {v(RAW+i)}")
        A(f"v_and_b32 {v(F+2*i+1)}, 0xffff0000, {v(RAW+i)}")
    A(f"v_readfirstlane_b32 {s(sT+3)}, {v(F)}")
    A("s_nop 1")
    for i in range(16): A(f"v_subrev_f32 {v(D+i)}, {s(sT+3)}, {v(F+i)}")
    A(f"v_add_f32 {v(SUM)}, {v(D)}, {v(D+1)}")
    A(f"v_mul_f32 {v(SQ)}, {v(D)}, {v(D)}")
    A(f"v_add_f32 {v(T1)}, {v(D+2)}, {v(D+3)}")
    A(f"v_mul_f32 {v(T2)}, {v(D+1)}, {v(D+1)}")
    for i in range(2, 16, 2):
        if i >= 4:
            A(f"v_add_f32 {v(SUM)}, {v(SUM)}, {v(D+i)}")
            A(f"v_add_f32 {v(T1)}, {v(T1)}, {v(D+i+1)}")
        A(f"v_fmac_f32 {v(SQ)}, {v(D+i)}, {v(D+i)}")
        A(f"v_fmac_f32 {v(T2)}, {v(D+i+1)}, {v(D+i+1)}")
    A(f"v_add_f32 {v(SUM)}, {v(SUM)}, {v(T1)}")
    A(f"v_add_f32 {v(SQ)}, {v(SQ)}, {v(T2)}")
    wave_allreduce_add2(A, [SUM, SQ], [T1, T2])
    A(f"v_mul_f32 {v(MB)}, {f32(1/1024)}, {v(SUM)}")
    A(f"v_mul_f32 {v(RS)}, {f32(1/1024)}, {v(SQ)}")
    A(f"v_fma_f32 {v(RS)}, -{v(MB)}, {v(MB)}, {v(RS)}")
    A(f"v_add_f32 {v(MB)}, {s(sT+3)}, {v(MB)}")
    A(f"v_max_f32 {v(RS)}, 0, {v(RS)}")
    round_bf16(A, RS)
    round_bf16(A, MB)
    A(f"v_add_f32 {v(RS)}, {f32(1e-5)}, {v(RS)}")
    round_bf16(A, RS)
    A(f"v_sqrt_f32 {v(RS)}, {v(RS)}")
    for i in range(16): A(f"v_sub_f32 {v(D+i)}, {v(F+i)}, {v(MB)}")
    round_bf16(A, RS)
    A(f"v_rcp_f32 {v(RS)}, {v(RS)}")
    for i in range(8): A(f"v_cvt_pk_bf16_f32 {v(RAW+i)}, {v(D+2*i)}, {v(D+2*i+1)}")
    for i in range(8):
        A(f"v_lshlrev_b32 {v(D+2*i)}, 16, {v(RAW+i)}")
        A(f"v_and_b32 {v(D+2*i+1)}, 0xffff0000, {v(RAW+i)}")
    for i in range(16): A(f"v_mul_f32 {v(D+i)}, {v(D+i)}, {v(RS)}")
    for i in range(8): A(f"v_cvt_pk_bf16_f32 {v(RAW+i)}, {v(D+2*i)}, {v(D+2*i+1)}")
    A(f"ds_write_b128 {v(vLw)}, {v(RAW,4)}")
    A(f"ds_write_b128 {v(vLw)}, {v(RAW+4,4)} offset:1024")
    A("s_waitcnt lgkmcnt(0)")
    A("s_barrier")
    dbg_mark(A, opts, 2, 254)
    CO = 196
    nco = A.newlabel("ka_nco")
    A(f"s_cmp_lt_u32 {s(sWave)}, 4")
    A(f"s_cbranch_scc1 {nco}")
    A("v_and_b32 v212, 255, v0")
    A("v_bfe_u32 v213, v0, 2, 2")
    A("v_lshrrev_b32 v214, 4, v212")
    A("v_xor_b32 v215, v214, v213")
    A("v_lshlrev_b32 v215, 6, v215")
    A("v_lshl_add_u32 v215, v213, 11, v215")
    A(f"s_and_b32 {s(sT)}, {s(sN2)}, 2")
    A("v_and_b32 v213, 3, v0")
    A(f"v_xor_b32 v213, {s(sT)}, v213")
    A("v_lshl_add_u32 v215, v213, 4, v215")
    for i in range(4):
        A(f"ds_read_b128 {v(CO+4*i,4)}, v215 offset:{LS + (i>>1)*8192 + (i&1)*1024}")
    A("v_and_b32 v213, 15, v0")
    A("v_lshlrev_b32 v213, 4, v213")
    A("v_lshl_add_u32 v213, v214, 14, v213")
    A(f"s_lshl_b32 {s(sT)}, {s(sU)}, 19")
    A(f"s_lshl_b32 {s(sT+1)}, {s(sN2)}, 8")
    A(f"s_add_u32 {s(sT)}, {s(sT)}, {s(sT+1)}")
    for i in range(4):
        A(f"s_add_u32 {s(sT+1)}, {s(sT)}, {(i>>1)*(2<<19) + (i&1)*16*16384}")
        A(f"s_waitcnt lgkmcnt({3-i})")
        A(f"buffer_store_dwordx4 {v(CO+4*i,4)}, v213, {s(sX,4)}, {s(sT+1)} offen sc1")
    def signal(cnt_off, calc):
        sk = A.newlabel("ka_sig")
        A(f"v_mov_b32 v40, {LCNT + cnt_off}")
        A("v_mov_b32 v41, 1")
        A("s_mov_b64 exec, 1")
        A("ds_add_rtn_u32 v42, v40, v41")
        A("s_mov_b64 exec, -1")
        A("s_waitcnt lgkmcnt(0)")
        A(f"v_readfirstlane_b32 {s(sT)}, v42")
        A("s_nop 3")
        A(f"s_cmp_lg_u32 {s(sT)}, 3")
        A(f"s_cbranch_scc1 {sk}")
        calc()
        set_flag(A, sFb, sT, sTag, 40)
        A.label(sk)
    def calc_xf():
        A(f"s_and_b32 {s(sT)}, {s(sXcd)}, 3")
        A(f"s_lshl_b32 {s(sT)}, {s(sT)}, 6")
        A(f"s_add_u32 {s(sT)}, {s(sT)}, {s(sN2)}")
        A(f"s_lshl_b32 {s(sT)}, {s(sT)}, 3")
    def calc_yf():
        A(f"s_lshl_b32 {s(sT)}, s2, 3")
        A(f"s_add_u32 {s(sT)}, {s(sT)}, 2048")
    def wpart():
        A(f"s_lshl_b32 {s(sT)}, {s(sWave)}, 11")
        A(f"s_add_u32 {s(sT)}, {s(sT)}, {LWR}")
        A(f"v_add_u32 v136, {s(sT)}, {v(vOff)}")
        A(f"ds_write_b128 v136, {v(WR,4)}")
        A(f"ds_write_b128 v136, {v(WR+4,4)} offset:1024")
        A(f"v_bfe_u32 v137, {v(vL)}, 2, 2")
        A(f"v_lshlrev_b32 v137, 8, v137")
        A(f"v_lshrrev_b32 v138, 4, {v(vL)}")
        A(f"v_lshl_add_u32 v137, v138, 5, v137")
        A(f"v_and_b32 v138, 3, {v(vL)}")
        A(f"v_lshl_add_u32 v137, v138, 3, v137")
        A(f"v_add_u32 v137, {s(sT)}, v137")
        A(f"v_and_b32 v138, 7, {v(vL)}")
        A(f"v_xor_b32 v138, {s(sWave)}, v138")
        A(f"v_lshlrev_b32 v138, 4, v138")
        A(f"v_lshl_add_u32 v138, {v(vL)}, 7, v138")
        A(f"v_add_u32 v138, {LWI}, v138")
        A(f"s_lshl_b32 {s(sT)}, {s(sWave)}, 4")
        A(f"s_add_u32 {s(sT)}, {s(sT)}, 147456")
        A(f"v_lshl_add_u32 v139, {v(vL)}, 1, {s(sT)}")
        A("s_waitcnt lgkmcnt(0)")
        for ps_ in range(2):
            for eh in range(2):
                A(f"ds_read_b64_tr_b16 {v(140+4*ps_+2*eh,2)}, v137 offset:{eh*1024 + ps_*128}")
        A("s_mov_b64 exec, 0xff")
        A("ds_write_b16 v139, v194")
        A("s_mov_b64 exec, -1")
        A("s_waitcnt lgkmcnt(1)")
        for ps_ in range(2):
            A(f"ds_write_b128 v138, {v(140+4*ps_,4)} offset:{ps_*8192}")
    A("s_waitcnt vmcnt(4)")
    wpart()
    get_tag(A, sDbg, sTag, 40)
    signal(0, calc_xf)
    A.label(nco)
    OP = 12
    for u in range(2):
        for e in range(2):
            A(f"ds_read_b64_tr_b16 {v(OP+4*u+2*e,2)}, {v(vLr)} offset:{(16*u+8*e)*64}")
    for g in range(16):
        A(f"ds_read_b128 {v(64+4*g,4)}, {v(vOff)} offset:{LC + g*1024}")
    TR, TI = 32, 48
    A("s_waitcnt lgkmcnt(12)")
    A(f"{MF32} {v(TR,16)}, {v(OP,4)}, {v(B1C,4)}, 0")
    A(f"{MF32} {v(TI,16)}, {v(OP,4)}, {v(B1S,4)}, 0")
    A(f"{MF32} {v(TR,16)}, {v(OP+4,4)}, {v(B1C+4,4)}, {v(TR,16)}")
    A(f"{MF32} {v(TI,16)}, {v(OP+4,4)}, {v(B1S+4,4)}, {v(TI,16)}")
    make_srd(A, sA, sWS, sWS+1, 4 << 20, add=WS_YT)
    A("s_waitcnt lgkmcnt(0)")
    A("s_nop 5")
    NY, NT = 27, 28
    WK = B1C
    A(f"v_sub_f32 {v(NY)}, {v(TR)}, {v(TR+1)}")
    A(f"v_sub_f32 {v(NT)}, {v(TR+2)}, {v(TR+3)}")
    for r in range(4, 16, 4):
        A(f"v_add_f32 {v(NY)}, {v(NY)}, {v(TR+r)}")
        A(f"v_add_f32 {v(NT)}, {v(NT)}, {v(TR+r+2)}")
        A(f"v_sub_f32 {v(NY)}, {v(NY)}, {v(TR+r+1)}")
        A(f"v_sub_f32 {v(NT)}, {v(NT)}, {v(TR+r+3)}")
    A(f"v_add_f32 {v(NY)}, {v(NY)}, {v(NT)}")
    A(f"v_mov_b32 {v(NT)}, {v(NY)}")
    def pk(op, d, *srcs, neg=None):
        m = ""
        if neg:
            bits = ",".join("1" if i in neg else "0" for i in range(len(srcs)))
            m = f" neg_lo:[{bits}] neg_hi:[{bits}]"
        A(f"v_pk_{op}_f32 {v(d,2)}, " + ", ".join(v(x,2) for x in srcs) + m)
    for r in range(0, 16, 2): pk("mul", WK+r, TR+r, TWC+r)
    for r in range(0, 16, 2): pk("mul", TR+r, TR+r, TWS+r)
    for r in range(0, 16, 2): pk("fma", WK+r, TI+r, TWS+r, WK+r, neg=[0])
    UR, UI = 4, 12
    for p in range(8): A(f"v_cvt_pk_bf16_f32 {v(UR+p)}, {v(WK+2*p)}, {v(WK+2*p+1)}")
    Y = WK
    for r in range(0, 16, 2): pk("fma", TR+r, TI+r, TWC+r, TR+r)
    A(f"{MF32} {v(Y,16)}, {v(A2R,4)}, {v(UR,4)}, 0")
    A(f"{MF32} {v(Y,16)}, {v(A2R+4,4)}, {v(UR+4,4)}, {v(Y,16)}")
    for p in range(8): A(f"v_cvt_pk_bf16_f32 {v(UI+p)}, {v(TR+2*p)}, {v(TR+2*p+1)}")
    A(f"v_permlane32_swap_b32 {v(NY)}, {v(NT)}")
    A("s_nop 0")
    A(f"{MF32} {v(Y,16)}, {v(A2I,4)}, {v(UI,4)}, {v(Y,16)}")
    A(f"{MF32} {v(Y,16)}, {v(A2I+4,4)}, {v(UI+4,4)}, {v(Y,16)}")
    A(f"v_add_f32 {v(NY)}, {v(NY)}, {v(NT)}")
    A(f"v_mul_f32 {v(NY)}, 0.5, {v(NY)}")
    A("s_nop 9")
    A(f"v_mul_f32 {v(Y)}, {v(Y)}, {v(vDC)}")
    A(f"v_cndmask_b32 {v(Y+8)}, {v(Y+8)}, {v(NY)}, s[96:97]")
    for p in range(8): A(f"v_cvt_pk_bf16_f32 {v(32+p)}, {v(Y+2*p)}, {v(Y+2*p+1)}")
    for r in range(16):
        c = r >> 3; k2 = 8*((r >> 2) & 1) + (r & 3)
        A(f"ds_write_b16{'_d16_hi' if r & 1 else ''} {v(vTw)}, {v(32+r//2)} offset:{(c*16+k2)*512}")
    ng = A.newlabel("ka_ng"); ng2 = A.newlabel("ka_ng2")
    A(f"s_cmp_ge_u32 {s(sWave)}, 4")
    A(f"s_cbranch_scc1 {ng}")
    A(f"s_cmp_eq_u32 {s(sIsD)}, 0")
    A(f"s_cbranch_scc1 {ng2}")
    A(f"s_waitcnt vmcnt({4*EW})")
    wpart()
    for t in range(EW, NS):
        for ins in dmaW(t): A(ins)
    A(f"s_branch {ng}")
    A.label(ng2)
    A("s_waitcnt vmcnt(0)")
    wpart()
    A.label(ng)
    A("s_waitcnt lgkmcnt(0)")
    A("s_barrier")
    stamp(A, dict(stamp=opts.get("stamp0")), 2)
    dbg_mark(A, opts, 10, 254)
    ny = A.newlabel("ka_ny")
    A(f"s_cmp_lt_u32 {s(sWave)}, 4")
    A(f"s_cbranch_scc1 {ny}")
    A("v_lshrrev_b32 v213, 1, v212")
    A("v_and_b32 v214, 1, v212")
    A("v_lshlrev_b32 v213, 4, v213")
    A("v_lshl_add_u32 v213, v214, 13, v213")
    A(f"v_add_u32 v213, {LT}, v213")
    for i in range(4): A(f"ds_read_b128 {v(CO+4*i,4)}, v213 offset:{i*2048}")
    A("v_lshlrev_b32 v214, 4, v212")
    A(f"s_lshl_b32 {s(sT)}, {s(sChunk)}, 14")
    for i in range(4):
        A(f"s_add_u32 {s(sT+1)}, {s(sT)}, {i*4096}")
        A(f"s_waitcnt lgkmcnt({3-i})")
        A(f"buffer_store_dwordx4 {v(CO+4*i,4)}, v214, {s(sA,4)}, {s(sT+1)} offen sc1")
    make_srd(A, sB, sWS, sWS+1, 513*WP, add=WS_WT)
    A("v_and_b32 v40, 7, v212")
    A("v_lshrrev_b32 v41, 3, v212")
    A("v_xor_b32 v42, v41, v40")
    A("v_and_b32 v42, 7, v42")
    A("v_lshlrev_b32 v42, 4, v42")
    A("v_lshl_add_u32 v42, v41, 7, v42")
    A(f"v_add_u32 v42, {LWI}, v42")
    for i in range(4): A(f"ds_read_b128 {v(128+4*i,4)}, v42 offset:{i*4096}")
    A(f"v_add_u32 v43, 147456, {v(vOff)}")
    A("ds_read_b128 v[144:147], v43")
    A(f"v_mul_u32_u24 v41, {WP}, v41")
    A("v_lshl_add_u32 v41, v40, 4, v41")
    A(f"s_and_b32 {s(sT)}, s2, 63")
    A(f"s_lshl_b32 {s(sT)}, {s(sT)}, 7")
    A(f"s_add_u32 {s(sT+2)}, {s(sT)}, {512*WP}")
    A(f"s_lshr_b32 {s(sT+1)}, s2, 6")
    A(f"s_mul_i32 {s(sT+1)}, {s(sT+1)}, {128*WP}")
    A(f"s_add_u32 {s(sT)}, {s(sT)}, {s(sT+1)}")
    for i in range(4):
        A(f"s_add_u32 {s(sT+1)}, {s(sT)}, {i*32*WP}")
        A(f"s_waitcnt lgkmcnt({4-i})")
        A(f"buffer_store_dwordx4 {v(128+4*i,4)}, v41, {s(sB,4)}, {s(sT+1)} offen sc1")
    A(f"s_cmp_eq_u32 {s(sWave)}, 4")
    A(f"s_cselect_b32 {s(sT+2)}, {s(sT+2)}, 0x40000000")
    A("s_cmp_ge_u32 s2, 192")
    A(f"s_cselect_b32 {s(sT+2)}, {s(sT+2)}, 0x40000000")
    A("s_waitcnt lgkmcnt(0)")
    A("s_mov_b64 exec, 0xff")
    A(f"buffer_store_dwordx4 v[144:147], {v(vOff)}, {s(sB,4)}, {s(sT+2)} offen sc1")
    A("s_mov_b64 exec, -1")
    A.label(ny)
    A(f"s_cmp_ge_u32 {s(sIdx)}, 28")
    A(f"s_cbranch_scc1 {fftl}")

    def common_setup():
        L = vLL
        A(f"s_lshr_b32 {s(sWm)}, {s(sWave)}, 2")
        A(f"v_and_b32 {v(t0)}, 15, {v(L)}")
        A(f"v_lshrrev_b32 {v(t1)}, 4, {v(L)}")
        A(f"v_lshrrev_b32 {v(t2)}, 2, {v(L)}")
        A(f"v_and_b32 {v(t3)}, 2, {v(t2)}")
        A(f"v_xor_b32 {v(t3)}, {v(t3)}, {v(t1)}")
        A(f"v_lshlrev_b32 {v(t3)}, 4, {v(t3)}")
        A(f"v_lshl_add_u32 {v(t3)}, {v(t0)}, 6, {v(t3)}")
        A(f"s_lshl_b32 {s(sT)}, {s(sWm)}, 13")
        A(f"v_add_u32 {v(vXa[0])}, {s(sT)}, {v(t3)}")
        for g in range(1, nsg): A(f"v_add_u32 {v(vXa[g])}, {hex(65536*g)}, {v(vXa[0])}")
        A(f"v_and_b32 {v(t2)}, 3, {v(t2)}")
        A(f"v_lshlrev_b32 {v(t3)}, 11, {v(t1)}")
        A(f"v_lshl_add_u32 {v(t3)}, {v(t2)}, 8, {v(t3)}")
        A(f"v_and_b32 {v(t1)}, 1, {v(t1)}")
        A(f"v_lshl_or_b32 {v(t2)}, {v(t1)}, 2, {v(t2)}")
        A(f"s_lshl_b32 {s(sT)}, {s(sWn)}, 1")
        A(f"v_xor_b32 {v(t2)}, {s(sT)}, {v(t2)}")
        A(f"v_lshl_add_u32 {v(t3)}, {v(t2)}, 5, {v(t3)}")
        A(f"v_and_b32 {v(t2)}, 3, {v(L)}")
        A(f"v_lshl_add_u32 {v(t3)}, {v(t2)}, 3, {v(t3)}")
        A(f"v_add_u32 {v(vWa[0][0])}, {XB}, {v(t3)}")
        A(f"v_xor_b32 {v(vWa[1][0])}, 32, {v(vWa[0][0])}")
        for jt in range(2):
            for g in range(1, nsg): A(f"v_add_u32 {v(vWa[jt][g])}, {hex(65536*g)}, {v(vWa[jt][0])}")
        A(f"v_lshrrev_b32 {v(t1)}, 5, {v(L)}")
        A(f"v_lshrrev_b32 {v(t2)}, 3, {v(L)}")
        A(f"v_and_b32 {v(t2)}, 2, {v(t2)}")
        A(f"v_or_b32 {v(t1)}, {v(t1)}, {v(t2)}")
        A(f"v_lshlrev_b32 {v(t1)}, 8, {v(t1)}")
        A(f"v_lshl_add_u32 {v(t1)}, {v(t0)}, 4, {v(t1)}")
        A(f"s_lshl_b32 {s(sT)}, {s(sMt)}, 1")
        A(f"s_add_u32 {s(sT)}, {s(sT)}, {s(sWm)}")
        A(f"s_mul_i32 {s(sT)}, {s(sT)}, 112")
        A(f"s_lshl_b32 {s(sT+1)}, {s(sNt)}, 2")
        A(f"s_add_u32 {s(sT)}, {s(sT)}, {s(sT+1)}")
        A(f"s_add_u32 {s(sT)}, {s(sT)}, {s(sWn)}")
        A(f"s_lshl_b32 {s(sT)}, {s(sT)}, 13")
        A(f"v_add_u32 {v(vSt)}, {s(sT)}, {v(t1)}")
        k0 = -2.0*math.log2(math.e)*math.sqrt(2.0/math.pi); k1 = k0*0.044715
        for i, c in enumerate((k0, k0, k1, k1, 1.0, 1.0)): A(f"v_mov_b32 {v(vK+i)}, {f32(c)}")
        make_srd(A, sH, sWS, sWS+1, 2048*3584*2, add=WS_H)
    common_setup()
    def reads(slot, rs):
        sg, so = divmod(slot*SLOT, 65536)
        X = [f"ds_read_b128 {v(opX(rs,i),4)}, {v(vXa[sg])} offset:{so + i*1024}" for i in range(8)]
        Wr = [f"ds_read_b64_tr_b16 {v(opW(rs,j)+2*e,2)}, {v(vWa[j%2][sg])} offset:{so + (j//2)*8192 + e*1024}" for j in range(4) for e in range(2)]
        return Wr + X
    def mfmas(rs, first):
        return [f"{MF} {v(acc(i,j),4)}, {v(opW(rs,j),4)}, {v(opX(rs,i),4)}, {'0' if first else v(acc(i,j),4)}" for i in range(8) for j in range(4)]
    def mainloop(isd, pf_init=(), pfs=()):
        A("s_barrier")
        stamp(A, opts, 1)
        if not isd: dbg_mark(A, opts, 4, 254)
        for ins in reads(0, 0): A(ins)
        for ins in pf_init: A(ins)
        def step(t, do_dma=True, vm=None, bar=True):
            slot = t % NS; rs = t % 2
            mf = mfmas(rs, t == 0); n = 32
            A(f"s_waitcnt vmcnt({vm}) lgkmcnt(0)" if (isd and bar) else "s_waitcnt lgkmcnt(0)")
            if bar: A("s_barrier")
            fl = []; sl = []
            if t+1 < KS:
                rd = reads((t+1) % NS, 1-rs)
                r0, r1 = opts.get("rspan", (0.0, 0.6))
                for q, ins in enumerate(rd): fl.append(ins); sl.append(int((r0 + (r1-r0)*q/len(rd))*n))
            dm = ((dmaW(slot) + dmaX(slot)) if do_dma else []) if isd else (pfs if t < KS-1 else [])
            d0, d1 = opts.get("dspan", (0.1, 0.9))
            for q, ins in enumerate(dm): fl.append(ins); sl.append(int((d0 + (d1-d0)*q/len(dm))*n))
            for ins in interleave(mf, fl, sl): A(ins)
        ndma = KS - NS
        step(0, vm=8); step(1, vm=4+8); step(2, vm=16)
        step(3, vm=16); step(4, vm=16)
        t = 5
        nl = (ndma - t)//NS
        lp = A.newlabel("loop")
        A(f"s_mov_b32 {s(sLoop)}, {nl}")
        A.label(lp)
        for j in range(NS): step(t+j, vm=16)
        A(f"s_sub_u32 {s(sLoop)}, {s(sLoop)}, 1")
        A(f"s_cmp_lg_u32 {s(sLoop)}, 0")
        A(f"s_cbranch_scc1 {lp}")
        t += nl*NS
        while t < KS:
            lastissued = min(t+NS-1, KS-1)
            vm = 8*max(0, lastissued-(t+1))
            if t == KS - FR: vm = 0
            step(t, do_dma=(t < ndma), vm=vm, bar=(t <= KS - FR and t < KS-1) or (FR == 0 and t < KS-1))
            t += 1
    A(f"s_cmp_ge_u32 {s(sWave)}, 4")
    A(f"s_cbranch_scc1 {pfl}")
    A(f"v_lshlrev_b32 {v(vDx)}, 4, {v(vLL)}")
    A(f"s_lshl_b32 {s(sKx)}, {s(sMt)}, 19")
    A(f"s_add_u32 {s(sKx)}, {s(sKx)}, {s(sM0x)}")
    npoll = A.newlabel("ka_np")
    A(f"s_cmp_lg_u32 {s(sWave)}, 0")
    A(f"s_cbranch_scc1 {npoll}")
    get_tag(A, sDbg, sTag, 40)
    A(f"s_lshr_b32 {s(sT)}, {s(sMt)}, 2")
    A(f"s_lshl_b32 {s(sT)}, {s(sT)}, 1")
    A(f"s_and_b32 {s(sT+1)}, {s(sMt)}, 1")
    A(f"s_add_u32 {s(sT)}, {s(sT)}, {s(sT+1)}")
    A(f"s_lshl_b32 {s(sT)}, {s(sT)}, 9")
    A(f"v_lshlrev_b32 v44, 3, {v(vLL)}")
    A(f"v_add_u32 v44, {s(sT)}, v44")
    poll_flags(A, sFb, 44, 1, sTag, 40, 96)
    A.label(npoll)
    A("s_barrier")
    stamp(A, dict(stamp=opts.get("stamp0")), 3)
    for t in range(NS):
        for ins in dmaX(t): A(ins)
    A(f"s_waitcnt vmcnt(12)")
    mainloop(True)
    A(f"s_branch {epi}")
    A.label(pfl)
    DL = opts.get("pfd", 8); P0 = 4
    vP, vP2, vD, vS = vDx, b+26, b+27, b+28
    A(f"s_lshl_b32 {s(sT)}, {s(sMt)}, 2")
    A(f"s_and_b32 {s(sT+1)}, {s(sWave)}, 1")
    A(f"s_lshl_b32 {s(sT+1)}, {s(sT+1)}, 1")
    A(f"s_add_u32 {s(sT)}, {s(sT)}, {s(sT+1)}")
    A(f"v_lshrrev_b32 {v(t0)}, 5, {v(vLL)}")
    A(f"v_add_u32 {v(vP)}, {s(sT)}, {v(t0)}")
    A(f"v_mul_u32_u24 {v(vP)}, 7168, {v(vP)}")
    A(f"v_and_b32 {v(t1)}, 16, {v(vLL)}")
    A(f"v_lshl_add_u32 {v(vP)}, {v(t1)}, 3, {v(vP)}")
    A(f"s_lshl_b32 {s(sKw)}, {s(sNt)}, 8")
    A(f"s_add_u32 {s(sKw)}, {s(sKw)}, {P0*32*7168}")
    A(f"s_mul_i32 {s(sT)}, {s(sMt)}, 28")
    A(f"s_add_u32 {s(sT)}, {s(sT)}, {s(sNt)}")
    A(f"s_lshl_b32 {s(sT)}, {s(sT)}, 2")
    A(f"s_add_u32 {s(sT)}, {s(sT)}, {s(sWn)}")
    A(f"s_lshl_b32 {s(sKx)}, {s(sT)}, 8")
    A(f"s_lshl_b32 {s(sPf)}, {s(sT)}, 10")
    A(f"v_lshlrev_b32 {v(vP2)}, 7, {v(t0)}")
    A(f"v_lshlrev_b32 {v(vS)}, 4, {v(vLL)}")
    for i in range(4): A(f"v_mov_b32 {v(vDw[i])}, -1")
    make_srd(A, sD, 92, 93, 1024*3584*2)
    make_srd(A, sP, sWS, sWS+1, 256*32768, add=WS_PART)
    pw = [f"buffer_load_dword {v(vD)}, {v(vP)}, {s(sW,4)}, {s(sKw)} offen", f"s_add_u32 {s(sKw)}, {s(sKw)}, {32*7168}"]
    pd = [f"buffer_load_dword {v(vD)}, {v(vP2)}, {s(sD,4)}, {s(sKx)} offen", f"s_add_u32 {s(sKx)}, {s(sKx)}, {32*7168}"]
    ps = [f"buffer_store_dwordx4 {v(vDw[0],4)}, {v(vS)}, {s(sP,4)}, {s(sPf)} offen sc1", f"s_add_u32 {s(sPf)}, {s(sPf)}, {896*1024}"]
    if opts.get("nopfw"): pw = []
    if not opts.get("sentinel"): ps = []
    A("s_waitcnt vmcnt(0)")
    signal(4, calc_yf)
    def zero_flags():
        make_srd(A, sB, sWS, sWS+1, 65536, add=WS_FLAG)
        A(f"s_lshl_b32 {s(sT)}, s2, 8")
        A(f"s_cmp_eq_u32 {s(sWave)}, 5")
        A(f"s_cselect_b32 {s(sT)}, {s(sT)}, 0x100000")
        A(f"v_lshlrev_b32 v40, 2, {v(vL)}")
        A(f"v_mov_b32 v41, 0")
        A(f"buffer_store_dword v41, v40, {s(sB,4)}, {s(sT)} offen")
    zero_flags()
    if opts.get("pfearly", 1):
        for ins in pw*DL: A(ins)
    A("s_barrier")
    dbg_mark(A, opts, 13, 254)
    pf_init = ([] if opts.get("pfearly", 1) else pw*DL) + pd
    mainloop(False, pf_init, pw + pd + ps)
    A.label(epi)
    dbg_mark(A, opts, 5, 254)
    stamp(A, opts, 2)
    E = R[0]; sRow = 41
    for i in range(8):
        Tm = E + (i % 2)*16; P = Tm + 8
        g = acc(i, 0); u = acc(i, 2)
        for r in range(0, 8, 2): pk("mul", Tm+r, g+r, g+r)
        for r in range(0, 8, 2): pk("fma", Tm+r, Tm+r, vK+2, vK)
        for r in range(0, 8, 2): pk("mul", Tm+r, Tm+r, g+r)
        for r in range(8): A(f"v_exp_f32 {v(Tm+r)}, {v(Tm+r)}")
        for r in range(0, 8, 2): pk("mul", u+r, u+r, g+r)
        for r in range(0, 8, 2): pk("add", Tm+r, Tm+r, vK+4)
        for r in range(8): A(f"v_rcp_f32 {v(Tm+r)}, {v(Tm+r)}")
        A(f"s_mov_b32 {s(sRow)}, {i*1024}")
        for r in range(0, 8, 2): pk("mul", Tm+r, Tm+r, u+r)
        for r in range(4): A(f"v_cvt_pk_bf16_f32 {v(P+r)}, {v(Tm+2*r)}, {v(Tm+2*r+1)}")
        A("s_nop 1")
        A(f"v_permlane16_swap_b32 {v(P)}, {v(P+2)}")
        A(f"v_permlane16_swap_b32 {v(P+1)}, {v(P+3)}")
        A(f"buffer_store_dwordx4 {v(P,4)}, {v(vSt)}, {s(sH,4)}, {s(sRow)} offen sc1")
    if opts.get("stamp") or opts.get("stamp0"):
        A("s_waitcnt vmcnt(0)")
        stamp(A, opts, 3)
        stamp_store(A, dict(stamp=True), 4, sWS, E, sWave)
    if opts.get("tldbg"): A("s_waitcnt vmcnt(0)")
    dbg_mark(A, opts, 6, 254)
    A.label(done)
    A("s_endpgm")
    from fft2 import gen_fft_role2
    A.label(fftl)
    fr1 = A.newlabel("ka_fr1")
    A(f"s_cmp_lt_u32 {s(sWave)}, 4")
    A(f"s_cbranch_scc1 {fr1}")
    A("s_waitcnt vmcnt(0)")
    signal(4, calc_yf)
    zero_flags()
    A.label(fr1)
    A(f"s_sub_u32 s42, {s(sIdx)}, 28")
    A(f"s_lshl_b32 {s(sT)}, {s(sXcd)}, 2")
    A(f"s_add_u32 s42, s42, {s(sT)}")
    A(f"s_mov_b32 s40, {s(sWave)}")
    A(f"s_mov_b64 s[26:27], {s(sDbg,2)}")
    A(f"s_mov_b64 s[88:89], {s(sFb,2)}")
    o = dict(opts); o["stamp"] = opts.get("stampf"); o["nopf"] = True; o["fused"] = True
    gen_fft_role2(A, o, 42, done)
    return 147456 + 2048
```

```python
from asmlib import *
from layout import *
from dbgstamp import *
from sync import *
from gemm import stamp, stamp_store
from colfft import col_params
from rowifft import chunk_rows
MF = "v_mfma_f32_32x32x16_bf16"

def pk(op, d, *srcs, neg=None):
    ss = ", ".join(v(x, 2) for x in srcs)
    m = ""
    if neg:
        bits = ",".join("1" if i in neg else "0" for i in range(len(srcs)))
        m = f" neg_lo:[{bits}] neg_hi:[{bits}]"
    return f"v_pk_{op}_f32 {v(d,2)}, {ss}{m}"

USE_PK = False
def pk2(A, op, n, d, *srcs, neg=None):
    if USE_PK:
        for r in range(0, n, 2): A(pk(op, d+r, *[x+r for x in srcs], neg=neg))
        return
    for r in range(n):
        ss = [("-" if (neg and i in neg) else "") + v(x+r) for i, x in enumerate(srcs)]
        A(f"v_{op}_f32 {v(d+r)}, " + ", ".join(ss))

def angle(A, t, b0, vIdx, vH4, mod, sign=1.0, vPhase=None):
    if b0 <= 64:
        A(f"v_mad_u32_u24 {v(t)}, {b0}, {v(vIdx)}, {v(vH4)}")
    else:
        A(f"v_mul_u32_u24 {v(t)}, {b0}, {v(vIdx)}")
        A(f"v_add_u32 {v(t)}, {v(t)}, {v(vH4)}")
    A(f"v_and_b32 {v(t)}, {mod-1}, {v(t)}")
    A(f"v_cvt_f32_u32 {v(t)}, {v(t)}")
    if vPhase is None:
        A(f"v_mul_f32 {v(t)}, {f32(sign/mod)}, {v(t)}")
    else:
        A(f"v_fmamk_f32 {v(t)}, {v(t)}, {f32(sign/mod)}, {v(vPhase)}")

def job_trig(A, b0s, vIdx, vH4, mod, W, vAddr, outs, vPhase=None):
    T, C, S, O = W, W+8, W+16, W+24
    for e in range(8): angle(A, T+e, b0s[e], vIdx, vH4, mod, vPhase=vPhase)
    for e in range(8): A(f"v_cos_f32 {v(C+e)}, {v(T+e)}")
    for e in range(8): A(f"v_sin_f32 {v(S+e)}, {v(T+e)}")
    A("s_nop 0")
    for k, (kind, off) in enumerate(outs):
        o = O + 4*k
        for p in range(4):
            if kind == 'c': A(f"v_cvt_pk_bf16_f32 {v(o+p)}, {v(C+2*p)}, {v(C+2*p+1)}")
            if kind == 's': A(f"v_cvt_pk_bf16_f32 {v(o+p)}, {v(S+2*p)}, {v(S+2*p+1)}")
            if kind == 'n': A(f"v_cvt_pk_bf16_f32 {v(o+p)}, -{v(S+2*p)}, -{v(S+2*p+1)}")
        A(f"ds_write_b128 {v(vAddr)}, {v(o,4)} offset:{off}")

def job_tw(A, b0s, vIdx, vH4, mod, W, vAddr, offc, offs, sign=1.0, scale=None):
    T, C, S = W, W+8, W+16
    for e in range(8): angle(A, T+e, b0s[e], vIdx, vH4, mod, sign=sign)
    for e in range(8): A(f"v_cos_f32 {v(C+e)}, {v(T+e)}")
    for e in range(8): A(f"v_sin_f32 {v(S+e)}, {v(T+e)}")
    A("s_nop 0")
    if scale is not None:
        for e in range(16): A(f"v_mul_f32 {v(C+e)}, {f32(scale)}, {v(C+e)}")
    for q in range(2):
        A(f"ds_write_b128 {v(vAddr)}, {v(C+4*q,4)} offset:{offc+q*1024}")
        A(f"ds_write_b128 {v(vAddr)}, {v(S+4*q,4)} offset:{offs+q*1024}")

def run_jobs(A, jobs, sWave, nw):
    load = [0]*nw; asg = [[] for _ in range(nw)]
    for cost, fn in sorted(jobs, key=lambda x: -x[0]):
        w = load.index(min(load)); load[w] += cost; asg[w].append(fn)
    end = A.newlabel("jobs_end")
    for w in range(nw):
        if not asg[w]: continue
        nxt = A.newlabel("jobs")
        A(f"s_cmp_lg_u32 {s(sWave)}, {w}")
        A(f"s_cbranch_scc1 {nxt}")
        for fn in asg[w]: fn()
        A(f"s_branch {end}")
        A.label(nxt)
    A.label(end)

PI = lambda u, base=0: [base + 16*u + 8*(e//4) + e % 4 for e in range(8)]
EO = lambda it, par: [32*it + 8*(e//2) + 2*(e % 2) + par for e in range(8)]
DR = lambda half, base=0: [base + 8*(r//4) + r % 4 for r in range(8*half, 8*half+8)]

def cmul_pk(A, ar, ai, c, sn, X):
    for r in range(0, 8, 2): A(pk("mul", X+r, ar+r, c+r))
    for r in range(0, 8, 2): A(pk("mul", ar+r, ar+r, sn+r))
    for r in range(0, 8, 2): A(pk("fma", X+r, ai+r, sn+r, X+r, neg=[0]))
    for r in range(0, 8, 2): A(pk("fma", ai+r, ai+r, c+r, ar+r))

def gen_fft_role2(A, opts, sFid, done, NF=32):
    vL, vOff, vTw = 1, 2, 3
    ROFF = [8, 9, 10, 11, 16, 17, 18, 19]
    C32, S32, N32 = 8, 16, 24
    K64 = 32
    def k64(par, kind, it): return K64 + ((par*3 + 'csn'.index(kind))*2 + it)*4
    SX, SY, SZ = 80, 112, 144
    ACC = 176
    TMP = 240
    XS = 0
    accr = lambda t: ACC + 16*t
    acci = lambda t: ACC + 32 + 16*t
    TW1, TW2, CC, RC = 0, 16384, 32768, 32768 + 18*1024
    sYT, sZT, sWT, sX, sXY = 8, 12, 16, 20, 44
    sWS = 24; sDbg = 26; sWave = 40; sCol, sRe, sIm, sWo = 30, 31, 32, 34
    sRe2, sIm2 = 36, 37
    sT = 48
    FU = opts.get("fused")
    LF = " sc1" if FU else ""
    stamp(A, opts, 0)
    if not FU:
        A(f"s_load_dwordx4 {s(sT,4)}, s[0:1], 64")
        A("v_lshrrev_b32 v2, 6, v0")
        A(f"v_and_b32 {v(vL)}, 63, v0")
        A("s_nop 0")
        A(f"v_readfirstlane_b32 {s(sWave)}, v2")
        A("s_nop 3")
    A(f"s_lshl_b32 {s(sCol)}, {s(sFid)}, 3")
    A(f"s_add_u32 {s(sCol)}, {s(sCol)}, {s(sWave)}")
    col_params(A, sCol, sRe, sIm, sWo, 38)
    A(f"v_lshlrev_b32 {v(vOff)}, 4, {v(vL)}")
    if not FU:
        A("s_waitcnt lgkmcnt(0)")
        A(f"s_mov_b64 {s(sDbg,2)}, {s(sT,2)}")
        A(f"s_mov_b64 {s(sWS,2)}, {s(sT+2,2)}")
    make_srd(A, sYT, sWS, sWS+1, 4<<20, add=WS_YT)
    make_srd(A, sWT, sWS, sWS+1, 513*WP, add=WS_WT)
    PST = 65536
    vPd, vPr = 252, 253
    def dma_P(rnd):
        for i in range(8):
            A(f"s_add_u32 m0, {s(sM0)}, {i*1024}")
            A(f"s_add_u32 {s(sT)}, {s(sPb)}, {i*4*16384 + rnd*8192}")
            A(f"buffer_load_dwordx4 {v(vPdi[i%4])}, {s(sYT,4)}, {s(sT)} offen{LF} lds")
    def read_P():
        for c in range(2):
            for q in range(4):
                A(f"ds_read_b128 {v(SX + c*16 + q*4, 4)}, {v(vPrd[c])} offset:{q*16384}")
    def load_W():
        for q in range(8):
            A(f"buffer_load_dwordx4 {v(SZ+4*q,4)}, {v(vOff)}, {s(sWT,4)}, {s(sWo + (q//4))} offen offset:{(q%4)*1024}{LF}")
    sM0, sPb = 41, 43
    vPdi = [SY, SY+1, SY+2, SY+3]
    vPrd = [3, 0]
    def calc_pd():
        A(f"v_lshrrev_b32 {v(SY+4)}, 4, {v(vL)}")
        A(f"v_and_b32 {v(SY+5)}, 15, {v(vL)}")
        A(f"v_xor_b32 {v(SY+5)}, {v(SY+5)}, {v(SY+4)}")
        A(f"v_lshlrev_b32 {v(SY+5)}, 4, {v(SY+5)}")
        A(f"v_lshl_add_u32 {v(vPdi[0])}, {v(SY+4)}, 14, {v(SY+5)}")
        for i in range(1, 4): A(f"v_xor_b32 {v(vPdi[i])}, {i*64}, {v(vPdi[0])}")
    calc_pd()
    A(f"s_lshl_b32 {s(sM0)}, {s(sWave)}, 13")
    A(f"s_add_u32 {s(sM0)}, {s(sM0)}, {PST}")
    A(f"s_lshl_b32 {s(sPb)}, {s(sWave)}, 19")
    A(f"s_lshl_b32 {s(sT)}, {s(sFid)}, 8")
    A(f"s_add_u32 {s(sPb)}, {s(sPb)}, {s(sT)}")
    if not FU:
        dma_P(0)
        load_W()
    A(f"s_lshl_b32 {s(sT)}, {s(sWave)}, 1")
    A(f"v_and_b32 v4, 15, {v(vL)}")
    A(f"v_xor_b32 v4, {s(sT)}, v4")
    A(f"v_lshlrev_b32 v4, 4, v4")
    A(f"v_lshl_add_u32 v4, {v(vL)}, 8, v4")
    A(f"v_add_u32 v3, {PST}, v4")
    A(f"v_xor_b32 v0, 16, v3")
    npf = 0
    if not opts.get("nopf"):
        PFK = opts.get("pfk", 256)
        make_srd(A, 92, 84, 85, 1024*3584*2)
        make_srd(A, 96, 86, 87, 1024*3584*2)
        make_srd(A, 88, 6, 7, 1024*3584*2)
        A(f"v_lshlrev_b32 v4, 7, v0")
        A(f"s_lshl_b32 {s(sT)}, {s(sFid)}, 16")
        A(f"s_add_u32 {s(sT+1)}, {s(sT)}, {PFK*7168}")
        nit = -(-(1024-PFK)*7168 // (32 << 16))
        for i in range(nit):
            A(f"buffer_load_dword v3, v4, s[92:95], {s(sT+1)} offen")
            A(f"buffer_load_dword v3, v4, s[96:99], {s(sT+1)} offen")
            A(f"s_add_u32 {s(sT+1)}, {s(sT+1)}, {32<<16}")
            npf += 2
    make_srd(A, sZT, sWS, sWS+1, 1024*YP, add=WS_ZT)
    make_srd(A, sXY, sWS, sWS+1, 4 << 20, add=WS_XY)
    W = ACC
    vI, vH4, vI2, vH42, vN2, vH4n = TMP, TMP+1, TMP+2, TMP+3, TMP+4, TMP+5
    t0, t1, t2 = TMP+6, TMP+7, TMP+8
    A(f"v_and_b32 {v(vI)}, 31, {v(vL)}")
    A(f"v_lshrrev_b32 {v(t0)}, 5, {v(vL)}")
    A(f"v_lshlrev_b32 {v(t0)}, 2, {v(t0)}")
    A(f"v_mul_u32_u24 {v(vH4)}, {v(t0)}, {v(vI)}")
    A(f"v_add_u32 {v(vI2)}, 32, {v(vI)}")
    A(f"v_mul_u32_u24 {v(vH42)}, {v(t0)}, {v(vI2)}")
    A(f"v_bfe_u32 {v(t1)}, {v(vL)}, 2, 1")
    A(f"v_lshlrev_b32 {v(t1)}, 4, {v(t1)}")
    A(f"v_bfe_u32 {v(t2)}, {v(vL)}, 3, 2")
    A(f"v_lshl_add_u32 {v(t1)}, {v(t2)}, 2, {v(t1)}")
    A(f"v_and_b32 {v(t2)}, 3, {v(vL)}")
    A(f"v_add_u32 {v(vN2)}, {v(t1)}, {v(t2)}")
    A(f"v_mul_u32_u24 {v(vH4n)}, {v(t0)}, {v(vN2)}")
    img = lambda reg: CC + ((reg - 8)//4)*1024
    def rimg(reg):
        if reg < 80: return RC + ((reg - 64)//4)*1024
        if reg < 88: return img(C32 + reg - 80)
        if reg < 96: return img(N32 + reg - 88)
        return RC + (4 + (reg - 96)//4)*1024
    jobs = []
    for u in range(2):
        jobs.append((60, lambda u=u: job_trig(A, PI(u), vI, vH4, 32, W, vOff, [('c', img(C32+4*u)), ('s', img(S32+4*u)), ('n', img(N32+4*u)), ('c', rimg(80+4*u))][:3] + [])))
    for par in range(2):
        for it in range(2):
            jobs.append((60, lambda par=par, it=it: job_trig(A, EO(it, par), vI, vH4, 64, W, vOff, [(k, img(k64(par, k, it))) for k in 'csn'])))
    for t in range(2):
        for half in range(2):
            jobs.append((52, lambda t=t, half=half: job_tw(A, DR(half, 32*t), vI, vH4, 2048, W, vOff, TW1 + t*8192 + half*2048, TW1 + t*8192 + 4096 + half*2048, sign=-1.0)))
            jobs.append((68, lambda t=t, half=half: job_tw(A, DR(half), vI if t == 0 else vI2, vH4 if t == 0 else vH42, 2048, W, vOff, TW2 + t*8192 + half*2048, TW2 + t*8192 + 4096 + half*2048, scale=2.0**-20)))
    jobs.append((64, lambda: job_trig(A, PI(0), vN2, vH4n, 32, W, vOff, [('c', rimg(64)), ('n', rimg(68)), ('s', rimg(72)), ('c', rimg(76))])))
    for half in range(2):
        jobs.append((52, lambda half=half: job_tw(A, DR(half), vN2, vH4n, 1024, W, vOff, rimg(96) + half*2048, rimg(112) + half*2048)))
    run_jobs(A, jobs, sWave, 8)
    fs = dict(stamp=opts.get("stamp") and opts.get("fine"))
    stamp(A, fs, 4)
    if FU:
        f2 = A.newlabel("ff2")
        A(f"s_lshl_b32 {s(sT)}, {s(sWave)}, 14")
        A(f"s_add_u32 {s(sT)}, {s(sT)}, {1024*128}")
        A(f"v_lshl_add_u32 v4, {v(vL)}, 8, {s(sT)}")
        poll_flags(A, 88, 4, 2, 90, SX, 92, sleep=4, stride=128)
        A.label(f2)
        A("s_waitcnt lgkmcnt(0)")
        A("s_barrier")
        dma_P(0)
        load_W()
    A("s_waitcnt vmcnt(8) lgkmcnt(0)")
    A("s_barrier")
    read_P()
    for g in range(18):
        A(f"ds_read_b128 {v(8+4*g,4)}, {v(vOff)} offset:{CC + g*1024}")
    A("s_waitcnt lgkmcnt(0)")
    A("s_barrier")
    dma_P(1)
    def zero_im():
        z = A.newlabel("zim")
        A(f"s_and_b32 {s(sT)}, {s(sCol)}, 511")
        A(f"s_cmp_lg_u32 {s(sT)}, 0")
        A(f"s_cbranch_scc1 {z}")
        for r in range(16): A(f"v_mov_b32 {v(SX+16+r)}, 0")
        A.label(z)
    zero_im()
    XS = TMP + 16 - 16
    Pr = lambda it, u: SX + (it*2+u)*4
    Pi = lambda it, u: SX + 16 + (it*2+u)*4
    Zr = lambda it, u: SZ + (it*2+u)*4
    Zi = lambda it, u: SZ + 16 + (it*2+u)*4
    Yo = lambda c, par, it: SY + ((c*2 + par)*2 + it)*4

    def tw_load(table, g):
        t, q = g >> 2, g & 3
        o = TMP + 8*(g & 1)
        A(f"ds_read_b128 {v(o,4)}, {v(vOff)} offset:{table + t*8192 + q*1024}")
        A(f"ds_read_b128 {v(o+4,4)}, {v(vOff)} offset:{table + t*8192 + (4+q)*1024}")
    def cmul4(g, eo):
        t, q = g >> 2, g & 3
        ar = accr(t) + 4*q; ai = acci(t) + 4*q; c = TMP + 8*(g & 1); sn = c + 4
        pk2(A, "mul", 4, 4, ar, c)
        pk2(A, "mul", 4, ar, ar, sn)
        pk2(A, "fma", 4, 4, ai, sn, 4, neg=[0])
        pk2(A, "fma", 4, ai, ai, c, ar)
        if eo:
            A(f"v_cvt_pk_bf16_f32 {v(Yo(0,0,t)+q)}, v4, v6")
            A(f"v_cvt_pk_bf16_f32 {v(Yo(0,1,t)+q)}, v5, v7")
            A(f"v_cvt_pk_bf16_f32 {v(Yo(1,0,t)+q)}, {v(ai)}, {v(ai+2)}")
            A(f"v_cvt_pk_bf16_f32 {v(Yo(1,1,t)+q)}, {v(ai+1)}, {v(ai+3)}")
        else:
            for p in range(2):
                A(f"v_cvt_pk_bf16_f32 {v(Zr(t,0)+2*q+p)}, {v(4+2*p)}, {v(5+2*p)}")
            for p in range(2):
                A(f"v_cvt_pk_bf16_f32 {v(Zi(t,0)+2*q+p)}, {v(ai+2*p)}, {v(ai+2*p+1)}")
    def tw_phase(table, eo):
        for g in range(8):
            A(f"s_waitcnt lgkmcnt({2 if g < 7 else 0})")
            cmul4(g, eo)
            if g+2 < 8: tw_load(table, g+2)
    def bfly():
        for c in range(2):
            e = ACC + 32*c; o = e + 16
            pk2(A, "add", 16, e, e, o)
            for r in range(16): A(f"v_fma_f32 {v(o+r)}, {v(o+r)}, -2.0, {v(e+r)}")
    A("s_mov_b32 s54, -2.0")
    A("s_mov_b32 s55, -2.0")
    lp = A.newlabel("col_loop"); cend = A.newlabel("col_end"); nopre = A.newlabel("col_nopre"); now = A.newlabel("col_now")
    A("s_nop 1")
    A.label(lp)
    stamp(A, fs, 5)
    tw_load(TW1, 0); tw_load(TW1, 1)
    for it in range(2):
        for u in range(2):
            c = "0" if u == 0 else v(accr(it),16)
            A(f"{MF} {v(accr(it),16)}, {v(Pr(it,u),4)}, {v(C32+4*u,4)}, {c}")
            c = "0" if u == 0 else v(acci(it),16)
            A(f"{MF} {v(acci(it),16)}, {v(Pi(it,u),4)}, {v(C32+4*u,4)}, {c}")
        for u in range(2):
            A(f"{MF} {v(accr(it),16)}, {v(Pi(it,u),4)}, {v(S32+4*u,4)}, {v(accr(it),16)}")
            A(f"{MF} {v(acci(it),16)}, {v(Pr(it,u),4)}, {v(N32+4*u,4)}, {v(acci(it),16)}")
    A(f"s_mov_b32 {s(sRe2)}, {s(sRe)}")
    A(f"s_mov_b32 {s(sIm2)}, {s(sIm)}")
    A(f"s_add_u32 {s(sCol)}, {s(sCol)}, {NF*8}")
    col_params(A, sCol, sRe, sIm, 38, 0)
    tw_phase(TW1, True)
    A("s_nop 1")
    def stage64(fwd):
        for par in range(2):
            for it in range(2):
                for c in range(2):
                    d = (accr if c == 0 else acci)(par)
                    cc = "0" if it == 0 else v(d,16)
                    x, y = v(k64(par,'c',it),4), v(Yo(c,par,it),4)
                    A(f"{MF} {v(d,16)}, {x}, {y}, {cc}" if fwd else f"{MF} {v(d,16)}, {y}, {x}, {cc}")
            for it in range(2):
                for c in range(2):
                    d = (accr if c == 0 else acci)(par)
                    kind = ('s' if c == 0 else 'n') if fwd else ('n' if c == 0 else 's')
                    x, y = v(k64(par,kind,it),4), v(Yo(1-c,par,it),4)
                    A(f"{MF} {v(d,16)}, {x}, {y}, {v(d,16)}" if fwd else f"{MF} {v(d,16)}, {y}, {x}, {v(d,16)}")
    stamp(A, fs, 6)
    stage64(True)
    A("s_waitcnt vmcnt(0)")
    nb = A.newlabel("col_nb")
    A(f"s_cmp_ge_u32 {s(sCol)}, 512")
    A(f"s_cbranch_scc1 {nb}")
    A("s_barrier")
    read_P()
    A.label(nb)
    def wunpack(g):
        t, q = g >> 2, g & 3
        wr = Zr(t,0) + 2*q; wi = Zi(t,0) + 2*q; o = TMP + 8*(g & 1)
        for p in range(2):
            A(f"v_lshlrev_b32 {v(o+2*p)}, 16, {v(wr+p)}")
            A(f"v_and_b32 {v(o+2*p+1)}, 0xffff0000, {v(wr+p)}")
            A(f"v_lshlrev_b32 {v(o+4+2*p)}, 16, {v(wi+p)}")
            A(f"v_and_b32 {v(o+4+2*p+1)}, 0xffff0000, {v(wi+p)}")
    wunpack(0); wunpack(1)
    bfly()
    for g in range(8):
        cmul4(g, True)
        if g+2 < 8: wunpack(g+2)
    tw_load(TW2, 0); tw_load(TW2, 1)
    stamp(A, fs, 7)
    stage64(False)
    A("s_nop 7"); A("s_nop 3")
    bfly()
    tw_phase(TW2, False)
    A("s_nop 1")
    stamp(A, fs, 8)
    for jt in range(2):
        for u in range(2):
            c = "0" if u == 0 else v(accr(jt),16)
            A(f"{MF} {v(accr(jt),16)}, {v(C32+4*u,4)}, {v(Zr(jt,u),4)}, {c}")
            c = "0" if u == 0 else v(acci(jt),16)
            A(f"{MF} {v(acci(jt),16)}, {v(C32+4*u,4)}, {v(Zi(jt,u),4)}, {c}")
        for u in range(2):
            A(f"{MF} {v(accr(jt),16)}, {v(N32+4*u,4)}, {v(Zi(jt,u),4)}, {v(accr(jt),16)}")
            A(f"{MF} {v(acci(jt),16)}, {v(S32+4*u,4)}, {v(Zr(jt,u),4)}, {v(acci(jt),16)}")
    A(f"s_mov_b32 {s(sWo)}, s38")
    A(f"s_mov_b32 {s(sWo+1)}, s39")
    load_W()
    for jt in range(2):
        if jt == 1: A("s_nop 3")
        for c in range(2):
            base = (accr(jt) if c == 0 else acci(jt))
            for p in range(8):
                A(f"v_cvt_pk_bf16_f32 {v(SY + c*16 + jt*8 + p)}, {v(base+2*p)}, {v(base+2*p+1)}")
    for c, so in enumerate((sRe2, sIm2)):
        for q in range(4):
            A(f"buffer_store_dwordx4 {v(SY + c*16 + q*4, 4)}, {v(vOff)}, {s(sZT,4)}, {s(so)} offen offset:{q*1024} sc1")
    A(f"s_cmp_ge_u32 {s(sCol)}, 512")
    A(f"s_cbranch_scc1 {cend}")
    A(f"s_branch {lp}")
    A.label(cend)
    A("s_waitcnt vmcnt(0)")
    ny_done = A.newlabel("ny_done"); norm = A.newlabel("col_norm")
    A(f"s_cmp_eq_u32 {s(sCol)}, 768")
    A(f"s_cbranch_scc1 {ny_done}")
    stamp(A, opts, 1)
    dbg_mark(A, opts, 7, 4)
    A("s_barrier")
    A(f"s_cmp_lg_u32 {s(sCol)}, 512")
    A(f"s_cbranch_scc1 {norm}")
    A(f"v_lshlrev_b32 v4, 14, {v(vL)}")
    for q in range(4):
        A(f"s_mov_b32 {s(sT)}, {q*64*16384 + 16}")
        A(f"buffer_load_dwordx4 {v(SX+q*4,4)}, v4, {s(sYT,4)}, {s(sT)} offen{LF}")
    zero_im()
    A("s_waitcnt vmcnt(0)")
    A(f"s_branch {lp}")
    A.label(ny_done)
    A("v_mov_b32 v4, 128")
    A("v_mov_b32 v5, 1")
    A("s_mov_b64 exec, 1")
    A(f"global_store_dword v4, v5, {s(sDbg,2)} sc1")
    A("s_mov_b64 exec, -1")
    A.label(norm)
    A(f"s_lshl_b32 {s(sT)}, {s(sWave)}, 6")
    A(f"v_add_u32 v0, {s(sT)}, {v(vL)}")
    for g in range(16):
        A(f"ds_read_b128 {v(64+4*g,4)}, {v(vOff)} offset:{rimg(64+4*g)}")
    sk = A.newlabel("fft_sig"); pl = A.newlabel("fft_poll")
    A(f"s_cmp_lg_u32 {s(sWave)}, 4")
    A(f"s_cbranch_scc1 {sk}")
    A("v_mov_b32 v4, 0")
    A("v_mov_b32 v5, 1")
    A("s_mov_b64 exec, 1")
    A(f"global_atomic_add v4, v5, {s(sDbg,2)} sc1")
    A.label(pl)
    A("s_sleep 2")
    A(f"global_load_dword v6, v4, {s(sDbg,2)} sc1")
    A("s_waitcnt vmcnt(0)")
    A(f"v_readfirstlane_b32 {s(sT)}, v6")
    A("s_nop 3")
    A(f"s_cmp_lt_u32 {s(sT)}, {NF}")
    A(f"s_cbranch_scc1 {pl}")
    A("s_mov_b64 exec, -1")
    A.label(sk)
    B1R, B1I, B2C, B2N, TWC, TWS = 64, 72, 80, 88, 96, 112
    A("v_lshrrev_b32 v4, 3, v0")
    A(f"v_mul_u32_u24 v5, {2*YP}, v4")
    A("v_and_b32 v6, 7, v0")
    A("v_lshlrev_b32 v7, 4, v6")
    A(f"s_lshl_b32 {s(sT)}, {s(sFid)}, 7")
    A(f"v_add3_u32 v5, v5, v7, {s(sT)}")
    A("v_lshrrev_b32 v7, 1, v4")
    A("v_xor_b32 v7, v7, v6")
    A("v_and_b32 v7, 7, v7")
    A("v_lshlrev_b32 v7, 4, v7")
    A("v_lshl_add_u32 v7, v4, 7, v7")
    A("v_add_u32 v6, 0x10000, v7")
    vXo, vRd, vRd2, vNy = 8, 9, 10, 11
    T0, T1, T2 = 12, 13, 14
    A(f"v_and_b32 {v(T0)}, 31, {v(vL)}")
    A(f"v_lshlrev_b32 {v(T1)}, 6, {v(T0)}")
    A(f"v_and_b32 {v(T2)}, 32, {v(vL)}")
    A(f"v_add_u32 {v(vXo)}, {v(T1)}, {v(T2)}")
    A(f"v_lshlrev_b32 {v(T2)}, 9, {v(T2)}")
    A(f"v_lshl_add_u32 {v(T2)}, {v(T0)}, 7, {v(T2)}")
    A(f"v_bfe_u32 {v(T1)}, {v(vL)}, 1, 3")
    A(f"v_xor_b32 {v(T1)}, {s(sWave)}, {v(T1)}")
    A(f"v_lshl_add_u32 {v(vRd)}, {v(T1)}, 4, {v(T2)}")
    A(f"v_add_u32 {v(vRd2)}, 0x10000, {v(vRd)}")
    A(f"s_lshl_b32 {s(sT)}, {s(sWave)}, 4")
    A(f"s_add_u32 {s(sT)}, {s(sT)}, 0x10000")
    A(f"v_mov_b32 {v(vNy)}, {s(sT)}")
    sChunk, sS0, sZ = 30, 31, 32
    A(f"s_lshl_b32 {s(sChunk)}, {s(sFid)}, 3")
    A(f"s_add_u32 {s(sChunk)}, {s(sChunk)}, {s(sWave)}")
    A(f"s_mov_b32 {s(sZ)}, 0")
    chunk_rows(A, sChunk, sZ, sS0, sT)
    A(f"s_lshl_b32 {s(sS0)}, {s(sS0)}, 11")
    for e in range(8):
        A(f"s_add_u32 {s(ROFF[e])}, {s(sS0)}, {(8*(e>>2) + (e&3))*64*2048}")
    XR = [[16, 24], [32, 40]]
    def xload(p):
        for rw in range(2):
            A(f"buffer_load_dwordx4 {v(XR[p%2][rw],4)}, {v(vXo)}, {s(sX,4)}, {s(ROFF[2*p+rw])} offen")
            A(f"buffer_load_dwordx4 {v(XR[p%2][rw]+4,4)}, {v(vXo)}, {s(sX,4)}, {s(ROFF[2*p+rw])} offen offset:16")
    A("s_waitcnt lgkmcnt(0)")
    A("s_barrier")
    stamp(A, opts, 2)
    for i in range(16):
        A(f"s_mov_b32 {s(sT)}, {(i&7)*64*2*YP + (i>>3)*YP}")
        A(f"buffer_load_dwordx4 {v(128+4*i,4)}, v5, {s(sZT,4)}, {s(sT)} offen sc1")
    ex = 0
    for i in range(16):
        A(f"s_waitcnt vmcnt({15-i+ex})")
        if i == 8:
            A("v_cmp_le_u32 vcc, 8, v0")
            A("s_nop 1")
            for r in range(4): A(f"v_cndmask_b32 {v(128+4*i+r)}, 0, {v(128+4*i+r)}, vcc")
        A(f"ds_write_b128 {'v7' if i < 8 else 'v6'}, {v(128+4*i,4)} offset:{(i&7)*8192}")
    sk2 = A.newlabel("fft_sig2"); pl2 = A.newlabel("fft_poll2")
    A(f"s_cmp_lg_u32 {s(sWave)}, 4")
    A(f"s_cbranch_scc1 {sk2}")
    A("v_mov_b32 v4, 128")
    A.label(pl2)
    A(f"global_load_dword v3, v4, {s(sDbg,2)} sc1")
    A("s_waitcnt vmcnt(0)")
    A(f"v_readfirstlane_b32 {s(sT)}, v3")
    A("s_nop 3")
    A(f"s_cmp_eq_u32 {s(sT)}, 0")
    A(f"s_cbranch_scc1 {pl2}")
    A.label(sk2)
    A(f"s_mov_b32 {s(sT+3)}, 0x05040100")
    A(f"s_mov_b32 {s(sT+4)}, 0x07060302")
    A("s_waitcnt lgkmcnt(0)")
    A("s_barrier")
    A(f"s_lshl_b32 {s(sT)}, {s(sChunk)}, 4")
    A(f"s_add_u32 {s(sT)}, {s(sT)}, {YP}")
    A(f"v_mov_b32 {v(vNy)}, {s(sT)}")
    A(f"buffer_load_dwordx4 v[16:19], {v(vNy)}, {s(sZT,4)}, 0 offen sc1")
    RD = 224
    OP = [48, 56]
    TR = [128, 160]; TI = [144, 176]; UR = [192, 208]; UI = [200, 216]; WK = 240
    OUT = [24, 32]
    def rdload(p):
        for r in range(16):
            c = r >> 3; k2 = 8*((r >> 2) & 1) + (r & 3)
            A(f"ds_read_b32 {v(RD+r)}, {v(vRd if c == 0 else vRd2)} offset:{k2*4096 + p*4}")
    stamp(A, fs, 9)
    rdload(0)
    for p in range(4):
        A("s_waitcnt lgkmcnt(0)")
        for q in range(8):
            A(f"v_perm_b32 {v(OP[0]+q)}, {v(RD+2*q+1)}, {v(RD+2*q)}, {s(sT+3)}")
            A(f"v_perm_b32 {v(OP[1]+q)}, {v(RD+2*q+1)}, {v(RD+2*q)}, {s(sT+4)}")
        A("s_nop 0")
        for rw in range(2):
            for u in range(2):
                c = "0" if u == 0 else v(TR[rw],16)
                A(f"{MF} {v(TR[rw],16)}, {v(OP[rw]+4*u,4)}, {v(B1R+4*u,4)}, {c}")
                c = "0" if u == 0 else v(TI[rw],16)
                A(f"{MF} {v(TI[rw],16)}, {v(OP[rw]+4*u,4)}, {v(B1I+4*u,4)}, {c}")
        if p < 3: rdload(p+1)
        else: A("s_nop 7")
        for rw in range(2):
            pk2(A, "mul", 16, WK, TR[rw], TWC)
            pk2(A, "mul", 16, TR[rw], TR[rw], TWS)
            pk2(A, "fma", 16, WK, TI[rw], TWS, WK, neg=[0])
            pk2(A, "fma", 16, TI[rw], TI[rw], TWC, TR[rw])
            for q in range(8):
                A(f"v_cvt_pk_bf16_f32 {v(UR[rw]+q)}, {v(WK+2*q)}, {v(WK+2*q+1)}")
            for q in range(8):
                A(f"v_cvt_pk_bf16_f32 {v(UI[rw]+q)}, {v(TI[rw]+2*q)}, {v(TI[rw]+2*q+1)}")
            Y = TR[rw]
            A(f"{MF} {v(Y,16)}, {v(UR[rw],4)}, {v(B2C,4)}, 0")
            A(f"{MF} {v(Y,16)}, {v(UR[rw]+4,4)}, {v(B2C+4,4)}, {v(Y,16)}")
            A(f"{MF} {v(Y,16)}, {v(UI[rw],4)}, {v(B2N,4)}, {v(Y,16)}")
            A(f"{MF} {v(Y,16)}, {v(UI[rw]+4,4)}, {v(B2N+4,4)}, {v(Y,16)}")
        if p == 0: A("s_waitcnt vmcnt(0)")
        A(f"v_lshlrev_b32 v4, 16, {v(16+p)}")
        A(f"v_and_b32 v5, 0xffff0000, {v(16+p)}")
        for rw in range(2):
            Y = TR[rw]
            for r in range(16):
                A(f"v_{'add' if r % 2 == 0 else 'sub'}_f32 {v(Y+r)}, {v(Y+r)}, {v(4+rw)}")
            for q in range(8):
                A(f"v_cvt_pk_bf16_f32 {v(OUT[rw]+q)}, {v(Y+2*q)}, {v(Y+2*q+1)}")
            A(f"buffer_store_dwordx4 {v(OUT[rw],4)}, {v(vXo)}, {s(sXY,4)}, {s(ROFF[2*p+rw])} offen")
            A(f"buffer_store_dwordx4 {v(OUT[rw]+4,4)}, {v(vXo)}, {s(sXY,4)}, {s(ROFF[2*p+rw])} offen offset:16")
    if opts.get("stamp"):
        A("s_waitcnt vmcnt(0)")
        stamp(A, opts, 3)
        stamp_store(A, opts, 10, sWS, 128, sWave)
    if not opts.get("nopf"):
        A(f"v_lshlrev_b32 v4, 7, v0")
        A(f"s_lshl_b32 {s(sT)}, {s(sFid)}, 16")
        for i in range(4):
            A(f"buffer_load_dword v3, v4, s[88:91], {s(sT)} offen")
            A(f"s_add_u32 {s(sT)}, {s(sT)}, {32<<16}")
    if opts.get("tldbg"): A("s_waitcnt vmcnt(0)")
    dbg_mark(A, opts, 8, 4)
    A(f"s_branch {done}")
```

```python
from asmlib import *
from layout import *
from dbgstamp import *
from sync import *
from gemm import stamp, stamp_store
from fft2 import job_trig, job_tw, run_jobs, PI, DR
from fftcommon import wave_allreduce_add2, round_bf16
import math
MF = "v_mfma_f32_16x16x32_bf16"
MF32 = "v_mfma_f32_32x32x16_bf16"

def gen_ka(A, name, opts):
    NS = 4; KS = 32; SLOT = 32768; XB = 16384
    FR = opts.get("freerun", 3)
    kernel_begin(A, name)
    sX, sW, sD, sH, sP = 8, 12, 16, 20, 44
    sWS = 24; sT = 26
    sWave, sWm, sWn = 30, 31, 32
    sM0x, sM0w, sKx, sKw = 33, 34, 35, 36
    sMt, sNt, sLoop, sPf = 37, 38, 39, 40
    sDbg, sTag, sFb = 48, 50, 52
    sIdx, sXcd = 54, 55
    sA, sB = 72, 76
    sS, sChunk, sN2, sU = 80, 81, 82, 83
    ACC = 0; R = [128, 176]
    acc = lambda i, j: ACC + (i*4+j)*4
    opX = lambda rs, i: R[rs] + i*4
    opW = lambda rs, j: R[rs] + 32 + j*4
    nsg = 2
    b = 224
    vDw = [b, b+1, b+2, b+3]; vDx = b+4; vL = 1
    vXa = [b+6+g for g in range(nsg)]
    vWa = [[b+9+g for g in range(nsg)], [b+12+g for g in range(nsg)]]
    t0, t1, t2, t3 = b+15, b+16, b+17, b+18
    vSt = b+19; vK = b+20
    vLL = b+5
    done = A.newlabel("ka_done"); fftl = A.newlabel("ka_fft"); pfl = A.newlabel("ka_pf"); epi = A.newlabel("ka_epi")
    A("s_load_dwordx2 s[94:95], s[0:1], 0")
    A(f"s_load_dwordx4 {s(sDbg,4)}, s[0:1], 64")
    A(f"s_load_dwordx4 s[4:7], s[0:1], 32")
    A(f"s_load_dwordx4 s[88:91], s[0:1], 8")
    A(f"s_load_dwordx2 s[92:93], s[0:1], 48")
    A(f"s_cmp_ge_u32 s2, 256")
    A(f"s_cbranch_scc1 {done}")
    dbg_init(A, opts, 0); dbg_mark(A, opts, 0, 254, neg=True)
    stamp(A, dict(stamp=opts.get("stamp") or opts.get("stamp0")), 0)
    vOff = 2
    A(f"v_lshrrev_b32 v2, 6, v0")
    A(f"v_and_b32 {v(vL)}, 63, v0")
    A(f"s_and_b32 {s(sXcd)}, s2, 7")
    A(f"v_readfirstlane_b32 {s(sWave)}, v2")
    A(f"s_lshr_b32 {s(sIdx)}, s2, 3")
    A(f"v_lshlrev_b32 {v(vOff)}, 4, {v(vL)}")
    A(f"v_mov_b32 {v(vLL)}, {v(vL)}")
    A(f"s_lshl_b32 {s(sChunk)}, {s(sXcd)}, 5")
    A(f"s_add_u32 {s(sChunk)}, {s(sChunk)}, {s(sIdx)}")
    A(f"s_lshr_b32 {s(sT)}, {s(sXcd)}, 2")
    A(f"s_lshl_b32 {s(sT)}, {s(sT)}, 5")
    A(f"s_add_u32 {s(sN2)}, {s(sIdx)}, {s(sT)}")
    A(f"s_and_b32 {s(sT)}, {s(sXcd)}, 2")
    A(f"s_lshl_b32 {s(sT)}, {s(sT)}, 1")
    A(f"s_and_b32 {s(sT+1)}, {s(sXcd)}, 1")
    A(f"s_add_u32 {s(sU)}, {s(sT)}, {s(sT+1)}")
    A(f"s_lshr_b32 {s(sT)}, {s(sWave)}, 2")
    A(f"s_lshl_b32 {s(sT)}, {s(sT)}, 1")
    A(f"s_add_u32 {s(sT)}, {s(sT)}, {s(sU)}")
    A(f"s_lshl_b32 {s(sS)}, {s(sT)}, 8")
    A(f"s_and_b32 {s(sWn)}, {s(sWave)}, 3")
    A(f"s_lshl_b32 {s(sT)}, {s(sWn)}, 6")
    A(f"s_add_u32 {s(sS)}, {s(sS)}, {s(sT)}")
    A(f"s_add_u32 {s(sS)}, {s(sS)}, {s(sN2)}")
    A(f"s_lshl_b32 {s(sT)}, {s(sS)}, 11")
    A(f"s_and_b32 {s(sMt)}, {s(sXcd)}, 1")
    A(f"s_lshl_b32 {s(sMt)}, {s(sMt)}, 2")
    A(f"s_and_b32 {s(sT+2)}, {s(sIdx)}, 3")
    A(f"s_add_u32 {s(sMt)}, {s(sMt)}, {s(sT+2)}")
    A(f"s_lshr_b32 {s(sNt)}, {s(sXcd)}, 1")
    A(f"s_mul_i32 {s(sNt)}, {s(sNt)}, 7")
    A(f"s_lshr_b32 {s(sT+2)}, {s(sIdx)}, 2")
    A(f"s_add_u32 {s(sNt)}, {s(sNt)}, {s(sT+2)}")
    A("s_waitcnt lgkmcnt(0)")
    make_srd(A, sA, 94, 95, 2048*1024*2)
    RAW = 4
    A(f"buffer_load_dwordx4 {v(RAW,4)}, {v(vOff)}, {s(sA,4)}, {s(sT)} offen")
    A(f"buffer_load_dwordx4 {v(RAW+4,4)}, {v(vOff)}, {s(sA,4)}, {s(sT)} offen offset:1024")
    A(f"s_mov_b64 {s(sWS,2)}, s[50:51]")
    A(f"s_add_u32 {s(sFb)}, {s(sWS)}, {hex(WS_TAG)}")
    A(f"s_addc_u32 {s(sFb+1)}, {s(sWS+1)}, 0")
    nt_ = A.newlabel("ka_notag")
    A(f"s_lshl_b32 {s(sT)}, s2, 3")
    A(f"s_add_u32 {s(sT)}, {s(sT)}, {s(sWave)}")
    A(f"s_cmp_lg_u32 {s(sT)}, 7")
    A(f"s_cbranch_scc1 {nt_}")
    A(f"s_memrealtime {s(sTag,2)}")
    A("s_waitcnt lgkmcnt(0)")
    A(f"s_or_b32 {s(sTag+1)}, {s(sTag+1)}, 0x80000000")
    A(f"s_mov_b32 {s(sT)}, 64")
    set_flag(A, sDbg, sT, sTag, 12)
    A.label(nt_)
    WR = 128
    LWR, LWI = 131072, 147456
    A(f"s_and_b32 {s(sT)}, s2, 63")
    A(f"s_lshl_b32 {s(sT)}, {s(sT)}, 3")
    A(f"s_add_u32 {s(sT)}, {s(sT)}, {s(sWave)}")
    A(f"s_bfe_u32 {s(sT+1)}, {s(sT)}, 0x20006")
    A(f"s_lshl_b32 {s(sT+1)}, {s(sT+1)}, 4")
    A(f"s_bfe_u32 {s(sT+2)}, {s(sT)}, 0x10005")
    A(f"s_lshl_b32 {s(sT+2)}, {s(sT+2)}, 2")
    A(f"s_add_u32 {s(sT+1)}, {s(sT+1)}, {s(sT+2)}")
    A(f"s_lshl_b32 {s(sT+1)}, {s(sT+1)}, 5")
    A(f"s_and_b32 {s(sT+2)}, {s(sT)}, 31")
    A(f"s_add_u32 {s(sT+1)}, {s(sT+1)}, {s(sT+2)}")
    A(f"s_mul_i32 {s(sT+1)}, {s(sT+1)}, 1026")
    A(f"s_lshr_b32 {s(sT+2)}, s2, 6")
    A(f"s_lshl_b32 {s(sT+2)}, {s(sT+2)}, 8")
    A(f"s_add_u32 {s(sT+2)}, {s(sT+2)}, {s(sT+1)}")
    A(f"s_add_u32 {s(sT+3)}, {s(sT+2)}, {32*8*1026}")
    A("s_bitcmp1_b32 s2, 5")
    A("s_cselect_b32 s88, s90, s88")
    A("s_cselect_b32 s89, s91, s89")
    make_srd(A, sB, 88, 89, 2048*513*2)
    A(f"v_lshrrev_b32 v192, 4, {v(vL)}")
    A(f"v_mul_u32_u24 v192, {32*1026}, v192")
    A(f"v_and_b32 v193, 15, {v(vL)}")
    A(f"v_lshl_add_u32 v192, v193, 4, v192")
    A(f"buffer_load_dwordx4 {v(WR,4)}, v192, {s(sB,4)}, {s(sT+2)} offen")
    A(f"buffer_load_dwordx4 {v(WR+4,4)}, v192, {s(sB,4)}, {s(sT+3)} offen")
    A(f"v_and_b32 v192, 3, {v(vL)}")
    A(f"v_bfe_u32 v193, {v(vL)}, 2, 1")
    A(f"v_lshl_add_u32 v192, v193, 3, v192")
    A(f"v_lshrrev_b32 v193, 3, {v(vL)}")
    A(f"v_lshl_add_u32 v192, v192, 5, v193")
    A(f"v_mul_u32_u24 v192, 1026, v192")
    A(f"v_lshlrev_b32 v195, 1, {v(vL)}")
    A(f"s_sub_u32 {s(sT+1)}, {s(sT+1)}, {4*1026 - 1024}")
    A("s_cmp_ge_u32 s2, 192")
    A(f"s_cselect_b32 {s(sT+1)}, {s(sT+1)}, 0x40000000")
    A(f"s_cmp_eq_u32 {s(sWave)}, 4")
    A(f"s_cselect_b32 {s(sT+1)}, {s(sT+1)}, 0x40000000")
    A(f"buffer_load_ushort v194, v192, {s(sB,4)}, {s(sT+1)} offen")
    A(f"s_bitcmp1_b32 {s(sWave)}, 1")
    A(f"s_cselect_b32 s4, s6, s4")
    A(f"s_cselect_b32 s5, s7, s5")
    make_srd(A, sW, 4, 5, 1024*3584*2)
    def dmaW(slot):
        o = [f"s_add_u32 m0, {s(sM0w)}, {hex(slot*SLOT)}", "s_nop 0"]
        for i in range(4): o.append(f"buffer_load_dwordx4 {v(vDw[i])}, {s(sW,4)}, {s(sKw)} offen offset:{1024*i} lds")
        o.append(f"s_add_u32 {s(sKw)}, {s(sKw)}, {32*7168}")
        return o
    def dmaX(slot):
        o = [f"s_add_u32 m0, {s(sM0x)}, {hex(slot*SLOT)}", "s_nop 0"]
        for i in range(4): o.append(f"buffer_load_dwordx4 {v(vDx)}, {s(sX,4)}, {s(sKx)} offen offset:{1024*i} sc1 lds")
        o.append(f"s_add_u32 {s(sKx)}, {s(sKx)}, {XB}")
        return o
    nd1 = A.newlabel("ka_nodma")
    A(f"v_lshrrev_b32 {v(t0)}, 4, {v(vL)}")
    A(f"v_and_b32 {v(t2)}, 15, {v(vL)}")
    A(f"v_lshlrev_b32 {v(t1)}, 1, {v(t0)}")
    A(f"v_xor_b32 {v(t2)}, {v(t2)}, {v(t1)}")
    A(f"v_mul_u32_u24 {v(t0)}, 7168, {v(t0)}")
    A(f"v_lshl_add_u32 {v(vDw[0])}, {v(t2)}, 4, {v(t0)}")
    A(f"v_xor_b32 {v(t1)}, 128, {v(vDw[0])}")
    for i in range(1, 4): A(f"v_add_u32 {v(vDw[i])}, {i*4*7168 - i*1024}, {v(t1 if i & 2 else vDw[0])}")
    A(f"s_and_b32 {s(sKw)}, {s(sWave)}, 1")
    A(f"s_mul_i32 {s(sKw)}, {s(sKw)}, {16*7168}")
    A(f"s_lshl_b32 {s(sT)}, {s(sNt)}, 8")
    A(f"s_add_u32 {s(sKw)}, {s(sKw)}, {s(sT)}")
    A(f"s_lshl_b32 {s(sM0x)}, {s(sWave)}, 12")
    A(f"s_add_u32 {s(sM0w)}, {s(sM0x)}, {XB}")
    DL = opts.get("pfd", 8); P0 = 6
    vP, vD = b+29, b+27; sPw = 87
    A(f"s_lshl_b32 {s(sT)}, {s(sMt)}, 2")
    A(f"s_and_b32 {s(sT+1)}, {s(sWave)}, 1")
    A(f"s_lshl_b32 {s(sT+1)}, {s(sT+1)}, 1")
    A(f"s_add_u32 {s(sT)}, {s(sT)}, {s(sT+1)}")
    A(f"v_lshrrev_b32 {v(t0)}, 5, {v(vLL)}")
    A(f"v_add_u32 {v(vP)}, {s(sT)}, {v(t0)}")
    A(f"v_mul_u32_u24 {v(vP)}, 7168, {v(vP)}")
    A(f"v_and_b32 {v(t1)}, 16, {v(vLL)}")
    A(f"v_lshl_add_u32 {v(vP)}, {v(t1)}, 3, {v(vP)}")
    A(f"s_lshl_b32 {s(sPw)}, {s(sNt)}, 8")
    A(f"s_add_u32 {s(sPw)}, {s(sPw)}, {P0*32*7168}")
    pw = [f"buffer_load_dword {v(vD)}, {v(vP)}, {s(sW,4)}, {s(sPw)} offen", f"s_add_u32 {s(sPw)}, {s(sPw)}, {32*7168}"]
    EW = opts.get('EW', 2)
    sIsD = 84
    A(f"s_cmp_lt_u32 {s(sIdx)}, 28")
    A(f"s_cselect_b32 {s(sIsD)}, 1, 0")
    A(f"s_cmp_lt_u32 {s(sWave)}, 4")
    A(f"s_cselect_b32 {s(sIsD)}, {s(sIsD)}, 0")
    LC, LS, LT = 65536, 98304, 131072
    B1C, B1S, A2R, A2I, TWC, TWS = 64, 72, 80, 88, 96, 112
    vK1, vIdx, vB, vPh, vC = 12, 13, 14, 15, 20
    A(f"v_and_b32 {v(vK1)}, 31, {v(vL)}")
    A(f"v_add_u32 {v(vC)}, {LC}, {v(vOff)}")
    jend = A.newlabel("ka_jend"); jtw = A.newlabel("ka_jtw")
    A(f"s_xor_b32 {s(sT+3)}, {s(sWave)}, 4")
    A(f"s_cmp_ge_u32 {s(sT+3)}, 6")
    A(f"s_cbranch_scc1 {jend}")
    A(f"s_lshr_b32 {s(sT)}, {s(sT+3)}, 1")
    A(f"s_cmp_eq_u32 {s(sT)}, 1")
    A(f"s_cselect_b32 {s(sT+1)}, 15, 31")
    A(f"s_mov_b32 {s(sT+2)}, {f32(-1/32)}")
    A(f"s_cselect_b32 {s(sT+2)}, {f32(1/32)}, {s(sT+2)}")
    A(f"s_cselect_b32 s85, {f32(0.25)}, 0")
    A(f"v_and_b32 {v(vIdx)}, {s(sT+1)}, {v(vL)}")
    A(f"v_bfe_u32 {v(vPh)}, {v(vL)}, 4, 1")
    A(f"v_cvt_f32_u32 {v(vPh)}, {v(vPh)}")
    A(f"v_mul_f32 {v(vPh)}, s85, {v(vPh)}")
    A(f"s_cmp_eq_u32 {s(sT)}, 2")
    A(f"s_cselect_b32 {s(sT+1)}, 1023, 31")
    A(f"s_cselect_b32 {s(sT+2)}, {f32(-1/1024)}, {s(sT+2)}")
    A(f"s_and_b32 s85, {s(sT+3)}, 1")
    A(f"s_lshl_b32 s86, s85, 4")
    A(f"v_lshrrev_b32 {v(vB)}, 5, {v(vL)}")
    A(f"v_lshl_add_u32 {v(vB)}, {v(vB)}, 2, s86")
    A(f"v_mul_u32_u24 {v(vB)}, {v(vB)}, {v(vIdx)}")
    JT, JC, JS, JO = 64, 72, 80, 88
    for e, c in enumerate((0, 1, 2, 3, 8, 9, 10, 11)): A(f"v_mad_u32_u24 {v(JT+e)}, {c}, {v(vIdx)}, {v(vB)}")
    for e in range(8): A(f"v_and_b32 {v(JT+e)}, {s(sT+1)}, {v(JT+e)}")
    for e in range(8): A(f"v_cvt_f32_u32 {v(JT+e)}, {v(JT+e)}")
    for e in range(8): A(f"v_fma_f32 {v(JT+e)}, {v(JT+e)}, {s(sT+2)}, {v(vPh)}")
    for e in range(8): A(f"v_cos_f32 {v(JC+e)}, {v(JT+e)}")
    for e in range(8): A(f"v_sin_f32 {v(JS+e)}, {v(JT+e)}")
    A(f"s_cbranch_scc1 {jtw}") if False else None
    A(f"s_cmp_eq_u32 {s(sT)}, 2")
    A(f"s_cbranch_scc1 {jtw}")
    A(f"s_lshl_b32 {s(sT)}, {s(sT)}, 12")
    A(f"s_lshl_b32 s85, s85, 10")
    A(f"s_add_u32 {s(sT)}, {s(sT)}, s85")
    A(f"v_add_u32 {v(vB)}, {s(sT)}, {v(vC)}")
    for p in range(8): A(f"v_cvt_pk_bf16_f32 {v(JO+p)}, {v(JC+2*p)}, {v(JC+2*p+1)}")
    A(f"ds_write_b128 {v(vB)}, {v(JO,4)}")
    A(f"ds_write_b128 {v(vB)}, {v(JO+4,4)} offset:2048")
    A(f"s_branch {jend}")
    A.label(jtw)
    A(f"s_lshl_b32 s85, s85, 11")
    A(f"v_add_u32 {v(vB)}, s85, {v(vC)}")
    for q in range(2):
        A(f"ds_write_b128 {v(vB)}, {v(JC+4*q,4)} offset:{8192 + q*1024}")
        A(f"ds_write_b128 {v(vB)}, {v(JS+4*q,4)} offset:{12288 + q*1024}")
    A.label(jend)
    q0, q1, q2 = 17, 18, 19
    vLw, vLr, vTw, vDC = 21, 22, 23, 24
    A(f"s_lshl_b32 {s(sT)}, {s(sWave)}, 11")
    A(f"s_add_u32 {s(sT)}, {s(sT)}, {LS}")
    A(f"s_lshl_b32 {s(sT+1)}, {s(sWn)}, 6")
    A(f"v_xor_b32 {v(vLw)}, {s(sT+1)}, {v(vOff)}")
    A(f"v_add_u32 {v(vLw)}, {s(sT)}, {v(vLw)}")
    A(f"v_lshrrev_b32 {v(q0)}, 5, {v(vL)}")
    A(f"v_lshlrev_b32 {v(vTw)}, 11, {v(q0)}")
    A(f"v_lshlrev_b32 {v(q0)}, 8, {v(q0)}")
    A(f"v_bfe_u32 {v(q1)}, {v(vL)}, 2, 2")
    A(f"v_lshl_add_u32 {v(q0)}, {v(q1)}, 6, {v(q0)}")
    A(f"v_and_b32 {v(q1)}, 16, {v(vL)}")
    A(f"v_lshl_add_u32 {v(q0)}, {v(q1)}, 1, {v(q0)}")
    A(f"v_and_b32 {v(q2)}, 3, {v(vL)}")
    A(f"v_lshl_add_u32 {v(q0)}, {v(q2)}, 3, {v(q0)}")
    A(f"v_xor_b32 {v(q0)}, {s(sT+1)}, {v(q0)}")
    A(f"v_add_u32 {v(vLr)}, {s(sT)}, {v(q0)}")
    A(f"v_lshl_add_u32 {v(vTw)}, {v(vK1)}, 4, {v(vTw)}")
    A(f"s_lshl_b32 {s(sT)}, {s(sWave)}, 1")
    A(f"s_add_u32 {s(sT)}, {s(sT)}, {LT}")
    A(f"v_add_u32 {v(vTw)}, {s(sT)}, {v(vTw)}")
    A(f"v_cmp_eq_u32 s[96:97], 0, {v(vL)}")
    A(f"v_mov_b32 {v(vDC)}, 1.0")
    make_srd(A, sX, sWS, sWS+1, 2048*1024*2, add=WS_XN)
    A(f"v_cndmask_b32 {v(vDC)}, {v(vDC)}, 0.5, s[96:97]")
    F = 32; D = 48
    SUM, SQ, T1, T2, MB, RS = 25, 26, 27, 28, 29, 30
    def common_setup():
        L = vLL
        A(f"s_lshr_b32 {s(sWm)}, {s(sWave)}, 2")
        A(f"v_and_b32 {v(t0)}, 15, {v(L)}")
        A(f"v_lshrrev_b32 {v(t1)}, 4, {v(L)}")
        A(f"v_lshrrev_b32 {v(t2)}, 2, {v(L)}")
        A(f"v_and_b32 {v(t3)}, 2, {v(t2)}")
        A(f"v_xor_b32 {v(t3)}, {v(t3)}, {v(t1)}")
        A(f"v_lshlrev_b32 {v(t3)}, 4, {v(t3)}")
        A(f"v_lshl_add_u32 {v(t3)}, {v(t0)}, 6, {v(t3)}")
        A(f"s_lshl_b32 {s(sT)}, {s(sWm)}, 13")
        A(f"v_add_u32 {v(vXa[0])}, {s(sT)}, {v(t3)}")
        for g in range(1, nsg): A(f"v_add_u32 {v(vXa[g])}, {hex(65536*g)}, {v(vXa[0])}")
        A(f"v_and_b32 {v(t2)}, 3, {v(t2)}")
        A(f"v_lshlrev_b32 {v(t3)}, 11, {v(t1)}")
        A(f"v_lshl_add_u32 {v(t3)}, {v(t2)}, 8, {v(t3)}")
        A(f"v_and_b32 {v(t1)}, 1, {v(t1)}")
        A(f"v_lshl_or_b32 {v(t2)}, {v(t1)}, 2, {v(t2)}")
        A(f"s_lshl_b32 {s(sT)}, {s(sWn)}, 1")
        A(f"v_xor_b32 {v(t2)}, {s(sT)}, {v(t2)}")
        A(f"v_lshl_add_u32 {v(t3)}, {v(t2)}, 5, {v(t3)}")
        A(f"v_and_b32 {v(t2)}, 3, {v(L)}")
        A(f"v_lshl_add_u32 {v(t3)}, {v(t2)}, 3, {v(t3)}")
        A(f"v_add_u32 {v(vWa[0][0])}, {XB}, {v(t3)}")
        A(f"v_xor_b32 {v(vWa[1][0])}, 32, {v(vWa[0][0])}")
        for jt in range(2):
            for g in range(1, nsg): A(f"v_add_u32 {v(vWa[jt][g])}, {hex(65536*g)}, {v(vWa[jt][0])}")
        A(f"v_lshrrev_b32 {v(t1)}, 5, {v(L)}")
        A(f"v_lshrrev_b32 {v(t2)}, 3, {v(L)}")
        A(f"v_and_b32 {v(t2)}, 2, {v(t2)}")
        A(f"v_or_b32 {v(t1)}, {v(t1)}, {v(t2)}")
        A(f"v_lshlrev_b32 {v(t1)}, 8, {v(t1)}")
        A(f"v_lshl_add_u32 {v(t1)}, {v(t0)}, 4, {v(t1)}")
        A(f"s_lshl_b32 {s(sT)}, {s(sMt)}, 1")
        A(f"s_add_u32 {s(sT)}, {s(sT)}, {s(sWm)}")
        A(f"s_mul_i32 {s(sT)}, {s(sT)}, 112")
        A(f"s_lshl_b32 {s(sT+1)}, {s(sNt)}, 2")
        A(f"s_add_u32 {s(sT)}, {s(sT)}, {s(sT+1)}")
        A(f"s_add_u32 {s(sT)}, {s(sT)}, {s(sWn)}")
        A(f"s_lshl_b32 {s(sT)}, {s(sT)}, 13")
        A(f"v_add_u32 {v(vSt)}, {s(sT)}, {v(t1)}")
        k0 = -2.0*math.log2(math.e)*math.sqrt(2.0/math.pi); k1 = k0*0.044715
        for i, c in enumerate((k0, k0, k1, k1, 1.0, 1.0)): A(f"v_mov_b32 {v(vK+i)}, {f32(c)}")
        make_srd(A, sH, sWS, sWS+1, 2048*3584*2, add=WS_H)
    common_setup()
    A(f"v_lshlrev_b32 {v(vDx)}, 4, {v(vLL)}")
    tag_issue(A, sDbg, 216)
    wd = A.newlabel("ka_wd")
    A(f"s_cmp_eq_u32 {s(sIsD)}, 0")
    A(f"s_cbranch_scc1 {nd1}")
    for t in range(EW):
        for ins in dmaW(t): A(ins)
    A(f"s_waitcnt vmcnt({4+4*EW})")
    A(f"s_branch {wd}")
    A.label(nd1)
    A("s_waitcnt vmcnt(4)")
    A.label(wd)
    stamp(A, dict(stamp=opts.get("stamp0")), 1)
    dbg_mark(A, opts, 1, 254)
    for i in range(8):
        A(f"v_lshlrev_b32 {v(F+2*i)}, 16, {v(RAW+i)}")
        A(f"v_and_b32 {v(F+2*i+1)}, 0xffff0000, {v(RAW+i)}")
    A(f"v_readfirstlane_b32 {s(sT+3)}, {v(F)}")
    A("s_nop 1")
    for i in range(16): A(f"v_subrev_f32 {v(D+i)}, {s(sT+3)}, {v(F+i)}")
    A(f"v_add_f32 {v(SUM)}, {v(D)}, {v(D+1)}")
    A(f"v_mul_f32 {v(SQ)}, {v(D)}, {v(D)}")
    A(f"v_add_f32 {v(T1)}, {v(D+2)}, {v(D+3)}")
    A(f"v_mul_f32 {v(T2)}, {v(D+1)}, {v(D+1)}")
    for i in range(2, 16, 2):
        if i >= 4:
            A(f"v_add_f32 {v(SUM)}, {v(SUM)}, {v(D+i)}")
            A(f"v_add_f32 {v(T1)}, {v(T1)}, {v(D+i+1)}")
        A(f"v_fmac_f32 {v(SQ)}, {v(D+i)}, {v(D+i)}")
        A(f"v_fmac_f32 {v(T2)}, {v(D+i+1)}, {v(D+i+1)}")
    A(f"v_add_f32 {v(SUM)}, {v(SUM)}, {v(T1)}")
    A(f"v_add_f32 {v(SQ)}, {v(SQ)}, {v(T2)}")
    wave_allreduce_add2(A, [SUM, SQ], [T1, T2])
    A(f"v_mul_f32 {v(MB)}, {f32(1/1024)}, {v(SUM)}")
    A(f"v_mul_f32 {v(RS)}, {f32(1/1024)}, {v(SQ)}")
    A(f"v_fma_f32 {v(RS)}, -{v(MB)}, {v(MB)}, {v(RS)}")
    A(f"v_add_f32 {v(MB)}, {s(sT+3)}, {v(MB)}")
    A(f"v_max_f32 {v(RS)}, 0, {v(RS)}")
    round_bf16(A, RS)
    round_bf16(A, MB)
    A(f"v_add_f32 {v(RS)}, {f32(1e-5)}, {v(RS)}")
    round_bf16(A, RS)
    A(f"v_sqrt_f32 {v(RS)}, {v(RS)}")
    for i in range(16): A(f"v_sub_f32 {v(D+i)}, {v(F+i)}, {v(MB)}")
    round_bf16(A, RS)
    A(f"v_rcp_f32 {v(RS)}, {v(RS)}")
    for i in range(8): A(f"v_cvt_pk_bf16_f32 {v(RAW+i)}, {v(D+2*i)}, {v(D+2*i+1)}")
    for i in range(8):
        A(f"v_lshlrev_b32 {v(D+2*i)}, 16, {v(RAW+i)}")
        A(f"v_and_b32 {v(D+2*i+1)}, 0xffff0000, {v(RAW+i)}")
    for i in range(16): A(f"v_mul_f32 {v(D+i)}, {v(D+i)}, {v(RS)}")
    for i in range(8): A(f"v_cvt_pk_bf16_f32 {v(RAW+i)}, {v(D+2*i)}, {v(D+2*i+1)}")
    A(f"ds_write_b128 {v(vLw)}, {v(RAW,4)}")
    A(f"ds_write_b128 {v(vLw)}, {v(RAW+4,4)} offset:1024")
    def wpart():
        A(f"s_lshl_b32 {s(sT)}, {s(sWave)}, 11")
        A(f"s_add_u32 {s(sT)}, {s(sT)}, {LWR}")
        A(f"v_add_u32 v136, {s(sT)}, {v(vOff)}")
        A(f"ds_write_b128 v136, {v(WR,4)}")
        A(f"ds_write_b128 v136, {v(WR+4,4)} offset:1024")
        A(f"v_bfe_u32 v137, {v(vL)}, 2, 2")
        A(f"v_lshlrev_b32 v137, 8, v137")
        A(f"v_lshrrev_b32 v138, 4, {v(vL)}")
        A(f"v_lshl_add_u32 v137, v138, 5, v137")
        A(f"v_and_b32 v138, 3, {v(vL)}")
        A(f"v_lshl_add_u32 v137, v138, 3, v137")
        A(f"v_add_u32 v137, {s(sT)}, v137")
        A(f"v_and_b32 v138, 7, {v(vL)}")
        A(f"v_xor_b32 v138, {s(sWave)}, v138")
        A(f"v_lshlrev_b32 v138, 4, v138")
        A(f"v_lshl_add_u32 v138, {v(vL)}, 7, v138")
        A(f"v_add_u32 v138, {LWI}, v138")
        A("s_waitcnt lgkmcnt(0)")
        for ps_ in range(2):
            for eh in range(2):
                A(f"ds_read_b64_tr_b16 {v(140+4*ps_+2*eh,2)}, v137 offset:{eh*1024 + ps_*128}")
        A("s_waitcnt lgkmcnt(0)")
        for ps_ in range(2):
            A(f"ds_write_b128 v138, {v(140+4*ps_,4)} offset:{ps_*8192}")
    w1 = A.newlabel("ka_w1"); w2 = A.newlabel("ka_w2")
    A(f"s_cmp_eq_u32 {s(sIsD)}, 0")
    A(f"s_cbranch_scc1 {w1}")
    A(f"s_waitcnt vmcnt({4*EW})")
    A(f"s_branch {w2}")
    A.label(w1)
    A("s_waitcnt vmcnt(0)")
    A.label(w2)
    wpart()
    tag_check(A, sDbg, sTag, 216)
    A("s_waitcnt lgkmcnt(0)")
    A("s_barrier")
    dbg_mark(A, opts, 2, 254)
    CO = 196
    nco = A.newlabel("ka_nco")
    A(f"s_cmp_lt_u32 {s(sWave)}, 4")
    A(f"s_cbranch_scc1 {nco}")
    A("v_and_b32 v212, 255, v0")
    A("v_bfe_u32 v213, v0, 2, 2")
    A("v_lshrrev_b32 v214, 4, v212")
    A("v_xor_b32 v215, v214, v213")
    A("v_lshlrev_b32 v215, 6, v215")
    A("v_lshl_add_u32 v215, v213, 11, v215")
    A(f"s_and_b32 {s(sT)}, {s(sN2)}, 2")
    A("v_and_b32 v213, 3, v0")
    A(f"v_xor_b32 v213, {s(sT)}, v213")
    A("v_lshl_add_u32 v215, v213, 4, v215")
    A(f"v_add_u32 v215, {LS}, v215")
    for i in range(4):
        A(f"ds_read_b128 {v(CO+4*i,4)}, v215 offset:{(i>>1)*8192 + (i&1)*1024}")
    A("v_and_b32 v213, 15, v0")
    A("v_lshlrev_b32 v213, 4, v213")
    A("v_lshl_add_u32 v213, v214, 14, v213")
    A(f"s_lshl_b32 {s(sT)}, {s(sU)}, 19")
    A(f"s_lshl_b32 {s(sT+1)}, {s(sN2)}, 8")
    A(f"s_add_u32 {s(sT)}, {s(sT)}, {s(sT+1)}")
    for i in range(4):
        A(f"s_add_u32 {s(sT+1)}, {s(sT)}, {(i>>1)*(2<<19) + (i&1)*16*16384}")
        A(f"s_waitcnt lgkmcnt({3-i})")
        A(f"buffer_store_dwordx4 {v(CO+4*i,4)}, v213, {s(sX,4)}, {s(sT+1)} offen sc1")
    def signal(cnt_off, calc, va=40):
        calc()
        A(f"s_lshl_b32 {s(sT)}, {s(sT)}, 2")
        A(f"s_add_u32 {s(sT)}, {s(sT)}, {s(sWn)}")
        A(f"s_lshl_b32 {s(sT)}, {s(sT)}, 7")
        set_flag(A, sFb, sT, sTag, va)
    def calc_xf():
        A(f"s_and_b32 {s(sT)}, {s(sXcd)}, 3")
        A(f"s_lshl_b32 {s(sT)}, {s(sT)}, 6")
        A(f"s_add_u32 {s(sT)}, {s(sT)}, {s(sN2)}")
    def calc_yf():
        A(f"s_add_u32 {s(sT)}, s2, 256")
    A("s_waitcnt vmcnt(0)")
    signal(0, calc_xf)
    dbg_mark(A, opts, 3, 254)
    A.label(nco)
    OP = 12
    for u in range(2):
        for e in range(2):
            A(f"ds_read_b64_tr_b16 {v(OP+4*u+2*e,2)}, {v(vLr)} offset:{(16*u+8*e)*64}")
    for g in range(16):
        A(f"ds_read_b128 {v(64+4*g,4)}, {v(vC)} offset:{g*1024}")
    TR, TI = 32, 48
    A("s_waitcnt lgkmcnt(12)")
    A(f"{MF32} {v(TR,16)}, {v(OP,4)}, {v(B1C,4)}, 0")
    A(f"{MF32} {v(TI,16)}, {v(OP,4)}, {v(B1S,4)}, 0")
    A(f"{MF32} {v(TR,16)}, {v(OP+4,4)}, {v(B1C+4,4)}, {v(TR,16)}")
    A(f"{MF32} {v(TI,16)}, {v(OP+4,4)}, {v(B1S+4,4)}, {v(TI,16)}")
    make_srd(A, sA, sWS, sWS+1, 4 << 20, add=WS_YT)
    ng = A.newlabel("ka_ng")
    A(f"s_cmp_eq_u32 {s(sIsD)}, 0")
    A(f"s_cbranch_scc1 {ng}")
    for t in range(EW, NS):
        for ins in dmaW(t): A(ins)
    A.label(ng)
    A("s_waitcnt lgkmcnt(0)")
    A("s_nop 5")
    NY, NT = 27, 28
    WK = B1C
    A(f"v_sub_f32 {v(NY)}, {v(TR)}, {v(TR+1)}")
    A(f"v_sub_f32 {v(NT)}, {v(TR+2)}, {v(TR+3)}")
    for r in range(4, 16, 4):
        A(f"v_add_f32 {v(NY)}, {v(NY)}, {v(TR+r)}")
        A(f"v_add_f32 {v(NT)}, {v(NT)}, {v(TR+r+2)}")
        A(f"v_sub_f32 {v(NY)}, {v(NY)}, {v(TR+r+1)}")
        A(f"v_sub_f32 {v(NT)}, {v(NT)}, {v(TR+r+3)}")
    A(f"v_add_f32 {v(NY)}, {v(NY)}, {v(NT)}")
    A(f"v_mov_b32 {v(NT)}, {v(NY)}")
    def pk(op, d, *srcs, neg=None):
        m = ""
        if neg:
            bits = ",".join("1" if i in neg else "0" for i in range(len(srcs)))
            m = f" neg_lo:[{bits}] neg_hi:[{bits}]"
        A(f"v_pk_{op}_f32 {v(d,2)}, " + ", ".join(v(x,2) for x in srcs) + m)
    for r in range(0, 16, 2): pk("mul", WK+r, TR+r, TWC+r)
    for r in range(0, 16, 2): pk("mul", TR+r, TR+r, TWS+r)
    for r in range(0, 16, 2): pk("fma", WK+r, TI+r, TWS+r, WK+r, neg=[0])
    UR, UI = 4, 12
    for p in range(8): A(f"v_cvt_pk_bf16_f32 {v(UR+p)}, {v(WK+2*p)}, {v(WK+2*p+1)}")
    Y = WK
    for r in range(0, 16, 2): pk("fma", TR+r, TI+r, TWC+r, TR+r)
    A(f"{MF32} {v(Y,16)}, {v(A2R,4)}, {v(UR,4)}, 0")
    A(f"{MF32} {v(Y,16)}, {v(A2R+4,4)}, {v(UR+4,4)}, {v(Y,16)}")
    for p in range(8): A(f"v_cvt_pk_bf16_f32 {v(UI+p)}, {v(TR+2*p)}, {v(TR+2*p+1)}")
    A(f"v_permlane32_swap_b32 {v(NY)}, {v(NT)}")
    A("s_nop 0")
    A(f"{MF32} {v(Y,16)}, {v(A2I,4)}, {v(UI,4)}, {v(Y,16)}")
    A(f"{MF32} {v(Y,16)}, {v(A2I+4,4)}, {v(UI+4,4)}, {v(Y,16)}")
    A(f"v_add_f32 {v(NY)}, {v(NY)}, {v(NT)}")
    A(f"v_mul_f32 {v(NY)}, 0.5, {v(NY)}")
    A("s_nop 9")
    A(f"v_mul_f32 {v(Y)}, {v(Y)}, {v(vDC)}")
    A(f"v_cndmask_b32 {v(Y+8)}, {v(Y+8)}, {v(NY)}, s[96:97]")
    for p in range(8): A(f"v_cvt_pk_bf16_f32 {v(32+p)}, {v(Y+2*p)}, {v(Y+2*p+1)}")
    for r in range(16):
        c = r >> 3; k2 = 8*((r >> 2) & 1) + (r & 3)
        A(f"ds_write_b16{'_d16_hi' if r & 1 else ''} {v(vTw)}, {v(32+r//2)} offset:{(c*16+k2)*512}")
    A("s_waitcnt lgkmcnt(0)")
    A("s_barrier")
    stamp(A, dict(stamp=opts.get("stamp0")), 2)
    dbg_mark(A, opts, 10, 254)
    ny = A.newlabel("ka_ny")
    A(f"s_cmp_lt_u32 {s(sWave)}, 4")
    A(f"s_cbranch_scc1 {ny}")
    A("v_lshrrev_b32 v213, 1, v212")
    A("v_and_b32 v214, 1, v212")
    A("v_lshlrev_b32 v213, 4, v213")
    A("v_lshl_add_u32 v213, v214, 13, v213")
    A(f"v_add_u32 v213, {LT}, v213")
    for i in range(4): A(f"ds_read_b128 {v(CO+4*i,4)}, v213 offset:{i*2048}")
    A("v_lshlrev_b32 v214, 4, v212")
    A(f"s_lshl_b32 {s(sT)}, {s(sChunk)}, 14")
    for i in range(4):
        A(f"s_add_u32 {s(sT+1)}, {s(sT)}, {i*4096}")
        A(f"s_waitcnt lgkmcnt({3-i})")
        A(f"buffer_store_dwordx4 {v(CO+4*i,4)}, v214, {s(sA,4)}, {s(sT+1)} offen sc1")
    make_srd(A, sB, sWS, sWS+1, 513*WP, add=WS_WT)
    A("v_and_b32 v40, 7, v212")
    A("v_lshrrev_b32 v41, 3, v212")
    A("v_xor_b32 v42, v41, v40")
    A("v_and_b32 v42, 7, v42")
    A("v_lshlrev_b32 v42, 4, v42")
    A("v_lshl_add_u32 v42, v41, 7, v42")
    A(f"v_add_u32 v42, {LWI}, v42")
    for i in range(4): A(f"ds_read_b128 {v(128+4*i,4)}, v42 offset:{i*4096}")
    A(f"v_mul_u32_u24 v41, {WP}, v41")
    A("v_lshl_add_u32 v41, v40, 4, v41")
    A(f"s_and_b32 {s(sT)}, s2, 63")
    A(f"s_lshl_b32 {s(sT)}, {s(sT)}, 7")
    A(f"s_add_u32 {s(sT+2)}, {s(sT)}, {512*WP}")
    A(f"s_lshr_b32 {s(sT+1)}, s2, 6")
    A(f"s_mul_i32 {s(sT+1)}, {s(sT+1)}, {128*WP}")
    A(f"s_add_u32 {s(sT)}, {s(sT)}, {s(sT+1)}")
    for i in range(4):
        A(f"s_add_u32 {s(sT+1)}, {s(sT)}, {i*32*WP}")
        A(f"s_waitcnt lgkmcnt({3-i})")
        A(f"buffer_store_dwordx4 {v(128+4*i,4)}, v41, {s(sB,4)}, {s(sT+1)} offen sc1")
    A(f"s_cmp_eq_u32 {s(sWave)}, 4")
    A(f"s_cselect_b32 {s(sT+2)}, {s(sT+2)}, 0x40000000")
    A("s_cmp_ge_u32 s2, 192")
    A(f"s_cselect_b32 {s(sT+2)}, {s(sT+2)}, 0x40000000")
    A(f"buffer_store_short v194, v195, {s(sB,4)}, {s(sT+2)} offen sc1")
    A.label(ny)
    A(f"s_cmp_ge_u32 {s(sIdx)}, 28")
    A(f"s_cbranch_scc1 {fftl}")

    def reads(slot, rs):
        sg, so = divmod(slot*SLOT, 65536)
        X = [f"ds_read_b128 {v(opX(rs,i),4)}, {v(vXa[sg])} offset:{so + i*1024}" for i in range(8)]
        Wr = [f"ds_read_b64_tr_b16 {v(opW(rs,j)+2*e,2)}, {v(vWa[j%2][sg])} offset:{so + (j//2)*8192 + e*1024}" for j in range(4) for e in range(2)]
        return Wr + X
    def mfmas(rs, first):
        return [f"{MF} {v(acc(i,j),4)}, {v(opW(rs,j),4)}, {v(opX(rs,i),4)}, {'0' if first else v(acc(i,j),4)}" for i in range(8) for j in range(4)]
    def mainloop(isd, hook=None, pfs=()):
        A("s_barrier")
        stamp(A, opts, 1)
        if not isd: dbg_mark(A, opts, 4, 254)
        for ins in reads(0, 0): A(ins)
        YS = opts.get("ys", 1)
        def step(t, do_dma=True, vm=None, bar=True):
            slot = t % NS; rs = t % 2
            mf = mfmas(rs, t == 0); n = 32
            A(f"s_waitcnt vmcnt({vm}) lgkmcnt(0)" if (isd and bar) else "s_waitcnt lgkmcnt(0)")
            if bar: A("s_barrier")
            fl = []; sl = []
            if t+1 < KS:
                rd = reads((t+1) % NS, 1-rs)
                r0, r1 = opts.get("rspan", (0.0, 0.6))
                for q, ins in enumerate(rd): fl.append(ins); sl.append(int((r0 + (r1-r0)*q/len(rd))*n))
            dm = ((dmaW(slot) + dmaX(slot)) if do_dma else []) if isd else (pfs if YS < t < KS-1 else [])
            d0, d1 = opts.get("dspan", (0.1, 0.9))
            for q, ins in enumerate(dm): fl.append(ins); sl.append(int((d0 + (d1-d0)*q/len(dm))*n))
            for ins in interleave(mf, fl, sl): A(ins)
            if t == YS and hook: hook()
        ndma = KS - NS
        step(0, vm=8); step(1, vm=4+8); step(2, vm=16)
        step(3, vm=16); step(4, vm=16)
        t = 5
        nl = (ndma - t)//NS
        lp = A.newlabel("loop")
        A(f"s_mov_b32 {s(sLoop)}, {nl}")
        A.label(lp)
        for j in range(NS): step(t+j, vm=16)
        A(f"s_sub_u32 {s(sLoop)}, {s(sLoop)}, 1")
        A(f"s_cmp_lg_u32 {s(sLoop)}, 0")
        A(f"s_cbranch_scc1 {lp}")
        t += nl*NS
        while t < KS:
            lastissued = min(t+NS-1, KS-1)
            vm = 8*max(0, lastissued-(t+1))
            if t == KS - FR: vm = 0
            step(t, do_dma=(t < ndma), vm=vm, bar=(t <= KS - FR and t < KS-1) or (FR == 0 and t < KS-1))
            t += 1
    A(f"s_cmp_ge_u32 {s(sWave)}, 4")
    A(f"s_cbranch_scc1 {pfl}")
    A(f"s_lshl_b32 {s(sKx)}, {s(sMt)}, 19")
    A(f"s_add_u32 {s(sKx)}, {s(sKx)}, {s(sM0x)}")
    A(f"s_lshr_b32 {s(sT)}, {s(sMt)}, 2")
    A(f"s_lshl_b32 {s(sT)}, {s(sT)}, 1")
    A(f"s_and_b32 {s(sT+1)}, {s(sMt)}, 1")
    A(f"s_add_u32 {s(sT)}, {s(sT)}, {s(sT+1)}")
    A(f"s_lshl_b32 {s(sT)}, {s(sT)}, 15")
    A(f"v_and_b32 v44, 15, {v(vLL)}")
    A(f"s_lshl_b32 {s(sT+1)}, {s(sWave)}, 13")
    A(f"s_add_u32 {s(sT)}, {s(sT)}, {s(sT+1)}")
    A(f"v_lshlrev_b32 v44, 7, {v(vLL)}")
    A(f"v_add_u32 v44, {s(sT)}, v44")
    poll_flags(A, sFb, 44, 1, sTag, 40, 96, sleep=opts.get("psleep", 2))
    dbg_mark(A, opts, 13, 254)
    for t in range(NS):
        for ins in dmaX(t): A(ins)
    A(f"s_waitcnt vmcnt(12)")
    mainloop(True)
    A(f"s_branch {epi}")
    A.label(pfl)
    vP2, vS = b+26, b+28
    A(f"v_lshrrev_b32 {v(t0)}, 5, {v(vLL)}")
    A(f"s_mul_i32 {s(sT)}, {s(sMt)}, 28")
    A(f"s_add_u32 {s(sT)}, {s(sT)}, {s(sNt)}")
    A(f"s_lshl_b32 {s(sT)}, {s(sT)}, 2")
    A(f"s_add_u32 {s(sT)}, {s(sT)}, {s(sWn)}")
    A(f"s_lshl_b32 {s(sKx)}, {s(sT)}, 8")
    A(f"s_lshl_b32 {s(sPf)}, {s(sT)}, 10")
    A(f"v_lshlrev_b32 {v(vP2)}, 7, {v(t0)}")
    A(f"v_lshlrev_b32 {v(vS)}, 4, {v(vLL)}")
    for i in range(4): A(f"v_mov_b32 {v(vDw[i])}, -1")
    make_srd(A, sD, 92, 93, 1024*3584*2)
    make_srd(A, sP, sWS, sWS+1, 256*32768, add=WS_PART)
    pd = [f"buffer_load_dword {v(vD)}, {v(vP2)}, {s(sD,4)}, {s(sKx)} offen", f"s_add_u32 {s(sKx)}, {s(sKx)}, {32*7168}"]
    ps = [f"buffer_store_dwordx4 {v(vDw[0],4)}, {v(vS)}, {s(sP,4)}, {s(sPf)} offen sc1", f"s_add_u32 {s(sPf)}, {s(sPf)}, {896*1024}"]
    if opts.get("nopfw"): pw = []
    if not opts.get("sentinel"): ps = []
    def zero_flags(va, L):
        make_srd(A, sB, sWS, sWS+1, 65536, add=WS_FLAG)
        A(f"s_lshl_b32 {s(sT)}, s2, 8")
        A(f"s_cmp_eq_u32 {s(sWave)}, 5")
        A(f"s_cselect_b32 {s(sT)}, {s(sT)}, 0x100000")
        A(f"v_lshlrev_b32 {v(va)}, 2, {v(L)}")
        A(f"v_mov_b32 {v(va+1)}, 0")
        A(f"buffer_store_dword {v(va+1)}, {v(va)}, {s(sB,4)}, {s(sT)} offen")
    def hook():
        A("s_waitcnt vmcnt(0)")
        signal(4, calc_yf, va=t1)
        dbg_mark(A, opts, 15, 254)
        A("s_nop 1")
        zero_flags(t1, vLL)
        for ins in pw*DL + pd*(opts.get("ys", 1)+2): A(ins)
    mainloop(False, hook, pw + pd + ps)
    A.label(epi)
    dbg_mark(A, opts, 5, 254)
    stamp(A, opts, 2)
    E = R[0]; sRow = 41
    for i in range(8):
        Tm = E + (i % 2)*16; P = Tm + 8
        g = acc(i, 0); u = acc(i, 2)
        for r in range(0, 8, 2): pk("mul", Tm+r, g+r, g+r)
        for r in range(0, 8, 2): pk("fma", Tm+r, Tm+r, vK+2, vK)
        for r in range(0, 8, 2): pk("mul", Tm+r, Tm+r, g+r)
        for r in range(8): A(f"v_exp_f32 {v(Tm+r)}, {v(Tm+r)}")
        for r in range(0, 8, 2): pk("mul", u+r, u+r, g+r)
        for r in range(0, 8, 2): pk("add", Tm+r, Tm+r, vK+4)
        for r in range(8): A(f"v_rcp_f32 {v(Tm+r)}, {v(Tm+r)}")
        A(f"s_mov_b32 {s(sRow)}, {i*1024}")
        for r in range(0, 8, 2): pk("mul", Tm+r, Tm+r, u+r)
        for r in range(4): A(f"v_cvt_pk_bf16_f32 {v(P+r)}, {v(Tm+2*r)}, {v(Tm+2*r+1)}")
        A("s_nop 1")
        A(f"v_permlane16_swap_b32 {v(P)}, {v(P+2)}")
        A(f"v_permlane16_swap_b32 {v(P+1)}, {v(P+3)}")
        A(f"buffer_store_dwordx4 {v(P,4)}, {v(vSt)}, {s(sH,4)}, {s(sRow)} offen sc1")
    if opts.get("stamp") or opts.get("stamp0"):
        A("s_waitcnt vmcnt(0)")
        stamp(A, opts, 3)
        stamp_store(A, dict(stamp=True), 4, sWS, E, sWave)
    if opts.get("tldbg"): A("s_waitcnt vmcnt(0)")
    dbg_mark(A, opts, 6, 254)
    A.label(done)
    A("s_endpgm")
    from fft2 import gen_fft_role2
    A.label(fftl)
    fr1 = A.newlabel("ka_fr1")
    A(f"s_cmp_lt_u32 {s(sWave)}, 4")
    A(f"s_cbranch_scc1 {fr1}")
    A("s_waitcnt vmcnt(0)")
    signal(4, calc_yf)
    A("s_nop 1")
    zero_flags(40, vL)
    A.label(fr1)
    A(f"s_sub_u32 s42, {s(sIdx)}, 28")
    A(f"s_lshl_b32 {s(sT)}, {s(sXcd)}, 2")
    A(f"s_add_u32 s42, s42, {s(sT)}")
    A(f"s_mov_b32 s40, {s(sWave)}")
    A(f"s_mov_b64 s[26:27], {s(sDbg,2)}")
    A(f"s_mov_b64 s[88:89], {s(sFb,2)}")
    A(f"s_mov_b64 s[90:91], {s(sTag,2)}")
    o = dict(opts); o["stamp"] = opts.get("stampf"); o["nopf"] = True; o["fused"] = True
    gen_fft_role2(A, o, 42, done)
    return 163840
```

```python
from asmlib import *
from layout import *
def get_tag(A, sDbg, sTag, va):
    lp = A.newlabel("tag")
    A(f"v_mov_b32 {v(va+2)}, 64")
    A.label(lp)
    A(f"global_load_dwordx2 {v(va,2)}, {v(va+2)}, {s(sDbg,2)} sc1")
    A("s_waitcnt vmcnt(0)")
    A(f"v_readfirstlane_b32 {s(sTag)}, {v(va)}")
    A(f"v_readfirstlane_b32 {s(sTag+1)}, {v(va+1)}")
    A("s_nop 3")
    A(f"s_cmp_eq_u32 {s(sTag+1)}, 0")
    A(f"s_cbranch_scc1 {lp}")
def set_flag(A, sFb, sOff, sTag, va):
    A(f"v_mov_b32 {v(va)}, {s(sTag)}")
    A(f"v_mov_b32 {v(va+1)}, {s(sTag+1)}")
    A(f"v_mov_b32 {v(va+2)}, {s(sOff)}")
    A("s_mov_b64 exec, 1")
    A(f"global_store_dwordx2 {v(va+2)}, {v(va,2)}, {s(sFb,2)} sc1")
    A("s_mov_b64 exec, -1")
def poll_flags(A, sFb, vOffs, n, sTag, va, sM, sleep=1, stride=512):
    lp = A.newlabel("pollf")
    A.label(lp)
    if sleep: A(f"s_sleep {sleep}")
    for i in range(n):
        A(f"global_load_dwordx2 {v(va+2*i,2)}, {v(vOffs)}, {s(sFb,2)} offset:{i*stride} sc1")
    A("s_waitcnt vmcnt(0)")
    A(f"v_cmp_eq_u64 vcc, {s(sTag,2)}, {v(va,2)}")
    for i in range(1, n):
        A(f"v_cmp_eq_u64 {s(sM,2)}, {s(sTag,2)}, {v(va+2*i,2)}")
        A("s_nop 1")
        A(f"s_and_b64 vcc, vcc, {s(sM,2)}")
    A("s_nop 1")
    A("s_cmp_eq_u64 vcc, -1")
    A(f"s_cbranch_scc0 {lp}")

def poll_flags4(A, sFb, vOffs, n, sTag, va, sM, sleep=4):
    lp = A.newlabel("pollf")
    A.label(lp)
    if sleep: A(f"s_sleep {sleep}")
    for i in range(n):
        for hh in range(2):
            A(f"global_load_dwordx4 {v(va+8*i+4*hh,4)}, {v(vOffs)}, {s(sFb,2)} offset:{i*2048+hh*16} sc1")
    A("s_waitcnt vmcnt(0)")
    A(f"v_cmp_eq_u64 vcc, {s(sTag,2)}, {v(va,2)}")
    for i in range(1, 4*n):
        A(f"v_cmp_eq_u64 {s(sM,2)}, {s(sTag,2)}, {v(va+2*i,2)}")
        A("s_nop 1")
        A(f"s_and_b64 vcc, vcc, {s(sM,2)}")
    A("s_cmp_eq_u64 vcc, -1")
    A(f"s_cbranch_scc0 {lp}")

def tag_issue(A, sDbg, va):
    A(f"v_mov_b32 {v(va+2)}, 64")
    A(f"global_load_dwordx2 {v(va,2)}, {v(va+2)}, {s(sDbg,2)} sc1")
def tag_check(A, sDbg, sTag, va):
    ok = A.newlabel("tagok")
    A(f"v_readfirstlane_b32 {s(sTag)}, {v(va)}")
    A(f"v_readfirstlane_b32 {s(sTag+1)}, {v(va+1)}")
    A("s_nop 3")
    A(f"s_cmp_lg_u32 {s(sTag+1)}, 0")
    A(f"s_cbranch_scc1 {ok}")
    get_tag(A, sDbg, sTag, va)
    A.label(ok)
```

```python
from asmlib import *
from layout import *
from dbgstamp import *
from sync import *
from gemm import stamp, stamp_store
from colfft import col_params
from rowifft import chunk_rows
MF = "v_mfma_f32_32x32x16_bf16"

def pk(op, d, *srcs, neg=None):
    ss = ", ".join(v(x, 2) for x in srcs)
    m = ""
    if neg:
        bits = ",".join("1" if i in neg else "0" for i in range(len(srcs)))
        m = f" neg_lo:[{bits}] neg_hi:[{bits}]"
    return f"v_pk_{op}_f32 {v(d,2)}, {ss}{m}"

USE_PK = False
def pk2(A, op, n, d, *srcs, neg=None):
    if USE_PK:
        for r in range(0, n, 2): A(pk(op, d+r, *[x+r for x in srcs], neg=neg))
        return
    for r in range(n):
        ss = [("-" if (neg and i in neg) else "") + v(x+r) for i, x in enumerate(srcs)]
        A(f"v_{op}_f32 {v(d+r)}, " + ", ".join(ss))

def angle(A, t, b0, vIdx, vH4, mod, sign=1.0, vPhase=None):
    if b0 <= 64:
        A(f"v_mad_u32_u24 {v(t)}, {b0}, {v(vIdx)}, {v(vH4)}")
    else:
        A(f"v_mul_u32_u24 {v(t)}, {b0}, {v(vIdx)}")
        A(f"v_add_u32 {v(t)}, {v(t)}, {v(vH4)}")
    A(f"v_and_b32 {v(t)}, {mod-1}, {v(t)}")
    A(f"v_cvt_f32_u32 {v(t)}, {v(t)}")
    if vPhase is None:
        A(f"v_mul_f32 {v(t)}, {f32(sign/mod)}, {v(t)}")
    else:
        A(f"v_fmamk_f32 {v(t)}, {v(t)}, {f32(sign/mod)}, {v(vPhase)}")

def job_trig(A, b0s, vIdx, vH4, mod, W, vAddr, outs, vPhase=None):
    T, C, S, O = W, W+8, W+16, W+24
    for e in range(8): angle(A, T+e, b0s[e], vIdx, vH4, mod, vPhase=vPhase)
    for e in range(8): A(f"v_cos_f32 {v(C+e)}, {v(T+e)}")
    for e in range(8): A(f"v_sin_f32 {v(S+e)}, {v(T+e)}")
    A("s_nop 0")
    for k, (kind, off) in enumerate(outs):
        o = O + 4*k
        for p in range(4):
            if kind == 'c': A(f"v_cvt_pk_bf16_f32 {v(o+p)}, {v(C+2*p)}, {v(C+2*p+1)}")
            if kind == 's': A(f"v_cvt_pk_bf16_f32 {v(o+p)}, {v(S+2*p)}, {v(S+2*p+1)}")
            if kind == 'n': A(f"v_cvt_pk_bf16_f32 {v(o+p)}, -{v(S+2*p)}, -{v(S+2*p+1)}")
        A(f"ds_write_b128 {v(vAddr)}, {v(o,4)} offset:{off}")

def job_tw(A, b0s, vIdx, vH4, mod, W, vAddr, offc, offs, sign=1.0, scale=None):
    T, C, S = W, W+8, W+16
    for e in range(8): angle(A, T+e, b0s[e], vIdx, vH4, mod, sign=sign)
    for e in range(8): A(f"v_cos_f32 {v(C+e)}, {v(T+e)}")
    for e in range(8): A(f"v_sin_f32 {v(S+e)}, {v(T+e)}")
    A("s_nop 0")
    if scale is not None:
        for e in range(16): A(f"v_mul_f32 {v(C+e)}, {f32(scale)}, {v(C+e)}")
    for q in range(2):
        A(f"ds_write_b128 {v(vAddr)}, {v(C+4*q,4)} offset:{offc+q*1024}")
        A(f"ds_write_b128 {v(vAddr)}, {v(S+4*q,4)} offset:{offs+q*1024}")

def run_jobs(A, jobs, sWave, nw):
    load = [0]*nw; asg = [[] for _ in range(nw)]
    for cost, fn in sorted(jobs, key=lambda x: -x[0]):
        w = load.index(min(load)); load[w] += cost; asg[w].append(fn)
    end = A.newlabel("jobs_end")
    for w in range(nw):
        if not asg[w]: continue
        nxt = A.newlabel("jobs")
        A(f"s_cmp_lg_u32 {s(sWave)}, {w}")
        A(f"s_cbranch_scc1 {nxt}")
        for fn in asg[w]: fn()
        A(f"s_branch {end}")
        A.label(nxt)
    A.label(end)

PI = lambda u, base=0: [base + 16*u + 8*(e//4) + e % 4 for e in range(8)]
EO = lambda it, par: [32*it + 8*(e//2) + 2*(e % 2) + par for e in range(8)]
DR = lambda half, base=0: [base + 8*(r//4) + r % 4 for r in range(8*half, 8*half+8)]

def cmul_pk(A, ar, ai, c, sn, X):
    for r in range(0, 8, 2): A(pk("mul", X+r, ar+r, c+r))
    for r in range(0, 8, 2): A(pk("mul", ar+r, ar+r, sn+r))
    for r in range(0, 8, 2): A(pk("fma", X+r, ai+r, sn+r, X+r, neg=[0]))
    for r in range(0, 8, 2): A(pk("fma", ai+r, ai+r, c+r, ar+r))

def gen_fft_role2(A, opts, sFid, done, NF=32):
    vL, vOff, vTw = 1, 2, 3
    ROFF = [8, 9, 10, 11, 16, 17, 18, 19]
    C32, S32, N32 = 8, 16, 24
    K64 = 32
    def k64(par, kind, it): return K64 + ((par*3 + 'csn'.index(kind))*2 + it)*4
    SX, SY, SZ = 80, 112, 144
    ACC = 176
    TMP = 240
    XS = 0
    accr = lambda t: ACC + 16*t
    acci = lambda t: ACC + 32 + 16*t
    TW1, TW2, CC, RC = 0, 16384, 32768, 32768 + 18*1024
    sYT, sZT, sWT, sX, sXY = 8, 12, 16, 20, 44
    sWS = 24; sDbg = 26; sWave = 40; sCol, sRe, sIm, sWo = 30, 31, 32, 34
    sRe2, sIm2 = 36, 37
    sT = 48
    FU = opts.get("fused")
    LF = " sc1" if FU else ""
    stamp(A, opts, 0)
    if not FU:
        A(f"s_load_dwordx4 {s(sT,4)}, s[0:1], 64")
        A("v_lshrrev_b32 v2, 6, v0")
        A(f"v_and_b32 {v(vL)}, 63, v0")
        A("s_nop 0")
        A(f"v_readfirstlane_b32 {s(sWave)}, v2")
        A("s_nop 3")
    A(f"s_lshl_b32 {s(sCol)}, {s(sFid)}, 3")
    A(f"s_add_u32 {s(sCol)}, {s(sCol)}, {s(sWave)}")
    col_params(A, sCol, sRe, sIm, sWo, 38)
    A(f"v_lshlrev_b32 {v(vOff)}, 4, {v(vL)}")
    if not FU:
        A("s_waitcnt lgkmcnt(0)")
        A(f"s_mov_b64 {s(sDbg,2)}, {s(sT,2)}")
        A(f"s_mov_b64 {s(sWS,2)}, {s(sT+2,2)}")
    make_srd(A, sYT, sWS, sWS+1, 4<<20, add=WS_YT)
    make_srd(A, sWT, sWS, sWS+1, 513*WP, add=WS_WT)
    PST = 65536
    vPd, vPr = 252, 253
    def dma_P(rnd):
        for i in range(8):
            A(f"s_add_u32 m0, {s(sM0)}, {i*1024}")
            A(f"s_add_u32 {s(sT)}, {s(sPb)}, {i*4*16384 + rnd*8192}")
            A(f"buffer_load_dwordx4 {v(vPdi[i%4])}, {s(sYT,4)}, {s(sT)} offen{LF} lds")
    def read_P():
        for c in range(2):
            for q in range(4):
                A(f"ds_read_b128 {v(SX + c*16 + q*4, 4)}, {v(vPrd[c])} offset:{q*16384}")
    def load_W():
        for q in range(8):
            A(f"buffer_load_dwordx4 {v(SZ+4*q,4)}, {v(vOff)}, {s(sWT,4)}, {s(sWo + (q//4))} offen offset:{(q%4)*1024}{LF}")
    sM0, sPb = 41, 43
    vPdi = [SY, SY+1, SY+2, SY+3]
    vPrd = [3, 0]
    def calc_pd():
        A(f"v_lshrrev_b32 {v(SY+4)}, 4, {v(vL)}")
        A(f"v_and_b32 {v(SY+5)}, 15, {v(vL)}")
        A(f"v_xor_b32 {v(SY+5)}, {v(SY+5)}, {v(SY+4)}")
        A(f"v_lshlrev_b32 {v(SY+5)}, 4, {v(SY+5)}")
        A(f"v_lshl_add_u32 {v(vPdi[0])}, {v(SY+4)}, 14, {v(SY+5)}")
        for i in range(1, 4): A(f"v_xor_b32 {v(vPdi[i])}, {i*64}, {v(vPdi[0])}")
    calc_pd()
    A(f"s_lshl_b32 {s(sM0)}, {s(sWave)}, 13")
    A(f"s_add_u32 {s(sM0)}, {s(sM0)}, {PST}")
    A(f"s_lshl_b32 {s(sPb)}, {s(sWave)}, 19")
    A(f"s_lshl_b32 {s(sT)}, {s(sFid)}, 8")
    A(f"s_add_u32 {s(sPb)}, {s(sPb)}, {s(sT)}")
    if not FU:
        dma_P(0)
        load_W()
    A(f"s_lshl_b32 {s(sT)}, {s(sWave)}, 1")
    A(f"v_and_b32 v4, 15, {v(vL)}")
    A(f"v_xor_b32 v4, {s(sT)}, v4")
    A(f"v_lshlrev_b32 v4, 4, v4")
    A(f"v_lshl_add_u32 v4, {v(vL)}, 8, v4")
    A(f"v_add_u32 v3, {PST}, v4")
    A(f"v_xor_b32 v0, 16, v3")
    npf = 0
    if not opts.get("nopf"):
        PFK = opts.get("pfk", 256)
        make_srd(A, 92, 84, 85, 1024*3584*2)
        make_srd(A, 96, 86, 87, 1024*3584*2)
        make_srd(A, 88, 6, 7, 1024*3584*2)
        A(f"v_lshlrev_b32 v4, 7, v0")
        A(f"s_lshl_b32 {s(sT)}, {s(sFid)}, 16")
        A(f"s_add_u32 {s(sT+1)}, {s(sT)}, {PFK*7168}")
        nit = -(-(1024-PFK)*7168 // (32 << 16))
        for i in range(nit):
            A(f"buffer_load_dword v3, v4, s[92:95], {s(sT+1)} offen")
            A(f"buffer_load_dword v3, v4, s[96:99], {s(sT+1)} offen")
            A(f"s_add_u32 {s(sT+1)}, {s(sT+1)}, {32<<16}")
            npf += 2
    make_srd(A, sZT, sWS, sWS+1, 1024*YP, add=WS_ZT)
    make_srd(A, sXY, sWS, sWS+1, 4 << 20, add=WS_XY)
    W = ACC
    vI, vH4, vI2, vH42, vN2, vH4n = TMP, TMP+1, TMP+2, TMP+3, TMP+4, TMP+5
    t0, t1, t2 = TMP+6, TMP+7, TMP+8
    A(f"v_and_b32 {v(vI)}, 31, {v(vL)}")
    A(f"v_lshrrev_b32 {v(t0)}, 5, {v(vL)}")
    A(f"v_lshlrev_b32 {v(t0)}, 2, {v(t0)}")
    A(f"v_mul_u32_u24 {v(vH4)}, {v(t0)}, {v(vI)}")
    A(f"v_add_u32 {v(vI2)}, 32, {v(vI)}")
    A(f"v_mul_u32_u24 {v(vH42)}, {v(t0)}, {v(vI2)}")
    A(f"v_bfe_u32 {v(t1)}, {v(vL)}, 2, 1")
    A(f"v_lshlrev_b32 {v(t1)}, 4, {v(t1)}")
    A(f"v_bfe_u32 {v(t2)}, {v(vL)}, 3, 2")
    A(f"v_lshl_add_u32 {v(t1)}, {v(t2)}, 2, {v(t1)}")
    A(f"v_and_b32 {v(t2)}, 3, {v(vL)}")
    A(f"v_add_u32 {v(vN2)}, {v(t1)}, {v(t2)}")
    A(f"v_mul_u32_u24 {v(vH4n)}, {v(t0)}, {v(vN2)}")
    img = lambda reg: CC + ((reg - 8)//4)*1024
    def rimg(reg):
        if reg < 80: return RC + ((reg - 64)//4)*1024
        if reg < 88: return img(C32 + reg - 80)
        if reg < 96: return img(N32 + reg - 88)
        return RC + (4 + (reg - 96)//4)*1024
    jobs = []
    for u in range(2):
        jobs.append((60, lambda u=u: job_trig(A, PI(u), vI, vH4, 32, W, vOff, [('c', img(C32+4*u)), ('s', img(S32+4*u)), ('n', img(N32+4*u)), ('c', rimg(80+4*u))][:3] + [])))
    for par in range(2):
        for it in range(2):
            jobs.append((60, lambda par=par, it=it: job_trig(A, EO(it, par), vI, vH4, 64, W, vOff, [(k, img(k64(par, k, it))) for k in 'csn'])))
    for t in range(2):
        for half in range(2):
            jobs.append((52, lambda t=t, half=half: job_tw(A, DR(half, 32*t), vI, vH4, 2048, W, vOff, TW1 + t*8192 + half*2048, TW1 + t*8192 + 4096 + half*2048, sign=-1.0)))
            jobs.append((68, lambda t=t, half=half: job_tw(A, DR(half), vI if t == 0 else vI2, vH4 if t == 0 else vH42, 2048, W, vOff, TW2 + t*8192 + half*2048, TW2 + t*8192 + 4096 + half*2048, scale=2.0**-20)))
    if not opts.get("colonly"): jobs.append((64, lambda: job_trig(A, PI(0), vN2, vH4n, 32, W, vOff, [('c', rimg(64)), ('n', rimg(68)), ('s', rimg(72)), ('c', rimg(76))])))
    for half in range(0 if opts.get("colonly") else 2):
        jobs.append((52, lambda half=half: job_tw(A, DR(half), vN2, vH4n, 1024, W, vOff, rimg(96) + half*2048, rimg(112) + half*2048)))
    run_jobs(A, jobs, sWave, 8)
    fs = dict(stamp=opts.get("stamp") and opts.get("fine"))
    stamp(A, fs, 4)
    if FU:
        f2 = A.newlabel("ff2")
        A(f"s_lshl_b32 {s(sT)}, {s(sWave)}, 14")
        A(f"s_add_u32 {s(sT)}, {s(sT)}, {1024*128}")
        A(f"v_lshl_add_u32 v4, {v(vL)}, 8, {s(sT)}")
        poll_flags(A, 88, 4, 2, 90, SX, 92, sleep=4, stride=128)
        A.label(f2)
        A("s_waitcnt lgkmcnt(0)")
        A("s_barrier")
        dma_P(0)
        load_W()
    A("s_waitcnt vmcnt(8) lgkmcnt(0)")
    A("s_barrier")
    read_P()
    for g in range(18):
        A(f"ds_read_b128 {v(8+4*g,4)}, {v(vOff)} offset:{CC + g*1024}")
    A("s_waitcnt lgkmcnt(0)")
    A("s_barrier")
    dma_P(1)
    def zero_im():
        z = A.newlabel("zim")
        A(f"s_and_b32 {s(sT)}, {s(sCol)}, 511")
        A(f"s_cmp_lg_u32 {s(sT)}, 0")
        A(f"s_cbranch_scc1 {z}")
        for r in range(16): A(f"v_mov_b32 {v(SX+16+r)}, 0")
        A.label(z)
    zero_im()
    XS = TMP + 16 - 16
    Pr = lambda it, u: SX + (it*2+u)*4
    Pi = lambda it, u: SX + 16 + (it*2+u)*4
    Zr = lambda it, u: SZ + (it*2+u)*4
    Zi = lambda it, u: SZ + 16 + (it*2+u)*4
    Yo = lambda c, par, it: SY + ((c*2 + par)*2 + it)*4

    def tw_load(table, g):
        t, q = g >> 2, g & 3
        o = TMP + 8*(g & 1)
        A(f"ds_read_b128 {v(o,4)}, {v(vOff)} offset:{table + t*8192 + q*1024}")
        A(f"ds_read_b128 {v(o+4,4)}, {v(vOff)} offset:{table + t*8192 + (4+q)*1024}")
    def cmul4(g, eo):
        t, q = g >> 2, g & 3
        ar = accr(t) + 4*q; ai = acci(t) + 4*q; c = TMP + 8*(g & 1); sn = c + 4
        pk2(A, "mul", 4, 4, ar, c)
        pk2(A, "mul", 4, ar, ar, sn)
        pk2(A, "fma", 4, 4, ai, sn, 4, neg=[0])
        pk2(A, "fma", 4, ai, ai, c, ar)
        if eo:
            A(f"v_cvt_pk_bf16_f32 {v(Yo(0,0,t)+q)}, v4, v6")
            A(f"v_cvt_pk_bf16_f32 {v(Yo(0,1,t)+q)}, v5, v7")
            A(f"v_cvt_pk_bf16_f32 {v(Yo(1,0,t)+q)}, {v(ai)}, {v(ai+2)}")
            A(f"v_cvt_pk_bf16_f32 {v(Yo(1,1,t)+q)}, {v(ai+1)}, {v(ai+3)}")
        else:
            for p in range(2):
                A(f"v_cvt_pk_bf16_f32 {v(Zr(t,0)+2*q+p)}, {v(4+2*p)}, {v(5+2*p)}")
            for p in range(2):
                A(f"v_cvt_pk_bf16_f32 {v(Zi(t,0)+2*q+p)}, {v(ai+2*p)}, {v(ai+2*p+1)}")
    def tw_phase(table, eo):
        for g in range(8):
            A(f"s_waitcnt lgkmcnt({2 if g < 7 else 0})")
            cmul4(g, eo)
            if g+2 < 8: tw_load(table, g+2)
    def bfly():
        for c in range(2):
            e = ACC + 32*c; o = e + 16
            pk2(A, "add", 16, e, e, o)
            for r in range(16): A(f"v_fma_f32 {v(o+r)}, {v(o+r)}, -2.0, {v(e+r)}")
    A("s_mov_b32 s54, -2.0")
    A("s_mov_b32 s55, -2.0")
    lp = A.newlabel("col_loop"); cend = A.newlabel("col_end"); nopre = A.newlabel("col_nopre"); now = A.newlabel("col_now")
    A("s_nop 1")
    A.label(lp)
    stamp(A, fs, 5)
    tw_load(TW1, 0); tw_load(TW1, 1)
    for it in range(2):
        for u in range(2):
            c = "0" if u == 0 else v(accr(it),16)
            A(f"{MF} {v(accr(it),16)}, {v(Pr(it,u),4)}, {v(C32+4*u,4)}, {c}")
            c = "0" if u == 0 else v(acci(it),16)
            A(f"{MF} {v(acci(it),16)}, {v(Pi(it,u),4)}, {v(C32+4*u,4)}, {c}")
        for u in range(2):
            A(f"{MF} {v(accr(it),16)}, {v(Pi(it,u),4)}, {v(S32+4*u,4)}, {v(accr(it),16)}")
            A(f"{MF} {v(acci(it),16)}, {v(Pr(it,u),4)}, {v(N32+4*u,4)}, {v(acci(it),16)}")
    A(f"s_mov_b32 {s(sRe2)}, {s(sRe)}")
    A(f"s_mov_b32 {s(sIm2)}, {s(sIm)}")
    A(f"s_add_u32 {s(sCol)}, {s(sCol)}, {NF*8}")
    col_params(A, sCol, sRe, sIm, 38, 0)
    tw_phase(TW1, True)
    A("s_nop 1")
    def stage64(fwd):
        for par in range(2):
            for it in range(2):
                for c in range(2):
                    d = (accr if c == 0 else acci)(par)
                    cc = "0" if it == 0 else v(d,16)
                    x, y = v(k64(par,'c',it),4), v(Yo(c,par,it),4)
                    A(f"{MF} {v(d,16)}, {x}, {y}, {cc}" if fwd else f"{MF} {v(d,16)}, {y}, {x}, {cc}")
            for it in range(2):
                for c in range(2):
                    d = (accr if c == 0 else acci)(par)
                    kind = ('s' if c == 0 else 'n') if fwd else ('n' if c == 0 else 's')
                    x, y = v(k64(par,kind,it),4), v(Yo(1-c,par,it),4)
                    A(f"{MF} {v(d,16)}, {x}, {y}, {v(d,16)}" if fwd else f"{MF} {v(d,16)}, {y}, {x}, {v(d,16)}")
    stamp(A, fs, 6)
    stage64(True)
    A("s_waitcnt vmcnt(0)")
    nb = A.newlabel("col_nb")
    A(f"s_cmp_ge_u32 {s(sCol)}, 512")
    A(f"s_cbranch_scc1 {nb}")
    A("s_barrier")
    read_P()
    A.label(nb)
    def wunpack(g):
        t, q = g >> 2, g & 3
        wr = Zr(t,0) + 2*q; wi = Zi(t,0) + 2*q; o = TMP + 8*(g & 1)
        for p in range(2):
            A(f"v_lshlrev_b32 {v(o+2*p)}, 16, {v(wr+p)}")
            A(f"v_and_b32 {v(o+2*p+1)}, 0xffff0000, {v(wr+p)}")
            A(f"v_lshlrev_b32 {v(o+4+2*p)}, 16, {v(wi+p)}")
            A(f"v_and_b32 {v(o+4+2*p+1)}, 0xffff0000, {v(wi+p)}")
    wunpack(0); wunpack(1)
    bfly()
    for g in range(8):
        cmul4(g, True)
        if g+2 < 8: wunpack(g+2)
    tw_load(TW2, 0); tw_load(TW2, 1)
    stamp(A, fs, 7)
    stage64(False)
    A("s_nop 7"); A("s_nop 3")
    bfly()
    tw_phase(TW2, False)
    A("s_nop 1")
    stamp(A, fs, 8)
    for jt in range(2):
        for u in range(2):
            c = "0" if u == 0 else v(accr(jt),16)
            A(f"{MF} {v(accr(jt),16)}, {v(C32+4*u,4)}, {v(Zr(jt,u),4)}, {c}")
            c = "0" if u == 0 else v(acci(jt),16)
            A(f"{MF} {v(acci(jt),16)}, {v(C32+4*u,4)}, {v(Zi(jt,u),4)}, {c}")
        for u in range(2):
            A(f"{MF} {v(accr(jt),16)}, {v(N32+4*u,4)}, {v(Zi(jt,u),4)}, {v(accr(jt),16)}")
            A(f"{MF} {v(acci(jt),16)}, {v(S32+4*u,4)}, {v(Zr(jt,u),4)}, {v(acci(jt),16)}")
    A(f"s_mov_b32 {s(sWo)}, s38")
    A(f"s_mov_b32 {s(sWo+1)}, s39")
    load_W()
    for jt in range(2):
        if jt == 1: A("s_nop 3")
        for c in range(2):
            base = (accr(jt) if c == 0 else acci(jt))
            for p in range(8):
                A(f"v_cvt_pk_bf16_f32 {v(SY + c*16 + jt*8 + p)}, {v(base+2*p)}, {v(base+2*p+1)}")
    if opts.get("colonly"):
        l512 = A.newlabel("col_l512")
        A(f"s_cmp_eq_u32 {s(sCol)}, 768")
        A(f"s_cbranch_scc1 {l512}")
        A("s_barrier")
        for c in range(2):
            for q in range(4):
                A(f"ds_write_b128 {v(vPrd[c])}, {v(SY + c*16 + q*4, 4)} offset:{q*16384}")
        za, zb = TMP, TMP+1
        A(f"v_add_u32 {v(za)}, {s(sM0)}, {v(vOff)}")
        A(f"v_lshrrev_b32 {v(TMP+6)}, 4, {v(vL)}")
        A(f"v_and_b32 {v(TMP+7)}, 15, {v(vL)}")
        A(f"v_xor_b32 {v(TMP+7)}, {v(TMP+7)}, {v(TMP+6)}")
        A(f"v_and_b32 {v(TMP+8)}, 1, {v(TMP+7)}")
        A(f"v_lshrrev_b32 {v(TMP+7)}, 1, {v(TMP+7)}")
        A(f"v_lshlrev_b32 {v(TMP+7)}, 4, {v(TMP+7)}")
        A(f"v_lshl_add_u32 {v(TMP+7)}, {v(TMP+8)}, 13, {v(TMP+7)}")
        A(f"v_lshl_add_u32 {v(zb)}, {v(TMP+6)}, 14, {v(TMP+7)}")
        for i in range(1, 4): A(f"v_xor_b32 {v(zb+i)}, {i*32}, {v(zb)}")
        A(f"s_sub_u32 {s(sT)}, {s(sCol)}, 256")
        A(f"s_andn2_b32 {s(sT)}, {s(sT)}, 7")
        A(f"s_lshl_b32 {s(sT)}, {s(sT)}, 4")
        A(f"s_lshl_b32 {s(sT+1)}, {s(sWave)}, 19")
        A(f"s_add_u32 {s(sT)}, {s(sT)}, {s(sT+1)}")
        A("s_waitcnt lgkmcnt(0)")
        A("s_barrier")
        for i in range(8): A(f"ds_read_b128 {v(ACC+4*i,4)}, {v(za)} offset:{i*1024}")
        for i in range(8):
            A(f"s_add_u32 {s(sT+1)}, {s(sT)}, {i*4*16384}")
            A(f"s_waitcnt lgkmcnt({7-i})")
            A(f"buffer_store_dwordx4 {v(ACC+4*i,4)}, {v(zb+(i%4))}, {s(sZT,4)}, {s(sT+1)} offen sc1")
        A(f"s_cmp_lt_u32 {s(sCol)}, 512")
        A(f"s_cbranch_scc1 {lp}")
        rend = opts.get("rend")
        if rend:
            rb = A.newlabel("col_rb"); zf1 = A.newlabel("col_zf1")
            A("s_waitcnt vmcnt(0)")
            A("s_barrier")
            A(f"s_cmp_lg_u32 {s(sWave)}, 1")
            A(f"s_cbranch_scc1 {zf1}")
            A(f"s_add_u32 {s(sT)}, {s(sFid)}, 3840")
            A(f"s_lshl_b32 {s(sT)}, {s(sT)}, 7")
            set_flag(A, 88, sT, 90, 4)
            A.label(zf1)
        if opts.get("tldbg"): A("s_waitcnt vmcnt(0)")
        dbg_mark(A, opts, 8, 4)
        A(f"s_cmp_lg_u32 {s(sCol)}, 512")
        A(f"s_cbranch_scc1 {rb if rend else done}")
        A(f"v_lshlrev_b32 v4, 14, {v(vL)}")
        for q in range(4):
            A(f"s_mov_b32 {s(sT)}, {q*64*16384 + 16}")
            A(f"buffer_load_dwordx4 {v(SX+q*4,4)}, v4, {s(sYT,4)}, {s(sT)} offen{LF}")
        zero_im()
        A("s_waitcnt vmcnt(0)")
        A(f"s_branch {lp}")
        A.label(l512)
        A(f"v_lshlrev_b32 v4, 14, {v(vL)}")
        for q in range(4):
            A(f"s_mov_b32 {s(sT)}, {q*64*16384 + 8192}")
            A(f"buffer_store_dwordx4 {v(SY+q*4,4)}, v4, {s(sZT,4)}, {s(sT)} offen sc1")
        if rend:
            A("s_waitcnt vmcnt(0)")
            A(f"s_mov_b32 {s(sT)}, {(3840+32)*128}")
            set_flag(A, 88, sT, 90, 4)
        if opts.get("tldbg"): A("s_waitcnt vmcnt(0)")
        dbg_mark(A, opts, 8, 4)
        if rend:
            A.label(rb)
            A("s_barrier")
            A(f"s_branch {rend}")
        else:
            A(f"s_branch {done}")
        return
    for c, so in enumerate((sRe2, sIm2)):
        for q in range(4):
            A(f"buffer_store_dwordx4 {v(SY + c*16 + q*4, 4)}, {v(vOff)}, {s(sZT,4)}, {s(so)} offen offset:{q*1024} sc1")
    A(f"s_cmp_ge_u32 {s(sCol)}, 512")
    A(f"s_cbranch_scc1 {cend}")
    A(f"s_branch {lp}")
    A.label(cend)
    A("s_waitcnt vmcnt(0)")
    ny_done = A.newlabel("ny_done"); norm = A.newlabel("col_norm")
    A(f"s_cmp_eq_u32 {s(sCol)}, 768")
    A(f"s_cbranch_scc1 {ny_done}")
    stamp(A, opts, 1)
    dbg_mark(A, opts, 7, 4)
    A("s_barrier")
    A(f"s_cmp_lg_u32 {s(sCol)}, 512")
    A(f"s_cbranch_scc1 {norm}")
    A(f"v_lshlrev_b32 v4, 14, {v(vL)}")
    for q in range(4):
        A(f"s_mov_b32 {s(sT)}, {q*64*16384 + 16}")
        A(f"buffer_load_dwordx4 {v(SX+q*4,4)}, v4, {s(sYT,4)}, {s(sT)} offen{LF}")
    zero_im()
    A("s_waitcnt vmcnt(0)")
    A(f"s_branch {lp}")
    A.label(ny_done)
    A("v_mov_b32 v4, 128")
    A("v_mov_b32 v5, 1")
    A("s_mov_b64 exec, 1")
    A(f"global_store_dword v4, v5, {s(sDbg,2)} sc1")
    A("s_mov_b64 exec, -1")
    A.label(norm)
    A(f"s_lshl_b32 {s(sT)}, {s(sWave)}, 6")
    A(f"v_add_u32 v0, {s(sT)}, {v(vL)}")
    for g in range(16):
        A(f"ds_read_b128 {v(64+4*g,4)}, {v(vOff)} offset:{rimg(64+4*g)}")
    sk = A.newlabel("fft_sig"); pl = A.newlabel("fft_poll")
    A(f"s_cmp_lg_u32 {s(sWave)}, 4")
    A(f"s_cbranch_scc1 {sk}")
    A("v_mov_b32 v4, 0")
    A("v_mov_b32 v5, 1")
    A("s_mov_b64 exec, 1")
    A(f"global_atomic_add v4, v5, {s(sDbg,2)} sc1")
    A.label(pl)
    A("s_sleep 2")
    A(f"global_load_dword v6, v4, {s(sDbg,2)} sc1")
    A("s_waitcnt vmcnt(0)")
    A(f"v_readfirstlane_b32 {s(sT)}, v6")
    A("s_nop 3")
    A(f"s_cmp_lt_u32 {s(sT)}, {NF}")
    A(f"s_cbranch_scc1 {pl}")
    A("s_mov_b64 exec, -1")
    A.label(sk)
    B1R, B1I, B2C, B2N, TWC, TWS = 64, 72, 80, 88, 96, 112
    A("v_lshrrev_b32 v4, 3, v0")
    A(f"v_mul_u32_u24 v5, {2*YP}, v4")
    A("v_and_b32 v6, 7, v0")
    A("v_lshlrev_b32 v7, 4, v6")
    A(f"s_lshl_b32 {s(sT)}, {s(sFid)}, 7")
    A(f"v_add3_u32 v5, v5, v7, {s(sT)}")
    A("v_lshrrev_b32 v7, 1, v4")
    A("v_xor_b32 v7, v7, v6")
    A("v_and_b32 v7, 7, v7")
    A("v_lshlrev_b32 v7, 4, v7")
    A("v_lshl_add_u32 v7, v4, 7, v7")
    A("v_add_u32 v6, 0x10000, v7")
    vXo, vRd, vRd2, vNy = 8, 9, 10, 11
    T0, T1, T2 = 12, 13, 14
    A(f"v_and_b32 {v(T0)}, 31, {v(vL)}")
    A(f"v_lshlrev_b32 {v(T1)}, 6, {v(T0)}")
    A(f"v_and_b32 {v(T2)}, 32, {v(vL)}")
    A(f"v_add_u32 {v(vXo)}, {v(T1)}, {v(T2)}")
    A(f"v_lshlrev_b32 {v(T2)}, 9, {v(T2)}")
    A(f"v_lshl_add_u32 {v(T2)}, {v(T0)}, 7, {v(T2)}")
    A(f"v_bfe_u32 {v(T1)}, {v(vL)}, 1, 3")
    A(f"v_xor_b32 {v(T1)}, {s(sWave)}, {v(T1)}")
    A(f"v_lshl_add_u32 {v(vRd)}, {v(T1)}, 4, {v(T2)}")
    A(f"v_add_u32 {v(vRd2)}, 0x10000, {v(vRd)}")
    A(f"s_lshl_b32 {s(sT)}, {s(sWave)}, 4")
    A(f"s_add_u32 {s(sT)}, {s(sT)}, 0x10000")
    A(f"v_mov_b32 {v(vNy)}, {s(sT)}")
    sChunk, sS0, sZ = 30, 31, 32
    A(f"s_lshl_b32 {s(sChunk)}, {s(sFid)}, 3")
    A(f"s_add_u32 {s(sChunk)}, {s(sChunk)}, {s(sWave)}")
    A(f"s_mov_b32 {s(sZ)}, 0")
    chunk_rows(A, sChunk, sZ, sS0, sT)
    A(f"s_lshl_b32 {s(sS0)}, {s(sS0)}, 11")
    for e in range(8):
        A(f"s_add_u32 {s(ROFF[e])}, {s(sS0)}, {(8*(e>>2) + (e&3))*64*2048}")
    XR = [[16, 24], [32, 40]]
    def xload(p):
        for rw in range(2):
            A(f"buffer_load_dwordx4 {v(XR[p%2][rw],4)}, {v(vXo)}, {s(sX,4)}, {s(ROFF[2*p+rw])} offen")
            A(f"buffer_load_dwordx4 {v(XR[p%2][rw]+4,4)}, {v(vXo)}, {s(sX,4)}, {s(ROFF[2*p+rw])} offen offset:16")
    A("s_waitcnt lgkmcnt(0)")
    A("s_barrier")
    stamp(A, opts, 2)
    for i in range(16):
        A(f"s_mov_b32 {s(sT)}, {(i&7)*64*2*YP + (i>>3)*YP}")
        A(f"buffer_load_dwordx4 {v(128+4*i,4)}, v5, {s(sZT,4)}, {s(sT)} offen sc1")
    ex = 0
    for i in range(16):
        A(f"s_waitcnt vmcnt({15-i+ex})")
        if i == 8:
            A("v_cmp_le_u32 vcc, 8, v0")
            A("s_nop 1")
            for r in range(4): A(f"v_cndmask_b32 {v(128+4*i+r)}, 0, {v(128+4*i+r)}, vcc")
        A(f"ds_write_b128 {'v7' if i < 8 else 'v6'}, {v(128+4*i,4)} offset:{(i&7)*8192}")
    sk2 = A.newlabel("fft_sig2"); pl2 = A.newlabel("fft_poll2")
    A(f"s_cmp_lg_u32 {s(sWave)}, 4")
    A(f"s_cbranch_scc1 {sk2}")
    A("v_mov_b32 v4, 128")
    A.label(pl2)
    A(f"global_load_dword v3, v4, {s(sDbg,2)} sc1")
    A("s_waitcnt vmcnt(0)")
    A(f"v_readfirstlane_b32 {s(sT)}, v3")
    A("s_nop 3")
    A(f"s_cmp_eq_u32 {s(sT)}, 0")
    A(f"s_cbranch_scc1 {pl2}")
    A.label(sk2)
    A(f"s_mov_b32 {s(sT+3)}, 0x05040100")
    A(f"s_mov_b32 {s(sT+4)}, 0x07060302")
    A("s_waitcnt lgkmcnt(0)")
    A("s_barrier")
    A(f"s_lshl_b32 {s(sT)}, {s(sChunk)}, 4")
    A(f"s_add_u32 {s(sT)}, {s(sT)}, {YP}")
    A(f"v_mov_b32 {v(vNy)}, {s(sT)}")
    A(f"buffer_load_dwordx4 v[16:19], {v(vNy)}, {s(sZT,4)}, 0 offen sc1")
    RD = 224
    OP = [48, 56]
    TR = [128, 160]; TI = [144, 176]; UR = [192, 208]; UI = [200, 216]; WK = 240
    OUT = [24, 32]
    def rdload(p):
        for r in range(16):
            c = r >> 3; k2 = 8*((r >> 2) & 1) + (r & 3)
            A(f"ds_read_b32 {v(RD+r)}, {v(vRd if c == 0 else vRd2)} offset:{k2*4096 + p*4}")
    stamp(A, fs, 9)
    rdload(0)
    for p in range(4):
        A("s_waitcnt lgkmcnt(0)")
        for q in range(8):
            A(f"v_perm_b32 {v(OP[0]+q)}, {v(RD+2*q+1)}, {v(RD+2*q)}, {s(sT+3)}")
            A(f"v_perm_b32 {v(OP[1]+q)}, {v(RD+2*q+1)}, {v(RD+2*q)}, {s(sT+4)}")
        A("s_nop 0")
        for rw in range(2):
            for u in range(2):
                c = "0" if u == 0 else v(TR[rw],16)
                A(f"{MF} {v(TR[rw],16)}, {v(OP[rw]+4*u,4)}, {v(B1R+4*u,4)}, {c}")
                c = "0" if u == 0 else v(TI[rw],16)
                A(f"{MF} {v(TI[rw],16)}, {v(OP[rw]+4*u,4)}, {v(B1I+4*u,4)}, {c}")
        if p < 3: rdload(p+1)
        else: A("s_nop 7")
        for rw in range(2):
            pk2(A, "mul", 16, WK, TR[rw], TWC)
            pk2(A, "mul", 16, TR[rw], TR[rw], TWS)
            pk2(A, "fma", 16, WK, TI[rw], TWS, WK, neg=[0])
            pk2(A, "fma", 16, TI[rw], TI[rw], TWC, TR[rw])
            for q in range(8):
                A(f"v_cvt_pk_bf16_f32 {v(UR[rw]+q)}, {v(WK+2*q)}, {v(WK+2*q+1)}")
            for q in range(8):
                A(f"v_cvt_pk_bf16_f32 {v(UI[rw]+q)}, {v(TI[rw]+2*q)}, {v(TI[rw]+2*q+1)}")
            Y = TR[rw]
            A(f"{MF} {v(Y,16)}, {v(UR[rw],4)}, {v(B2C,4)}, 0")
            A(f"{MF} {v(Y,16)}, {v(UR[rw]+4,4)}, {v(B2C+4,4)}, {v(Y,16)}")
            A(f"{MF} {v(Y,16)}, {v(UI[rw],4)}, {v(B2N,4)}, {v(Y,16)}")
            A(f"{MF} {v(Y,16)}, {v(UI[rw]+4,4)}, {v(B2N+4,4)}, {v(Y,16)}")
        if p == 0: A("s_waitcnt vmcnt(0)")
        A(f"v_lshlrev_b32 v4, 16, {v(16+p)}")
        A(f"v_and_b32 v5, 0xffff0000, {v(16+p)}")
        for rw in range(2):
            Y = TR[rw]
            for r in range(16):
                A(f"v_{'add' if r % 2 == 0 else 'sub'}_f32 {v(Y+r)}, {v(Y+r)}, {v(4+rw)}")
            for q in range(8):
                A(f"v_cvt_pk_bf16_f32 {v(OUT[rw]+q)}, {v(Y+2*q)}, {v(Y+2*q+1)}")
            A(f"buffer_store_dwordx4 {v(OUT[rw],4)}, {v(vXo)}, {s(sXY,4)}, {s(ROFF[2*p+rw])} offen")
            A(f"buffer_store_dwordx4 {v(OUT[rw]+4,4)}, {v(vXo)}, {s(sXY,4)}, {s(ROFF[2*p+rw])} offen offset:16")
    if opts.get("stamp"):
        A("s_waitcnt vmcnt(0)")
        stamp(A, opts, 3)
        stamp_store(A, opts, 10, sWS, 128, sWave)
    if not opts.get("nopf"):
        A(f"v_lshlrev_b32 v4, 7, v0")
        A(f"s_lshl_b32 {s(sT)}, {s(sFid)}, 16")
        for i in range(4):
            A(f"buffer_load_dword v3, v4, s[88:91], {s(sT)} offen")
            A(f"s_add_u32 {s(sT)}, {s(sT)}, {32<<16}")
    if opts.get("tldbg"): A("s_waitcnt vmcnt(0)")
    dbg_mark(A, opts, 8, 4)
    A(f"s_branch {done}")
```

```python
from asmlib import *
from layout import *
from dbgstamp import *
from sync import *
from gemm import stamp, stamp_store
from fft2 import job_trig, job_tw, run_jobs, PI, DR
from fftcommon import wave_allreduce_add2, round_bf16
import math
MF = "v_mfma_f32_16x16x32_bf16"
MF32 = "v_mfma_f32_32x32x16_bf16"

def gen_ka(A, name, opts):
    NS = 4; KS = 32; SLOT = 32768; XB = 16384
    FR = opts.get("freerun", 3)
    kernel_begin(A, name)
    sX, sW, sD, sH, sP = 8, 12, 16, 20, 44
    sWS = 24; sT = 26
    sWave, sWm, sWn = 30, 31, 32
    sM0x, sM0w, sKx, sKw = 33, 34, 35, 36
    sMt, sNt, sLoop, sPf = 37, 38, 39, 40
    sDbg, sTag, sFb = 48, 50, 52
    sIdx, sXcd = 54, 55
    sA, sB = 72, 76
    sS, sChunk, sN2, sU = 80, 81, 82, 83
    ACC = 0; R = [128, 176]
    acc = lambda i, j: ACC + (i*4+j)*4
    opX = lambda rs, i: R[rs] + i*4
    opW = lambda rs, j: R[rs] + 32 + j*4
    nsg = 2
    b = 224
    vDw = [b, b+1, b+2, b+3]; vDx = b+4; vL = 1
    vXa = [b+6+g for g in range(nsg)]
    vWa = [[b+9+g for g in range(nsg)], [b+12+g for g in range(nsg)]]
    t0, t1, t2, t3 = b+15, b+16, b+17, b+18
    vSt = b+19; vK = b+20
    vLL = b+5
    done = A.newlabel("ka_done"); fftl = A.newlabel("ka_fft"); pfl = A.newlabel("ka_pf"); epi = A.newlabel("ka_epi")
    A("s_load_dwordx2 s[94:95], s[0:1], 0")
    A(f"s_load_dwordx4 {s(sDbg,4)}, s[0:1], 64")
    A(f"s_load_dwordx4 s[4:7], s[0:1], 32")
    A(f"s_load_dwordx4 s[88:91], s[0:1], 8")
    A(f"s_load_dwordx2 s[92:93], s[0:1], 48")
    A(f"s_cmp_ge_u32 s2, 256")
    A(f"s_cbranch_scc1 {done}")
    dbg_init(A, opts, 0); dbg_mark(A, opts, 0, 254, neg=True)
    stamp(A, dict(stamp=opts.get("stamp") or opts.get("stamp0")), 0)
    vOff = 2
    A(f"v_lshrrev_b32 v2, 6, v0")
    A(f"v_and_b32 {v(vL)}, 63, v0")
    A(f"s_and_b32 {s(sXcd)}, s2, 7")
    A(f"v_readfirstlane_b32 {s(sWave)}, v2")
    A(f"s_lshr_b32 {s(sIdx)}, s2, 3")
    A(f"v_lshlrev_b32 {v(vOff)}, 4, {v(vL)}")
    A(f"v_mov_b32 {v(vLL)}, {v(vL)}")
    A(f"s_lshl_b32 {s(sChunk)}, {s(sXcd)}, 5")
    A(f"s_add_u32 {s(sChunk)}, {s(sChunk)}, {s(sIdx)}")
    A(f"s_lshr_b32 {s(sT)}, {s(sXcd)}, 2")
    A(f"s_lshl_b32 {s(sT)}, {s(sT)}, 5")
    A(f"s_add_u32 {s(sN2)}, {s(sIdx)}, {s(sT)}")
    A(f"s_and_b32 {s(sT)}, {s(sXcd)}, 2")
    A(f"s_lshl_b32 {s(sT)}, {s(sT)}, 1")
    A(f"s_and_b32 {s(sT+1)}, {s(sXcd)}, 1")
    A(f"s_add_u32 {s(sU)}, {s(sT)}, {s(sT+1)}")
    A(f"s_lshr_b32 {s(sT)}, {s(sWave)}, 2")
    A(f"s_lshl_b32 {s(sT)}, {s(sT)}, 1")
    A(f"s_add_u32 {s(sT)}, {s(sT)}, {s(sU)}")
    A(f"s_lshl_b32 {s(sS)}, {s(sT)}, 8")
    A(f"s_and_b32 {s(sWn)}, {s(sWave)}, 3")
    A(f"s_lshl_b32 {s(sT)}, {s(sWn)}, 6")
    A(f"s_add_u32 {s(sS)}, {s(sS)}, {s(sT)}")
    A(f"s_add_u32 {s(sS)}, {s(sS)}, {s(sN2)}")
    A(f"s_lshl_b32 {s(sT)}, {s(sS)}, 11")
    A(f"s_and_b32 {s(sMt)}, {s(sXcd)}, 1")
    A(f"s_lshl_b32 {s(sMt)}, {s(sMt)}, 2")
    A(f"s_and_b32 {s(sT+2)}, {s(sIdx)}, 3")
    A(f"s_add_u32 {s(sMt)}, {s(sMt)}, {s(sT+2)}")
    A(f"s_lshr_b32 {s(sNt)}, {s(sXcd)}, 1")
    A(f"s_mul_i32 {s(sNt)}, {s(sNt)}, 7")
    A(f"s_lshr_b32 {s(sT+2)}, {s(sIdx)}, 2")
    A(f"s_add_u32 {s(sNt)}, {s(sNt)}, {s(sT+2)}")
    sRot, sKwE, sKxE = 56, 57, 58
    GM = opts.get("g1map", 4)
    if GM == 2:
        A(f"s_and_b32 {s(sMt)}, {s(sXcd)}, 6")
        A(f"s_lshl_b32 {s(sRot)}, {s(sMt)}, 2")
        A(f"s_and_b32 {s(sT+2)}, {s(sIdx)}, 1")
        A(f"s_add_u32 {s(sMt)}, {s(sMt)}, {s(sT+2)}")
        A(f"s_and_b32 {s(sNt)}, {s(sXcd)}, 1")
        A(f"s_mul_i32 {s(sNt)}, {s(sNt)}, 14")
        A(f"s_lshr_b32 {s(sT+2)}, {s(sIdx)}, 1")
        A(f"s_add_u32 {s(sNt)}, {s(sNt)}, {s(sT+2)}")
    elif GM == 1:
        A(f"s_mov_b32 {s(sMt)}, {s(sXcd)}")
        A(f"s_lshl_b32 {s(sRot)}, {s(sXcd)}, 2")
        A(f"s_mov_b32 {s(sNt)}, {s(sIdx)}")
    else:
        A(f"s_and_b32 {s(sRot)}, {s(sXcd)}, 1")
        A(f"s_lshl_b32 {s(sRot)}, {s(sRot)}, 4")
    if not opts.get("rot", 1): A(f"s_mov_b32 {s(sRot)}, 0")
    A("s_waitcnt lgkmcnt(0)")
    make_srd(A, sA, 94, 95, 2048*1024*2)
    RAW = 4
    A(f"buffer_load_dwordx4 {v(RAW,4)}, {v(vOff)}, {s(sA,4)}, {s(sT)} offen")
    A(f"buffer_load_dwordx4 {v(RAW+4,4)}, {v(vOff)}, {s(sA,4)}, {s(sT)} offen offset:1024")
    A(f"s_mov_b64 {s(sWS,2)}, s[50:51]")
    A(f"s_add_u32 {s(sFb)}, {s(sWS)}, {hex(WS_TAG)}")
    A(f"s_addc_u32 {s(sFb+1)}, {s(sWS+1)}, 0")
    CT = 0
    nt_ = A.newlabel("ka_notag")
    sIsT = 59
    A(f"s_lshl_b32 {s(sT)}, s2, 3")
    A(f"s_add_u32 {s(sT)}, {s(sT)}, {s(sWave)}")
    A(f"s_cmp_eq_u32 {s(sT)}, 3")
    A(f"s_cselect_b32 s62, 1, 0")
    A(f"s_cbranch_scc0 {nt_}")
    A(f"s_memrealtime {s(sTag,2)}")
    A("s_waitcnt lgkmcnt(0)")
    A(f"s_or_b32 {s(sTag+1)}, {s(sTag+1)}, 0x80000000")
    A(f"s_mov_b32 {s(sT)}, 64")
    set_flag(A, sDbg, sT, sTag, 12)
    A.label(nt_)
    WR = 128
    LWR, LWI = 131072, 147456
    A(f"s_and_b32 {s(sT)}, s2, 63")
    A(f"s_lshl_b32 {s(sT)}, {s(sT)}, 3")
    A(f"s_add_u32 {s(sT)}, {s(sT)}, {s(sWave)}")
    A(f"s_bfe_u32 {s(sT+1)}, {s(sT)}, 0x20006")
    A(f"s_lshl_b32 {s(sT+1)}, {s(sT+1)}, 4")
    A(f"s_bfe_u32 {s(sT+2)}, {s(sT)}, 0x10005")
    A(f"s_lshl_b32 {s(sT+2)}, {s(sT+2)}, 2")
    A(f"s_add_u32 {s(sT+1)}, {s(sT+1)}, {s(sT+2)}")
    A(f"s_lshl_b32 {s(sT+1)}, {s(sT+1)}, 5")
    A(f"s_and_b32 {s(sT+2)}, {s(sT)}, 31")
    A(f"s_add_u32 {s(sT+1)}, {s(sT+1)}, {s(sT+2)}")
    A(f"s_mul_i32 {s(sT+1)}, {s(sT+1)}, 1026")
    A(f"s_lshr_b32 {s(sT+2)}, s2, 6")
    A(f"s_lshl_b32 {s(sT+2)}, {s(sT+2)}, 8")
    A(f"s_add_u32 {s(sT+2)}, {s(sT+2)}, {s(sT+1)}")
    A(f"s_add_u32 {s(sT+3)}, {s(sT+2)}, {32*8*1026}")
    A("s_bitcmp1_b32 s2, 5")
    A("s_cselect_b32 s88, s90, s88")
    A("s_cselect_b32 s89, s91, s89")
    make_srd(A, sB, 88, 89, 2048*513*2)
    A(f"v_lshrrev_b32 v192, 4, {v(vL)}")
    A(f"v_mul_u32_u24 v192, {32*1026}, v192")
    A(f"v_and_b32 v193, 15, {v(vL)}")
    A(f"v_lshl_add_u32 v192, v193, 4, v192")
    A(f"buffer_load_dwordx4 {v(WR,4)}, v192, {s(sB,4)}, {s(sT+2)} offen")
    A(f"buffer_load_dwordx4 {v(WR+4,4)}, v192, {s(sB,4)}, {s(sT+3)} offen")
    A(f"v_and_b32 v192, 3, {v(vL)}")
    A(f"v_bfe_u32 v193, {v(vL)}, 2, 1")
    A(f"v_lshl_add_u32 v192, v193, 3, v192")
    A(f"v_lshrrev_b32 v193, 3, {v(vL)}")
    A(f"v_lshl_add_u32 v192, v192, 5, v193")
    A(f"v_mul_u32_u24 v192, 1026, v192")
    A(f"v_lshlrev_b32 v195, 1, {v(vL)}")
    A(f"s_sub_u32 {s(sT+1)}, {s(sT+1)}, {4*1026 - 1024}")
    A("s_cmp_ge_u32 s2, 192")
    A(f"s_cselect_b32 {s(sT+1)}, {s(sT+1)}, 0x40000000")
    A(f"s_cmp_eq_u32 {s(sWave)}, 4")
    A(f"s_cselect_b32 {s(sT+1)}, {s(sT+1)}, 0x40000000")
    A(f"buffer_load_ushort v194, v192, {s(sB,4)}, {s(sT+1)} offen")
    A(f"s_bitcmp1_b32 {s(sWave)}, 1")
    A(f"s_cselect_b32 s4, s6, s4")
    A(f"s_cselect_b32 s5, s7, s5")
    make_srd(A, sW, 4, 5, 1024*3584*2)
    def dmaW(slot):
        o = [f"s_add_u32 m0, {s(sM0w)}, {hex(slot*SLOT)}", "s_nop 0"]
        for i in range(4): o.append(f"buffer_load_dwordx4 {v(vDw[i])}, {s(sW,4)}, {s(sKw)} offen offset:{1024*i} lds")
        o.append(f"s_add_u32 {s(sKw)}, {s(sKw)}, {32*7168}\n    s_cmp_eq_u32 {s(sKw)}, {s(sKwE)}\n    s_cselect_b32 {s(sKw)}, {s(sKwE+2)}, {s(sKw)}")
        return o
    def dmaX(slot):
        o = [f"s_add_u32 m0, {s(sM0x)}, {hex(slot*SLOT)}", "s_nop 0"]
        for i in range(4): o.append(f"buffer_load_dwordx4 {v(vDx)}, {s(sX,4)}, {s(sKx)} offen offset:{1024*i} sc1 lds")
        o.append(f"s_add_u32 {s(sKx)}, {s(sKx)}, {XB}\n    s_cmp_eq_u32 {s(sKx)}, {s(sKxE)}\n    s_cselect_b32 {s(sKx)}, {s(sKxE+2)}, {s(sKx)}")
        return o
    nd1 = A.newlabel("ka_nodma")
    A(f"v_lshrrev_b32 {v(t0)}, 4, {v(vL)}")
    A(f"v_and_b32 {v(t2)}, 15, {v(vL)}")
    A(f"v_lshlrev_b32 {v(t1)}, 1, {v(t0)}")
    A(f"v_xor_b32 {v(t2)}, {v(t2)}, {v(t1)}")
    A(f"v_mul_u32_u24 {v(t0)}, 7168, {v(t0)}")
    A(f"v_lshl_add_u32 {v(vDw[0])}, {v(t2)}, 4, {v(t0)}")
    A(f"v_xor_b32 {v(t1)}, 128, {v(vDw[0])}")
    for i in range(1, 4): A(f"v_add_u32 {v(vDw[i])}, {i*4*7168 - i*1024}, {v(t1 if i & 2 else vDw[0])}")
    A(f"s_and_b32 {s(sKw)}, {s(sWave)}, 1")
    A(f"s_mul_i32 {s(sKw)}, {s(sKw)}, {16*7168}")
    A(f"s_lshl_b32 {s(sT)}, {s(sNt)}, 8")
    A(f"s_add_u32 {s(sKwE+2)}, {s(sKw)}, {s(sT)}")
    A(f"s_add_u32 {s(sKwE)}, {s(sKwE+2)}, {1024*7168}")
    A(f"s_mul_i32 {s(sT)}, {s(sRot)}, {32*7168}")
    A(f"s_add_u32 {s(sKw)}, {s(sKwE+2)}, {s(sT)}")
    A(f"s_lshl_b32 {s(sM0x)}, {s(sWave)}, 12")
    A(f"s_add_u32 {s(sM0w)}, {s(sM0x)}, {XB}")
    DL = opts.get("pfd", 8); P0 = 6
    vP, vD = b+29, b+27; sPw = 87
    pw = [f"buffer_load_dword {v(vD)}, {v(vP)}, {s(sW,4)}, {s(sPw)} offen", f"s_add_u32 {s(sPw)}, {s(sPw)}, {32*7168}"]
    EW = opts.get('EW', 2)
    sIsD = 84
    A(f"s_cmp_lt_u32 {s(sIdx)}, 28")
    A(f"s_cselect_b32 {s(sIsD)}, 1, 0")
    A(f"s_cmp_lt_u32 {s(sWave)}, 4")
    A(f"s_cselect_b32 {s(sIsD)}, {s(sIsD)}, 0")
    LC, LS, LT = 65536, 98304, 131072
    B1C, B1S, A2R, A2I, TWC, TWS = 64, 72, 80, 88, 96, 112
    vK1, vIdx, vB, vPh, vC = 12, 13, 14, 15, 20
    A(f"v_and_b32 {v(vK1)}, 31, {v(vL)}")
    A(f"v_add_u32 {v(vC)}, {LC}, {v(vOff)}")
    jend = A.newlabel("ka_jend"); jtw = A.newlabel("ka_jtw")
    A(f"s_xor_b32 {s(sT+3)}, {s(sWave)}, 4")
    A(f"s_cmp_ge_u32 {s(sT+3)}, 6")
    A(f"s_cbranch_scc1 {jend}")
    A(f"s_lshr_b32 {s(sT)}, {s(sT+3)}, 1")
    A(f"s_cmp_eq_u32 {s(sT)}, 1")
    A(f"s_cselect_b32 {s(sT+1)}, 15, 31")
    A(f"s_mov_b32 {s(sT+2)}, {f32(-1/32)}")
    A(f"s_cselect_b32 {s(sT+2)}, {f32(1/32)}, {s(sT+2)}")
    A(f"s_cselect_b32 s85, {f32(0.25)}, 0")
    A(f"v_and_b32 {v(vIdx)}, {s(sT+1)}, {v(vL)}")
    A(f"v_bfe_u32 {v(vPh)}, {v(vL)}, 4, 1")
    A(f"v_cvt_f32_u32 {v(vPh)}, {v(vPh)}")
    A(f"v_mul_f32 {v(vPh)}, s85, {v(vPh)}")
    A(f"s_cmp_eq_u32 {s(sT)}, 2")
    A(f"s_cselect_b32 {s(sT+1)}, 1023, 31")
    A(f"s_cselect_b32 {s(sT+2)}, {f32(-1/1024)}, {s(sT+2)}")
    A(f"s_and_b32 s85, {s(sT+3)}, 1")
    A(f"s_lshl_b32 s86, s85, 4")
    A(f"v_lshrrev_b32 {v(vB)}, 5, {v(vL)}")
    A(f"v_lshl_add_u32 {v(vB)}, {v(vB)}, 2, s86")
    A(f"v_mul_u32_u24 {v(vB)}, {v(vB)}, {v(vIdx)}")
    JT, JC, JS, JO = 64, 72, 80, 88
    for e, c in enumerate((0, 1, 2, 3, 8, 9, 10, 11)): A(f"v_mad_u32_u24 {v(JT+e)}, {c}, {v(vIdx)}, {v(vB)}")
    for e in range(8): A(f"v_and_b32 {v(JT+e)}, {s(sT+1)}, {v(JT+e)}")
    for e in range(8): A(f"v_cvt_f32_u32 {v(JT+e)}, {v(JT+e)}")
    for e in range(8): A(f"v_fma_f32 {v(JT+e)}, {v(JT+e)}, {s(sT+2)}, {v(vPh)}")
    for e in range(8): A(f"v_cos_f32 {v(JC+e)}, {v(JT+e)}")
    for e in range(8): A(f"v_sin_f32 {v(JS+e)}, {v(JT+e)}")
    A(f"s_cbranch_scc1 {jtw}") if False else None
    A(f"s_cmp_eq_u32 {s(sT)}, 2")
    A(f"s_cbranch_scc1 {jtw}")
    A(f"s_lshl_b32 {s(sT)}, {s(sT)}, 12")
    A(f"s_lshl_b32 s85, s85, 10")
    A(f"s_add_u32 {s(sT)}, {s(sT)}, s85")
    A(f"v_add_u32 {v(vB)}, {s(sT)}, {v(vC)}")
    for p in range(8): A(f"v_cvt_pk_bf16_f32 {v(JO+p)}, {v(JC+2*p)}, {v(JC+2*p+1)}")
    A(f"ds_write_b128 {v(vB)}, {v(JO,4)}")
    A(f"ds_write_b128 {v(vB)}, {v(JO+4,4)} offset:2048")
    A(f"s_branch {jend}")
    A.label(jtw)
    A(f"s_lshl_b32 s85, s85, 11")
    A(f"v_add_u32 {v(vB)}, s85, {v(vC)}")
    for q in range(2):
        A(f"ds_write_b128 {v(vB)}, {v(JC+4*q,4)} offset:{8192 + q*1024}")
        A(f"ds_write_b128 {v(vB)}, {v(JS+4*q,4)} offset:{12288 + q*1024}")
    A.label(jend)
    q0, q1, q2 = 17, 18, 19
    vLw, vLr, vTw, vDC = 21, 22, 23, 24
    A(f"s_lshl_b32 {s(sT)}, {s(sWave)}, 11")
    A(f"s_add_u32 {s(sT)}, {s(sT)}, {LS}")
    A(f"s_lshl_b32 {s(sT+1)}, {s(sWn)}, 6")
    A(f"v_xor_b32 {v(vLw)}, {s(sT+1)}, {v(vOff)}")
    A(f"v_add_u32 {v(vLw)}, {s(sT)}, {v(vLw)}")
    A(f"v_lshrrev_b32 {v(q0)}, 5, {v(vL)}")
    A(f"v_lshlrev_b32 {v(vTw)}, 11, {v(q0)}")
    A(f"v_lshlrev_b32 {v(q0)}, 8, {v(q0)}")
    A(f"v_bfe_u32 {v(q1)}, {v(vL)}, 2, 2")
    A(f"v_lshl_add_u32 {v(q0)}, {v(q1)}, 6, {v(q0)}")
    A(f"v_and_b32 {v(q1)}, 16, {v(vL)}")
    A(f"v_lshl_add_u32 {v(q0)}, {v(q1)}, 1, {v(q0)}")
    A(f"v_and_b32 {v(q2)}, 3, {v(vL)}")
    A(f"v_lshl_add_u32 {v(q0)}, {v(q2)}, 3, {v(q0)}")
    A(f"v_xor_b32 {v(q0)}, {s(sT+1)}, {v(q0)}")
    A(f"v_add_u32 {v(vLr)}, {s(sT)}, {v(q0)}")
    A(f"v_lshl_add_u32 {v(vTw)}, {v(vK1)}, 4, {v(vTw)}")
    A(f"s_lshl_b32 {s(sT)}, {s(sWave)}, 1")
    A(f"s_add_u32 {s(sT)}, {s(sT)}, {LT}")
    A(f"v_add_u32 {v(vTw)}, {s(sT)}, {v(vTw)}")
    A(f"v_cmp_eq_u32 s[96:97], 0, {v(vL)}")
    A(f"v_mov_b32 {v(vDC)}, 1.0")
    make_srd(A, sX, sWS, sWS+1, 2048*1024*2, add=WS_XN)
    A(f"v_cndmask_b32 {v(vDC)}, {v(vDC)}, 0.5, s[96:97]")
    F = 32; D = 48
    SUM, SQ, T1, T2, MB, RS = 25, 26, 27, 28, 29, 30
    def common_setup():
        L = vLL
        A(f"s_lshr_b32 {s(sWm)}, {s(sWave)}, 2")
        A(f"v_and_b32 {v(t0)}, 15, {v(L)}")
        A(f"v_lshrrev_b32 {v(t1)}, 4, {v(L)}")
        A(f"v_lshrrev_b32 {v(t2)}, 2, {v(L)}")
        A(f"v_and_b32 {v(t3)}, 2, {v(t2)}")
        A(f"v_xor_b32 {v(t3)}, {v(t3)}, {v(t1)}")
        A(f"v_lshlrev_b32 {v(t3)}, 4, {v(t3)}")
        A(f"v_lshl_add_u32 {v(t3)}, {v(t0)}, 6, {v(t3)}")
        A(f"s_lshl_b32 {s(sT)}, {s(sWm)}, 13")
        A(f"v_add_u32 {v(vXa[0])}, {s(sT)}, {v(t3)}")
        for g in range(1, nsg): A(f"v_add_u32 {v(vXa[g])}, {hex(65536*g)}, {v(vXa[0])}")
        A(f"v_and_b32 {v(t2)}, 3, {v(t2)}")
        A(f"v_lshlrev_b32 {v(t3)}, 11, {v(t1)}")
        A(f"v_lshl_add_u32 {v(t3)}, {v(t2)}, 8, {v(t3)}")
        A(f"v_and_b32 {v(t1)}, 1, {v(t1)}")
        A(f"v_lshl_or_b32 {v(t2)}, {v(t1)}, 2, {v(t2)}")
        A(f"s_lshl_b32 {s(sT)}, {s(sWn)}, 1")
        A(f"v_xor_b32 {v(t2)}, {s(sT)}, {v(t2)}")
        A(f"v_lshl_add_u32 {v(t3)}, {v(t2)}, 5, {v(t3)}")
        A(f"v_and_b32 {v(t2)}, 3, {v(L)}")
        A(f"v_lshl_add_u32 {v(t3)}, {v(t2)}, 3, {v(t3)}")
        A(f"v_add_u32 {v(vWa[0][0])}, {XB}, {v(t3)}")
        A(f"v_xor_b32 {v(vWa[1][0])}, 32, {v(vWa[0][0])}")
        for jt in range(2):
            for g in range(1, nsg): A(f"v_add_u32 {v(vWa[jt][g])}, {hex(65536*g)}, {v(vWa[jt][0])}")
        A(f"v_lshrrev_b32 {v(t1)}, 5, {v(L)}")
        A(f"v_lshrrev_b32 {v(t2)}, 3, {v(L)}")
        A(f"v_and_b32 {v(t2)}, 2, {v(t2)}")
        A(f"v_or_b32 {v(t1)}, {v(t1)}, {v(t2)}")
        A(f"v_lshlrev_b32 {v(t1)}, 8, {v(t1)}")
        A(f"v_lshl_add_u32 {v(t1)}, {v(t0)}, 4, {v(t1)}")
        A(f"s_lshl_b32 {s(sT)}, {s(sMt)}, 1")
        A(f"s_add_u32 {s(sT)}, {s(sT)}, {s(sWm)}")
        A(f"s_mul_i32 {s(sT)}, {s(sT)}, 112")
        A(f"s_lshl_b32 {s(sT+1)}, {s(sNt)}, 2")
        A(f"s_add_u32 {s(sT)}, {s(sT)}, {s(sT+1)}")
        A(f"s_add_u32 {s(sT)}, {s(sT)}, {s(sWn)}")
        A(f"s_lshl_b32 {s(sT)}, {s(sT)}, 13")
        A(f"v_add_u32 {v(vSt)}, {s(sT)}, {v(t1)}")
        k0 = -2.0*math.log2(math.e)*math.sqrt(2.0/math.pi); k1 = k0*0.044715
        for i, c in enumerate((k0, k0, k1, k1, 1.0, 1.0)): A(f"v_mov_b32 {v(vK+i)}, {f32(c)}")
        make_srd(A, sH, sWS, sWS+1, 2048*3584*2, add=WS_H)
    if not opts.get("latesetup", 1):
        common_setup()
        A(f"v_lshlrev_b32 {v(vDx)}, 4, {v(vLL)}")
    CPF = opts.get("cpf", 0)
    if CPF:
        A("s_getpc_b64 s[60:61]")
        lbl = A.newlabel("ka_pc")
        A.label(lbl)
        A(f"s_sub_u32 s60, s60, {lbl}-{name}")
        A("s_subb_u32 s61, s61, 0")
        A(f"v_lshlrev_b32 v219, 7, v0")
        A(f"v_min_u32 v219, ka_code_end-{name}-4, v219")
        A("global_load_dword v220, v219, s[60:61]")
    wd = A.newlabel("ka_wd")
    A(f"s_cmp_eq_u32 {s(sIsD)}, 0")
    A(f"s_cbranch_scc1 {nd1}")
    for t in range(EW):
        for ins in dmaW(t): A(ins)
    A(f"s_waitcnt vmcnt({3+4*EW+CPF})")
    A(f"s_branch {wd}")
    A.label(nd1)
    A(f"s_waitcnt vmcnt({3+CPF})")
    A.label(wd)
    stamp(A, dict(stamp=opts.get("stamp0")), 1)
    dbg_mark(A, opts, 1, 254)
    for i in range(8):
        A(f"v_lshlrev_b32 {v(F+2*i)}, 16, {v(RAW+i)}")
        A(f"v_and_b32 {v(F+2*i+1)}, 0xffff0000, {v(RAW+i)}")
    A(f"v_readfirstlane_b32 {s(sT+3)}, {v(F)}")
    A("s_nop 1")
    for i in range(16): A(f"v_subrev_f32 {v(D+i)}, {s(sT+3)}, {v(F+i)}")
    A(f"v_add_f32 {v(SUM)}, {v(D)}, {v(D+1)}")
    A(f"v_mul_f32 {v(SQ)}, {v(D)}, {v(D)}")
    A(f"v_add_f32 {v(T1)}, {v(D+2)}, {v(D+3)}")
    A(f"v_mul_f32 {v(T2)}, {v(D+1)}, {v(D+1)}")
    for i in range(2, 16, 2):
        if i >= 4:
            A(f"v_add_f32 {v(SUM)}, {v(SUM)}, {v(D+i)}")
            A(f"v_add_f32 {v(T1)}, {v(T1)}, {v(D+i+1)}")
        A(f"v_fmac_f32 {v(SQ)}, {v(D+i)}, {v(D+i)}")
        A(f"v_fmac_f32 {v(T2)}, {v(D+i+1)}, {v(D+i+1)}")
    A(f"v_add_f32 {v(SUM)}, {v(SUM)}, {v(T1)}")
    A(f"v_add_f32 {v(SQ)}, {v(SQ)}, {v(T2)}")
    wave_allreduce_add2(A, [SUM, SQ], [T1, T2])
    A(f"v_mul_f32 {v(MB)}, {f32(1/1024)}, {v(SUM)}")
    A(f"v_mul_f32 {v(RS)}, {f32(1/1024)}, {v(SQ)}")
    A(f"v_fma_f32 {v(RS)}, -{v(MB)}, {v(MB)}, {v(RS)}")
    A(f"v_add_f32 {v(MB)}, {s(sT+3)}, {v(MB)}")
    A(f"v_max_f32 {v(RS)}, 0, {v(RS)}")
    round_bf16(A, RS)
    round_bf16(A, MB)
    A(f"v_add_f32 {v(RS)}, {f32(1e-5)}, {v(RS)}")
    round_bf16(A, RS)
    A(f"v_sqrt_f32 {v(RS)}, {v(RS)}")
    for i in range(16): A(f"v_sub_f32 {v(D+i)}, {v(F+i)}, {v(MB)}")
    round_bf16(A, RS)
    A(f"v_rcp_f32 {v(RS)}, {v(RS)}")
    for i in range(8): A(f"v_cvt_pk_bf16_f32 {v(RAW+i)}, {v(D+2*i)}, {v(D+2*i+1)}")
    for i in range(8):
        A(f"v_lshlrev_b32 {v(D+2*i)}, 16, {v(RAW+i)}")
        A(f"v_and_b32 {v(D+2*i+1)}, 0xffff0000, {v(RAW+i)}")
    for i in range(16): A(f"v_mul_f32 {v(D+i)}, {v(D+i)}, {v(RS)}")
    for i in range(8): A(f"v_cvt_pk_bf16_f32 {v(RAW+i)}, {v(D+2*i)}, {v(D+2*i+1)}")
    A(f"ds_write_b128 {v(vLw)}, {v(RAW,4)}")
    A(f"ds_write_b128 {v(vLw)}, {v(RAW+4,4)} offset:1024")
    def wpart():
        A(f"s_lshl_b32 {s(sT)}, {s(sWave)}, 11")
        A(f"s_add_u32 {s(sT)}, {s(sT)}, {LWR}")
        A(f"v_add_u32 v136, {s(sT)}, {v(vOff)}")
        A(f"ds_write_b128 v136, {v(WR,4)}")
        A(f"ds_write_b128 v136, {v(WR+4,4)} offset:1024")
        A(f"v_bfe_u32 v137, {v(vL)}, 2, 2")
        A(f"v_lshlrev_b32 v137, 8, v137")
        A(f"v_lshrrev_b32 v138, 4, {v(vL)}")
        A(f"v_lshl_add_u32 v137, v138, 5, v137")
        A(f"v_and_b32 v138, 3, {v(vL)}")
        A(f"v_lshl_add_u32 v137, v138, 3, v137")
        A(f"v_add_u32 v137, {s(sT)}, v137")
        A(f"v_and_b32 v138, 7, {v(vL)}")
        A(f"v_xor_b32 v138, {s(sWave)}, v138")
        A(f"v_lshlrev_b32 v138, 4, v138")
        A(f"v_lshl_add_u32 v138, {v(vL)}, 7, v138")
        A(f"v_add_u32 v138, {LWI}, v138")
        A("s_waitcnt lgkmcnt(0)")
        for ps_ in range(2):
            for eh in range(2):
                A(f"ds_read_b64_tr_b16 {v(140+4*ps_+2*eh,2)}, v137 offset:{eh*1024 + ps_*128}")
        A("s_waitcnt lgkmcnt(0)")
        for ps_ in range(2):
            A(f"ds_write_b128 v138, {v(140+4*ps_,4)} offset:{ps_*8192}")
    w1 = A.newlabel("ka_w1"); w2 = A.newlabel("ka_w2")
    A(f"s_cmp_eq_u32 {s(sIsD)}, 0")
    A(f"s_cbranch_scc1 {w1}")
    A(f"s_waitcnt vmcnt({4*EW+CPF})")
    A(f"s_branch {w2}")
    A.label(w1)
    A(f"s_waitcnt vmcnt({CPF})")
    A.label(w2)
    wpart()
    tag_issue(A, sDbg, 216)
    A("s_waitcnt lgkmcnt(0)")
    A("s_barrier")
    dbg_mark(A, opts, 2, 254)
    CO = 196
    nco = A.newlabel("ka_nco")
    A(f"s_cmp_lt_u32 {s(sWave)}, 4")
    A(f"s_cbranch_scc1 {nco}")
    if opts.get("pfprio", 1): A("s_setprio 2")
    A("v_and_b32 v212, 255, v0")
    A("v_bfe_u32 v213, v0, 2, 2")
    A("v_lshrrev_b32 v214, 4, v212")
    A("v_xor_b32 v215, v214, v213")
    A("v_lshlrev_b32 v215, 6, v215")
    A("v_lshl_add_u32 v215, v213, 11, v215")
    A(f"s_and_b32 {s(sT)}, {s(sN2)}, 2")
    A("v_and_b32 v213, 3, v0")
    A(f"v_xor_b32 v213, {s(sT)}, v213")
    A("v_lshl_add_u32 v215, v213, 4, v215")
    A(f"v_add_u32 v215, {LS}, v215")
    for i in range(4):
        A(f"ds_read_b128 {v(CO+4*i,4)}, v215 offset:{(i>>1)*8192 + (i&1)*1024}")
    A("v_and_b32 v213, 15, v0")
    A("v_lshlrev_b32 v213, 4, v213")
    A("v_lshl_add_u32 v213, v214, 14, v213")
    A(f"s_lshl_b32 {s(sT)}, {s(sU)}, 19")
    A(f"s_lshl_b32 {s(sT+1)}, {s(sN2)}, 8")
    A(f"s_add_u32 {s(sT)}, {s(sT)}, {s(sT+1)}")
    for i in range(4):
        A(f"s_add_u32 {s(sT+1)}, {s(sT)}, {(i>>1)*(2<<19) + (i&1)*16*16384}")
        A(f"s_waitcnt lgkmcnt({3-i})")
        A(f"buffer_store_dwordx4 {v(CO+4*i,4)}, v213, {s(sX,4)}, {s(sT+1)} offen sc1")
    def signal(cnt_off, calc, va=40):
        calc()
        A(f"s_lshl_b32 {s(sT)}, {s(sT)}, 2")
        A(f"s_add_u32 {s(sT)}, {s(sT)}, {s(sWn)}")
        A(f"s_lshl_b32 {s(sT)}, {s(sT)}, 7")
        set_flag(A, sFb, sT, sTag, va)
    def calc_xf():
        A(f"s_and_b32 {s(sT)}, {s(sXcd)}, 3")
        A(f"s_lshl_b32 {s(sT)}, {s(sT)}, 6")
        A(f"s_add_u32 {s(sT)}, {s(sT)}, {s(sN2)}")
    def yf_set(va):
        nf = A.newlabel("ka_yf")
        A(f"s_cmp_lg_u32 {s(sWave)}, 4")
        A(f"s_cbranch_scc1 {nf}")
        A(f"s_add_u32 {s(sT)}, {s(sChunk)}, 1024")
        A(f"s_lshl_b32 {s(sT)}, {s(sT)}, 7")
        set_flag(A, sFb, sT, sTag, va)
        dbg_mark(A, opts, 15, 254)
        A.label(nf)
    if opts.get("xfearly"):
        A("s_waitcnt vmcnt(0)")
        signal(0, calc_xf)
        dbg_mark(A, opts, 3, 254)
    A.label(nco)
    OP = 12
    for u in range(2):
        for e in range(2):
            A(f"ds_read_b64_tr_b16 {v(OP+4*u+2*e,2)}, {v(vLr)} offset:{(16*u+8*e)*64}")
    for g in range(16):
        A(f"ds_read_b128 {v(64+4*g,4)}, {v(vC)} offset:{g*1024}")
    TR, TI = 32, 48
    A("s_waitcnt lgkmcnt(12)")
    A(f"{MF32} {v(TR,16)}, {v(OP,4)}, {v(B1C,4)}, 0")
    A(f"{MF32} {v(TI,16)}, {v(OP,4)}, {v(B1S,4)}, 0")
    A(f"{MF32} {v(TR,16)}, {v(OP+4,4)}, {v(B1C+4,4)}, {v(TR,16)}")
    A(f"{MF32} {v(TI,16)}, {v(OP+4,4)}, {v(B1S+4,4)}, {v(TI,16)}")
    make_srd(A, sA, sWS, sWS+1, 4 << 20, add=WS_YT)
    if opts.get("latesetup", 1):
        common_setup()
        A(f"v_lshlrev_b32 {v(vDx)}, 4, {v(vLL)}")
    ng = A.newlabel("ka_ng")
    A(f"s_cmp_eq_u32 {s(sIsD)}, 0")
    A(f"s_cbranch_scc1 {ng}")
    WL = opts.get("wlate", 0)
    for t in range(EW, NS if not WL else EW):
        for ins in dmaW(t): A(ins)
    A.label(ng)
    A("s_waitcnt lgkmcnt(0)")
    A("s_nop 5")
    NY, NT = 27, 28
    WK = B1C
    A(f"v_sub_f32 {v(NY)}, {v(TR)}, {v(TR+1)}")
    A(f"v_sub_f32 {v(NT)}, {v(TR+2)}, {v(TR+3)}")
    for r in range(4, 16, 4):
        A(f"v_add_f32 {v(NY)}, {v(NY)}, {v(TR+r)}")
        A(f"v_add_f32 {v(NT)}, {v(NT)}, {v(TR+r+2)}")
        A(f"v_sub_f32 {v(NY)}, {v(NY)}, {v(TR+r+1)}")
        A(f"v_sub_f32 {v(NT)}, {v(NT)}, {v(TR+r+3)}")
    A(f"v_add_f32 {v(NY)}, {v(NY)}, {v(NT)}")
    A(f"v_mov_b32 {v(NT)}, {v(NY)}")
    def pk(op, d, *srcs, neg=None):
        m = ""
        if neg:
            bits = ",".join("1" if i in neg else "0" for i in range(len(srcs)))
            m = f" neg_lo:[{bits}] neg_hi:[{bits}]"
        A(f"v_pk_{op}_f32 {v(d,2)}, " + ", ".join(v(x,2) for x in srcs) + m)
    for r in range(0, 16, 2): pk("mul", WK+r, TR+r, TWC+r)
    for r in range(0, 16, 2): pk("mul", TR+r, TR+r, TWS+r)
    for r in range(0, 16, 2): pk("fma", WK+r, TI+r, TWS+r, WK+r, neg=[0])
    UR, UI = 4, 12
    for p in range(8): A(f"v_cvt_pk_bf16_f32 {v(UR+p)}, {v(WK+2*p)}, {v(WK+2*p+1)}")
    Y = WK
    for r in range(0, 16, 2): pk("fma", TR+r, TI+r, TWC+r, TR+r)
    A(f"{MF32} {v(Y,16)}, {v(A2R,4)}, {v(UR,4)}, 0")
    A(f"{MF32} {v(Y,16)}, {v(A2R+4,4)}, {v(UR+4,4)}, {v(Y,16)}")
    for p in range(8): A(f"v_cvt_pk_bf16_f32 {v(UI+p)}, {v(TR+2*p)}, {v(TR+2*p+1)}")
    A(f"v_permlane32_swap_b32 {v(NY)}, {v(NT)}")
    A("s_nop 0")
    A(f"{MF32} {v(Y,16)}, {v(A2I,4)}, {v(UI,4)}, {v(Y,16)}")
    A(f"{MF32} {v(Y,16)}, {v(A2I+4,4)}, {v(UI+4,4)}, {v(Y,16)}")
    A(f"v_add_f32 {v(NY)}, {v(NY)}, {v(NT)}")
    A(f"v_mul_f32 {v(NY)}, 0.5, {v(NY)}")
    A("s_nop 9")
    A(f"v_mul_f32 {v(Y)}, {v(Y)}, {v(vDC)}")
    A(f"v_cndmask_b32 {v(Y+8)}, {v(Y+8)}, {v(NY)}, s[96:97]")
    for p in range(8): A(f"v_cvt_pk_bf16_f32 {v(32+p)}, {v(Y+2*p)}, {v(Y+2*p+1)}")
    for r in range(16):
        c = r >> 3; k2 = 8*((r >> 2) & 1) + (r & 3)
        A(f"ds_write_b16{'_d16_hi' if r & 1 else ''} {v(vTw)}, {v(32+r//2)} offset:{(c*16+k2)*512}")
    if not opts.get("xfearly"):
        nx2 = A.newlabel("ka_nx2")
        A(f"s_cmp_lt_u32 {s(sWave)}, 4")
        A(f"s_cbranch_scc1 {nx2}")
        A("s_waitcnt vmcnt(0)")
        tag_check(A, sDbg, sTag, 216)
        if CT:
            calc_xf()
            A(f"s_lshr_b32 {s(sT)}, {s(sT)}, 4")
            A(f"s_add_u32 {s(sT)}, {s(sT)}, {CN0}")
            A(f"s_lshl_b32 {s(sT)}, {s(sT)}, 7")
            cnt_arrive(A, sFb, sT, 40)
        else:
            signal(0, calc_xf)
        dbg_mark(A, opts, 3, 254)
        A.label(nx2)
    A("s_waitcnt lgkmcnt(0)")
    A("s_barrier")
    stamp(A, dict(stamp=opts.get("stamp0")), 2)
    dbg_mark(A, opts, 10, 254)
    ny = A.newlabel("ka_ny"); ny0 = A.newlabel("ka_ny0")
    A(f"s_cmp_ge_u32 {s(sWave)}, 4")
    A(f"s_cbranch_scc1 {ny0}")
    A(f"s_waitcnt vmcnt({4*(NS-EW) if not opts.get('wlate') else 0})")
    tg2 = A.newlabel("ka_tg2")
    A(f"s_cmp_eq_u32 {s(sIsD)}, 1")
    A(f"s_cbranch_scc1 {tg2}")
    A("s_waitcnt vmcnt(0)")
    A.label(tg2)
    tag_check(A, sDbg, sTag, 216)
    A(f"s_branch {ny}")
    A.label(ny0)
    for i in range(opts.get("ydelay", 0)): A("s_sleep 16")
    A("v_lshrrev_b32 v213, 1, v212")
    A("v_and_b32 v214, 1, v212")
    A("v_lshlrev_b32 v213, 4, v213")
    A("v_lshl_add_u32 v213, v214, 13, v213")
    A(f"v_add_u32 v213, {LT}, v213")
    for i in range(4): A(f"ds_read_b128 {v(CO+4*i,4)}, v213 offset:{i*2048}")
    A("v_lshlrev_b32 v214, 4, v212")
    A(f"s_lshl_b32 {s(sT)}, {s(sChunk)}, 14")
    for i in range(4):
        A(f"s_add_u32 {s(sT+1)}, {s(sT)}, {i*4096}")
        A(f"s_waitcnt lgkmcnt({3-i})")
        A(f"buffer_store_dwordx4 {v(CO+4*i,4)}, v214, {s(sA,4)}, {s(sT+1)} offen sc1")
    make_srd(A, sB, sWS, sWS+1, 513*WP, add=WS_WT)
    A("v_and_b32 v40, 7, v212")
    A("v_lshrrev_b32 v41, 3, v212")
    A("v_xor_b32 v42, v41, v40")
    A("v_and_b32 v42, 7, v42")
    A("v_lshlrev_b32 v42, 4, v42")
    A("v_lshl_add_u32 v42, v41, 7, v42")
    A(f"v_add_u32 v42, {LWI}, v42")
    for i in range(4): A(f"ds_read_b128 {v(128+4*i,4)}, v42 offset:{i*4096}")
    A(f"v_mul_u32_u24 v41, {WP}, v41")
    A("v_lshl_add_u32 v41, v40, 4, v41")
    A(f"s_and_b32 {s(sT)}, s2, 63")
    A(f"s_lshl_b32 {s(sT)}, {s(sT)}, 7")
    A(f"s_add_u32 {s(sT+2)}, {s(sT)}, {512*WP}")
    A(f"s_lshr_b32 {s(sT+1)}, s2, 6")
    A(f"s_mul_i32 {s(sT+1)}, {s(sT+1)}, {128*WP}")
    A(f"s_add_u32 {s(sT)}, {s(sT)}, {s(sT+1)}")
    for i in range(4):
        A(f"s_add_u32 {s(sT+1)}, {s(sT)}, {i*32*WP}")
        A(f"s_waitcnt lgkmcnt({3-i})")
        A(f"buffer_store_dwordx4 {v(128+4*i,4)}, v41, {s(sB,4)}, {s(sT+1)} offen sc1")
    A(f"s_cmp_eq_u32 {s(sWave)}, 4")
    A(f"s_cselect_b32 {s(sT+2)}, {s(sT+2)}, 0x40000000")
    A("s_cmp_ge_u32 s2, 192")
    A(f"s_cselect_b32 {s(sT+2)}, {s(sT+2)}, 0x40000000")
    A(f"buffer_store_short v194, v195, {s(sB,4)}, {s(sT+2)} offen sc1")
    A("s_setprio 0")
    A.label(ny)
    A(f"s_cmp_ge_u32 {s(sIdx)}, 28")
    A(f"s_cbranch_scc1 {fftl}")

    def reads(slot, rs):
        sg, so = divmod(slot*SLOT, 65536)
        X = [f"ds_read_b128 {v(opX(rs,i),4)}, {v(vXa[sg])} offset:{so + i*1024}" for i in range(8)]
        Wr = [f"ds_read_b64_tr_b16 {v(opW(rs,j)+2*e,2)}, {v(vWa[j%2][sg])} offset:{so + (j//2)*8192 + e*1024}" for j in range(4) for e in range(2)]
        return Wr + X
    def mfmas(rs, first):
        return [f"{MF} {v(acc(i,j),4)}, {v(opW(rs,j),4)}, {v(opX(rs,i),4)}, {'0' if first else v(acc(i,j),4)}" for i in range(8) for j in range(4)]
    VM = [8, 12]
    def mainloop(isd, hook=None, pfs=()):
        A("s_barrier")
        stamp(A, opts, 1)
        if not isd: dbg_mark(A, opts, 4, 254)
        for ins in reads(0, 0): A(ins)
        YS = opts.get("ys", 1)
        if YS < 0 and hook: hook()
        def step(t, do_dma=True, vm=None, bar=True):
            slot = t % NS; rs = t % 2
            mf = mfmas(rs, t == 0); n = 32
            A(f"s_waitcnt vmcnt({vm}) lgkmcnt(0)" if (isd and bar) else "s_waitcnt lgkmcnt(0)")
            if bar: A("s_barrier")
            if t == YS+1 and hook: yf_set(t1)
            fl = []; sl = []
            if t+1 < KS:
                rd = reads((t+1) % NS, 1-rs)
                r0, r1 = opts.get("rspan", (0.0, 0.6))
                for q, ins in enumerate(rd): fl.append(ins); sl.append(int((r0 + (r1-r0)*q/len(rd))*n))
            dm = ((dmaW(slot) + dmaX(slot)) if do_dma else []) if isd else (pfs if YS < t < KS-1 else [])
            d0, d1 = opts.get("dspan", (0.1, 0.9))
            for q, ins in enumerate(dm): fl.append(ins); sl.append(int((d0 + (d1-d0)*q/len(dm))*n))
            for ins in interleave(mf, fl, sl): A(ins)
            if t == YS and hook: hook()
        ndma = KS - NS
        step(0, vm=VM[0]); step(1, vm=VM[1]); step(2, vm=16)
        step(3, vm=16); step(4, vm=16)
        t = 5
        nl = (ndma - t)//NS
        lp = A.newlabel("loop")
        A(f"s_mov_b32 {s(sLoop)}, {nl}")
        A.label(lp)
        for j in range(NS): step(t+j, vm=16)
        A(f"s_sub_u32 {s(sLoop)}, {s(sLoop)}, 1")
        A(f"s_cmp_lg_u32 {s(sLoop)}, 0")
        A(f"s_cbranch_scc1 {lp}")
        t += nl*NS
        while t < KS:
            lastissued = min(t+NS-1, KS-1)
            vm = 8*max(0, lastissued-(t+1))
            if t == KS - FR: vm = 0
            step(t, do_dma=(t < ndma), vm=vm, bar=(t <= KS - FR and t < KS-1) or (FR == 0 and t < KS-1))
            t += 1
    A(f"s_cmp_ge_u32 {s(sWave)}, 4")
    A(f"s_cbranch_scc1 {pfl}")
    A(f"s_lshl_b32 {s(sKx)}, {s(sMt)}, 19")
    A(f"s_add_u32 {s(sKxE+2)}, {s(sKx)}, {s(sM0x)}")
    A(f"s_add_u32 {s(sKxE)}, {s(sKxE+2)}, {1<<19}")
    A(f"s_lshl_b32 {s(sT)}, {s(sRot)}, 14")
    A(f"s_add_u32 {s(sKx)}, {s(sKxE+2)}, {s(sT)}")
    A(f"s_lshr_b32 {s(sT)}, {s(sMt)}, 2")
    A(f"s_lshl_b32 {s(sT)}, {s(sT)}, 1")
    A(f"s_and_b32 {s(sT+1)}, {s(sMt)}, 1")
    A(f"s_add_u32 {s(sT)}, {s(sT)}, {s(sT+1)}")
    if CT:
        A(f"s_lshl_b32 {s(sT)}, {s(sT)}, 2")
        A(f"s_add_u32 {s(sT)}, {s(sT)}, {s(sWave)}")
        A(f"s_add_u32 {s(sT)}, {s(sT)}, {CN0}")
        A(f"s_lshl_b32 {s(sT)}, {s(sT)}, 7")
        cnt_poll(A, sFb, sT, 64, 40, sT+1, sleep=opts.get("psleep", 2))
    else:
        A(f"s_lshl_b32 {s(sT)}, {s(sT)}, 15")
        A(f"v_and_b32 v44, 15, {v(vLL)}")
        A(f"s_lshl_b32 {s(sT+1)}, {s(sWave)}, 13")
        A(f"s_add_u32 {s(sT)}, {s(sT)}, {s(sT+1)}")
        A(f"v_lshlrev_b32 v44, 7, {v(vLL)}")
        A(f"v_add_u32 v44, {s(sT)}, v44")
        poll_flags(A, sFb, 44, 1, sTag, 40, 96, sleep=opts.get("psleep", 2))
    dbg_mark(A, opts, 13, 254)
    grp = []
    for t in range(NS):
        g_ = (dmaW(t) if (WL and t >= EW) else []) + dmaX(t)
        grp.append(sum(i_.startswith("buffer") for i_ in g_))
        for ins in g_: A(ins)
    A(f"s_waitcnt vmcnt({sum(grp[1:])})")
    VM[:] = [grp[2]+grp[3], grp[3]+8]
    mainloop(True)
    A(f"s_branch {epi}")
    A.label(pfl)
    pw = []; pd = []; ps = []
    def zero_flags(va, L):
        make_srd(A, sB, sWS, sWS+1, 131072, add=WS_FLAG)
        A(f"s_lshl_b32 {s(sT)}, s2, 9")
        A(f"s_cmp_eq_u32 {s(sWave)}, 5")
        A(f"s_cselect_b32 {s(sT)}, {s(sT)}, 0x100000")
        A(f"v_lshlrev_b32 {v(va+2)}, 3, {v(L)}")
        A(f"v_mov_b32 {v(va)}, 0")
        A(f"v_mov_b32 {v(va+1)}, 0")
        A(f"buffer_store_dwordx2 {v(va,2)}, {v(va+2)}, {s(sB,4)}, {s(sT)} offen")
    def hook():
        A("s_waitcnt vmcnt(0)")
        if not opts.get("fuseall"): zero_flags(t1, vLL)
        for ins in pw*DL + pd*(opts.get("ys", 1)+2): A(ins)
    mainloop(False, hook, pw + pd + ps)
    A.label(epi)
    dbg_mark(A, opts, 5, 254)
    FZ = opts.get("fuseall")
    wp = []
    if FZ:
        from kf import gen_kf
        gen = gen_kf(A, opts, done)
        part1, wpre, part1b, zcheck = next(gen)
        nv = 0; zy = 0
        A(f"s_lshl_b32 s83, {s(sMt)}, 1")
        A(f"s_add_u32 s83, s83, {s(sWm)}")
        A(f"s_mul_i32 s83, s83, 112")
        A(f"s_lshl_b32 {s(sT)}, {s(sNt)}, 2")
        A(f"s_add_u32 s83, s83, {s(sT)}")
        A(f"s_add_u32 s83, s83, {s(sWn)}")
        A(f"s_add_u32 s83, s83, 2048")
        if CT:
            A(f"s_lshl_b32 s83, {s(sMt)}, 1")
            A(f"s_add_u32 s83, s83, {s(sWm)}")
            A(f"s_lshl_b32 s83, s83, 1")
            A(f"s_cmp_ge_u32 {s(sNt)}, 14")
            A(f"s_addc_u32 s83, s83, {CN0+16}")
        A(f"s_lshl_b32 s83, s83, 7")
        A(f"s_mov_b64 s[94:95], {s(sTag,2)}")
        A(f"s_mov_b64 s[96:97], {s(sFb,2)}")
        A("s_nop 4")
        part1(vLL)
        wp = wpre()
    stamp(A, opts, 2)
    E = R[0]; sRow = 41
    for i in range(8):
        Tm = E + (i % 2)*16; P = Tm + 8
        g = acc(i, 0); u = acc(i, 2)
        for r in range(0, 8, 2): pk("mul", Tm+r, g+r, g+r)
        for r in range(0, 8, 2): pk("fma", Tm+r, Tm+r, vK+2, vK)
        for r in range(0, 8, 2): pk("mul", Tm+r, Tm+r, g+r)
        for r in range(8): A(f"v_exp_f32 {v(Tm+r)}, {v(Tm+r)}")
        for r in range(0, 8, 2): pk("mul", u+r, u+r, g+r)
        for r in range(0, 8, 2): pk("add", Tm+r, Tm+r, vK+4)
        for r in range(8): A(f"v_rcp_f32 {v(Tm+r)}, {v(Tm+r)}")
        A(f"s_mov_b32 {s(sRow)}, {i*1024}")
        for r in range(0, 8, 2): pk("mul", Tm+r, Tm+r, u+r)
        for r in range(4): A(f"v_cvt_pk_bf16_f32 {v(P+r)}, {v(Tm+2*r)}, {v(Tm+2*r+1)}")
        A("s_nop 1")
        A(f"v_permlane16_swap_b32 {v(P)}, {v(P+2)}")
        A(f"v_permlane16_swap_b32 {v(P+1)}, {v(P+3)}")
        A(f"buffer_store_dwordx4 {v(P,4)}, {v(vSt)}, {s(sH,4)}, {s(sRow)} offen sc1")
        if FZ:
            nv += 1; zy += 1
            wb = opts.get("wbar", 3)
            if i == opts.get("zat", 3):
                zcheck(nv); zy = 0
            if i == wb:
                part1b()
                if wp: A("s_barrier")
            if i >= wb:
                for ins in wp[:7]:
                    A(ins); nv += ins.startswith("buffer"); zy += ins.startswith("buffer")
                wp = wp[7:]
    if FZ: assert not wp
    if FZ:
        p2 = A.newlabel("ka_p2")
        A.label(p2)
        gen.send(zy)
    else:
        if opts.get("tldbg"): A("s_waitcnt vmcnt(0)")
        dbg_mark(A, opts, 6, 254)
    A.label(done)
    A("s_endpgm")
    from fft2 import gen_fft_role2
    A.label(fftl)
    A(f"s_sub_u32 s42, {s(sIdx)}, 28")
    A(f"s_lshl_b32 {s(sT)}, {s(sXcd)}, 2")
    A(f"s_add_u32 s42, s42, {s(sT)}")
    A(f"s_mov_b32 s40, {s(sWave)}")
    A(f"s_mov_b64 s[26:27], {s(sDbg,2)}")
    A(f"s_mov_b64 s[88:89], {s(sFb,2)}")
    A(f"s_mov_b64 s[90:91], {s(sTag,2)}")
    assert FZ
    from role3 import gen_role3
    gen_role3(A, opts, 42, sChunk)
    if FZ:
        A("s_mov_b32 s30, s40")
        A("s_mov_b32 s83, -1")
        A("s_mov_b64 s[94:95], s[90:91]")
        A("s_mov_b64 s[96:97], s[88:89]")
        part1(1)
        part1b()
        for ins in wpre(): A(ins)
        A(f"s_branch {p2}")
        A.label("ka_code_end")
    return 163840
```

```python
from asmlib import *
from layout import *
from dbgstamp import *
from gemm import stamp, stamp_store
from sync import *
MF = "v_mfma_f32_16x16x32_bf16"
MF32 = "v_mfma_f32_32x32x16_bf16"

def gen_kf(A, opts, done):
    NS = 4; XR = 4
    NT = 14; SLOT = 32768
    HF0, ZF0, Y2F0, EF0 = 2048, 3840, 3904, 4160
    sX, sW, sO, sY, sP, sXin, sZ = 8, 12, 16, 20, 44, 88, 84
    sTag, sFb = 94, 96
    sWS = 24; sT = 26
    sWave = 30; sMt, sNt, sHk = 31, 32, 33
    sM0 = 34; sKx, sKw, sKx2 = 35, 36, 37
    sG, sWr = 38, 39
    sFl = 42
    sPs, sPr, sFs, sFr, sYf, sRow = 48, 49, 50, 51, 52, 53
    ACC = 0; WOP = [64, 96]; XRG = 128
    b = XRG + XR*16
    nsg = (NS*SLOT + 65535)//65536
    vL, vSt, vXo = b, b+1, b+31
    vDw = [b+4, b+5, b+6, b+7]
    t0, t1, t2, t3 = b+8, b+9, b+10, b+11
    vPo, vPo2, vEx = b+12, b+13, b+14
    vWa = [list(range(b+15+8*g, b+23+8*g)) for g in range(nsg)]
    def xr(t, kk, i): return v(XRG + (t % XR)*16 + (kk*2+i)*4, 4)
    vZf = b+3; sZok = 82; WE = opts.get('WE', 2)
    LZ, LC = 131072, 147456
    def part1(vLane):
        A(f"s_load_dwordx4 s[4:7], s[0:1], 48")
        A(f"s_load_dwordx2 s[92:93], s[0:1], 0")
        A(f"v_mov_b32 {v(vL)}, {v(vLane)}")
        A(f"s_and_b32 {s(sT)}, s2, 7")
        A(f"s_lshr_b32 {s(sT+1)}, s2, 3")
        A(f"s_and_b32 {s(sHk)}, {s(sT)}, 1")
        A(f"s_lshr_b32 {s(sMt)}, {s(sT)}, 1")
        A(f"s_lshl_b32 {s(sMt)}, {s(sMt)}, 2")
        A(f"s_and_b32 {s(sT+2)}, {s(sT+1)}, 3")
        A(f"s_add_u32 {s(sMt)}, {s(sMt)}, {s(sT+2)}")
        A(f"s_lshr_b32 {s(sNt)}, {s(sT+1)}, 2")
        A(f"s_lshr_b32 {s(sG)}, {s(sWave)}, 2")
        A(f"s_and_b32 {s(sWr)}, {s(sWave)}, 3")
        A(f"s_mul_i32 {s(sKw)}, {s(sHk)}, {14<<18}")
        A(f"s_mul_i32 {s(sKx)}, {s(sHk)}, {14<<15}")
        A(f"s_add_u32 {s(sKx2)}, {s(sKx)}, 8192")
        A(f"v_lshlrev_b32 {v(vPo)}, 4, {v(vL)}")
        A(f"v_lshrrev_b32 {v(t0)}, 4, {v(vL)}")
        A(f"v_lshlrev_b32 {v(t1)}, 1, {v(t0)}")
        A(f"v_and_b32 {v(t2)}, 15, {v(vL)}")
        A(f"v_xor_b32 {v(t2)}, {v(t2)}, {v(t1)}")
        A(f"v_lshlrev_b32 {v(t2)}, 4, {v(t2)}")
        A(f"s_lshl_b32 {s(sT)}, {s(sWave)}, 4")
        A(f"v_add_u32 {v(t0)}, {s(sT)}, {v(t0)}")
        A(f"v_lshlrev_b32 {v(t0)}, 11, {v(t0)}")
        A(f"s_lshl_b32 {s(sT)}, {s(sNt)}, 8")
        A(f"v_add3_u32 {v(vDw[0])}, {v(t0)}, {v(t2)}, {s(sT)}")
        A(f"v_xor_b32 {v(t1)}, 128, {v(vDw[0])}")
        for i in range(1, 4):
            A(f"v_add_u32 {v(vDw[i])}, {i*4*2048 - i*1024}, {v(t1 if i & 2 else vDw[0])}")
        A(f"s_lshl_b32 {s(sM0)}, {s(sWave)}, 12")
        A(f"s_mul_i32 {s(sT)}, {s(sMt)}, {112*8192}")
        A(f"s_lshl_b32 {s(sT+1)}, {s(sWr)}, 10")
        A(f"s_add_u32 {s(sT)}, {s(sT)}, {s(sT+1)}")
        A(f"s_lshl_b32 {s(sT+1)}, {s(sHk)}, 12")
        A(f"s_add_u32 {s(sT)}, {s(sT)}, {s(sT+1)}")
        A(f"s_lshl_b32 {s(sT+1)}, {s(sG)}, 14")
        A(f"s_add_u32 {s(sT)}, {s(sT)}, {s(sT+1)}")
        A(f"v_add_u32 {v(vXo)}, {s(sT)}, {v(vPo)}")
        A(f"v_xor_b32 {v(vXo+1)}, 0x1000, {v(vXo)}")
        A(f"v_min_u32 {v(t0)}, 31, {v(vL)}")
        A(f"v_lshlrev_b32 {v(t0)}, 7, {v(t0)}")
        A(f"v_add_u32 {v(vZf)}, {ZF0*128}, {v(t0)}")
        A(f"global_load_dwordx2 {v(t0,2)}, {v(vZf)}, {s(sFb,2)} sc1")
        make_srd(A, sZ, sWS, sWS+1, 4 << 20, add=WS_ZT)
        A(f"s_mov_b32 {s(sZok)}, 0")
    LZ, LC = 131072, 147456
    log = []
    def emit(ins, tag=None):
        A(ins)
        if ins.startswith("buffer_") or ins.startswith("global_"): log.append(tag)
    def cnt_after(tags):
        tags = [tg for tg in tags if not (tg[0] == 'w' and tg[1] < (NS if FA else WE))]
        for tg in tags: assert tg in log and not any(x[1] == tg for x in pending), tg
        last = max(i for i, t in enumerate(log) if t in tags)
        return min(63, len(log) - 1 - last)
    pending = []
    def dma(t):
        o = [f"s_add_u32 m0, {s(sM0)}, {(t % NS)*SLOT}", "s_nop 0"]
        for i in range(4): o.append(f"buffer_load_dwordx4 {v(vDw[i])}, {s(sW,4)}, {s(sKw)} offen offset:{1024*i} lds")
        o.append(f"s_add_u32 {s(sKw)}, {s(sKw)}, {1<<18}")
        return [(x, ('w', t)) for x in o]
    def xload(t, kk):
        r = sKx if kk == 0 else sKx2
        o = [f"buffer_load_dwordx4 {xr(t,kk,i)}, {v(vXo+i)}, {s(sX,4)}, {s(r)} offen sc1" for i in range(2)]
        o.append(f"s_add_u32 {s(r)}, {s(r)}, {1<<15}")
        return [(x, ('x', t, kk)) for x in o]
    def wreads(t, kk):
        sg, so = divmod((t % NS)*SLOT, 65536)
        return [f"ds_read_b64_tr_b16 {v(WOP[kk] + j*4 + 2*e, 2)}, {v(vWa[sg][j])} offset:{so + (32*kk + 4*e)*256}" for j in range(8) for e in range(2)]
    def wpre():
        return [x for t in range(WE) for x, _ in dma(t)]
    def zdma():
        A(f"s_lshl_b32 {s(sT)}, {s(sWave)}, 11")
        A(f"s_add_u32 m0, {s(sT)}, {LZ}")
        A(f"s_lshl_b32 {s(sT+1)}, s2, 14")
        A(f"s_add_u32 {s(sT)}, {s(sT)}, {s(sT+1)}")
        for i in range(2): A(f"buffer_load_dwordx4 {v(vPo)}, {s(sZ,4)}, {s(sT)} offen offset:{i*1024} sc1 lds")
    def zcheck(younger):
        nz = A.newlabel("kf_nz")
        A(f"s_waitcnt vmcnt({younger})")
        A(f"v_cmp_eq_u64 vcc, {s(sTag,2)}, {v(t0,2)}")
        A("s_nop 1")
        A("s_cmp_eq_u64 vcc, -1")
        A(f"s_cbranch_scc0 {nz}")
        zdma()
        A(f"s_mov_b32 {s(sZok)}, 1")
        A.label(nz)
    def part1b():
        A(f"s_waitcnt lgkmcnt(0)")
        make_srd(A, sW, 4, 5, 3584*1024*2)
    ZY = yield part1, wpre, part1b, zcheck
    sHF = 83
    dbg_mark(A, opts, 9, 254)
    def hflag():
        nh = A.newlabel("kf_nh")
        A("s_waitcnt vmcnt(0)")
        A(f"s_cmp_eq_u32 {s(sHF)}, -1")
        A(f"s_cbranch_scc1 {nh}")
        if opts.get("cnt", 1): cnt_arrive(A, sFb, sHF, 0)
        else: set_flag(A, sFb, sHF, sTag, 0)
        A(f"s_mov_b32 {s(sHF)}, -1")
        A.label(nh)
    zk = A.newlabel("kf_zok")
    A(f"s_cmp_eq_u32 {s(sZok)}, 1")
    A(f"s_cbranch_scc1 {zk}")
    hflag()
    poll_flags(A, sFb, vZf, 1, sTag, 0, 98, sleep=1)
    zdma()
    A("s_waitcnt vmcnt(0)")
    A.label(zk)
    make_srd(A, sX, sWS, sWS+1, 2048*3584*2, add=WS_H)
    B1R, B1I, B2C, B2N, TWC, TWS = 64, 72, 80, 88, 96, 112
    vN2, vIdx, vB, vC = 4, 5, 6, 7
    A(f"v_bfe_u32 {v(t1)}, {v(vL)}, 2, 1")
    A(f"v_lshlrev_b32 {v(t1)}, 4, {v(t1)}")
    A(f"v_bfe_u32 {v(t2)}, {v(vL)}, 3, 2")
    A(f"v_lshl_add_u32 {v(t1)}, {v(t2)}, 2, {v(t1)}")
    A(f"v_and_b32 {v(t2)}, 3, {v(vL)}")
    A(f"v_add_u32 {v(vN2)}, {v(t1)}, {v(t2)}")
    A(f"v_add_u32 {v(vC)}, {LC}, {v(vPo)}")
    jend = A.newlabel("kb_jend"); jtw = A.newlabel("kb_jtw"); jb1 = A.newlabel("kb_jb1"); jn = A.newlabel("kb_jn")
    A(f"s_cmp_ge_u32 {s(sWave)}, 5")
    A(f"s_cbranch_scc1 {jend}")
    A(f"v_mov_b32 {v(vIdx)}, {v(vN2)}")
    A(f"s_add_u32 {s(sT)}, {s(sWave)}, 1")
    A(f"s_lshr_b32 {s(sT)}, {s(sT)}, 1")
    A(f"s_cmp_lg_u32 {s(sT)}, 1")
    A(f"s_cbranch_scc1 {jn}")
    A(f"v_and_b32 {v(vIdx)}, 31, {v(vL)}")
    A.label(jn)
    A(f"s_cmp_eq_u32 {s(sT)}, 2")
    A(f"s_cselect_b32 {s(sT+1)}, 1023, 31")
    A(f"s_mov_b32 {s(sT+2)}, {f32(1/32)}")
    A(f"s_cselect_b32 {s(sT+2)}, {f32(1/1024)}, {s(sT+2)}")
    A(f"s_add_u32 {s(sT+3)}, {s(sWave)}, 1")
    A(f"s_and_b32 {s(sT+3)}, {s(sT+3)}, 1")
    A(f"s_cmp_eq_u32 {s(sWave)}, 0")
    A(f"s_cselect_b32 {s(sT+3)}, 0, {s(sT+3)}")
    A(f"s_lshl_b32 s40, {s(sT+3)}, 4")
    A(f"v_lshrrev_b32 {v(vB)}, 5, {v(vL)}")
    A(f"v_lshl_add_u32 {v(vB)}, {v(vB)}, 2, s40")
    A(f"v_mul_u32_u24 {v(vB)}, {v(vB)}, {v(vIdx)}")
    JT, JC, JS, JO = 64, 72, 80, 88
    for e, c in enumerate((0, 1, 2, 3, 8, 9, 10, 11)): A(f"v_mad_u32_u24 {v(JT+e)}, {c}, {v(vIdx)}, {v(vB)}")
    for e in range(8): A(f"v_and_b32 {v(JT+e)}, {s(sT+1)}, {v(JT+e)}")
    for e in range(8): A(f"v_cvt_f32_u32 {v(JT+e)}, {v(JT+e)}")
    for e in range(8): A(f"v_mul_f32 {v(JT+e)}, {s(sT+2)}, {v(JT+e)}")
    for e in range(8): A(f"v_cos_f32 {v(JC+e)}, {v(JT+e)}")
    for e in range(8): A(f"v_sin_f32 {v(JS+e)}, {v(JT+e)}")
    A(f"s_cmp_eq_u32 {s(sT)}, 2")
    A(f"s_cbranch_scc1 {jtw}")
    for p in range(4): A(f"v_cvt_pk_bf16_f32 {v(JO+p)}, {v(JC+2*p)}, {v(JC+2*p+1)}")
    for p in range(4): A(f"v_cvt_pk_bf16_f32 {v(JO+4+p)}, -{v(JS+2*p)}, -{v(JS+2*p+1)}")
    A(f"s_cmp_eq_u32 {s(sT)}, 0")
    A(f"s_cbranch_scc1 {jb1}")
    A(f"s_lshl_b32 {s(sT+3)}, {s(sT+3)}, 10")
    A(f"v_add_u32 {v(vB)}, {s(sT+3)}, {v(vC)}")
    A(f"ds_write_b128 {v(vB)}, {v(JO,4)} offset:4096")
    A(f"ds_write_b128 {v(vB)}, {v(JO+4,4)} offset:6144")
    A(f"s_branch {jend}")
    A.label(jb1)
    for p in range(4): A(f"v_cvt_pk_bf16_f32 {v(JO+8+p)}, {v(JS+2*p)}, {v(JS+2*p+1)}")
    A(f"ds_write_b128 {v(vC)}, {v(JO,4)}")
    A(f"ds_write_b128 {v(vC)}, {v(JO+4,4)} offset:1024")
    A(f"ds_write_b128 {v(vC)}, {v(JO+8,4)} offset:2048")
    A(f"ds_write_b128 {v(vC)}, {v(JO,4)} offset:3072")
    A(f"s_branch {jend}")
    A.label(jtw)
    A(f"s_lshl_b32 {s(sT+3)}, {s(sT+3)}, 11")
    A(f"v_add_u32 {v(vB)}, {s(sT+3)}, {v(vC)}")
    for q in range(2):
        A(f"ds_write_b128 {v(vB)}, {v(JC+4*q,4)} offset:{8192 + q*1024}")
        A(f"ds_write_b128 {v(vB)}, {v(JS+4*q,4)} offset:{12288 + q*1024}")
    A.label(jend)
    make_srd(A, sO, 6, 7, 2048*1024*2)
    make_srd(A, sXin, 92, 93, 2048*1024*2)
    make_srd(A, sY, sWS, sWS+1, 2048*1024*2, add=WS_XY)
    make_srd(A, sP, sWS, sWS+1, 256*49152, add=WS_PART)
    A(f"v_lshrrev_b32 {v(t0)}, 4, {v(vL)}")
    A(f"v_bfe_u32 {v(t1)}, {v(vL)}, 2, 2")
    A(f"v_lshlrev_b32 {v(t2)}, 11, {v(t0)}")
    A(f"v_lshlrev_b32 {v(t3)}, 8, {v(t1)}")
    A(f"s_lshl_b32 {s(sT)}, {s(sG)}, 14")
    A(f"v_add3_u32 {v(t2)}, {v(t2)}, {v(t3)}, {s(sT)}")
    A(f"v_and_b32 {v(t0)}, 1, {v(t0)}")
    A(f"v_lshl_or_b32 {v(t1)}, {v(t0)}, 2, {v(t1)}")
    A(f"v_lshlrev_b32 {v(t1)}, 5, {v(t1)}")
    A(f"v_and_b32 {v(t3)}, 3, {v(vL)}")
    A(f"v_lshlrev_b32 {v(t3)}, 3, {v(t3)}")
    A(f"v_add3_u32 {v(vWa[0][0])}, {v(t2)}, {v(t1)}, {v(t3)}")
    for j in range(1, 8): A(f"v_xor_b32 {v(vWa[0][j])}, {32*j}, {v(vWa[0][0])}")
    for g in range(1, nsg):
        for j in range(8): A(f"v_add_u32 {v(vWa[g][j])}, {hex(0x10000*g)}, {v(vWa[0][j])}")
    A(f"v_and_b32 {v(t0)}, 3, {v(vL)}")
    A(f"v_bfe_u32 {v(t1)}, {v(vL)}, 2, 2")
    A(f"v_lshl_add_u32 {v(t0)}, {v(t0)}, 6, {v(t1)}")
    A(f"s_lshl_b32 {s(sT+1)}, {s(sWr)}, 2")
    A(f"s_lshl_b32 {s(sT+2)}, {s(sHk)}, 4")
    A(f"s_add_u32 {s(sT+1)}, {s(sT+1)}, {s(sT+2)}")
    A(f"s_lshr_b32 {s(sT)}, {s(sMt)}, 1")
    A(f"s_and_b32 {s(sT+2)}, {s(sMt)}, 1")
    A(f"s_lshl_b32 {s(sYf)}, {s(sT+2)}, 1")
    A(f"s_lshr_b32 {s(sT+3)}, {s(sT)}, 2")
    A(f"s_add_u32 {s(sYf)}, {s(sYf)}, {s(sT+3)}")
    A(f"s_lshl_b32 {s(sYf)}, {s(sYf)}, 1")
    A(f"s_and_b32 {s(sT+3)}, {s(sT)}, 1")
    A(f"s_add_u32 {s(sYf)}, {s(sYf)}, {s(sT+3)}")
    A(f"s_lshl_b32 {s(sYf)}, {s(sYf)}, 5")
    A(f"s_add_u32 {s(sYf)}, {s(sYf)}, {s(sT+1)}")
    A(f"s_add_u32 {s(sYf)}, {s(sYf)}, {Y2F0}")
    A(f"s_lshl_b32 {s(sYf)}, {s(sYf)}, 7")
    A(f"s_lshl_b32 {s(sT)}, {s(sT)}, 8")
    A(f"s_lshl_b32 {s(sT+2)}, {s(sT+2)}, 5")
    A(f"s_add_u32 {s(sT)}, {s(sT)}, {s(sT+2)}")
    A(f"s_add_u32 {s(sT)}, {s(sT)}, {s(sT+1)}")
    A(f"v_add_u32 {v(t0)}, {s(sT)}, {v(t0)}")
    A(f"v_lshlrev_b32 {v(t0)}, 11, {v(t0)}")
    A(f"v_lshrrev_b32 {v(t1)}, 5, {v(vL)}")
    A(f"v_lshlrev_b32 {v(t1)}, 4, {v(t1)}")
    A(f"v_and_b32 {v(t2)}, 16, {v(vL)}")
    A(f"v_lshlrev_b32 {v(t2)}, 1, {v(t2)}")
    A(f"v_add3_u32 {v(t0)}, {v(t0)}, {v(t1)}, {v(t2)}")
    A(f"s_lshl_b32 {s(sT)}, {s(sNt)}, 8")
    A(f"v_add_u32 {v(vSt)}, {s(sT)}, {v(t0)}")
    A(f"s_lshl_b32 {s(sT)}, {s(sMt)}, 3")
    A(f"s_add_u32 {s(sT)}, {s(sT)}, {s(sNt)}")
    A(f"s_lshl_b32 {s(sT)}, {s(sT)}, 1")
    A(f"s_add_u32 {s(sT)}, {s(sT)}, {s(sHk)}")
    A(f"s_xor_b32 {s(sT+1)}, {s(sT)}, 1")
    A(f"s_mul_i32 {s(sT+2)}, {s(sWr)}, 12288")
    A(f"s_mul_i32 {s(sPs)}, {s(sT)}, 49152")
    A(f"s_add_u32 {s(sPs)}, {s(sPs)}, {s(sT+2)}")
    A(f"s_mul_i32 {s(sPr)}, {s(sT+1)}, 49152")
    A(f"s_add_u32 {s(sPr)}, {s(sPr)}, {s(sT+2)}")
    A(f"s_lshl_b32 {s(sT+2)}, {s(sWr)}, 7")
    A(f"s_add_u32 {s(sT+2)}, {s(sT+2)}, {EF0*128}")
    A(f"s_lshl_b32 {s(sFs)}, {s(sT)}, 9")
    A(f"s_add_u32 {s(sFs)}, {s(sFs)}, {s(sT+2)}")
    A(f"s_lshl_b32 {s(sFr)}, {s(sT+1)}, 9")
    A(f"s_add_u32 {s(sFr)}, {s(sFr)}, {s(sT+2)}")
    A(f"v_add_u32 {v(vPo2)}, 4096, {v(vPo)}")
    A(f"s_lshl_b32 {s(sT)}, {s(sWave)}, 13")
    A(f"v_add_u32 {v(vEx)}, {s(sT)}, {v(vPo)}")
    A(f"s_and_b32 {s(sRow)}, s2, 31")
    A(f"s_lshr_b32 {s(sT)}, s2, 7")
    A(f"s_lshl_b32 {s(sT)}, {s(sT)}, 5")
    A(f"s_add_u32 {s(sRow)}, {s(sRow)}, {s(sT)}")
    A(f"s_bfe_u32 {s(sT)}, s2, 0x10006")
    A(f"s_lshl_b32 {s(sT)}, {s(sT)}, 10")
    A(f"s_add_u32 {s(sRow)}, {s(sRow)}, {s(sT)}")
    A(f"s_bfe_u32 {s(sT)}, s2, 0x10005")
    A(f"s_lshl_b32 {s(sT)}, {s(sT)}, 8")
    A(f"s_add_u32 {s(sRow)}, {s(sRow)}, {s(sT)}")
    A(f"s_lshl_b32 {s(sT)}, {s(sG)}, 9")
    A(f"s_add_u32 {s(sRow)}, {s(sRow)}, {s(sT)}")
    A(f"s_lshl_b32 {s(sT)}, {s(sWr)}, 6")
    A(f"s_add_u32 {s(sRow)}, {s(sRow)}, {s(sT)}")
    A(f"s_lshl_b32 {s(sRow)}, {s(sRow)}, 11")
    vRd, vNy, vYo = 8, 9, 10
    A(f"v_lshrrev_b32 {v(t0)}, 5, {v(vL)}")
    A(f"v_and_b32 {v(t1)}, 31, {v(vL)}")
    A(f"v_lshlrev_b32 {v(vRd)}, 11, {v(t0)}")
    A(f"v_lshl_add_u32 {v(vRd)}, {v(t1)}, 4, {v(vRd)}")
    A(f"s_lshl_b32 {s(sT)}, {s(sWave)}, 1")
    A(f"s_add_u32 {s(sT)}, {s(sT)}, {LZ}")
    A(f"v_add_u32 {v(vRd)}, {s(sT)}, {v(vRd)}")
    A(f"v_mov_b32 {v(vNy)}, {s(sT)}")
    A(f"s_mul_i32 {s(sT)}, {s(sMt)}, 112")
    A(f"s_mul_i32 {s(sT+1)}, {s(sHk)}, 56")
    A(f"s_add_u32 {s(sT)}, {s(sT)}, {s(sT+1)}")
    A(f"s_add_u32 {s(sT)}, {s(sT)}, {HF0}")
    A(f"v_min_u32 {v(t0)}, 55, {v(vL)}")
    A(f"v_add_u32 {v(t0)}, {s(sT)}, {v(t0)}")
    A(f"v_lshlrev_b32 {v(vZf)}, 7, {v(t0)}")
    hflag()
    dbg_mark(A, opts, 6, 254)
    A(f"s_waitcnt lgkmcnt(0)")
    A("s_barrier")
    WM = opts.get("WM", 0)
    for t in range(WE, WM):
        for ins, tg in dma(t): emit(ins, tg)
    def l2pf():
        A(f"s_lshr_b32 {s(sT)}, s2, 3")
        A(f"s_lshl_b32 {s(sT)}, {s(sT)}, 3")
        A(f"s_add_u32 {s(sT)}, {s(sT)}, {s(sWave)}")
        A(f"s_lshl_b32 {s(sT)}, {s(sT)}, 13")
        A(f"s_mul_i32 {s(sT+1)}, {s(sHk)}, {14<<18}")
        A(f"s_add_u32 {s(sT+1)}, {s(sT+1)}, {4<<18}")
        A(f"s_add_u32 {s(sT+1)}, {s(sT+1)}, {s(sT)}")
        A(f"v_lshlrev_b32 v1, 3, {v(vPo)}")
        A(f"buffer_load_dword v0, v1, {s(sW,4)}, {s(sT+1)} offen")
        if opts.get("l2pf") == 2:
            A(f"s_add_u32 {s(sT+1)}, {s(sT+1)}, {2<<20}")
            A(f"s_cmp_lt_u32 {s(sT)}, {(10<<18) - (2<<20)}")
            A(f"s_cselect_b32 {s(sT+1)}, {s(sT+1)}, 0x40000000")
            A(f"buffer_load_dword v0, v1, {s(sW,4)}, {s(sT+1)} offen")
    if opts.get("l2pf"): l2pf()
    RD = 32; NYQ = 11; OP = 12; TR, TI = 32, 48; WK = 64
    for r in range(16):
        c = r >> 3; k2 = 8*((r >> 2) & 1) + (r & 3)
        A(f"ds_read_u16 {v(RD+r)}, {v(vRd)} offset:{(c*16+k2)*512}")
    for g in range(16): A(f"ds_read_b128 {v(64+4*g,4)}, {v(vC)} offset:{g*1024}")
    A("s_waitcnt lgkmcnt(12)")
    for q in range(8): A(f"v_lshl_or_b32 {v(OP+q)}, {v(RD+2*q+1)}, 16, {v(RD+2*q)}")
    A("s_nop 1")
    A(f"{MF32} {v(TR,16)}, {v(OP,4)}, {v(B1R,4)}, 0")
    A(f"{MF32} {v(TI,16)}, {v(OP,4)}, {v(B1I,4)}, 0")
    A(f"{MF32} {v(TR,16)}, {v(OP+4,4)}, {v(B1R+4,4)}, {v(TR,16)}")
    A(f"{MF32} {v(TI,16)}, {v(OP+4,4)}, {v(B1I+4,4)}, {v(TI,16)}")
    A("s_nop 5")
    A("s_waitcnt lgkmcnt(0)")
    A("s_nop 7")
    def pk(op, d, *srcs, neg=None):
        m = ""
        if neg:
            bits = ",".join("1" if i in neg else "0" for i in range(len(srcs)))
            m = f" neg_lo:[{bits}] neg_hi:[{bits}]"
        A(f"v_pk_{op}_f32 {v(d,2)}, " + ", ".join(v(x,2) for x in srcs) + m)
    for r in range(0, 16, 2): pk("mul", WK+r, TR+r, TWC+r)
    for r in range(0, 16, 2): pk("mul", TR+r, TR+r, TWS+r)
    for r in range(0, 16, 2): pk("fma", WK+r, TI+r, TWS+r, WK+r, neg=[0])
    UR, UI = 12, 24
    for p in range(8): A(f"v_cvt_pk_bf16_f32 {v(UR+p)}, {v(WK+2*p)}, {v(WK+2*p+1)}")
    Y = WK
    for r in range(0, 16, 2): pk("fma", TR+r, TI+r, TWC+r, TR+r)
    A(f"{MF32} {v(Y,16)}, {v(UR,4)}, {v(B2C,4)}, 0")
    A(f"{MF32} {v(Y,16)}, {v(UR+4,4)}, {v(B2C+4,4)}, {v(Y,16)}")
    for p in range(8): A(f"v_cvt_pk_bf16_f32 {v(UI+p)}, {v(TR+2*p)}, {v(TR+2*p+1)}")
    A("s_nop 1")
    A(f"{MF32} {v(Y,16)}, {v(UI,4)}, {v(B2N,4)}, {v(Y,16)}")
    A(f"{MF32} {v(Y,16)}, {v(UI+4,4)}, {v(B2N+4,4)}, {v(Y,16)}")
    FA = opts.get("flow", "A") == "A"
    if not FA: A(f"global_load_dwordx2 v[2:3], {v(vZf)}, {s(sFb,2)} sc1")
    A("s_nop 11")
    for q in range(8): A(f"v_cvt_pk_bf16_f32 {v(32+q)}, {v(Y+2*q)}, {v(Y+2*q+1)}")
    def yflag():
        nf = A.newlabel("kb_nf")
        A(f"s_cmp_lg_u32 {s(sWave)}, 7")
        A(f"s_cbranch_scc1 {nf}")
        A(f"s_add_u32 {s(sT)}, s2, {Y2F0}")
        A(f"s_lshl_b32 {s(sT)}, {s(sT)}, 7")
        set_flag(A, sFb, sT, sTag, t0)
        A.label(nf)
    if FA:
        A(f"buffer_store_dwordx4 v[32:35], {v(vPo)}, {s(sY,4)}, {s(sRow)} offen sc1")
        A(f"buffer_store_dwordx4 v[36:39], {v(vPo)}, {s(sY,4)}, {s(sRow)} offen offset:1024 sc1")
        for t in range(max(WE, WM), NS):
            for ins, tg in dma(t): A(ins)
        if opts.get("cnt", 1):
            A(f"s_lshl_b32 {s(sT)}, {s(sMt)}, 1")
            A(f"s_add_u32 {s(sT)}, {s(sT)}, {s(sHk)}")
            A(f"s_add_u32 {s(sT)}, {s(sT)}, {CN0+16}")
            A(f"s_lshl_b32 {s(sT)}, {s(sT)}, 7")
            cnt_poll(A, sFb, sT, 56, 2, sT+1, sleep=opts.get("hsleep", 1))
        else:
            poll_flags(A, sFb, vZf, 1, sTag, 2, 98, sleep=opts.get("hsleep", 1))
        dbg_mark(A, opts, 14, 254)
        PRO = opts.get("PRO", 2)
        for t in range(PRO):
            for ins, tg in xload(t, 0) + xload(t, 1): emit(ins, tg)
        for t in range(PRO, XR): pending += xload(t, 0) + xload(t, 1)
        A("s_barrier")
        yflag()
    else:
        hok = A.newlabel("kf_hok")
        A("s_waitcnt vmcnt(0)")
        A(f"v_cmp_eq_u64 vcc, {s(sTag,2)}, v[2:3]")
        A("s_nop 1")
        A("s_cmp_eq_u64 vcc, -1")
        A(f"s_cbranch_scc1 {hok}")
        poll_flags(A, sFb, vZf, 1, sTag, 2, 98, sleep=opts.get("hsleep", 1))
        A.label(hok)
        dbg_mark(A, opts, 14, 254)
        PRO = opts.get("PRO", 2)
        for t in range(PRO):
            for ins, tg in xload(t, 0) + xload(t, 1): emit(ins, tg)
        emit(f"buffer_store_dwordx4 v[32:35], {v(vPo)}, {s(sY,4)}, {s(sRow)} offen sc1", 'y')
        emit(f"buffer_store_dwordx4 v[36:39], {v(vPo)}, {s(sY,4)}, {s(sRow)} offen offset:1024 sc1", 'y')
        for t in range(XR):
            if t >= max(WE, WM): pending += dma(t)
            if t >= PRO: pending += xload(t, 0) + xload(t, 1)
        if WE == 0: A("s_barrier")
    for ins in wreads(0, 0): A(ins)
    r0, r1 = opts.get("rspan2", (0.0, 0.7))
    YT_ = NT - opts.get('ytb', 2)
    for t in range(NT):
        for kk in range(2):
            if kk == 0:
                A(f"s_waitcnt vmcnt({cnt_after([('x',t,0)])}) lgkmcnt(0)" if t <= YT_ else "s_waitcnt lgkmcnt(0)")
            else:
                need = [('x', t, 1)] + ([('w', t+1)] if t+1 < NT else [])
                cnt = cnt_after(need)
                if t == YT_:
                    assert not pending
                    cnt = 0
                A(f"s_waitcnt vmcnt({cnt}) lgkmcnt(0)" if t <= YT_ else "s_waitcnt lgkmcnt(0)")
                A("s_barrier")
                if t == YT_ and not FA: yflag()
            XX = XRG + 32; YY = XRG + 48; E = XRG
            if kk == 1 and t in (YT_-1, YT_):
                assert FA and YT_ == NT-2
                sk = A.newlabel("kb_sk")
                A(f"s_cmp_lg_u32 {s(sG)}, 0")
                A(f"s_cbranch_scc1 {sk}")
                if t == YT_-1:
                    A(f"v_and_b32 {v(t0)}, 3, {v(vL)}")
                    A(f"v_lshlrev_b32 {v(t0)}, 7, {v(t0)}")
                    A(f"v_add_u32 {v(vZf)}, {s(sYf)}, {v(t0)}")
                    A(f"v_mov_b32 {v(t1)}, {(ZF0+32)*128}")
                    A(f"v_cmp_gt_u32 vcc, 4, {v(vL)}")
                    A(f"v_and_b32 {v(t2)}, 0xfffff800, {v(vSt)}")
                    A(f"v_lshrrev_b32 {v(t3)}, 5, {v(vL)}")
                    A(f"v_cndmask_b32 {v(vZf)}, {v(t1)}, {v(vZf)}, vcc")
                    A(f"global_load_dwordx2 {v(t0,2)}, {v(vZf)}, {s(sFb,2)} sc1")
                    A(f"v_lshl_add_u32 {v(t2)}, {v(t3)}, 10, {v(t2)}")
                    A(f"v_and_b32 {v(t3)}, 16, {v(vL)}")
                    A(f"v_lshl_add_u32 {v(t2)}, {v(t3)}, 5, {v(t2)}")
                    A(f"s_lshl_b32 {s(sT)}, {s(sNt)}, 6")
                    A(f"v_add_u32 {v(t2)}, {s(sT)}, {v(t2)}")
                    make_srd(A, sZ, sWS, sWS+1, 4096, add=WS_ZT + (4 << 20))
                    A(f"s_lshr_b32 {s(sT)}, {s(sYf)}, 7")
                    A(f"s_sub_u32 {s(sT)}, {s(sT)}, {Y2F0}")
                    A(f"s_lshl_b32 {s(sT)}, {s(sT)}, 4")
                    A(f"s_bfe_u32 {s(sT+1)}, {s(sMt)}, 0x10002")
                    A(f"s_lshl_b32 {s(sT+1)}, {s(sT+1)}, 3")
                    A(f"s_add_u32 {s(sYf)}, {s(sT)}, {s(sT+1)}")
                    A(f"v_bfe_u32 {v(t3)}, {v(vL)}, 2, 2")
                    A(f"v_and_b32 {v(vDw[2])}, 3, {v(vL)}")
                    A(f"v_lshlrev_b32 {v(vDw[2])}, 1, {v(vDw[2])}")
                    A(f"v_lshl_add_u32 {v(t3)}, {v(t3)}, 4, {v(vDw[2])}")
                else:
                    yo = A.newlabel("kb_yo")
                    A(f"v_cmp_eq_u64 vcc, {s(sTag,2)}, {v(t0,2)}")
                    A("s_nop 1")
                    A("s_cmp_eq_u64 vcc, -1")
                    A(f"s_cbranch_scc1 {yo}")
                    poll_flags(A, sFb, vZf, 1, sTag, t0, 98, sleep=0)
                    A.label(yo)
                    for jp in range(4): A(f"buffer_load_dwordx4 {v(XX + jp*4, 4)}, {v(vSt)}, {s(sXin,4)}, 0 offen offset:{jp*64}")
                    for jp in range(4): A(f"buffer_load_dwordx4 {v(YY + jp*4, 4)}, {v(t2)}, {s(sY,4)}, 0 offen offset:{jp*16} sc1")
                    A(f"buffer_load_ushort {v(vDw[0])}, {v(t3)}, {s(sZ,4)}, {s(sYf)} offen sc1")
                A.label(sk)
            mf = []; fl = []; sl = []
            for i in range(2):
                for j in range(8):
                    c = "0" if (t == 0 and kk == 0) else v(ACC+(i*8+j)*4, 4)
                    mf.append(f"{MF} {v(ACC+(i*8+j)*4,4)}, {v(WOP[kk]+j*4,4)}, {xr(t, kk, i)}, {c}")
            n = 16
            def add(ins, pos, tag=None): fl.append((ins, tag)); sl.append(pos)
            rd = wreads(t, 1) if kk == 0 else (wreads(t+1, 0) if t+1 < NT else [])
            for q, ins in enumerate(rd): add(ins, int((r0 + (r1-r0)*q/len(rd))*n))
            if kk == 1 and t+NS < NT: pending += dma(t+NS)
            npop = min(len(pending), 14)
            for k in range(npop):
                ins, tg = pending.pop(0); add(ins, 1 + (k*14)//npop, tg)
            if t+XR < NT: pending += xload(t+XR, kk)
            for item in interleave(mf, fl, sl):
                if isinstance(item, tuple): emit(item[0], item[1])
                else: A(item)
    dbg_mark(A, opts, 11, 254)
    A("s_nop 7")
    g1l = A.newlabel("kb_g1")
    A(f"s_cmp_lg_u32 {s(sG)}, 0")
    A(f"s_cbranch_scc1 {g1l}")
    TG = opts.get("tagx", 0); PB = opts.get("pbf", 1)
    for j in range(8): A(f"ds_write_b128 {v(vEx)}, {v(ACC+(8+j)*4,4)} offset:{j*1024}")
    A("s_waitcnt lgkmcnt(0)")
    A("s_barrier")
    PR = WOP[0]
    for j in range(8): A(f"ds_read_b128 {v(PR+j*4,4)}, {v(vEx)} offset:{32768 + j*1024}")
    XF = ACC + 32; YF = 112
    A("s_waitcnt vmcnt(0)")
    for q in range(16):
        A(f"v_lshlrev_b32 {v(XF+2*q)}, 16, {v(XX+q)}")
        A(f"v_and_b32 {v(XF+2*q+1)}, 0xffff0000, {v(XX+q)}")
    A("s_waitcnt lgkmcnt(0)")
    for r in range(0, 32, 2): pk("add", ACC+r, ACC+r, PR+r)
    NG = 11 if TG else (4 if PB else 8)
    def poff(j, base):
        return f"{v(vPo if j % 8 < 4 else vPo2)}, {s(sP,4)}, {s(base if j < 8 else sT+3)} offen offset:{(j%4)*1024} sc1"
    def pload():
        for j in range(NG): A(f"buffer_load_dwordx4 {v(PR+j*4,4)}, {poff(j, sPr)}")
    A(f"s_add_u32 {s(sT+3)}, {s(sPr)}, 8192")
    def yproc(hf):
        for q in range(8):
            A(f"v_lshlrev_b32 {v(YF+2*q)}, 16, {v(YY+8*hf+q)}")
            A(f"v_and_b32 {v(YF+2*q+1)}, 0xffff0000, {v(YY+8*hf+q)}")
        for r in range(0, 16, 2): pk("add", YF+r, YF+r, vDw[0])
        for r in range(0, 16, 2): pk("add", XF+16*hf+r, XF+16*hf+r, YF+r)
        for q in range(8): A(f"v_cvt_pk_bf16_f32 {v(YY+8*hf+q)}, {v(XF+16*hf+2*q)}, {v(XF+16*hf+2*q+1)}")
        for q in range(8):
            A(f"v_lshlrev_b32 {v(XF+16*hf+2*q)}, 16, {v(YY+8*hf+q)}")
            A(f"v_and_b32 {v(XF+16*hf+2*q+1)}, 0xffff0000, {v(YY+8*hf+q)}")
    A(f"v_lshlrev_b32 {v(vDw[0])}, 16, {v(vDw[0])}")
    A(f"v_xor_b32 {v(vDw[1])}, 0x80000000, {v(vDw[0])}")
    yproc(0); yproc(1)
    po = A.newlabel("kb_pok"); pl = A.newlabel("kb_pl")
    if TG:
        for i in range(opts.get("xsl", 0)): A("s_sleep 8")
        A.label(pl)
        pload()
        A("s_waitcnt vmcnt(0)")
        tg = lambda g: v(PR+4*g+3)
        A(f"v_max3_u32 {v(t0)}, {tg(0)}, {tg(1)}, {tg(2)}")
        A(f"v_min3_u32 {v(t1)}, {tg(0)}, {tg(1)}, {tg(2)}")
        for g in range(3, 11, 2):
            A(f"v_max3_u32 {v(t0)}, {v(t0)}, {tg(g)}, {tg(g+1)}")
            A(f"v_min3_u32 {v(t1)}, {v(t1)}, {tg(g)}, {tg(g+1)}")
        A(f"v_cmp_eq_u32 vcc, {s(sTag)}, {v(t0)}")
        A(f"v_cmp_eq_u32 s[98:99], {s(sTag)}, {v(t1)}")
        A("s_nop 1")
        A("s_and_b64 vcc, vcc, s[98:99]")
        A("s_cmp_eq_u64 vcc, -1")
        A(f"s_cbranch_scc0 {pl}")
        pr = lambda r: PR + (r//3)*4 + r % 3
    else:
        A(f"v_mov_b32 {v(vZf)}, {s(sFr)}")
        poll_flags(A, sFb, vZf, 1, sTag, t0, 98, sleep=0)
        pload()
        pr = lambda r: PR + r
    dbg_mark(A, opts, 7, 254)
    for jp in range(4):
        P = (E, E+16)[jp % 2]; Tm = P + 4
        a0 = ACC + jp*8
        if PB:
            A(f"s_waitcnt vmcnt(3)")
            for p in range(4):
                A(f"v_lshlrev_b32 {v(Tm+2*p)}, 16, {v(PR+jp*4+p)}")
                A(f"v_and_b32 {v(Tm+2*p+1)}, 0xffff0000, {v(PR+jp*4+p)}")
            for r in range(0, 8, 2): pk("add", a0+r, a0+r, Tm+r)
        else:
            if not TG: A(f"s_waitcnt vmcnt({6-2*jp + jp})")
            for r in range(8): A(f"v_add_f32 {v(a0+r)}, {v(a0+r)}, {v(pr(jp*8+r))}")
        for p in range(4): A(f"v_cvt_pk_bf16_f32 {v(P+p)}, {v(a0+2*p)}, {v(a0+2*p+1)}")
        A("s_nop 1")
        A(f"v_permlane16_swap_b32 {v(P)}, {v(P+2)}")
        A(f"v_permlane16_swap_b32 {v(P+1)}, {v(P+3)}")
        A("s_nop 0")
        for p in range(4):
            A(f"v_lshlrev_b32 {v(Tm+2*p)}, 16, {v(P+p)}")
            A(f"v_and_b32 {v(Tm+2*p+1)}, 0xffff0000, {v(P+p)}")
        for r in range(0, 8, 2): pk("add", Tm+r, Tm+r, XF+jp*8+r)
        for p in range(4): A(f"v_cvt_pk_bf16_f32 {v(YY+jp*4+p)}, {v(Tm+2*p)}, {v(Tm+2*p+1)}")
        A(f"buffer_store_dwordx4 {v(YY+jp*4,4)}, {v(vSt)}, {s(sO,4)}, 0 offen offset:{jp*64} {opts.get('ofl','')}")
    if opts.get("tldbg"): A("s_waitcnt vmcnt(0)")
    dbg_mark(A, opts, 12, 254)
    A("s_endpgm")
    A.label(g1l)
    if opts.get("sprio", 1): A("s_setprio 3")
    for j in range(8): A(f"ds_write_b128 {v(vEx)}, {v(ACC+j*4,4)} offset:{j*1024}")
    A(f"v_subrev_u32 {v(vEx)}, 32768, {v(vEx)}")
    GR = XRG
    if TG:
        for g in range(11): A(f"v_mov_b32 {v(GR+4*g+3)}, {s(sTag)}")
        A(f"v_mov_b32 {v(GR+42)}, 0")
    A(f"s_add_u32 {s(sT+3)}, {s(sPs)}, 8192")
    A("s_waitcnt lgkmcnt(0)")
    A("s_barrier")
    for j in range(8): A(f"ds_read_b128 {v(PR+j*4,4)}, {v(vEx)} offset:{j*1024}")
    if TG:
        for g in range(11):
            last = min(3*g+2, 31)
            A(f"s_waitcnt lgkmcnt({7 - last//4})")
            for r in range(3*g, last+1): A(f"v_add_f32 {v(GR+4*g+r%3)}, {v(PR+r)}, {v(ACC+32+r)}")
            A(f"buffer_store_dwordx4 {v(GR+4*g,4)}, {poff(g, sPs)}")
    else:
        for j in range(8):
            A(f"s_waitcnt lgkmcnt({7-j})")
            for r in range(0, 4, 2): pk("add", PR+j*4+r, PR+j*4+r, ACC+32+j*4+r)
            if PB:
                for p in range(2): A(f"v_cvt_pk_bf16_f32 {v(GR+j*2+p)}, {v(PR+j*4+2*p)}, {v(PR+j*4+2*p+1)}")
                if j % 2: A(f"buffer_store_dwordx4 {v(GR+(j//2)*4,4)}, {poff(j//2, sPs)}")
            else:
                A(f"buffer_store_dwordx4 {v(PR+j*4,4)}, {poff(j, sPs)}")
        A("s_waitcnt vmcnt(0)")
        set_flag(A, sFb, sFs, sTag, t0)
    A("s_endpgm")
    yield None
```

```python
from asmlib import *
from layout import *
from dbgstamp import *
from sync import *
from fft2 import job_trig, job_tw, run_jobs, PI, EO, DR, pk2
MF = "v_mfma_f32_32x32x16_bf16"

def gen_role3(A, opts, sFid, sChunk):
    vL, vOff = 1, 2
    C32, S32, N32 = 8, 16, 24
    K64 = 32
    def k64(par, kind, it): return K64 + ((par*3 + 'csn'.index(kind))*2 + it)*4
    SX, SY, SZ = 80, 112, 144
    ACC = 176; TMP = 240
    accr = lambda t: ACC + 16*t
    acci = lambda t: ACC + 32 + 16*t
    TW1, TW2, CC, PA = 0, 16384, 32768, 32768
    sYT, sZT, sWT = 8, 12, 16
    sWS = 24; sWave = 40; sPass, sWo = 30, 34
    sM0, sPb, sT = 41, 43, 48
    A(f"v_lshlrev_b32 {v(vOff)}, 4, {v(vL)}")
    A("s_waitcnt vmcnt(0)")
    RPF = opts.get("rpf", -1)
    def pf(dst=1):
        if RPF < 0: return
        A(f"v_lshlrev_b32 v4, 3, {v(vOff)}")
        A(f"buffer_load_dword {v(dst)}, v4, s[72:75], s76 offen")
        A("s_add_u32 s76, s76, s77")
    if RPF >= 0:
        A("s_load_dwordx4 s[4:7], s[0:1], 32")
        A("s_load_dwordx2 s[78:79], s[0:1], 48")
        A(f"s_and_b32 s76, {s(sWave)}, 3")
        A(f"s_lshl_b32 s76, s76, 5")
        A(f"s_add_u32 s76, s76, {s(sFid)}")
        A(f"s_lshl_b32 s76, s76, 13")
        A(f"s_add_u32 s76, s76, {opts.get('rpk', 128)*7168}")
        A(f"s_mov_b32 s77, {1<<20}")
        A(f"s_cmp_ge_u32 {s(sWave)}, 4")
        A("s_waitcnt lgkmcnt(0)")
        A("s_cselect_b32 s4, s6, s4")
        A("s_cselect_b32 s5, s7, s5")
        make_srd(A, 72, 4, 5, 1024*3584*2)
        for i in range(RPF): pf(SX+31)
    RW = opts.get("rpw", 4)
    if RW >= 0:
        A("s_load_dwordx2 s[78:79], s[0:1], 48")
        A(f"s_lshl_b32 s76, {s(sWave)}, 5")
        A(f"s_add_u32 s76, s76, {s(sFid)}")
        A(f"s_lshl_b32 s76, s76, 13")
        A(f"s_mov_b32 s77, {2<<20}")
        A("s_waitcnt lgkmcnt(0)")
        make_srd(A, 72, 78, 79, 1024*3584*2)
        RPF = 0
        for i in range(RW): pf(SX+31)
        if RW >= 4: RPF = -1
    make_srd(A, sYT, sWS, sWS+1, 4 << 20, add=WS_YT)
    make_srd(A, sWT, sWS, sWS+1, 513*WP, add=WS_WT)
    make_srd(A, sZT, sWS, sWS+1, 4 << 20, add=WS_ZT)
    A(f"s_lshl_b32 {s(sT)}, {s(sFid)}, 3")
    A(f"s_add_u32 {s(sT)}, {s(sT)}, {s(sWave)}")
    A(f"s_mul_i32 {s(sWo)}, {s(sT)}, {WP}")
    A(f"s_add_u32 {s(sWo+1)}, {s(sWo)}, 4096")
    sSpec = 31
    A(f"s_cmp_eq_u32 {s(sT)}, 0")
    A(f"s_cselect_b32 {s(sSpec)}, 1, 0")
    A(f"s_mov_b32 {s(sPass)}, 0")
    vPdi = [SY, SY+1, SY+2, SY+3]
    A(f"v_lshrrev_b32 {v(SY+4)}, 4, {v(vL)}")
    A(f"v_and_b32 {v(SY+5)}, 15, {v(vL)}")
    A(f"v_xor_b32 {v(SY+5)}, {v(SY+5)}, {v(SY+4)}")
    A(f"v_lshlrev_b32 {v(SY+5)}, 4, {v(SY+5)}")
    A(f"v_lshl_add_u32 {v(vPdi[0])}, {v(SY+4)}, 14, {v(SY+5)}")
    for i in range(1, 4): A(f"v_xor_b32 {v(vPdi[i])}, {i*64}, {v(vPdi[0])}")
    A(f"s_lshl_b32 {s(sM0)}, {s(sWave)}, 13")
    A(f"s_add_u32 {s(sM0)}, {s(sM0)}, {PA}")
    A(f"s_lshl_b32 {s(sPb)}, {s(sWave)}, 19")
    A(f"s_lshl_b32 {s(sT)}, {s(sFid)}, 8")
    A(f"s_add_u32 {s(sPb)}, {s(sPb)}, {s(sT)}")
    A(f"s_lshl_b32 {s(sT)}, {s(sWave)}, 1")
    A(f"v_and_b32 v4, 15, {v(vL)}")
    A(f"v_xor_b32 v4, {s(sT)}, v4")
    A(f"v_lshlrev_b32 v4, 4, v4")
    A(f"v_lshl_add_u32 v4, {v(vL)}, 8, v4")
    A(f"v_add_u32 v3, {PA}, v4")
    A(f"v_xor_b32 v0, 16, v3")
    vPrd = [3, 0]
    W = ACC
    vI, vH4, vI2, vH42 = TMP, TMP+1, TMP+2, TMP+3
    t0 = TMP+6
    A(f"v_and_b32 {v(vI)}, 31, {v(vL)}")
    A(f"v_lshrrev_b32 {v(t0)}, 5, {v(vL)}")
    A(f"v_lshlrev_b32 {v(t0)}, 2, {v(t0)}")
    A(f"v_mul_u32_u24 {v(vH4)}, {v(t0)}, {v(vI)}")
    A(f"v_add_u32 {v(vI2)}, 32, {v(vI)}")
    A(f"v_mul_u32_u24 {v(vH42)}, {v(t0)}, {v(vI2)}")
    img = lambda reg: CC + ((reg - 8)//4)*1024
    jobs = []
    for u in range(2):
        jobs.append((60, lambda u=u: job_trig(A, PI(u), vI, vH4, 32, W, vOff, [('c', img(C32+4*u)), ('s', img(S32+4*u)), ('n', img(N32+4*u))])))
    for par in range(2):
        for it in range(2):
            jobs.append((60, lambda par=par, it=it: job_trig(A, EO(it, par), vI, vH4, 64, W, vOff, [(k, img(k64(par, k, it))) for k in 'csn'])))
    for t in range(2):
        for half in range(2):
            jobs.append((52, lambda t=t, half=half: job_tw(A, DR(half, 32*t), vI, vH4, 2048, W, vOff, TW1 + t*8192 + half*2048, TW1 + t*8192 + 4096 + half*2048, sign=-1.0)))
            jobs.append((68, lambda t=t, half=half: job_tw(A, DR(half), vI if t == 0 else vI2, vH4 if t == 0 else vH42, 2048, W, vOff, TW2 + t*8192 + half*2048, TW2 + t*8192 + 4096 + half*2048, scale=2.0**-20)))
    run_jobs(A, jobs, sWave, 8)
    A("s_waitcnt lgkmcnt(0)")
    A("s_barrier")
    yf = A.newlabel("r3_yf")
    A(f"s_cmp_lg_u32 {s(sWave)}, 4")
    A(f"s_cbranch_scc1 {yf}")
    A(f"s_add_u32 {s(sT)}, {s(sChunk)}, 1024")
    A(f"s_lshl_b32 {s(sT)}, {s(sT)}, 7")
    set_flag(A, 88, sT, 90, 4)
    A.label(yf)
    for g in range(18): A(f"ds_read_b128 {v(8+4*g,4)}, {v(vOff)} offset:{CC + g*1024}")
    ro = dict(tldbg=opts.get("tlrole"))
    A("s_waitcnt lgkmcnt(0)")
    A("s_barrier")
    A(f"s_lshl_b32 {s(sT)}, {s(sWave)}, 12")
    A(f"s_add_u32 {s(sT)}, {s(sT)}, {1024*128}")
    A(f"v_and_b32 v4, 31, {v(vL)}")
    A(f"v_lshl_add_u32 v4, v4, 7, {s(sT)}")
    poll_flags(A, 88, 4, 1, 90, SX, 92, sleep=3)
    dbg_mark(A, ro, 1, 4)
    def dma_P(rnd):
        for i in range(8):
            A(f"s_add_u32 m0, {s(sM0)}, {rnd*65536 + i*1024}")
            A(f"s_add_u32 {s(sT)}, {s(sPb)}, {i*4*16384 + rnd*8192}")
            A(f"buffer_load_dwordx4 {v(vPdi[i%4])}, {s(sYT,4)}, {s(sT)} offen sc1 lds")
    def load_W():
        for q in range(8):
            A(f"buffer_load_dwordx4 {v(SZ+4*q,4)}, {v(vOff)}, {s(sWT,4)}, {s(sWo + (q//4))} offen offset:{(q%4)*1024} sc1")
    CNT = TW1 + 4096
    def cnt_add(k):
        A(f"v_mov_b32 v4, {CNT + 4*k}")
        A("v_mov_b32 v5, 1")
        A("s_mov_b64 exec, 1")
        A("ds_add_u32 v4, v5")
        A("s_mov_b64 exec, -1")
    def cnt_wait(k):
        w = A.newlabel("r3_cw")
        A(f"v_mov_b32 v4, {CNT + 4*k}")
        A.label(w)
        A("ds_read_b32 v5, v4")
        A("s_waitcnt lgkmcnt(0)")
        A(f"v_readfirstlane_b32 {s(sT)}, v5")
        A("s_nop 3")
        A(f"s_and_b32 {s(sT)}, {s(sT)}, 15")
        A(f"s_cmp_lt_u32 {s(sT)}, 8")
        A(f"s_cbranch_scc1 {w}")
    dma_P(0)
    A("s_waitcnt vmcnt(0)")
    A("s_barrier")
    load_W(); dma_P(1)
    dbg_mark(A, ro, 2, 4)
    Pr = lambda it, u: SX + (it*2+u)*4
    Pi = lambda it, u: SX + 16 + (it*2+u)*4
    Zr = lambda it, u: SZ + (it*2+u)*4
    Zi = lambda it, u: SZ + 16 + (it*2+u)*4
    Yo = lambda c, par, it: SY + ((c*2 + par)*2 + it)*4
    def tw_load(table, g):
        t, q = g >> 2, g & 3
        o = TMP + 8*(g & 1)
        A(f"ds_read_b128 {v(o,4)}, {v(vOff)} offset:{table + t*8192 + q*1024}")
        A(f"ds_read_b128 {v(o+4,4)}, {v(vOff)} offset:{table + t*8192 + (4+q)*1024}")
    def cmul4(g, eo):
        t, q = g >> 2, g & 3
        ar = accr(t) + 4*q; ai = acci(t) + 4*q; c = TMP + 8*(g & 1); sn = c + 4
        pk2(A, "mul", 4, 4, ar, c)
        pk2(A, "mul", 4, ar, ar, sn)
        pk2(A, "fma", 4, 4, ai, sn, 4, neg=[0])
        pk2(A, "fma", 4, ai, ai, c, ar)
        if eo:
            A(f"v_cvt_pk_bf16_f32 {v(Yo(0,0,t)+q)}, v4, v6")
            A(f"v_cvt_pk_bf16_f32 {v(Yo(0,1,t)+q)}, v5, v7")
            A(f"v_cvt_pk_bf16_f32 {v(Yo(1,0,t)+q)}, {v(ai)}, {v(ai+2)}")
            A(f"v_cvt_pk_bf16_f32 {v(Yo(1,1,t)+q)}, {v(ai+1)}, {v(ai+3)}")
        else:
            for p in range(2): A(f"v_cvt_pk_bf16_f32 {v(Zr(t,0)+2*q+p)}, {v(4+2*p)}, {v(5+2*p)}")
            for p in range(2): A(f"v_cvt_pk_bf16_f32 {v(Zi(t,0)+2*q+p)}, {v(ai+2*p)}, {v(ai+2*p+1)}")
    def tw_phase(table, eo):
        for g in range(8):
            A(f"s_waitcnt lgkmcnt({2 if g < 7 else 0})")
            cmul4(g, eo)
            if g+2 < 8: tw_load(table, g+2)
    def bfly():
        for c in range(2):
            e = ACC + 32*c; o = e + 16
            pk2(A, "add", 16, e, e, o)
            for r in range(16): A(f"v_fma_f32 {v(o+r)}, {v(o+r)}, -2.0, {v(e+r)}")
    def stage64(fwd):
        for par in range(2):
            for it in range(2):
                for c in range(2):
                    d = (accr if c == 0 else acci)(par)
                    cc = "0" if it == 0 else v(d,16)
                    x, y = v(k64(par,'c',it),4), v(Yo(c,par,it),4)
                    A(f"{MF} {v(d,16)}, {x}, {y}, {cc}" if fwd else f"{MF} {v(d,16)}, {y}, {x}, {cc}")
            for it in range(2):
                for c in range(2):
                    d = (accr if c == 0 else acci)(par)
                    kind = ('s' if c == 0 else 'n') if fwd else ('n' if c == 0 else 's')
                    x, y = v(k64(par,kind,it),4), v(Yo(1-c,par,it),4)
                    A(f"{MF} {v(d,16)}, {x}, {y}, {v(d,16)}" if fwd else f"{MF} {v(d,16)}, {y}, {x}, {v(d,16)}")
    def wunpack(g):
        t, q = g >> 2, g & 3
        wr = Zr(t,0) + 2*q; wi = Zi(t,0) + 2*q; o = TMP + 8*(g & 1)
        for p in range(2):
            A(f"v_lshlrev_b32 {v(o+2*p)}, 16, {v(wr+p)}")
            A(f"v_and_b32 {v(o+2*p+1)}, 0xffff0000, {v(wr+p)}")
            A(f"v_lshlrev_b32 {v(o+4+2*p)}, 16, {v(wi+p)}")
            A(f"v_and_b32 {v(o+4+2*p+1)}, 0xffff0000, {v(wi+p)}")
    sReal = 32
    lp = A.newlabel("r3_loop"); fin = A.newlabel("r3_fin")
    A.label(lp)
    A(f"s_cmp_lg_u32 {s(sPass)}, 1")
    A(f"s_cselect_b32 {s(sReal)}, {s(sSpec)}, 0")
    for c in range(2):
        for q in range(4): A(f"ds_read_b128 {v(SX + c*16 + q*4, 4)}, {v(vPrd[c])} offset:{q*16384}")
    tw_load(TW1, 0); tw_load(TW1, 1)
    A("s_waitcnt lgkmcnt(4)")
    z = A.newlabel("r3_z")
    A(f"s_cmp_eq_u32 {s(sReal)}, 0")
    A(f"s_cbranch_scc1 {z}")
    for r in range(16): A(f"v_mov_b32 {v(SX+16+r)}, 0")
    A("s_nop 1")
    A.label(z)
    for it in range(2):
        for u in range(2):
            c = "0" if u == 0 else v(accr(it),16)
            A(f"{MF} {v(accr(it),16)}, {v(Pr(it,u),4)}, {v(C32+4*u,4)}, {c}")
            c = "0" if u == 0 else v(acci(it),16)
            A(f"{MF} {v(acci(it),16)}, {v(Pi(it,u),4)}, {v(C32+4*u,4)}, {c}")
        for u in range(2):
            A(f"{MF} {v(accr(it),16)}, {v(Pi(it,u),4)}, {v(S32+4*u,4)}, {v(accr(it),16)}")
            A(f"{MF} {v(acci(it),16)}, {v(Pr(it,u),4)}, {v(N32+4*u,4)}, {v(acci(it),16)}")
    A("s_nop 3")
    tw_phase(TW1, True)
    A("s_nop 1")
    stage64(True)
    A("s_waitcnt vmcnt(0)")
    c0 = A.newlabel("r3_c0")
    A(f"s_cmp_lg_u32 {s(sPass)}, 0")
    A(f"s_cbranch_scc1 {c0}")
    cnt_add(0)
    A.label(c0)
    pf(); pf()
    wunpack(0); wunpack(1)
    bfly()
    for g in range(8):
        cmul4(g, True)
        if g+2 < 8: wunpack(g+2)
    tw_load(TW2, 0); tw_load(TW2, 1)
    stage64(False)
    pf(); pf()
    A("s_nop 7"); A("s_nop 3")
    bfly()
    tw_phase(TW2, False)
    A("s_nop 1")
    for jt in range(2):
        for u in range(2):
            c = "0" if u == 0 else v(accr(jt),16)
            A(f"{MF} {v(accr(jt),16)}, {v(C32+4*u,4)}, {v(Zr(jt,u),4)}, {c}")
            c = "0" if u == 0 else v(acci(jt),16)
            A(f"{MF} {v(acci(jt),16)}, {v(C32+4*u,4)}, {v(Zi(jt,u),4)}, {c}")
        for u in range(2):
            A(f"{MF} {v(accr(jt),16)}, {v(N32+4*u,4)}, {v(Zi(jt,u),4)}, {v(accr(jt),16)}")
            A(f"{MF} {v(acci(jt),16)}, {v(S32+4*u,4)}, {v(Zr(jt,u),4)}, {v(acci(jt),16)}")
    A(f"s_add_u32 {s(sWo)}, {s(sWo)}, {256*WP}")
    A(f"s_add_u32 {s(sWo+1)}, {s(sWo+1)}, {256*WP}")
    load_W()
    for jt in range(2):
        if jt == 1: A("s_nop 3")
        for c in range(2):
            base = (accr(jt) if c == 0 else acci(jt))
            for p in range(8): A(f"v_cvt_pk_bf16_f32 {v(SY + c*16 + jt*8 + p)}, {v(base+2*p)}, {v(base+2*p+1)}")
    l512 = A.newlabel("r3_l512")
    A(f"s_cmp_eq_u32 {s(sPass)}, 2")
    A(f"s_cbranch_scc1 {l512}")
    for q in range(4): A(f"ds_write_b128 {v(vPrd[0])}, {v(SY + q*4, 4)} offset:{q*16384}")
    ni = A.newlabel("r3_ni")
    A(f"s_cmp_eq_u32 {s(sReal)}, 1")
    A(f"s_cbranch_scc1 {ni}")
    for q in range(4): A(f"ds_write_b128 {v(vPrd[1])}, {v(SY + 16 + q*4, 4)} offset:{q*16384}")
    A.label(ni)
    A(f"s_add_u32 {s(sPass)}, {s(sPass)}, 1")
    p1 = A.newlabel("r3_p1")
    A(f"s_cmp_lg_u32 {s(sPass)}, 1")
    A(f"s_cbranch_scc1 {p1}")
    if RPF >= 0 and RW < 0:
        make_srd(A, 72, 78, 79, 1024*3584*2)
        A(f"s_lshl_b32 s76, {s(sWave)}, 5")
        A(f"s_add_u32 s76, s76, {s(sFid)}")
        A(f"s_lshl_b32 s76, s76, 13")
        A(f"s_mov_b32 s77, {2<<20}")
    dbg_mark(A, ro, 3, 4)
    A("s_waitcnt lgkmcnt(0)")
    cnt_add(1)
    cnt_wait(0)
    A("v_add_u32 v3, 0x10000, v3")
    A("v_add_u32 v0, 0x10000, v0")
    A(f"s_branch {lp}")
    A.label(p1)
    A("s_waitcnt vmcnt(0)")
    A(f"v_lshrrev_b32 {v(vL)}, 4, {v(vOff)}")
    za, zb = TMP, TMP+2
    A(f"v_add_u32 {v(za)}, {s(sM0)}, {v(vOff)}")
    A(f"v_add_u32 {v(za+1)}, 0x10000, {v(za)}")
    A(f"v_lshrrev_b32 {v(TMP+6)}, 4, {v(vL)}")
    A(f"v_and_b32 {v(TMP+7)}, 15, {v(vL)}")
    A(f"v_xor_b32 {v(TMP+7)}, {v(TMP+7)}, {v(TMP+6)}")
    A(f"v_and_b32 {v(TMP+8)}, 1, {v(TMP+7)}")
    A(f"v_lshrrev_b32 {v(TMP+7)}, 1, {v(TMP+7)}")
    A(f"v_lshlrev_b32 {v(TMP+7)}, 4, {v(TMP+7)}")
    A(f"v_lshl_add_u32 {v(TMP+7)}, {v(TMP+8)}, 13, {v(TMP+7)}")
    A(f"v_lshl_add_u32 {v(zb)}, {v(TMP+6)}, 14, {v(TMP+7)}")
    for i in range(1, 4): A(f"v_xor_b32 {v(zb+i)}, {i*32}, {v(zb)}")
    A(f"s_lshl_b32 {s(sT)}, {s(sFid)}, 7")
    A(f"s_lshl_b32 {s(sT+1)}, {s(sWave)}, 19")
    A(f"s_add_u32 {s(sT)}, {s(sT)}, {s(sT+1)}")
    def copy(rnd, extra):
        for i in range(8): A(f"ds_read_b128 {v(ACC+4*i,4)}, {v(za+rnd)} offset:{i*1024 + extra*8192}")
        for i in range(8):
            A(f"s_add_u32 {s(sT+1)}, {s(sT+2)}, {i*4*16384 + rnd*4096 + extra*(1<<19)}")
            A(f"s_waitcnt lgkmcnt({7-i})")
            A(f"buffer_store_dwordx4 {v(ACC+4*i,4)}, {v(zb+(i%4))}, {s(sZT,4)}, {s(sT+1)} offen sc1")
    A(f"s_mov_b32 {s(sT+2)}, {s(sT)}")
    ya = A.newlabel("r3_ya")
    A(f"s_cmp_ge_u32 {s(sWave)}, 4")
    A(f"s_cbranch_scc1 {ya}")
    cnt_wait(1)
    copy(0, 0)
    A("s_nop 1")
    copy(0, 4)
    A.label(ya)
    A("s_waitcnt lgkmcnt(0)")
    A("s_barrier")
    dbg_mark(A, ro, 10, 4)
    copy(1, 0)
    A("s_waitcnt vmcnt(0)")
    A("s_barrier")
    zf1 = A.newlabel("r3_zf1")
    A(f"s_cmp_lg_u32 {s(sWave)}, 1")
    A(f"s_cbranch_scc1 {zf1}")
    A(f"s_add_u32 {s(sT)}, {s(sFid)}, 3840")
    A(f"s_lshl_b32 {s(sT)}, {s(sT)}, 7")
    set_flag(A, 88, sT, 90, 4)
    A.label(zf1)
    dbg_mark(A, opts, 8, 4)
    A(f"s_cmp_eq_u32 {s(sSpec)}, 0")
    A(f"s_cbranch_scc1 {fin}")
    A("v_subrev_u32 v3, 0x10000, v0")
    A(f"s_branch {lp}")
    A.label(l512)
    make_srd(A, sZT, sWS, sWS+1, 4096, add=WS_ZT + (4 << 20))
    for q in range(4): A(f"buffer_store_dwordx4 {v(SY+q*4,4)}, {v(vOff)}, {s(sZT,4)}, 0 offen offset:{q*1024} sc1")
    A("s_waitcnt vmcnt(0)")
    A(f"v_lshrrev_b32 {v(vL)}, 4, {v(vOff)}")
    A(f"s_mov_b32 {s(sT)}, {(3840+32)*128}")
    set_flag(A, 88, sT, 90, 4)
    A.label(fin)
    A("s_barrier")
```

```python
from asmlib import *
from layout import *
def get_tag(A, sDbg, sTag, va):
    lp = A.newlabel("tag")
    A(f"v_mov_b32 {v(va+2)}, 64")
    A.label(lp)
    A(f"global_load_dwordx2 {v(va,2)}, {v(va+2)}, {s(sDbg,2)} sc1")
    A("s_waitcnt vmcnt(0)")
    A(f"v_readfirstlane_b32 {s(sTag)}, {v(va)}")
    A(f"v_readfirstlane_b32 {s(sTag+1)}, {v(va+1)}")
    A("s_nop 3")
    A(f"s_cmp_eq_u32 {s(sTag+1)}, 0")
    A(f"s_cbranch_scc1 {lp}")
def set_flag(A, sFb, sOff, sTag, va):
    A(f"v_mov_b32 {v(va)}, {s(sTag)}")
    A(f"v_mov_b32 {v(va+1)}, {s(sTag+1)}")
    A(f"v_mov_b32 {v(va+2)}, {s(sOff)}")
    A("s_mov_b64 exec, 1")
    A(f"global_store_dwordx2 {v(va+2)}, {v(va,2)}, {s(sFb,2)} sc1")
    A("s_mov_b64 exec, -1")
def poll_flags(A, sFb, vOffs, n, sTag, va, sM, sleep=1, stride=512):
    lp = A.newlabel("pollf")
    A.label(lp)
    if sleep: A(f"s_sleep {sleep}")
    for i in range(n):
        A(f"global_load_dwordx2 {v(va+2*i,2)}, {v(vOffs)}, {s(sFb,2)} offset:{i*stride} sc1")
    A("s_waitcnt vmcnt(0)")
    A(f"v_cmp_eq_u64 vcc, {s(sTag,2)}, {v(va,2)}")
    for i in range(1, n):
        A(f"v_cmp_eq_u64 {s(sM,2)}, {s(sTag,2)}, {v(va+2*i,2)}")
        A("s_nop 1")
        A(f"s_and_b64 vcc, vcc, {s(sM,2)}")
    A("s_nop 1")
    A("s_cmp_eq_u64 vcc, -1")
    A(f"s_cbranch_scc0 {lp}")

def poll_flags4(A, sFb, vOffs, n, sTag, va, sM, sleep=4):
    lp = A.newlabel("pollf")
    A.label(lp)
    if sleep: A(f"s_sleep {sleep}")
    for i in range(n):
        for hh in range(2):
            A(f"global_load_dwordx4 {v(va+8*i+4*hh,4)}, {v(vOffs)}, {s(sFb,2)} offset:{i*2048+hh*16} sc1")
    A("s_waitcnt vmcnt(0)")
    A(f"v_cmp_eq_u64 vcc, {s(sTag,2)}, {v(va,2)}")
    for i in range(1, 4*n):
        A(f"v_cmp_eq_u64 {s(sM,2)}, {s(sTag,2)}, {v(va+2*i,2)}")
        A("s_nop 1")
        A(f"s_and_b64 vcc, vcc, {s(sM,2)}")
    A("s_cmp_eq_u64 vcc, -1")
    A(f"s_cbranch_scc0 {lp}")

def tag_issue(A, sDbg, va):
    A(f"v_mov_b32 {v(va+2)}, 64")
    A(f"global_load_dwordx2 {v(va,2)}, {v(va+2)}, {s(sDbg,2)} sc1")
def tag_check(A, sDbg, sTag, va):
    ok = A.newlabel("tagok")
    A(f"v_readfirstlane_b32 {s(sTag)}, {v(va)}")
    A(f"v_readfirstlane_b32 {s(sTag+1)}, {v(va+1)}")
    A("s_nop 3")
    A(f"s_cmp_lg_u32 {s(sTag+1)}, 0")
    A(f"s_cbranch_scc1 {ok}")
    get_tag(A, sDbg, sTag, va)
    A.label(ok)

CN0 = 5184
def cnt_arrive(A, sFb, sOff, va):
    A(f"v_mov_b32 {v(va)}, 1")
    A(f"v_mov_b32 {v(va+1)}, {s(sOff)}")
    A("s_mov_b64 exec, 1")
    A(f"global_atomic_add {v(va+1)}, {v(va)}, {s(sFb,2)} sc1")
    A("s_mov_b64 exec, -1")
def cnt_poll(A, sFb, sOff, n, va, sT, sleep=1):
    lp = A.newlabel("pollc")
    A(f"v_mov_b32 {v(va+1)}, {s(sOff)}")
    A.label(lp)
    if sleep: A(f"s_sleep {sleep}")
    A(f"global_load_dword {v(va)}, {v(va+1)}, {s(sFb,2)} sc1")
    A("s_waitcnt vmcnt(0)")
    A(f"v_readfirstlane_b32 {s(sT)}, {v(va)}")
    A("s_nop 3")
    A(f"s_cmp_lt_u32 {s(sT)}, {n}")
    A(f"s_cbranch_scc1 {lp}")
```

```python
import sys
from asmlib import *
from gemm import parse_opts
from ka import gen_ka
NAME = "parallel_sum__spectral_gfnet__glu_gated_geglu__prompt_kernel"
opts = parse_opts(sys.argv[2:])
opts.setdefault("ofl", ""); opts.setdefault("ys", 0); opts["fuseall"] = True; opts.setdefault("tlbw", 1); opts.setdefault("hsleep", 4); opts.setdefault("cnt", 0); opts.setdefault("hfwg", 1); opts.setdefault("hp1", 1); opts.setdefault("xfwg", 1); opts.setdefault("g1map", 4); opts.setdefault("rpw", 4); opts.setdefault("WE", 1); opts.setdefault("WM", 3)
B = Asm()
lds1 = gen_ka(B, NAME, opts)
if opts.get("tldbg"):
    from dbgstamp import gen_dbg_kernel
    lo = 224 if opts.get("tlrole") else 0
    gen_dbg_kernel(B, "dbg_kernel", {0:(0,256),1:(lo,256),2:(lo,256),10:(lo,256),13:(0,224),3:(lo,256),15:(0,224),4:(0,224),5:(0,224),8:(224,256),6:(0,256),7:(0,256),9:(0,256),14:(0,256),11:(0,256),12:(0,256)})
A = Asm()
hdr = open("parallel_sum__spectral_gfnet__glu_gated_geglu__prompt.s.ref").read().split("; Override launch")[0]
A.raw(hdr.rstrip())
if opts.get("single"):
    A.raw(f"; @launch grid=(256,1,1) block=(512,1,1) lds={lds1}")
else:
    A.raw(f"; @launch kernel={NAME} grid=(256,1,1) block=(512,1,1) lds={lds1}")
if opts.get("tldbg"): A.raw("; @launch kernel=dbg_kernel grid=(1,1,1) block=(64,1,1) lds=0")
A.raw('.amdgcn_target "amdgcn-amd-amdhsa--gfx950"')
A.raw(".text")
A.lines += B.lines
A.raw('.section .rodata,"a"')
A.raw(kernel_desc(NAME, 256))
if opts.get("tldbg"): A.raw(kernel_desc("dbg_kernel", 16))
open(sys.argv[1], "w").write(A.text())
```

```python
from asmlib import *
from layout import *
from dbgstamp import *
from sync import *
from gemm import stamp, stamp_store
from fft2 import job_trig, job_tw, run_jobs, PI, DR
from fftcommon import wave_allreduce_add2, round_bf16
import math
MF = "v_mfma_f32_16x16x32_bf16"
MF32 = "v_mfma_f32_32x32x16_bf16"

def gen_ka(A, name, opts):
    NS = 4; KS = 32; SLOT = 32768; XB = 16384
    FR = opts.get("freerun", 3)
    kernel_begin(A, name)
    sX, sW, sD, sH, sP = 8, 12, 16, 20, 44
    sWS = 24; sT = 26
    sWave, sWm, sWn = 30, 31, 32
    sM0x, sM0w, sKx, sKw = 33, 34, 35, 36
    sMt, sNt, sLoop, sPf = 37, 38, 39, 40
    sDbg, sTag, sFb = 48, 50, 52
    sIdx, sXcd = 54, 55
    sA, sB = 72, 76
    sS, sChunk, sN2, sU = 80, 81, 82, 83
    ACC = 0; R = [128, 176]
    acc = lambda i, j: ACC + (i*4+j)*4
    opX = lambda rs, i: R[rs] + i*4
    opW = lambda rs, j: R[rs] + 32 + j*4
    nsg = 2
    b = 224
    vDw = [b, b+1, b+2, b+3]; vDx = b+4; vL = 1
    vXa = [b+6+g for g in range(nsg)]
    vWa = [[b+9+g for g in range(nsg)], [b+12+g for g in range(nsg)]]
    t0, t1, t2, t3 = b+15, b+16, b+17, b+18
    vSt = b+19; vK = b+20
    vLL = b+5
    done = A.newlabel("ka_done"); fftl = A.newlabel("ka_fft"); pfl = A.newlabel("ka_pf"); epi = A.newlabel("ka_epi")
    A("s_load_dwordx2 s[94:95], s[0:1], 0")
    A(f"s_load_dwordx4 {s(sDbg,4)}, s[0:1], 64")
    A(f"s_load_dwordx4 s[4:7], s[0:1], 32")
    A(f"s_load_dwordx4 s[88:91], s[0:1], 8")
    A(f"s_load_dwordx2 s[92:93], s[0:1], 48")
    A(f"s_cmp_ge_u32 s2, 256")
    A(f"s_cbranch_scc1 {done}")
    dbg_init(A, opts, 0); dbg_mark(A, opts, 0, 254, neg=True)
    stamp(A, dict(stamp=opts.get("stamp") or opts.get("stamp0")), 0)
    vOff = 2
    A(f"v_lshrrev_b32 v2, 6, v0")
    A(f"v_and_b32 {v(vL)}, 63, v0")
    A(f"s_and_b32 {s(sXcd)}, s2, 7")
    A(f"v_readfirstlane_b32 {s(sWave)}, v2")
    A(f"s_lshr_b32 {s(sIdx)}, s2, 3")
    A(f"v_lshlrev_b32 {v(vOff)}, 4, {v(vL)}")
    A(f"v_mov_b32 {v(vLL)}, {v(vL)}")
    A(f"s_lshl_b32 {s(sChunk)}, {s(sXcd)}, 5")
    A(f"s_add_u32 {s(sChunk)}, {s(sChunk)}, {s(sIdx)}")
    A(f"s_lshr_b32 {s(sT)}, {s(sXcd)}, 2")
    A(f"s_lshl_b32 {s(sT)}, {s(sT)}, 5")
    A(f"s_add_u32 {s(sN2)}, {s(sIdx)}, {s(sT)}")
    A(f"s_and_b32 {s(sT)}, {s(sXcd)}, 2")
    A(f"s_lshl_b32 {s(sT)}, {s(sT)}, 1")
    A(f"s_and_b32 {s(sT+1)}, {s(sXcd)}, 1")
    A(f"s_add_u32 {s(sU)}, {s(sT)}, {s(sT+1)}")
    A(f"s_lshr_b32 {s(sT)}, {s(sWave)}, 2")
    A(f"s_lshl_b32 {s(sT)}, {s(sT)}, 1")
    A(f"s_add_u32 {s(sT)}, {s(sT)}, {s(sU)}")
    A(f"s_lshl_b32 {s(sS)}, {s(sT)}, 8")
    A(f"s_and_b32 {s(sWn)}, {s(sWave)}, 3")
    A(f"s_lshl_b32 {s(sT)}, {s(sWn)}, 6")
    A(f"s_add_u32 {s(sS)}, {s(sS)}, {s(sT)}")
    A(f"s_add_u32 {s(sS)}, {s(sS)}, {s(sN2)}")
    A(f"s_lshl_b32 {s(sT)}, {s(sS)}, 11")
    A(f"s_and_b32 {s(sMt)}, {s(sXcd)}, 1")
    A(f"s_lshl_b32 {s(sMt)}, {s(sMt)}, 2")
    A(f"s_and_b32 {s(sT+2)}, {s(sIdx)}, 3")
    A(f"s_add_u32 {s(sMt)}, {s(sMt)}, {s(sT+2)}")
    A(f"s_lshr_b32 {s(sNt)}, {s(sXcd)}, 1")
    A(f"s_mul_i32 {s(sNt)}, {s(sNt)}, 7")
    A(f"s_lshr_b32 {s(sT+2)}, {s(sIdx)}, 2")
    A(f"s_add_u32 {s(sNt)}, {s(sNt)}, {s(sT+2)}")
    sRot, sKwE, sKxE = 56, 57, 58
    GM = opts.get("g1map", 4)
    if GM == 2:
        A(f"s_and_b32 {s(sMt)}, {s(sXcd)}, 6")
        A(f"s_lshl_b32 {s(sRot)}, {s(sMt)}, 2")
        A(f"s_and_b32 {s(sT+2)}, {s(sIdx)}, 1")
        A(f"s_add_u32 {s(sMt)}, {s(sMt)}, {s(sT+2)}")
        A(f"s_and_b32 {s(sNt)}, {s(sXcd)}, 1")
        A(f"s_mul_i32 {s(sNt)}, {s(sNt)}, 14")
        A(f"s_lshr_b32 {s(sT+2)}, {s(sIdx)}, 1")
        A(f"s_add_u32 {s(sNt)}, {s(sNt)}, {s(sT+2)}")
    elif GM == 1:
        A(f"s_mov_b32 {s(sMt)}, {s(sXcd)}")
        A(f"s_lshl_b32 {s(sRot)}, {s(sXcd)}, 2")
        A(f"s_mov_b32 {s(sNt)}, {s(sIdx)}")
    else:
        A(f"s_and_b32 {s(sRot)}, {s(sXcd)}, 1")
        A(f"s_lshl_b32 {s(sRot)}, {s(sRot)}, 4")
    if not opts.get("rot", 1): A(f"s_mov_b32 {s(sRot)}, 0")
    A("s_waitcnt lgkmcnt(0)")
    make_srd(A, sA, 94, 95, 2048*1024*2)
    RAW = 4
    A(f"buffer_load_dwordx4 {v(RAW,4)}, {v(vOff)}, {s(sA,4)}, {s(sT)} offen")
    A(f"buffer_load_dwordx4 {v(RAW+4,4)}, {v(vOff)}, {s(sA,4)}, {s(sT)} offen offset:1024")
    A(f"s_mov_b64 {s(sWS,2)}, s[50:51]")
    A(f"s_add_u32 {s(sFb)}, {s(sWS)}, {hex(WS_TAG)}")
    A(f"s_addc_u32 {s(sFb+1)}, {s(sWS+1)}, 0")
    CT = 0
    nt_ = A.newlabel("ka_notag")
    sIsT = 59
    A(f"s_lshl_b32 {s(sT)}, s2, 3")
    A(f"s_add_u32 {s(sT)}, {s(sT)}, {s(sWave)}")
    A(f"s_cmp_eq_u32 {s(sT)}, 3")
    A(f"s_cselect_b32 s62, 1, 0")
    A(f"s_cbranch_scc0 {nt_}")
    A(f"s_memrealtime {s(sTag,2)}")
    A("s_waitcnt lgkmcnt(0)")
    A(f"s_or_b32 {s(sTag+1)}, {s(sTag+1)}, 0x80000000")
    A(f"s_mov_b32 {s(sT)}, 64")
    set_flag(A, sDbg, sT, sTag, 12)
    A.label(nt_)
    WR = 128
    LWR, LWI = 131072, 147456
    A(f"s_and_b32 {s(sT)}, s2, 63")
    A(f"s_lshl_b32 {s(sT)}, {s(sT)}, 3")
    A(f"s_add_u32 {s(sT)}, {s(sT)}, {s(sWave)}")
    A(f"s_bfe_u32 {s(sT+1)}, {s(sT)}, 0x20006")
    A(f"s_lshl_b32 {s(sT+1)}, {s(sT+1)}, 4")
    A(f"s_bfe_u32 {s(sT+2)}, {s(sT)}, 0x10005")
    A(f"s_lshl_b32 {s(sT+2)}, {s(sT+2)}, 2")
    A(f"s_add_u32 {s(sT+1)}, {s(sT+1)}, {s(sT+2)}")
    A(f"s_lshl_b32 {s(sT+1)}, {s(sT+1)}, 5")
    A(f"s_and_b32 {s(sT+2)}, {s(sT)}, 31")
    A(f"s_add_u32 {s(sT+1)}, {s(sT+1)}, {s(sT+2)}")
    A(f"s_mul_i32 {s(sT+1)}, {s(sT+1)}, 1026")
    A(f"s_lshr_b32 {s(sT+2)}, s2, 6")
    A(f"s_lshl_b32 {s(sT+2)}, {s(sT+2)}, 8")
    A(f"s_add_u32 {s(sT+2)}, {s(sT+2)}, {s(sT+1)}")
    A(f"s_add_u32 {s(sT+3)}, {s(sT+2)}, {32*8*1026}")
    A("s_bitcmp1_b32 s2, 5")
    A("s_cselect_b32 s88, s90, s88")
    A("s_cselect_b32 s89, s91, s89")
    make_srd(A, sB, 88, 89, 2048*513*2)
    A(f"v_lshrrev_b32 v192, 4, {v(vL)}")
    A(f"v_mul_u32_u24 v192, {32*1026}, v192")
    A(f"v_and_b32 v193, 15, {v(vL)}")
    A(f"v_lshl_add_u32 v192, v193, 4, v192")
    A(f"buffer_load_dwordx4 {v(WR,4)}, v192, {s(sB,4)}, {s(sT+2)} offen")
    A(f"buffer_load_dwordx4 {v(WR+4,4)}, v192, {s(sB,4)}, {s(sT+3)} offen")
    A(f"v_and_b32 v192, 3, {v(vL)}")
    A(f"v_bfe_u32 v193, {v(vL)}, 2, 1")
    A(f"v_lshl_add_u32 v192, v193, 3, v192")
    A(f"v_lshrrev_b32 v193, 3, {v(vL)}")
    A(f"v_lshl_add_u32 v192, v192, 5, v193")
    A(f"v_mul_u32_u24 v192, 1026, v192")
    A(f"v_lshlrev_b32 v195, 1, {v(vL)}")
    A(f"s_sub_u32 {s(sT+1)}, {s(sT+1)}, {4*1026 - 1024}")
    A("s_cmp_ge_u32 s2, 192")
    A(f"s_cselect_b32 {s(sT+1)}, {s(sT+1)}, 0x40000000")
    A(f"s_cmp_eq_u32 {s(sWave)}, 4")
    A(f"s_cselect_b32 {s(sT+1)}, {s(sT+1)}, 0x40000000")
    A(f"buffer_load_ushort v194, v192, {s(sB,4)}, {s(sT+1)} offen")
    A(f"s_bitcmp1_b32 {s(sWave)}, 1")
    A(f"s_cselect_b32 s4, s6, s4")
    A(f"s_cselect_b32 s5, s7, s5")
    make_srd(A, sW, 4, 5, 1024*3584*2)
    def dmaW(slot):
        o = [f"s_add_u32 m0, {s(sM0w)}, {hex(slot*SLOT)}", "s_nop 0"]
        for i in range(4): o.append(f"buffer_load_dwordx4 {v(vDw[i])}, {s(sW,4)}, {s(sKw)} offen offset:{1024*i} {opts.get('wfl','')} lds")
        o.append(f"s_add_u32 {s(sKw)}, {s(sKw)}, {32*7168}\n    s_cmp_eq_u32 {s(sKw)}, {s(sKwE)}\n    s_cselect_b32 {s(sKw)}, {s(sKwE+2)}, {s(sKw)}")
        return o
    def dmaX(slot):
        o = [f"s_add_u32 m0, {s(sM0x)}, {hex(slot*SLOT)}", "s_nop 0"]
        for rep in range(opts.get("xdup", 1)):
            for i in range(4): o.append(f"buffer_load_dwordx4 {v(vDx)}, {s(sX,4)}, {s(sKx)} offen offset:{1024*i} {opts.get('xfl','sc1').replace('_',' ')} lds")
        o.append(f"s_add_u32 {s(sKx)}, {s(sKx)}, {XB}\n    s_cmp_eq_u32 {s(sKx)}, {s(sKxE)}\n    s_cselect_b32 {s(sKx)}, {s(sKxE+2)}, {s(sKx)}")
        return o
    nd1 = A.newlabel("ka_nodma")
    A(f"v_lshrrev_b32 {v(t0)}, 4, {v(vL)}")
    A(f"v_and_b32 {v(t2)}, 15, {v(vL)}")
    A(f"v_lshlrev_b32 {v(t1)}, 1, {v(t0)}")
    A(f"v_xor_b32 {v(t2)}, {v(t2)}, {v(t1)}")
    A(f"v_mul_u32_u24 {v(t0)}, 7168, {v(t0)}")
    A(f"v_lshl_add_u32 {v(vDw[0])}, {v(t2)}, 4, {v(t0)}")
    A(f"v_xor_b32 {v(t1)}, 128, {v(vDw[0])}")
    for i in range(1, 4): A(f"v_add_u32 {v(vDw[i])}, {i*4*7168 - i*1024}, {v(t1 if i & 2 else vDw[0])}")
    A(f"s_and_b32 {s(sKw)}, {s(sWave)}, 1")
    A(f"s_mul_i32 {s(sKw)}, {s(sKw)}, {16*7168}")
    A(f"s_lshl_b32 {s(sT)}, {s(sNt)}, 8")
    A(f"s_add_u32 {s(sKwE+2)}, {s(sKw)}, {s(sT)}")
    A(f"s_add_u32 {s(sKwE)}, {s(sKwE+2)}, {1024*7168}")
    A(f"s_mul_i32 {s(sT)}, {s(sRot)}, {32*7168}")
    A(f"s_add_u32 {s(sKw)}, {s(sKwE+2)}, {s(sT)}")
    A(f"s_lshl_b32 {s(sM0x)}, {s(sWave)}, 12")
    A(f"s_add_u32 {s(sM0w)}, {s(sM0x)}, {XB}")
    DL = opts.get("pfd", 8); P0 = 6
    vP, vD = b+29, b+27; sPw = 87
    pw = [f"buffer_load_dword {v(vD)}, {v(vP)}, {s(sW,4)}, {s(sPw)} offen", f"s_add_u32 {s(sPw)}, {s(sPw)}, {32*7168}"]
    EW = opts.get('EW', 2)
    sIsD = 84
    A(f"s_cmp_lt_u32 {s(sIdx)}, 28")
    A(f"s_cselect_b32 {s(sIsD)}, 1, 0")
    A(f"s_cmp_lt_u32 {s(sWave)}, 4")
    A(f"s_cselect_b32 {s(sIsD)}, {s(sIsD)}, 0")
    LC, LS, LT = 65536, 98304, 131072
    B1C, B1S, A2R, A2I, TWC, TWS = 64, 72, 80, 88, 96, 112
    vK1, vIdx, vB, vPh, vC = 12, 13, 14, 15, 20
    A(f"v_and_b32 {v(vK1)}, 31, {v(vL)}")
    A(f"v_add_u32 {v(vC)}, {LC}, {v(vOff)}")
    jend = A.newlabel("ka_jend"); jtw = A.newlabel("ka_jtw")
    A(f"s_xor_b32 {s(sT+3)}, {s(sWave)}, 4")
    A(f"s_cmp_ge_u32 {s(sT+3)}, 6")
    A(f"s_cbranch_scc1 {jend}")
    A(f"s_lshr_b32 {s(sT)}, {s(sT+3)}, 1")
    A(f"s_cmp_eq_u32 {s(sT)}, 1")
    A(f"s_cselect_b32 {s(sT+1)}, 15, 31")
    A(f"s_mov_b32 {s(sT+2)}, {f32(-1/32)}")
    A(f"s_cselect_b32 {s(sT+2)}, {f32(1/32)}, {s(sT+2)}")
    A(f"s_cselect_b32 s85, {f32(0.25)}, 0")
    A(f"v_and_b32 {v(vIdx)}, {s(sT+1)}, {v(vL)}")
    A(f"v_bfe_u32 {v(vPh)}, {v(vL)}, 4, 1")
    A(f"v_cvt_f32_u32 {v(vPh)}, {v(vPh)}")
    A(f"v_mul_f32 {v(vPh)}, s85, {v(vPh)}")
    A(f"s_cmp_eq_u32 {s(sT)}, 2")
    A(f"s_cselect_b32 {s(sT+1)}, 1023, 31")
    A(f"s_cselect_b32 {s(sT+2)}, {f32(-1/1024)}, {s(sT+2)}")
    A(f"s_and_b32 s85, {s(sT+3)}, 1")
    A(f"s_lshl_b32 s86, s85, 4")
    A(f"v_lshrrev_b32 {v(vB)}, 5, {v(vL)}")
    A(f"v_lshl_add_u32 {v(vB)}, {v(vB)}, 2, s86")
    A(f"v_mul_u32_u24 {v(vB)}, {v(vB)}, {v(vIdx)}")
    JT, JC, JS, JO = 64, 72, 80, 88
    for e, c in enumerate((0, 1, 2, 3, 8, 9, 10, 11)): A(f"v_mad_u32_u24 {v(JT+e)}, {c}, {v(vIdx)}, {v(vB)}")
    for e in range(8): A(f"v_and_b32 {v(JT+e)}, {s(sT+1)}, {v(JT+e)}")
    for e in range(8): A(f"v_cvt_f32_u32 {v(JT+e)}, {v(JT+e)}")
    for e in range(8): A(f"v_fma_f32 {v(JT+e)}, {v(JT+e)}, {s(sT+2)}, {v(vPh)}")
    for e in range(8): A(f"v_cos_f32 {v(JC+e)}, {v(JT+e)}")
    for e in range(8): A(f"v_sin_f32 {v(JS+e)}, {v(JT+e)}")
    A(f"s_cbranch_scc1 {jtw}") if False else None
    A(f"s_cmp_eq_u32 {s(sT)}, 2")
    A(f"s_cbranch_scc1 {jtw}")
    A(f"s_lshl_b32 {s(sT)}, {s(sT)}, 12")
    A(f"s_lshl_b32 s85, s85, 10")
    A(f"s_add_u32 {s(sT)}, {s(sT)}, s85")
    A(f"v_add_u32 {v(vB)}, {s(sT)}, {v(vC)}")
    for p in range(8): A(f"v_cvt_pk_bf16_f32 {v(JO+p)}, {v(JC+2*p)}, {v(JC+2*p+1)}")
    A(f"ds_write_b128 {v(vB)}, {v(JO,4)}")
    A(f"ds_write_b128 {v(vB)}, {v(JO+4,4)} offset:2048")
    A(f"s_branch {jend}")
    A.label(jtw)
    A(f"s_lshl_b32 s85, s85, 11")
    A(f"v_add_u32 {v(vB)}, s85, {v(vC)}")
    for q in range(2):
        A(f"ds_write_b128 {v(vB)}, {v(JC+4*q,4)} offset:{8192 + q*1024}")
        A(f"ds_write_b128 {v(vB)}, {v(JS+4*q,4)} offset:{12288 + q*1024}")
    A.label(jend)
    q0, q1, q2 = 17, 18, 19
    vLw, vLr, vTw, vDC = 21, 22, 23, 24
    A(f"s_lshl_b32 {s(sT)}, {s(sWave)}, 11")
    A(f"s_add_u32 {s(sT)}, {s(sT)}, {LS}")
    A(f"s_lshl_b32 {s(sT+1)}, {s(sWn)}, 6")
    A(f"v_xor_b32 {v(vLw)}, {s(sT+1)}, {v(vOff)}")
    A(f"v_add_u32 {v(vLw)}, {s(sT)}, {v(vLw)}")
    A(f"v_lshrrev_b32 {v(q0)}, 5, {v(vL)}")
    A(f"v_lshlrev_b32 {v(vTw)}, 11, {v(q0)}")
    A(f"v_lshlrev_b32 {v(q0)}, 8, {v(q0)}")
    A(f"v_bfe_u32 {v(q1)}, {v(vL)}, 2, 2")
    A(f"v_lshl_add_u32 {v(q0)}, {v(q1)}, 6, {v(q0)}")
    A(f"v_and_b32 {v(q1)}, 16, {v(vL)}")
    A(f"v_lshl_add_u32 {v(q0)}, {v(q1)}, 1, {v(q0)}")
    A(f"v_and_b32 {v(q2)}, 3, {v(vL)}")
    A(f"v_lshl_add_u32 {v(q0)}, {v(q2)}, 3, {v(q0)}")
    A(f"v_xor_b32 {v(q0)}, {s(sT+1)}, {v(q0)}")
    A(f"v_add_u32 {v(vLr)}, {s(sT)}, {v(q0)}")
    A(f"v_lshl_add_u32 {v(vTw)}, {v(vK1)}, 4, {v(vTw)}")
    A(f"s_lshl_b32 {s(sT)}, {s(sWave)}, 1")
    A(f"s_add_u32 {s(sT)}, {s(sT)}, {LT}")
    A(f"v_add_u32 {v(vTw)}, {s(sT)}, {v(vTw)}")
    A(f"v_cmp_eq_u32 s[96:97], 0, {v(vL)}")
    A(f"v_mov_b32 {v(vDC)}, 1.0")
    make_srd(A, sX, sWS, sWS+1, 2048*1024*2, add=WS_XN)
    A(f"v_cndmask_b32 {v(vDC)}, {v(vDC)}, 0.5, s[96:97]")
    F = 32; D = 48
    SUM, SQ, T1, T2, MB, RS = 25, 26, 27, 28, 29, 30
    def common_setup():
        L = vLL
        A(f"s_lshr_b32 {s(sWm)}, {s(sWave)}, 2")
        A(f"v_and_b32 {v(t0)}, 15, {v(L)}")
        A(f"v_lshrrev_b32 {v(t1)}, 4, {v(L)}")
        A(f"v_lshrrev_b32 {v(t2)}, 2, {v(L)}")
        A(f"v_and_b32 {v(t3)}, 2, {v(t2)}")
        A(f"v_xor_b32 {v(t3)}, {v(t3)}, {v(t1)}")
        A(f"v_lshlrev_b32 {v(t3)}, 4, {v(t3)}")
        A(f"v_lshl_add_u32 {v(t3)}, {v(t0)}, 6, {v(t3)}")
        A(f"s_lshl_b32 {s(sT)}, {s(sWm)}, 13")
        A(f"v_add_u32 {v(vXa[0])}, {s(sT)}, {v(t3)}")
        for g in range(1, nsg): A(f"v_add_u32 {v(vXa[g])}, {hex(65536*g)}, {v(vXa[0])}")
        A(f"v_and_b32 {v(t2)}, 3, {v(t2)}")
        A(f"v_lshlrev_b32 {v(t3)}, 11, {v(t1)}")
        A(f"v_lshl_add_u32 {v(t3)}, {v(t2)}, 8, {v(t3)}")
        A(f"v_and_b32 {v(t1)}, 1, {v(t1)}")
        A(f"v_lshl_or_b32 {v(t2)}, {v(t1)}, 2, {v(t2)}")
        A(f"s_lshl_b32 {s(sT)}, {s(sWn)}, 1")
        A(f"v_xor_b32 {v(t2)}, {s(sT)}, {v(t2)}")
        A(f"v_lshl_add_u32 {v(t3)}, {v(t2)}, 5, {v(t3)}")
        A(f"v_and_b32 {v(t2)}, 3, {v(L)}")
        A(f"v_lshl_add_u32 {v(t3)}, {v(t2)}, 3, {v(t3)}")
        A(f"v_add_u32 {v(vWa[0][0])}, {XB}, {v(t3)}")
        A(f"v_xor_b32 {v(vWa[1][0])}, 32, {v(vWa[0][0])}")
        for jt in range(2):
            for g in range(1, nsg): A(f"v_add_u32 {v(vWa[jt][g])}, {hex(65536*g)}, {v(vWa[jt][0])}")
        A(f"v_lshrrev_b32 {v(t1)}, 5, {v(L)}")
        A(f"v_lshrrev_b32 {v(t2)}, 3, {v(L)}")
        A(f"v_and_b32 {v(t2)}, 2, {v(t2)}")
        A(f"v_or_b32 {v(t1)}, {v(t1)}, {v(t2)}")
        A(f"v_lshlrev_b32 {v(t1)}, 8, {v(t1)}")
        A(f"v_lshl_add_u32 {v(t1)}, {v(t0)}, 4, {v(t1)}")
        A(f"s_lshl_b32 {s(sT)}, {s(sMt)}, 1")
        A(f"s_add_u32 {s(sT)}, {s(sT)}, {s(sWm)}")
        A(f"s_mul_i32 {s(sT)}, {s(sT)}, 112")
        A(f"s_lshl_b32 {s(sT+1)}, {s(sNt)}, 2")
        A(f"s_add_u32 {s(sT)}, {s(sT)}, {s(sT+1)}")
        A(f"s_add_u32 {s(sT)}, {s(sT)}, {s(sWn)}")
        A(f"s_lshl_b32 {s(sT)}, {s(sT)}, 13")
        A(f"v_add_u32 {v(vSt)}, {s(sT)}, {v(t1)}")
        k0 = -2.0*math.log2(math.e)*math.sqrt(2.0/math.pi); k1 = k0*0.044715
        for i, c in enumerate((k0, k0, k1, k1, 1.0, 1.0)): A(f"v_mov_b32 {v(vK+i)}, {f32(c)}")
        make_srd(A, sH, sWS, sWS+1, 2048*3584*2, add=WS_H)
    if not opts.get("latesetup", 1):
        common_setup()
        A(f"v_lshlrev_b32 {v(vDx)}, 4, {v(vLL)}")
    CPF = opts.get("cpf", 0)
    if CPF:
        A("s_getpc_b64 s[60:61]")
        lbl = A.newlabel("ka_pc")
        A.label(lbl)
        A(f"s_sub_u32 s60, s60, {lbl}-{name}")
        A("s_subb_u32 s61, s61, 0")
        A(f"v_lshlrev_b32 v219, 7, v0")
        A(f"v_min_u32 v219, ka_code_end-{name}-4, v219")
        A("global_load_dword v220, v219, s[60:61]")
    TE = opts.get("tagearly", 1)
    if TE: tag_issue(A, sDbg, 216)
    CPF += TE
    wd = A.newlabel("ka_wd")
    A(f"s_cmp_eq_u32 {s(sIsD)}, 0")
    A(f"s_cbranch_scc1 {nd1}")
    for t in range(EW):
        for ins in dmaW(t): A(ins)
    A(f"s_waitcnt vmcnt({3+4*EW+CPF})")
    A(f"s_branch {wd}")
    A.label(nd1)
    A(f"s_waitcnt vmcnt({3+CPF})")
    A.label(wd)
    stamp(A, dict(stamp=opts.get("stamp0")), 1)
    dbg_mark(A, opts, 1, 254)
    for i in range(8):
        A(f"v_lshlrev_b32 {v(F+2*i)}, 16, {v(RAW+i)}")
        A(f"v_and_b32 {v(F+2*i+1)}, 0xffff0000, {v(RAW+i)}")
    A(f"v_readfirstlane_b32 {s(sT+3)}, {v(F)}")
    A("s_nop 1")
    for i in range(16): A(f"v_subrev_f32 {v(D+i)}, {s(sT+3)}, {v(F+i)}")
    A(f"v_add_f32 {v(SUM)}, {v(D)}, {v(D+1)}")
    A(f"v_mul_f32 {v(SQ)}, {v(D)}, {v(D)}")
    A(f"v_add_f32 {v(T1)}, {v(D+2)}, {v(D+3)}")
    A(f"v_mul_f32 {v(T2)}, {v(D+1)}, {v(D+1)}")
    for i in range(2, 16, 2):
        if i >= 4:
            A(f"v_add_f32 {v(SUM)}, {v(SUM)}, {v(D+i)}")
            A(f"v_add_f32 {v(T1)}, {v(T1)}, {v(D+i+1)}")
        A(f"v_fmac_f32 {v(SQ)}, {v(D+i)}, {v(D+i)}")
        A(f"v_fmac_f32 {v(T2)}, {v(D+i+1)}, {v(D+i+1)}")
    A(f"v_add_f32 {v(SUM)}, {v(SUM)}, {v(T1)}")
    A(f"v_add_f32 {v(SQ)}, {v(SQ)}, {v(T2)}")
    wave_allreduce_add2(A, [SUM, SQ], [T1, T2])
    A(f"v_mul_f32 {v(MB)}, {f32(1/1024)}, {v(SUM)}")
    A(f"v_mul_f32 {v(RS)}, {f32(1/1024)}, {v(SQ)}")
    A(f"v_fma_f32 {v(RS)}, -{v(MB)}, {v(MB)}, {v(RS)}")
    A(f"v_add_f32 {v(MB)}, {s(sT+3)}, {v(MB)}")
    A(f"v_max_f32 {v(RS)}, 0, {v(RS)}")
    round_bf16(A, RS)
    round_bf16(A, MB)
    A(f"v_add_f32 {v(RS)}, {f32(1e-5)}, {v(RS)}")
    round_bf16(A, RS)
    A(f"v_sqrt_f32 {v(RS)}, {v(RS)}")
    for i in range(16): A(f"v_sub_f32 {v(D+i)}, {v(F+i)}, {v(MB)}")
    round_bf16(A, RS)
    A(f"v_rcp_f32 {v(RS)}, {v(RS)}")
    for i in range(8): A(f"v_cvt_pk_bf16_f32 {v(RAW+i)}, {v(D+2*i)}, {v(D+2*i+1)}")
    for i in range(8):
        A(f"v_lshlrev_b32 {v(D+2*i)}, 16, {v(RAW+i)}")
        A(f"v_and_b32 {v(D+2*i+1)}, 0xffff0000, {v(RAW+i)}")
    for i in range(16): A(f"v_mul_f32 {v(D+i)}, {v(D+i)}, {v(RS)}")
    for i in range(8): A(f"v_cvt_pk_bf16_f32 {v(RAW+i)}, {v(D+2*i)}, {v(D+2*i+1)}")
    A(f"ds_write_b128 {v(vLw)}, {v(RAW,4)}")
    A(f"ds_write_b128 {v(vLw)}, {v(RAW+4,4)} offset:1024")
    def wpart():
        A(f"s_lshl_b32 {s(sT)}, {s(sWave)}, 11")
        A(f"s_add_u32 {s(sT)}, {s(sT)}, {LWR}")
        A(f"v_add_u32 v136, {s(sT)}, {v(vOff)}")
        A(f"ds_write_b128 v136, {v(WR,4)}")
        A(f"ds_write_b128 v136, {v(WR+4,4)} offset:1024")
        A(f"v_bfe_u32 v137, {v(vL)}, 2, 2")
        A(f"v_lshlrev_b32 v137, 8, v137")
        A(f"v_lshrrev_b32 v138, 4, {v(vL)}")
        A(f"v_lshl_add_u32 v137, v138, 5, v137")
        A(f"v_and_b32 v138, 3, {v(vL)}")
        A(f"v_lshl_add_u32 v137, v138, 3, v137")
        A(f"v_add_u32 v137, {s(sT)}, v137")
        A(f"v_and_b32 v138, 7, {v(vL)}")
        A(f"v_xor_b32 v138, {s(sWave)}, v138")
        A(f"v_lshlrev_b32 v138, 4, v138")
        A(f"v_lshl_add_u32 v138, {v(vL)}, 7, v138")
        A(f"v_add_u32 v138, {LWI}, v138")
        A("s_waitcnt lgkmcnt(0)")
        for ps_ in range(2):
            for eh in range(2):
                A(f"ds_read_b64_tr_b16 {v(140+4*ps_+2*eh,2)}, v137 offset:{eh*1024 + ps_*128}")
        A("s_waitcnt lgkmcnt(0)")
        for ps_ in range(2):
            A(f"ds_write_b128 v138, {v(140+4*ps_,4)} offset:{ps_*8192}")
    w1 = A.newlabel("ka_w1"); w2 = A.newlabel("ka_w2")
    A(f"s_cmp_eq_u32 {s(sIsD)}, 0")
    A(f"s_cbranch_scc1 {w1}")
    A(f"s_waitcnt vmcnt({4*EW+CPF})")
    A(f"s_branch {w2}")
    A.label(w1)
    A(f"s_waitcnt vmcnt({CPF})")
    A.label(w2)
    wpart()
    if not TE: tag_issue(A, sDbg, 216)
    A("s_waitcnt lgkmcnt(0)")
    A("s_barrier")
    dbg_mark(A, opts, 2, 254)
    CO = 196
    nco = A.newlabel("ka_nco")
    A(f"s_cmp_lt_u32 {s(sWave)}, 4")
    A(f"s_cbranch_scc1 {nco}")
    if opts.get("pfprio", 1): A("s_setprio 2")
    A("v_and_b32 v212, 255, v0")
    A("v_bfe_u32 v213, v0, 2, 2")
    A("v_lshrrev_b32 v214, 4, v212")
    A("v_xor_b32 v215, v214, v213")
    A("v_lshlrev_b32 v215, 6, v215")
    A("v_lshl_add_u32 v215, v213, 11, v215")
    A(f"s_and_b32 {s(sT)}, {s(sN2)}, 2")
    A("v_and_b32 v213, 3, v0")
    A(f"v_xor_b32 v213, {s(sT)}, v213")
    A("v_lshl_add_u32 v215, v213, 4, v215")
    A(f"v_add_u32 v215, {LS}, v215")
    for i in range(4):
        A(f"ds_read_b128 {v(CO+4*i,4)}, v215 offset:{(i>>1)*8192 + (i&1)*1024}")
    A("v_and_b32 v213, 15, v0")
    A("v_lshlrev_b32 v213, 4, v213")
    A("v_lshl_add_u32 v213, v214, 14, v213")
    A(f"s_lshl_b32 {s(sT)}, {s(sU)}, 19")
    A(f"s_lshl_b32 {s(sT+1)}, {s(sN2)}, 8")
    A(f"s_add_u32 {s(sT)}, {s(sT)}, {s(sT+1)}")
    for i in range(4):
        A(f"s_add_u32 {s(sT+1)}, {s(sT)}, {(i>>1)*(2<<19) + (i&1)*16*16384}")
        A(f"s_waitcnt lgkmcnt({3-i})")
        A(f"buffer_store_dwordx4 {v(CO+4*i,4)}, v213, {s(sX,4)}, {s(sT+1)} offen sc1")
    def signal(cnt_off, calc, va=40):
        calc()
        A(f"s_lshl_b32 {s(sT)}, {s(sT)}, 2")
        A(f"s_add_u32 {s(sT)}, {s(sT)}, {s(sWn)}")
        A(f"s_lshl_b32 {s(sT)}, {s(sT)}, 7")
        set_flag(A, sFb, sT, sTag, va)
    def calc_xf():
        A(f"s_and_b32 {s(sT)}, {s(sXcd)}, 3")
        A(f"s_lshl_b32 {s(sT)}, {s(sT)}, 6")
        A(f"s_add_u32 {s(sT)}, {s(sT)}, {s(sN2)}")
    def yf_set(va):
        nf = A.newlabel("ka_yf")
        A(f"s_cmp_lg_u32 {s(sWave)}, 4")
        A(f"s_cbranch_scc1 {nf}")
        A(f"s_add_u32 {s(sT)}, {s(sChunk)}, 1024")
        A(f"s_lshl_b32 {s(sT)}, {s(sT)}, 7")
        set_flag(A, sFb, sT, sTag, va)
        dbg_mark(A, opts, 15, 254)
        A.label(nf)
    if opts.get("xfearly"):
        A("s_waitcnt vmcnt(0)")
        signal(0, calc_xf)
        dbg_mark(A, opts, 3, 254)
    A.label(nco)
    OP = 12
    for u in range(2):
        for e in range(2):
            A(f"ds_read_b64_tr_b16 {v(OP+4*u+2*e,2)}, {v(vLr)} offset:{(16*u+8*e)*64}")
    for g in range(16):
        A(f"ds_read_b128 {v(64+4*g,4)}, {v(vC)} offset:{g*1024}")
    TR, TI = 32, 48
    A("s_waitcnt lgkmcnt(12)")
    A(f"{MF32} {v(TR,16)}, {v(OP,4)}, {v(B1C,4)}, 0")
    A(f"{MF32} {v(TI,16)}, {v(OP,4)}, {v(B1S,4)}, 0")
    A(f"{MF32} {v(TR,16)}, {v(OP+4,4)}, {v(B1C+4,4)}, {v(TR,16)}")
    A(f"{MF32} {v(TI,16)}, {v(OP+4,4)}, {v(B1S+4,4)}, {v(TI,16)}")
    make_srd(A, sA, sWS, sWS+1, 4 << 20, add=WS_YT)
    if opts.get("latesetup", 1):
        common_setup()
        A(f"v_lshlrev_b32 {v(vDx)}, 4, {v(vLL)}")
    ng = A.newlabel("ka_ng")
    A(f"s_cmp_eq_u32 {s(sIsD)}, 0")
    A(f"s_cbranch_scc1 {ng}")
    WL = opts.get("wlate", 0)
    for t in range(EW, NS if not WL else EW):
        for ins in dmaW(t): A(ins)
    A.label(ng)
    A("s_waitcnt lgkmcnt(0)")
    A("s_nop 5")
    NY, NT = 27, 28
    WK = B1C
    A(f"v_sub_f32 {v(NY)}, {v(TR)}, {v(TR+1)}")
    A(f"v_sub_f32 {v(NT)}, {v(TR+2)}, {v(TR+3)}")
    for r in range(4, 16, 4):
        A(f"v_add_f32 {v(NY)}, {v(NY)}, {v(TR+r)}")
        A(f"v_add_f32 {v(NT)}, {v(NT)}, {v(TR+r+2)}")
        A(f"v_sub_f32 {v(NY)}, {v(NY)}, {v(TR+r+1)}")
        A(f"v_sub_f32 {v(NT)}, {v(NT)}, {v(TR+r+3)}")
    A(f"v_add_f32 {v(NY)}, {v(NY)}, {v(NT)}")
    A(f"v_mov_b32 {v(NT)}, {v(NY)}")
    def pk(op, d, *srcs, neg=None):
        m = ""
        if neg:
            bits = ",".join("1" if i in neg else "0" for i in range(len(srcs)))
            m = f" neg_lo:[{bits}] neg_hi:[{bits}]"
        A(f"v_pk_{op}_f32 {v(d,2)}, " + ", ".join(v(x,2) for x in srcs) + m)
    for r in range(0, 16, 2): pk("mul", WK+r, TR+r, TWC+r)
    for r in range(0, 16, 2): pk("mul", TR+r, TR+r, TWS+r)
    for r in range(0, 16, 2): pk("fma", WK+r, TI+r, TWS+r, WK+r, neg=[0])
    UR, UI = 4, 12
    for p in range(8): A(f"v_cvt_pk_bf16_f32 {v(UR+p)}, {v(WK+2*p)}, {v(WK+2*p+1)}")
    Y = WK
    for r in range(0, 16, 2): pk("fma", TR+r, TI+r, TWC+r, TR+r)
    A(f"{MF32} {v(Y,16)}, {v(A2R,4)}, {v(UR,4)}, 0")
    A(f"{MF32} {v(Y,16)}, {v(A2R+4,4)}, {v(UR+4,4)}, {v(Y,16)}")
    for p in range(8): A(f"v_cvt_pk_bf16_f32 {v(UI+p)}, {v(TR+2*p)}, {v(TR+2*p+1)}")
    A(f"v_permlane32_swap_b32 {v(NY)}, {v(NT)}")
    A("s_nop 0")
    A(f"{MF32} {v(Y,16)}, {v(A2I,4)}, {v(UI,4)}, {v(Y,16)}")
    A(f"{MF32} {v(Y,16)}, {v(A2I+4,4)}, {v(UI+4,4)}, {v(Y,16)}")
    A(f"v_add_f32 {v(NY)}, {v(NY)}, {v(NT)}")
    A(f"v_mul_f32 {v(NY)}, 0.5, {v(NY)}")
    A("s_nop 9")
    A(f"v_mul_f32 {v(Y)}, {v(Y)}, {v(vDC)}")
    A(f"v_cndmask_b32 {v(Y+8)}, {v(Y+8)}, {v(NY)}, s[96:97]")
    for p in range(8): A(f"v_cvt_pk_bf16_f32 {v(32+p)}, {v(Y+2*p)}, {v(Y+2*p+1)}")
    for r in range(16):
        c = r >> 3; k2 = 8*((r >> 2) & 1) + (r & 3)
        A(f"ds_write_b16{'_d16_hi' if r & 1 else ''} {v(vTw)}, {v(32+r//2)} offset:{(c*16+k2)*512}")
    if not opts.get("xfearly"):
        nx2 = A.newlabel("ka_nx2")
        A(f"s_cmp_lt_u32 {s(sWave)}, 4")
        A(f"s_cbranch_scc1 {nx2}")
        A("s_waitcnt vmcnt(0)")
        tag_check(A, sDbg, sTag, 216)
        if CT:
            calc_xf()
            A(f"s_lshr_b32 {s(sT)}, {s(sT)}, 4")
            A(f"s_add_u32 {s(sT)}, {s(sT)}, {CN0}")
            A(f"s_lshl_b32 {s(sT)}, {s(sT)}, 7")
            cnt_arrive(A, sFb, sT, 40)
        elif not opts.get("xfwg", 0):
            signal(0, calc_xf)
        dbg_mark(A, opts, 3, 254)
        A.label(nx2)
    A("s_waitcnt lgkmcnt(0)")
    A("s_barrier")
    stamp(A, dict(stamp=opts.get("stamp0")), 2)
    dbg_mark(A, opts, 10, 254)
    ny = A.newlabel("ka_ny"); ny0 = A.newlabel("ka_ny0")
    A(f"s_cmp_ge_u32 {s(sWave)}, 4")
    A(f"s_cbranch_scc1 {ny0}")
    A(f"s_waitcnt vmcnt({4*(NS-EW) if not opts.get('wlate') else 0})")
    tg2 = A.newlabel("ka_tg2")
    A(f"s_cmp_eq_u32 {s(sIsD)}, 1")
    A(f"s_cbranch_scc1 {tg2}")
    A("s_waitcnt vmcnt(0)")
    A.label(tg2)
    tag_check(A, sDbg, sTag, 216)
    A(f"s_branch {ny}")
    A.label(ny0)
    if opts.get("xfwg", 0):
        xw = A.newlabel("ka_xw")
        A(f"s_cmp_lg_u32 {s(sWave)}, 4")
        A(f"s_cbranch_scc1 {xw}")
        signal(0, calc_xf)
        A.label(xw)
    for i in range(opts.get("ydelay", 0)): A("s_sleep 16")
    A("v_lshrrev_b32 v213, 1, v212")
    A("v_and_b32 v214, 1, v212")
    A("v_lshlrev_b32 v213, 4, v213")
    A("v_lshl_add_u32 v213, v214, 13, v213")
    A(f"v_add_u32 v213, {LT}, v213")
    for i in range(4): A(f"ds_read_b128 {v(CO+4*i,4)}, v213 offset:{i*2048}")
    A("v_lshlrev_b32 v214, 4, v212")
    A(f"s_lshl_b32 {s(sT)}, {s(sChunk)}, 14")
    for i in range(4):
        A(f"s_add_u32 {s(sT+1)}, {s(sT)}, {i*4096}")
        A(f"s_waitcnt lgkmcnt({3-i})")
        A(f"buffer_store_dwordx4 {v(CO+4*i,4)}, v214, {s(sA,4)}, {s(sT+1)} offen sc1")
    make_srd(A, sB, sWS, sWS+1, 513*WP, add=WS_WT)
    A("v_and_b32 v40, 7, v212")
    A("v_lshrrev_b32 v41, 3, v212")
    A("v_xor_b32 v42, v41, v40")
    A("v_and_b32 v42, 7, v42")
    A("v_lshlrev_b32 v42, 4, v42")
    A("v_lshl_add_u32 v42, v41, 7, v42")
    A(f"v_add_u32 v42, {LWI}, v42")
    for i in range(4): A(f"ds_read_b128 {v(128+4*i,4)}, v42 offset:{i*4096}")
    A(f"v_mul_u32_u24 v41, {WP}, v41")
    A("v_lshl_add_u32 v41, v40, 4, v41")
    A(f"s_and_b32 {s(sT)}, s2, 63")
    A(f"s_lshl_b32 {s(sT)}, {s(sT)}, 7")
    A(f"s_add_u32 {s(sT+2)}, {s(sT)}, {512*WP}")
    A(f"s_lshr_b32 {s(sT+1)}, s2, 6")
    A(f"s_mul_i32 {s(sT+1)}, {s(sT+1)}, {128*WP}")
    A(f"s_add_u32 {s(sT)}, {s(sT)}, {s(sT+1)}")
    for i in range(4):
        A(f"s_add_u32 {s(sT+1)}, {s(sT)}, {i*32*WP}")
        A(f"s_waitcnt lgkmcnt({3-i})")
        A(f"buffer_store_dwordx4 {v(128+4*i,4)}, v41, {s(sB,4)}, {s(sT+1)} offen sc1")
    A(f"s_cmp_eq_u32 {s(sWave)}, 4")
    A(f"s_cselect_b32 {s(sT+2)}, {s(sT+2)}, 0x40000000")
    A("s_cmp_ge_u32 s2, 192")
    A(f"s_cselect_b32 {s(sT+2)}, {s(sT+2)}, 0x40000000")
    A(f"buffer_store_short v194, v195, {s(sB,4)}, {s(sT+2)} offen sc1")
    A("s_setprio 0")
    A.label(ny)
    A(f"s_cmp_ge_u32 {s(sIdx)}, 28")
    A(f"s_cbranch_scc1 {fftl}")

    def reads(slot, rs):
        sg, so = divmod(slot*SLOT, 65536)
        X = [f"ds_read_b128 {v(opX(rs,i),4)}, {v(vXa[sg])} offset:{so + i*1024}" for i in range(8)]
        Wr = [f"ds_read_b64_tr_b16 {v(opW(rs,j)+2*e,2)}, {v(vWa[j%2][sg])} offset:{so + (j//2)*8192 + e*1024}" for j in range(4) for e in range(2)]
        return Wr + X + X[:opts.get("rdup", 0)]
    def mfmas(rs, first):
        od = opts.get("order", "xs")
        if od == "xs": ij = [(i, j) for i in range(8) for j in range(4)]
        elif od == "snake": ij = [(i, j if i % 2 == 0 else 3-j) for i in range(8) for j in range(4)]
        elif od == "ws": ij = [(i, j) for j in range(4) for i in range(8)]
        elif od == "wsnake": ij = [(i if j % 2 == 0 else 7-i, j) for j in range(4) for i in range(8)]
        return [f"{MF} {v(acc(i,j),4)}, {v(opW(rs,j),4)}, {v(opX(rs,i),4)}, {'0' if first else v(acc(i,j),4)}" for i, j in ij]
    VM = [8, 12]
    def mainloop(isd, hook=None, pfs=()):
        A("s_barrier")
        stamp(A, opts, 1)
        if not isd: dbg_mark(A, opts, 4, 254)
        for ins in reads(0, 0): A(ins)
        YS = opts.get("ys", 1)
        if YS < 0 and hook: hook()
        def step(t, do_dma=True, vm=None, bar=True):
            slot = t % NS; rs = t % 2
            mf = mfmas(rs, t == 0); n = 32
            if opts.get("xdup", 1) > 1 and vm in (8, 16) and t > 1: vm = vm*3//2
            A(f"s_waitcnt vmcnt({vm}) lgkmcnt(0)" if (isd and bar) else "s_waitcnt lgkmcnt(0)")
            if bar: A("s_barrier")
            if t == YS+1 and hook: yf_set(t1)
            fl = []; sl = []
            if t+1 < KS:
                rd = reads((t+1) % NS, 1-rs)
                r0, r1 = opts.get("rspan", (0.0, 0.6))
                for q, ins in enumerate(rd): fl.append(ins); sl.append(int((r0 + (r1-r0)*q/len(rd))*n))
            dm = ((dmaW(slot) + dmaX(slot)) if do_dma else []) if isd else (pfs if YS < t < KS-1 else [])
            d0, d1 = opts.get("dspan", (0.1, 0.9))
            for q, ins in enumerate(dm): fl.append(ins); sl.append(int((d0 + (d1-d0)*q/len(dm))*n))
            for ins in interleave(mf, fl, sl): A(ins)
            if t == YS and hook: hook()
        ndma = KS - NS
        step(0, vm=VM[0]); step(1, vm=VM[1]); step(2, vm=16)
        step(3, vm=16); step(4, vm=16)
        t = 5
        nl = (ndma - t)//NS
        lp = A.newlabel("loop")
        A(f"s_mov_b32 {s(sLoop)}, {nl}")
        A.label(lp)
        for j in range(NS): step(t+j, vm=16)
        A(f"s_sub_u32 {s(sLoop)}, {s(sLoop)}, 1")
        A(f"s_cmp_lg_u32 {s(sLoop)}, 0")
        A(f"s_cbranch_scc1 {lp}")
        t += nl*NS
        while t < KS:
            lastissued = min(t+NS-1, KS-1)
            vm = 8*max(0, lastissued-(t+1))
            if t == KS - FR: vm = 0
            step(t, do_dma=(t < ndma), vm=vm, bar=(t <= KS - FR and t < KS-1) or (FR == 0 and t < KS-1))
            t += 1
    A(f"s_cmp_ge_u32 {s(sWave)}, 4")
    A(f"s_cbranch_scc1 {pfl}")
    A(f"s_lshl_b32 {s(sKx)}, {s(sMt)}, 19")
    A(f"s_add_u32 {s(sKxE+2)}, {s(sKx)}, {s(sM0x)}")
    A(f"s_add_u32 {s(sKxE)}, {s(sKxE+2)}, {1<<19}")
    A(f"s_lshl_b32 {s(sT)}, {s(sRot)}, 14")
    A(f"s_add_u32 {s(sKx)}, {s(sKxE+2)}, {s(sT)}")
    A(f"s_lshr_b32 {s(sT)}, {s(sMt)}, 2")
    A(f"s_lshl_b32 {s(sT)}, {s(sT)}, 1")
    A(f"s_and_b32 {s(sT+1)}, {s(sMt)}, 1")
    A(f"s_add_u32 {s(sT)}, {s(sT)}, {s(sT+1)}")
    if CT:
        A(f"s_lshl_b32 {s(sT)}, {s(sT)}, 2")
        A(f"s_add_u32 {s(sT)}, {s(sT)}, {s(sWave)}")
        A(f"s_add_u32 {s(sT)}, {s(sT)}, {CN0}")
        A(f"s_lshl_b32 {s(sT)}, {s(sT)}, 7")
        cnt_poll(A, sFb, sT, 64, 40, sT+1, sleep=opts.get("psleep", 2))
    else:
        A(f"s_lshl_b32 {s(sT)}, {s(sT)}, 15")
        A(f"v_and_b32 v44, 15, {v(vLL)}")
        A(f"s_lshl_b32 {s(sT+1)}, {s(sWave)}, 13")
        A(f"s_add_u32 {s(sT)}, {s(sT)}, {s(sT+1)}")
        if opts.get("xfwg", 0): A(f"v_lshlrev_b32 v44, 9, v44")
        else: A(f"v_lshlrev_b32 v44, 7, {v(vLL)}")
        A(f"v_add_u32 v44, {s(sT)}, v44")
        poll_flags(A, sFb, 44, 1, sTag, 40, 96, sleep=opts.get("psleep", 2))
    dbg_mark(A, opts, 13, 254)
    grp = []
    for t in range(NS):
        g_ = (dmaW(t) if (WL and t >= EW) else []) + dmaX(t)
        grp.append(sum(i_.startswith("buffer") for i_ in g_))
        for ins in g_: A(ins)
    A(f"s_waitcnt vmcnt({sum(grp[1:])})")
    VM[:] = [grp[2]+grp[3], grp[3]+8]
    mainloop(True)
    A(f"s_branch {epi}")
    A.label(pfl)
    pw = []; pd = []; ps = []
    def zero_flags(va, L):
        make_srd(A, sB, sWS, sWS+1, 131072, add=WS_FLAG)
        A(f"s_lshl_b32 {s(sT)}, s2, 9")
        A(f"s_cmp_eq_u32 {s(sWave)}, 5")
        A(f"s_cselect_b32 {s(sT)}, {s(sT)}, 0x100000")
        A(f"v_lshlrev_b32 {v(va+2)}, 3, {v(L)}")
        A(f"v_mov_b32 {v(va)}, 0")
        A(f"v_mov_b32 {v(va+1)}, 0")
        A(f"buffer_store_dwordx2 {v(va,2)}, {v(va+2)}, {s(sB,4)}, {s(sT)} offen")
    def hook():
        A("s_waitcnt vmcnt(0)")
        if not opts.get("fuseall"): zero_flags(t1, vLL)
        for ins in pw*DL + pd*(opts.get("ys", 1)+2): A(ins)
    mainloop(False, hook, pw + pd + ps)
    A.label(epi)
    dbg_mark(A, opts, 5, 254)
    A("s_nop 7")
    FZ = opts.get("fuseall")
    wp = []
    if FZ:
        from kf import gen_kf
        gen = gen_kf(A, opts, done)
        part1, wpre, part1b, zcheck = next(gen)
        nv = 0; zy = 0
        A(f"s_lshl_b32 s83, {s(sMt)}, 1")
        A(f"s_add_u32 s83, s83, {s(sWm)}")
        A(f"s_mul_i32 s83, s83, 112")
        A(f"s_lshl_b32 {s(sT)}, {s(sNt)}, 2")
        A(f"s_add_u32 s83, s83, {s(sT)}")
        A(f"s_add_u32 s83, s83, {s(sWn)}")
        if opts.get("hfwg", 0):
            A(f"s_mul_i32 s83, {s(sMt)}, 28")
            A(f"s_add_u32 s83, s83, {s(sNt)}")
        A(f"s_add_u32 s83, s83, 2048")
        if CT:
            A(f"s_lshl_b32 s83, {s(sMt)}, 1")
            A(f"s_add_u32 s83, s83, {s(sWm)}")
            A(f"s_lshl_b32 s83, s83, 1")
            A(f"s_cmp_ge_u32 {s(sNt)}, 14")
            A(f"s_addc_u32 s83, s83, {CN0+16}")
        A(f"s_lshl_b32 s83, s83, 7")
        A(f"s_mov_b64 s[94:95], {s(sTag,2)}")
        A(f"s_mov_b64 s[96:97], {s(sFb,2)}")
        A("s_nop 4")
        part1(vLL)
        wp = wpre()
    stamp(A, opts, 2)
    E = R[0]; sRow = 41
    for i in range(8):
        Tm = E + (i % 2)*16; P = Tm + 8
        g = acc(i, 0); u = acc(i, 2)
        for r in range(0, 8, 2): pk("mul", Tm+r, g+r, g+r)
        for r in range(0, 8, 2): pk("fma", Tm+r, Tm+r, vK+2, vK)
        for r in range(0, 8, 2): pk("mul", Tm+r, Tm+r, g+r)
        for r in range(8): A(f"v_exp_f32 {v(Tm+r)}, {v(Tm+r)}")
        for r in range(0, 8, 2): pk("mul", u+r, u+r, g+r)
        for r in range(0, 8, 2): pk("add", Tm+r, Tm+r, vK+4)
        for r in range(8): A(f"v_rcp_f32 {v(Tm+r)}, {v(Tm+r)}")
        A(f"s_mov_b32 {s(sRow)}, {i*1024}")
        for r in range(0, 8, 2): pk("mul", Tm+r, Tm+r, u+r)
        for r in range(4): A(f"v_cvt_pk_bf16_f32 {v(P+r)}, {v(Tm+2*r)}, {v(Tm+2*r+1)}")
        A("s_nop 1")
        A(f"v_permlane16_swap_b32 {v(P)}, {v(P+2)}")
        A(f"v_permlane16_swap_b32 {v(P+1)}, {v(P+3)}")
        A(f"buffer_store_dwordx4 {v(P,4)}, {v(vSt)}, {s(sH,4)}, {s(sRow)} offen {opts.get('hst','sc1')}")
        if FZ:
            nv += 1; zy += 1
            wb = opts.get("wbar", 3)
            if i == opts.get("zat", 3):
                zcheck(nv); zy = 0
            if i == wb:
                part1b()
                if wp: A("s_barrier")
            if i >= wb:
                for ins in wp[:7]:
                    A(ins); nv += ins.startswith("buffer"); zy += ins.startswith("buffer")
                wp = wp[7:]
    if FZ: assert not wp
    if FZ:
        p2 = A.newlabel("ka_p2")
        A.label(p2)
        gen.send(zy)
    else:
        if opts.get("tldbg"): A("s_waitcnt vmcnt(0)")
        dbg_mark(A, opts, 6, 254)
    A.label(done)
    A("s_endpgm")
    from fft2 import gen_fft_role2
    A.label(fftl)
    A(f"s_sub_u32 s42, {s(sIdx)}, 28")
    A(f"s_lshl_b32 {s(sT)}, {s(sXcd)}, 2")
    A(f"s_add_u32 s42, s42, {s(sT)}")
    A(f"s_mov_b32 s40, {s(sWave)}")
    A(f"s_mov_b64 s[26:27], {s(sDbg,2)}")
    A(f"s_mov_b64 s[88:89], {s(sFb,2)}")
    A(f"s_mov_b64 s[90:91], {s(sTag,2)}")
    assert FZ
    from role3 import gen_role3
    gen_role3(A, opts, 42, sChunk)
    if FZ:
        A("s_mov_b32 s30, s40")
        A("s_mov_b32 s83, -1")
        A("s_mov_b64 s[94:95], s[90:91]")
        A("s_mov_b64 s[96:97], s[88:89]")
        part1(1)
        part1b()
        for ins in wpre(): A(ins)
        A(f"s_branch {p2}")
        A.label("ka_code_end")
    return 163840
```

```python
from asmlib import *
from layout import *
from dbgstamp import *
from gemm import stamp, stamp_store
from sync import *
MF = "v_mfma_f32_16x16x32_bf16"
MF32 = "v_mfma_f32_32x32x16_bf16"

def gen_kf(A, opts, done):
    NS = 4; XR = 4
    NT = 14; SLOT = 32768
    HF0, ZF0, Y2F0, EF0 = 2048, 3840, 3904, 4160
    sX, sW, sO, sY, sP, sXin, sZ = 8, 12, 16, 20, 44, 88, 84
    sTag, sFb = 94, 96
    sWS = 24; sT = 26
    sWave = 30; sMt, sNt, sHk = 31, 32, 33
    sM0 = 34; sKx, sKw, sKx2 = 35, 36, 37
    sG, sWr = 38, 39
    sFl = 42
    sPs, sPr, sFs, sFr, sYf, sRow = 48, 49, 50, 51, 52, 53
    ACC = 0; WOP = [64, 96]; XRG = 128
    b = XRG + XR*16
    nsg = (NS*SLOT + 65535)//65536
    vL, vSt, vXo = b, b+1, b+31
    vDw = [b+4, b+5, b+6, b+7]
    t0, t1, t2, t3 = b+8, b+9, b+10, b+11
    vPo, vPo2, vEx = b+12, b+13, b+14
    vWa = [list(range(b+15+8*g, b+23+8*g)) for g in range(nsg)]
    def xr(t, kk, i): return v(XRG + (t % XR)*16 + (kk*2+i)*4, 4)
    ZW = opts.get('zw', 1)
    vZf = b+3; sZok = 82; WE = opts.get('WE', 2)
    LZ, LC = 131072, 147456
    def part1(vLane):
        A(f"s_load_dwordx4 s[4:7], s[0:1], 48")
        A(f"s_load_dwordx2 s[92:93], s[0:1], 0")
        A(f"v_mov_b32 {v(vL)}, {v(vLane)}")
        A(f"s_and_b32 {s(sT)}, s2, 7")
        A(f"s_lshr_b32 {s(sT+1)}, s2, 3")
        A(f"s_and_b32 {s(sHk)}, {s(sT)}, 1")
        A(f"s_lshr_b32 {s(sMt)}, {s(sT)}, 1")
        A(f"s_lshl_b32 {s(sMt)}, {s(sMt)}, 2")
        A(f"s_and_b32 {s(sT+2)}, {s(sT+1)}, 3")
        A(f"s_add_u32 {s(sMt)}, {s(sMt)}, {s(sT+2)}")
        A(f"s_lshr_b32 {s(sNt)}, {s(sT+1)}, 2")
        A(f"s_lshr_b32 {s(sG)}, {s(sWave)}, 2")
        A(f"s_and_b32 {s(sWr)}, {s(sWave)}, 3")
        A(f"s_mul_i32 {s(sKw)}, {s(sHk)}, {14<<18}")
        A(f"s_mul_i32 {s(sKx)}, {s(sHk)}, {14<<15}")
        A(f"s_add_u32 {s(sKx2)}, {s(sKx)}, 8192")
        A(f"v_lshlrev_b32 {v(vPo)}, 4, {v(vL)}")
        A(f"v_lshrrev_b32 {v(t0)}, 4, {v(vL)}")
        A(f"v_lshlrev_b32 {v(t1)}, 1, {v(t0)}")
        A(f"v_and_b32 {v(t2)}, 15, {v(vL)}")
        A(f"v_xor_b32 {v(t2)}, {v(t2)}, {v(t1)}")
        A(f"v_lshlrev_b32 {v(t2)}, 4, {v(t2)}")
        A(f"s_lshl_b32 {s(sT)}, {s(sWave)}, 4")
        A(f"v_add_u32 {v(t0)}, {s(sT)}, {v(t0)}")
        A(f"v_lshlrev_b32 {v(t0)}, 11, {v(t0)}")
        A(f"s_lshl_b32 {s(sT)}, {s(sNt)}, 8")
        A(f"v_add3_u32 {v(vDw[0])}, {v(t0)}, {v(t2)}, {s(sT)}")
        A(f"v_xor_b32 {v(t1)}, 128, {v(vDw[0])}")
        for i in range(1, 4):
            A(f"v_add_u32 {v(vDw[i])}, {i*4*2048 - i*1024}, {v(t1 if i & 2 else vDw[0])}")
        A(f"s_lshl_b32 {s(sM0)}, {s(sWave)}, 12")
        A(f"s_mul_i32 {s(sT)}, {s(sMt)}, {112*8192}")
        A(f"s_lshl_b32 {s(sT+1)}, {s(sWr)}, 10")
        A(f"s_add_u32 {s(sT)}, {s(sT)}, {s(sT+1)}")
        A(f"s_lshl_b32 {s(sT+1)}, {s(sHk)}, 12")
        A(f"s_add_u32 {s(sT)}, {s(sT)}, {s(sT+1)}")
        A(f"s_lshl_b32 {s(sT+1)}, {s(sG)}, 14")
        A(f"s_add_u32 {s(sT)}, {s(sT)}, {s(sT+1)}")
        A(f"v_add_u32 {v(vXo)}, {s(sT)}, {v(vPo)}")
        A(f"v_xor_b32 {v(vXo+1)}, 0x1000, {v(vXo)}")
        A(f"v_min_u32 {v(t0)}, 31, {v(vL)}")
        A(f"v_lshlrev_b32 {v(t0)}, 7, {v(t0)}")
        A(f"v_add_u32 {v(vZf)}, {ZF0*128}, {v(t0)}")
        make_srd(A, sZ, sWS, sWS+1, 4 << 20, add=WS_ZT)
        A(f"s_mov_b32 {s(sZok)}, 1")
        z0 = A.newlabel("kf_z0")
        A(f"s_cmp_ge_u32 {s(sWave)}, {ZW}")
        A(f"s_cbranch_scc1 {z0}")
        A(f"global_load_dwordx2 {v(t0,2)}, {v(vZf)}, {s(sFb,2)} sc1")
        A(f"s_mov_b32 {s(sZok)}, 0")
        A.label(z0)
    LZ, LC = 131072, 147456
    log = []
    def emit(ins, tag=None):
        A(ins)
        if ins.startswith("buffer_") or ins.startswith("global_"): log.append(tag)
    def cnt_after(tags):
        tags = [tg for tg in tags if not (tg[0] == 'w' and tg[1] < (NS if FA else WE))]
        for tg in tags: assert tg in log and not any(x[1] == tg for x in pending), tg
        last = max(i for i, t in enumerate(log) if t in tags)
        return min(63, len(log) - 1 - last)
    pending = []
    def dma(t):
        o = [f"s_add_u32 m0, {s(sM0)}, {(t % NS)*SLOT}", "s_nop 0"]
        for i in range(4): o.append(f"buffer_load_dwordx4 {v(vDw[i])}, {s(sW,4)}, {s(sKw)} offen offset:{1024*i} {opts.get('wfl2','')} lds")
        o.append(f"s_add_u32 {s(sKw)}, {s(sKw)}, {1<<18}")
        return [(x, ('w', t)) for x in o]
    def xload(t, kk):
        r = sKx if kk == 0 else sKx2
        o = [f"buffer_load_dwordx4 {xr(t,kk,i)}, {v(vXo+i)}, {s(sX,4)}, {s(r)} offen sc1" for i in range(2)]
        o.append(f"s_add_u32 {s(r)}, {s(r)}, {1<<15}")
        return [(x, ('x', t, kk)) for x in o]
    def wreads(t, kk):
        sg, so = divmod((t % NS)*SLOT, 65536)
        return [f"ds_read_b64_tr_b16 {v(WOP[kk] + j*4 + 2*e, 2)}, {v(vWa[sg][j])} offset:{so + (32*kk + 4*e)*256}" for j in range(8) for e in range(2)]
    def wpre():
        return [x for t in range(WE) for x, _ in dma(t)]
    def zdma():
        per = 16 // ZW
        A(f"s_mul_i32 {s(sT)}, {s(sWave)}, {per*1024}")
        A(f"s_lshl_b32 {s(sT+1)}, s2, 14")
        A(f"s_add_u32 {s(sT+1)}, {s(sT)}, {s(sT+1)}")
        for g in range(0, per, 4):
            A(f"s_add_u32 m0, {s(sT)}, {LZ + g*1024}")
            A(f"s_add_u32 {s(sT+2)}, {s(sT+1)}, {g*1024}")
            for i in range(min(4, per)): A(f"buffer_load_dwordx4 {v(vPo)}, {s(sZ,4)}, {s(sT+2)} offen offset:{i*1024} sc1 lds")
    def zcheck(younger):
        nz = A.newlabel("kf_nz")
        A(f"s_cmp_eq_u32 {s(sZok)}, 1")
        A(f"s_cbranch_scc1 {nz}")
        A(f"s_waitcnt vmcnt({younger})")
        A(f"v_cmp_eq_u64 vcc, {s(sTag,2)}, {v(t0,2)}")
        A("s_nop 1")
        A("s_cmp_eq_u64 vcc, -1")
        A(f"s_cbranch_scc0 {nz}")
        zdma()
        A(f"s_mov_b32 {s(sZok)}, 1")
        A.label(nz)
    def part1b():
        A(f"s_waitcnt lgkmcnt(0)")
        make_srd(A, sW, 4, 5, 3584*1024*2)
    ZY = yield part1, wpre, part1b, zcheck
    sHF = 83
    dbg_mark(A, opts, 9, 254)
    def hflag():
        nh = A.newlabel("kf_nh")
        A("s_waitcnt vmcnt(0)")
        A(f"s_cmp_eq_u32 {s(sHF)}, -1")
        A(f"s_cbranch_scc1 {nh}")
        if opts.get("cnt", 1): cnt_arrive(A, sFb, sHF, 0)
        else: set_flag(A, sFb, sHF, sTag, 0)
        A(f"s_mov_b32 {s(sHF)}, -1")
        A.label(nh)
    zk = A.newlabel("kf_zok")
    A(f"s_cmp_eq_u32 {s(sZok)}, 1")
    A(f"s_cbranch_scc1 {zk}")
    if not opts.get("hfwg", 0): hflag()
    poll_flags(A, sFb, vZf, 1, sTag, 0, 98, sleep=opts.get('zsleep', 4))
    zdma()
    A("s_waitcnt vmcnt(0)")
    A.label(zk)
    make_srd(A, sX, sWS, sWS+1, 2048*3584*2, add=WS_H)
    B1R, B1I, B2C, B2N, TWC, TWS = 64, 72, 80, 88, 96, 112
    vN2, vIdx, vB, vC = 4, 5, 6, 7
    A(f"v_bfe_u32 {v(t1)}, {v(vL)}, 2, 1")
    A(f"v_lshlrev_b32 {v(t1)}, 4, {v(t1)}")
    A(f"v_bfe_u32 {v(t2)}, {v(vL)}, 3, 2")
    A(f"v_lshl_add_u32 {v(t1)}, {v(t2)}, 2, {v(t1)}")
    A(f"v_and_b32 {v(t2)}, 3, {v(vL)}")
    A(f"v_add_u32 {v(vN2)}, {v(t1)}, {v(t2)}")
    A(f"v_add_u32 {v(vC)}, {LC}, {v(vPo)}")
    jend = A.newlabel("kb_jend"); jtw = A.newlabel("kb_jtw"); jb1 = A.newlabel("kb_jb1"); jn = A.newlabel("kb_jn")
    A(f"s_cmp_ge_u32 {s(sWave)}, 5")
    A(f"s_cbranch_scc1 {jend}")
    A(f"v_mov_b32 {v(vIdx)}, {v(vN2)}")
    A(f"s_add_u32 {s(sT)}, {s(sWave)}, 1")
    A(f"s_lshr_b32 {s(sT)}, {s(sT)}, 1")
    A(f"s_cmp_lg_u32 {s(sT)}, 1")
    A(f"s_cbranch_scc1 {jn}")
    A(f"v_and_b32 {v(vIdx)}, 31, {v(vL)}")
    A.label(jn)
    A(f"s_cmp_eq_u32 {s(sT)}, 2")
    A(f"s_cselect_b32 {s(sT+1)}, 1023, 31")
    A(f"s_mov_b32 {s(sT+2)}, {f32(1/32)}")
    A(f"s_cselect_b32 {s(sT+2)}, {f32(1/1024)}, {s(sT+2)}")
    A(f"s_add_u32 {s(sT+3)}, {s(sWave)}, 1")
    A(f"s_and_b32 {s(sT+3)}, {s(sT+3)}, 1")
    A(f"s_cmp_eq_u32 {s(sWave)}, 0")
    A(f"s_cselect_b32 {s(sT+3)}, 0, {s(sT+3)}")
    A(f"s_lshl_b32 s40, {s(sT+3)}, 4")
    A(f"v_lshrrev_b32 {v(vB)}, 5, {v(vL)}")
    A(f"v_lshl_add_u32 {v(vB)}, {v(vB)}, 2, s40")
    A(f"v_mul_u32_u24 {v(vB)}, {v(vB)}, {v(vIdx)}")
    JT, JC, JS, JO = 64, 72, 80, 88
    for e, c in enumerate((0, 1, 2, 3, 8, 9, 10, 11)): A(f"v_mad_u32_u24 {v(JT+e)}, {c}, {v(vIdx)}, {v(vB)}")
    for e in range(8): A(f"v_and_b32 {v(JT+e)}, {s(sT+1)}, {v(JT+e)}")
    for e in range(8): A(f"v_cvt_f32_u32 {v(JT+e)}, {v(JT+e)}")
    for e in range(8): A(f"v_mul_f32 {v(JT+e)}, {s(sT+2)}, {v(JT+e)}")
    for e in range(8): A(f"v_cos_f32 {v(JC+e)}, {v(JT+e)}")
    for e in range(8): A(f"v_sin_f32 {v(JS+e)}, {v(JT+e)}")
    A(f"s_cmp_eq_u32 {s(sT)}, 2")
    A(f"s_cbranch_scc1 {jtw}")
    for p in range(4): A(f"v_cvt_pk_bf16_f32 {v(JO+p)}, {v(JC+2*p)}, {v(JC+2*p+1)}")
    for p in range(4): A(f"v_cvt_pk_bf16_f32 {v(JO+4+p)}, -{v(JS+2*p)}, -{v(JS+2*p+1)}")
    A(f"s_cmp_eq_u32 {s(sT)}, 0")
    A(f"s_cbranch_scc1 {jb1}")
    A(f"s_lshl_b32 {s(sT+3)}, {s(sT+3)}, 10")
    A(f"v_add_u32 {v(vB)}, {s(sT+3)}, {v(vC)}")
    A(f"ds_write_b128 {v(vB)}, {v(JO,4)} offset:4096")
    A(f"ds_write_b128 {v(vB)}, {v(JO+4,4)} offset:6144")
    A(f"s_branch {jend}")
    A.label(jb1)
    for p in range(4): A(f"v_cvt_pk_bf16_f32 {v(JO+8+p)}, {v(JS+2*p)}, {v(JS+2*p+1)}")
    A(f"ds_write_b128 {v(vC)}, {v(JO,4)}")
    A(f"ds_write_b128 {v(vC)}, {v(JO+4,4)} offset:1024")
    A(f"ds_write_b128 {v(vC)}, {v(JO+8,4)} offset:2048")
    A(f"ds_write_b128 {v(vC)}, {v(JO,4)} offset:3072")
    A(f"s_branch {jend}")
    A.label(jtw)
    A(f"s_lshl_b32 {s(sT+3)}, {s(sT+3)}, 11")
    A(f"v_add_u32 {v(vB)}, {s(sT+3)}, {v(vC)}")
    for q in range(2):
        A(f"ds_write_b128 {v(vB)}, {v(JC+4*q,4)} offset:{8192 + q*1024}")
        A(f"ds_write_b128 {v(vB)}, {v(JS+4*q,4)} offset:{12288 + q*1024}")
    A.label(jend)
    make_srd(A, sO, 6, 7, 2048*1024*2)
    make_srd(A, sXin, 92, 93, 2048*1024*2)
    make_srd(A, sY, sWS, sWS+1, 2048*1024*2, add=WS_XY)
    make_srd(A, sP, sWS, sWS+1, 256*49152, add=WS_PART)
    A(f"v_lshrrev_b32 {v(t0)}, 4, {v(vL)}")
    A(f"v_bfe_u32 {v(t1)}, {v(vL)}, 2, 2")
    A(f"v_lshlrev_b32 {v(t2)}, 11, {v(t0)}")
    A(f"v_lshlrev_b32 {v(t3)}, 8, {v(t1)}")
    A(f"s_lshl_b32 {s(sT)}, {s(sG)}, 14")
    A(f"v_add3_u32 {v(t2)}, {v(t2)}, {v(t3)}, {s(sT)}")
    A(f"v_and_b32 {v(t0)}, 1, {v(t0)}")
    A(f"v_lshl_or_b32 {v(t1)}, {v(t0)}, 2, {v(t1)}")
    A(f"v_lshlrev_b32 {v(t1)}, 5, {v(t1)}")
    A(f"v_and_b32 {v(t3)}, 3, {v(vL)}")
    A(f"v_lshlrev_b32 {v(t3)}, 3, {v(t3)}")
    A(f"v_add3_u32 {v(vWa[0][0])}, {v(t2)}, {v(t1)}, {v(t3)}")
    for j in range(1, 8): A(f"v_xor_b32 {v(vWa[0][j])}, {32*j}, {v(vWa[0][0])}")
    for g in range(1, nsg):
        for j in range(8): A(f"v_add_u32 {v(vWa[g][j])}, {hex(0x10000*g)}, {v(vWa[0][j])}")
    A(f"v_and_b32 {v(t0)}, 3, {v(vL)}")
    A(f"v_bfe_u32 {v(t1)}, {v(vL)}, 2, 2")
    A(f"v_lshl_add_u32 {v(t0)}, {v(t0)}, 6, {v(t1)}")
    A(f"s_lshl_b32 {s(sT+1)}, {s(sWr)}, 2")
    A(f"s_lshl_b32 {s(sT+2)}, {s(sHk)}, 4")
    A(f"s_add_u32 {s(sT+1)}, {s(sT+1)}, {s(sT+2)}")
    A(f"s_lshr_b32 {s(sT)}, {s(sMt)}, 1")
    A(f"s_and_b32 {s(sT+2)}, {s(sMt)}, 1")
    A(f"s_lshl_b32 {s(sYf)}, {s(sT+2)}, 1")
    A(f"s_lshr_b32 {s(sT+3)}, {s(sT)}, 2")
    A(f"s_add_u32 {s(sYf)}, {s(sYf)}, {s(sT+3)}")
    A(f"s_lshl_b32 {s(sYf)}, {s(sYf)}, 1")
    A(f"s_and_b32 {s(sT+3)}, {s(sT)}, 1")
    A(f"s_add_u32 {s(sYf)}, {s(sYf)}, {s(sT+3)}")
    A(f"s_lshl_b32 {s(sYf)}, {s(sYf)}, 5")
    A(f"s_add_u32 {s(sYf)}, {s(sYf)}, {s(sT+1)}")
    A(f"s_add_u32 {s(sYf)}, {s(sYf)}, {Y2F0}")
    A(f"s_lshl_b32 {s(sYf)}, {s(sYf)}, 7")
    A(f"s_lshl_b32 {s(sT)}, {s(sT)}, 8")
    A(f"s_lshl_b32 {s(sT+2)}, {s(sT+2)}, 5")
    A(f"s_add_u32 {s(sT)}, {s(sT)}, {s(sT+2)}")
    A(f"s_add_u32 {s(sT)}, {s(sT)}, {s(sT+1)}")
    A(f"v_add_u32 {v(t0)}, {s(sT)}, {v(t0)}")
    A(f"v_lshlrev_b32 {v(t0)}, 11, {v(t0)}")
    A(f"v_lshrrev_b32 {v(t1)}, 5, {v(vL)}")
    A(f"v_lshlrev_b32 {v(t1)}, 4, {v(t1)}")
    A(f"v_and_b32 {v(t2)}, 16, {v(vL)}")
    A(f"v_lshlrev_b32 {v(t2)}, 1, {v(t2)}")
    A(f"v_add3_u32 {v(t0)}, {v(t0)}, {v(t1)}, {v(t2)}")
    A(f"s_lshl_b32 {s(sT)}, {s(sNt)}, 8")
    A(f"v_add_u32 {v(vSt)}, {s(sT)}, {v(t0)}")
    A(f"s_lshl_b32 {s(sT)}, {s(sMt)}, 3")
    A(f"s_add_u32 {s(sT)}, {s(sT)}, {s(sNt)}")
    A(f"s_lshl_b32 {s(sT)}, {s(sT)}, 1")
    A(f"s_add_u32 {s(sT)}, {s(sT)}, {s(sHk)}")
    A(f"s_xor_b32 {s(sT+1)}, {s(sT)}, 1")
    A(f"s_mul_i32 {s(sT+2)}, {s(sWr)}, 12288")
    A(f"s_mul_i32 {s(sPs)}, {s(sT)}, 49152")
    A(f"s_add_u32 {s(sPs)}, {s(sPs)}, {s(sT+2)}")
    A(f"s_mul_i32 {s(sPr)}, {s(sT+1)}, 49152")
    A(f"s_add_u32 {s(sPr)}, {s(sPr)}, {s(sT+2)}")
    A(f"s_lshl_b32 {s(sT+2)}, {s(sWr)}, 7")
    A(f"s_add_u32 {s(sT+2)}, {s(sT+2)}, {EF0*128}")
    A(f"s_lshl_b32 {s(sFs)}, {s(sT)}, 9")
    A(f"s_add_u32 {s(sFs)}, {s(sFs)}, {s(sT+2)}")
    A(f"s_lshl_b32 {s(sFr)}, {s(sT+1)}, 9")
    A(f"s_add_u32 {s(sFr)}, {s(sFr)}, {s(sT+2)}")
    A(f"v_add_u32 {v(vPo2)}, 4096, {v(vPo)}")
    A(f"s_lshl_b32 {s(sT)}, {s(sWave)}, 13")
    A(f"v_add_u32 {v(vEx)}, {s(sT)}, {v(vPo)}")
    A(f"s_and_b32 {s(sRow)}, s2, 31")
    A(f"s_lshr_b32 {s(sT)}, s2, 7")
    A(f"s_lshl_b32 {s(sT)}, {s(sT)}, 5")
    A(f"s_add_u32 {s(sRow)}, {s(sRow)}, {s(sT)}")
    A(f"s_bfe_u32 {s(sT)}, s2, 0x10006")
    A(f"s_lshl_b32 {s(sT)}, {s(sT)}, 10")
    A(f"s_add_u32 {s(sRow)}, {s(sRow)}, {s(sT)}")
    A(f"s_bfe_u32 {s(sT)}, s2, 0x10005")
    A(f"s_lshl_b32 {s(sT)}, {s(sT)}, 8")
    A(f"s_add_u32 {s(sRow)}, {s(sRow)}, {s(sT)}")
    A(f"s_lshl_b32 {s(sT)}, {s(sG)}, 9")
    A(f"s_add_u32 {s(sRow)}, {s(sRow)}, {s(sT)}")
    A(f"s_lshl_b32 {s(sT)}, {s(sWr)}, 6")
    A(f"s_add_u32 {s(sRow)}, {s(sRow)}, {s(sT)}")
    A(f"s_lshl_b32 {s(sRow)}, {s(sRow)}, 11")
    vRd, vNy, vYo = 8, 9, 10
    A(f"v_lshrrev_b32 {v(t0)}, 5, {v(vL)}")
    A(f"v_and_b32 {v(t1)}, 31, {v(vL)}")
    A(f"v_lshlrev_b32 {v(vRd)}, 11, {v(t0)}")
    A(f"v_lshl_add_u32 {v(vRd)}, {v(t1)}, 4, {v(vRd)}")
    A(f"s_lshl_b32 {s(sT)}, {s(sWave)}, 1")
    A(f"s_add_u32 {s(sT)}, {s(sT)}, {LZ}")
    A(f"v_add_u32 {v(vRd)}, {s(sT)}, {v(vRd)}")
    A(f"v_mov_b32 {v(vNy)}, {s(sT)}")
    if opts.get("hfwg", 0):
        A(f"s_lshr_b32 {s(sT)}, {s(sMt)}, 1")
        A(f"s_mul_i32 {s(sT)}, {s(sT)}, 28")
        A(f"s_mul_i32 {s(sT+1)}, {s(sHk)}, 14")
    else:
        A(f"s_mul_i32 {s(sT)}, {s(sMt)}, 112")
        A(f"s_mul_i32 {s(sT+1)}, {s(sHk)}, 56")
    A(f"s_add_u32 {s(sT)}, {s(sT)}, {s(sT+1)}")
    A(f"s_add_u32 {s(sT)}, {s(sT)}, {HF0}")
    A(f"v_min_u32 {v(t0)}, {13 if opts.get('hfwg', 0) else 55}, {v(vL)}")
    A(f"v_add_u32 {v(t0)}, {s(sT)}, {v(t0)}")
    A(f"v_lshlrev_b32 {v(vZf)}, 7, {v(t0)}")
    HW = opts.get("hfwg", 0)
    if HW:
        A(f"s_waitcnt vmcnt(0) lgkmcnt(0)")
        A("s_barrier")
        hw = A.newlabel("kf_hw")
        A(f"s_cmp_lg_u32 {s(sWave)}, 6")
        A(f"s_cbranch_scc1 {hw}")
        hflag()
        A.label(hw)
        dbg_mark(A, opts, 6, 254)
    else:
        hflag()
        dbg_mark(A, opts, 6, 254)
        A(f"s_waitcnt lgkmcnt(0)")
        A("s_barrier")
    WM = opts.get("WM", 0)
    for t in range(WE, WM):
        for ins, tg in dma(t): emit(ins, tg)
    def l2pf():
        A(f"s_lshr_b32 {s(sT)}, s2, 3")
        A(f"s_lshl_b32 {s(sT)}, {s(sT)}, 3")
        A(f"s_add_u32 {s(sT)}, {s(sT)}, {s(sWave)}")
        A(f"s_lshl_b32 {s(sT)}, {s(sT)}, 13")
        A(f"s_mul_i32 {s(sT+1)}, {s(sHk)}, {14<<18}")
        A(f"s_add_u32 {s(sT+1)}, {s(sT+1)}, {4<<18}")
        A(f"s_add_u32 {s(sT+1)}, {s(sT+1)}, {s(sT)}")
        A(f"v_lshlrev_b32 v1, 3, {v(vPo)}")
        A(f"buffer_load_dword v0, v1, {s(sW,4)}, {s(sT+1)} offen")
        if opts.get("l2pf") == 2:
            A(f"s_add_u32 {s(sT+1)}, {s(sT+1)}, {2<<20}")
            A(f"s_cmp_lt_u32 {s(sT)}, {(10<<18) - (2<<20)}")
            A(f"s_cselect_b32 {s(sT+1)}, {s(sT+1)}, 0x40000000")
            A(f"buffer_load_dword v0, v1, {s(sW,4)}, {s(sT+1)} offen")
    if opts.get("l2pf"): l2pf()
    RD = 32; NYQ = 11; OP = 12; TR, TI = 32, 48; WK = 64
    for r in range(16):
        c = r >> 3; k2 = 8*((r >> 2) & 1) + (r & 3)
        A(f"ds_read_u16 {v(RD+r)}, {v(vRd)} offset:{(c*16+k2)*512}")
    for g in range(16): A(f"ds_read_b128 {v(64+4*g,4)}, {v(vC)} offset:{g*1024}")
    A("s_waitcnt lgkmcnt(12)")
    for q in range(8): A(f"v_lshl_or_b32 {v(OP+q)}, {v(RD+2*q+1)}, 16, {v(RD+2*q)}")
    A("s_nop 1")
    A(f"{MF32} {v(TR,16)}, {v(OP,4)}, {v(B1R,4)}, 0")
    A(f"{MF32} {v(TI,16)}, {v(OP,4)}, {v(B1I,4)}, 0")
    A(f"{MF32} {v(TR,16)}, {v(OP+4,4)}, {v(B1R+4,4)}, {v(TR,16)}")
    A(f"{MF32} {v(TI,16)}, {v(OP+4,4)}, {v(B1I+4,4)}, {v(TI,16)}")
    A("s_nop 5")
    A("s_waitcnt lgkmcnt(0)")
    A("s_nop 7")
    def pk(op, d, *srcs, neg=None):
        m = ""
        if neg:
            bits = ",".join("1" if i in neg else "0" for i in range(len(srcs)))
            m = f" neg_lo:[{bits}] neg_hi:[{bits}]"
        A(f"v_pk_{op}_f32 {v(d,2)}, " + ", ".join(v(x,2) for x in srcs) + m)
    for r in range(0, 16, 2): pk("mul", WK+r, TR+r, TWC+r)
    for r in range(0, 16, 2): pk("mul", TR+r, TR+r, TWS+r)
    for r in range(0, 16, 2): pk("fma", WK+r, TI+r, TWS+r, WK+r, neg=[0])
    UR, UI = 12, 24
    for p in range(8): A(f"v_cvt_pk_bf16_f32 {v(UR+p)}, {v(WK+2*p)}, {v(WK+2*p+1)}")
    Y = WK
    for r in range(0, 16, 2): pk("fma", TR+r, TI+r, TWC+r, TR+r)
    A(f"{MF32} {v(Y,16)}, {v(UR,4)}, {v(B2C,4)}, 0")
    A(f"{MF32} {v(Y,16)}, {v(UR+4,4)}, {v(B2C+4,4)}, {v(Y,16)}")
    for p in range(8): A(f"v_cvt_pk_bf16_f32 {v(UI+p)}, {v(TR+2*p)}, {v(TR+2*p+1)}")
    A("s_nop 1")
    A(f"{MF32} {v(Y,16)}, {v(UI,4)}, {v(B2N,4)}, {v(Y,16)}")
    A(f"{MF32} {v(Y,16)}, {v(UI+4,4)}, {v(B2N+4,4)}, {v(Y,16)}")
    FA = opts.get("flow", "A") == "A"
    if not FA: A(f"global_load_dwordx2 v[2:3], {v(vZf)}, {s(sFb,2)} sc1")
    A("s_nop 11")
    for q in range(8): A(f"v_cvt_pk_bf16_f32 {v(32+q)}, {v(Y+2*q)}, {v(Y+2*q+1)}")
    def yflag():
        nf = A.newlabel("kb_nf")
        A(f"s_cmp_lg_u32 {s(sWave)}, 7")
        A(f"s_cbranch_scc1 {nf}")
        A(f"s_add_u32 {s(sT)}, s2, {Y2F0}")
        A(f"s_lshl_b32 {s(sT)}, {s(sT)}, 7")
        set_flag(A, sFb, sT, sTag, t0)
        A.label(nf)
    if FA:
        A(f"buffer_store_dwordx4 v[32:35], {v(vPo)}, {s(sY,4)}, {s(sRow)} offen sc1")
        A(f"buffer_store_dwordx4 v[36:39], {v(vPo)}, {s(sY,4)}, {s(sRow)} offen offset:1024 sc1")
        for t in range(max(WE, WM), NS):
            for ins, tg in dma(t): A(ins)
        if opts.get("cnt", 1):
            A(f"s_lshl_b32 {s(sT)}, {s(sMt)}, 1")
            A(f"s_add_u32 {s(sT)}, {s(sT)}, {s(sHk)}")
            A(f"s_add_u32 {s(sT)}, {s(sT)}, {CN0+16}")
            A(f"s_lshl_b32 {s(sT)}, {s(sT)}, 7")
            cnt_poll(A, sFb, sT, 56, 2, sT+1, sleep=opts.get("hsleep", 1))
        elif opts.get("hp1", 0):
            hp = A.newlabel("kf_hp")
            A(f"s_cmp_lg_u32 {s(sWave)}, 0")
            A(f"s_cbranch_scc1 {hp}")
            poll_flags(A, sFb, vZf, 1, sTag, 2, 98, sleep=opts.get("hsleep", 1))
            A.label(hp)
            A("s_waitcnt vmcnt(0)")
            A("s_barrier")
        else:
            poll_flags(A, sFb, vZf, 1, sTag, 2, 98, sleep=opts.get("hsleep", 1))
        dbg_mark(A, opts, 14, 254)
        PRO = opts.get("PRO", 2)
        for t in range(PRO):
            for ins, tg in xload(t, 0) + xload(t, 1): emit(ins, tg)
        for t in range(PRO, XR): pending += xload(t, 0) + xload(t, 1)
        if not opts.get("hp1", 0): A("s_barrier")
        yflag()
    else:
        hok = A.newlabel("kf_hok")
        A("s_waitcnt vmcnt(0)")
        A(f"v_cmp_eq_u64 vcc, {s(sTag,2)}, v[2:3]")
        A("s_nop 1")
        A("s_cmp_eq_u64 vcc, -1")
        A(f"s_cbranch_scc1 {hok}")
        poll_flags(A, sFb, vZf, 1, sTag, 2, 98, sleep=opts.get("hsleep", 1))
        A.label(hok)
        dbg_mark(A, opts, 14, 254)
        PRO = opts.get("PRO", 2)
        for t in range(PRO):
            for ins, tg in xload(t, 0) + xload(t, 1): emit(ins, tg)
        emit(f"buffer_store_dwordx4 v[32:35], {v(vPo)}, {s(sY,4)}, {s(sRow)} offen sc1", 'y')
        emit(f"buffer_store_dwordx4 v[36:39], {v(vPo)}, {s(sY,4)}, {s(sRow)} offen offset:1024 sc1", 'y')
        for t in range(XR):
            if t >= max(WE, WM): pending += dma(t)
            if t >= PRO: pending += xload(t, 0) + xload(t, 1)
        if WE == 0: A("s_barrier")
    for ins in wreads(0, 0): A(ins)
    r0, r1 = opts.get("rspan2", (0.0, 0.7))
    YT_ = NT - opts.get('ytb', 2)
    for t in range(NT):
        for kk in range(2):
            if kk == 0:
                A(f"s_waitcnt vmcnt({cnt_after([('x',t,0)])}) lgkmcnt(0)" if t <= YT_ else "s_waitcnt lgkmcnt(0)")
            else:
                need = [('x', t, 1)] + ([('w', t+1)] if t+1 < NT else [])
                cnt = cnt_after(need)
                if t == YT_:
                    assert not pending
                    cnt = 0
                A(f"s_waitcnt vmcnt({cnt}) lgkmcnt(0)" if t <= YT_ else "s_waitcnt lgkmcnt(0)")
                A("s_barrier")
                if t == YT_ and not FA: yflag()
            XX = XRG + 32; YY = XRG + 48; E = XRG
            if kk == 1 and t in (YT_-1, YT_):
                assert FA and YT_ == NT-2
                sk = A.newlabel("kb_sk")
                A(f"s_cmp_lg_u32 {s(sG)}, 0")
                A(f"s_cbranch_scc1 {sk}")
                if t == YT_-1:
                    A(f"v_and_b32 {v(t0)}, 3, {v(vL)}")
                    A(f"v_lshlrev_b32 {v(t0)}, 7, {v(t0)}")
                    A(f"v_add_u32 {v(vZf)}, {s(sYf)}, {v(t0)}")
                    A(f"v_mov_b32 {v(t1)}, {(ZF0+32)*128}")
                    A(f"v_cmp_gt_u32 vcc, 4, {v(vL)}")
                    A(f"v_and_b32 {v(t2)}, 0xfffff800, {v(vSt)}")
                    A(f"v_lshrrev_b32 {v(t3)}, 5, {v(vL)}")
                    A(f"v_cndmask_b32 {v(vZf)}, {v(t1)}, {v(vZf)}, vcc")
                    A(f"global_load_dwordx2 {v(t0,2)}, {v(vZf)}, {s(sFb,2)} sc1")
                    A(f"v_lshl_add_u32 {v(t2)}, {v(t3)}, 10, {v(t2)}")
                    A(f"v_and_b32 {v(t3)}, 16, {v(vL)}")
                    A(f"v_lshl_add_u32 {v(t2)}, {v(t3)}, 5, {v(t2)}")
                    A(f"s_lshl_b32 {s(sT)}, {s(sNt)}, 6")
                    A(f"v_add_u32 {v(t2)}, {s(sT)}, {v(t2)}")
                    make_srd(A, sZ, sWS, sWS+1, 4096, add=WS_ZT + (4 << 20))
                    A(f"s_lshr_b32 {s(sT)}, {s(sYf)}, 7")
                    A(f"s_sub_u32 {s(sT)}, {s(sT)}, {Y2F0}")
                    A(f"s_lshl_b32 {s(sT)}, {s(sT)}, 4")
                    A(f"s_bfe_u32 {s(sT+1)}, {s(sMt)}, 0x10002")
                    A(f"s_lshl_b32 {s(sT+1)}, {s(sT+1)}, 3")
                    A(f"s_add_u32 {s(sYf)}, {s(sT)}, {s(sT+1)}")
                    A(f"v_bfe_u32 {v(t3)}, {v(vL)}, 2, 2")
                    A(f"v_and_b32 {v(vDw[2])}, 3, {v(vL)}")
                    A(f"v_lshlrev_b32 {v(vDw[2])}, 1, {v(vDw[2])}")
                    A(f"v_lshl_add_u32 {v(t3)}, {v(t3)}, 4, {v(vDw[2])}")
                else:
                    yo = A.newlabel("kb_yo")
                    A(f"v_cmp_eq_u64 vcc, {s(sTag,2)}, {v(t0,2)}")
                    A("s_nop 1")
                    A("s_cmp_eq_u64 vcc, -1")
                    A(f"s_cbranch_scc1 {yo}")
                    poll_flags(A, sFb, vZf, 1, sTag, t0, 98, sleep=0)
                    A.label(yo)
                    for jp in range(4): A(f"buffer_load_dwordx4 {v(XX + jp*4, 4)}, {v(vSt)}, {s(sXin,4)}, 0 offen offset:{jp*64}")
                    for jp in range(4): A(f"buffer_load_dwordx4 {v(YY + jp*4, 4)}, {v(t2)}, {s(sY,4)}, 0 offen offset:{jp*16} sc1")
                    A(f"buffer_load_ushort {v(vDw[0])}, {v(t3)}, {s(sZ,4)}, {s(sYf)} offen sc1")
                A.label(sk)
            mf = []; fl = []; sl = []
            od2 = opts.get("order2", "xs")
            ij = [(i, j) for i in range(2) for j in range(8)] if od2 == "xs" else [(i if j % 2 == 0 else 1-i, j) for j in range(8) for i in range(2)]
            for i, j in ij:
                if True:
                    c = "0" if (t == 0 and kk == 0) else v(ACC+(i*8+j)*4, 4)
                    mf.append(f"{MF} {v(ACC+(i*8+j)*4,4)}, {v(WOP[kk]+j*4,4)}, {xr(t, kk, i)}, {c}")
            n = 16
            def add(ins, pos, tag=None): fl.append((ins, tag)); sl.append(pos)
            rd = wreads(t, 1) if kk == 0 else (wreads(t+1, 0) if t+1 < NT else [])
            for q, ins in enumerate(rd): add(ins, int((r0 + (r1-r0)*q/len(rd))*n))
            if kk == 1 and t+NS < NT: pending += dma(t+NS)
            npop = min(len(pending), 14)
            for k in range(npop):
                ins, tg = pending.pop(0); add(ins, 1 + (k*14)//npop, tg)
            if t+XR < NT: pending += xload(t+XR, kk)
            for item in interleave(mf, fl, sl):
                if isinstance(item, tuple): emit(item[0], item[1])
                else: A(item)
    dbg_mark(A, opts, 11, 254)
    A("s_nop 7")
    g1l = A.newlabel("kb_g1")
    A(f"s_cmp_lg_u32 {s(sG)}, 0")
    A(f"s_cbranch_scc1 {g1l}")
    TG = opts.get("tagx", 0); PB = opts.get("pbf", 1)
    for j in range(8): A(f"ds_write_b128 {v(vEx)}, {v(ACC+(8+j)*4,4)} offset:{j*1024}")
    A("s_waitcnt lgkmcnt(0)")
    A("s_barrier")
    PR = WOP[0]
    for j in range(8): A(f"ds_read_b128 {v(PR+j*4,4)}, {v(vEx)} offset:{32768 + j*1024}")
    XF = ACC + 32; YF = 112
    A("s_waitcnt vmcnt(0)")
    for q in range(16):
        A(f"v_lshlrev_b32 {v(XF+2*q)}, 16, {v(XX+q)}")
        A(f"v_and_b32 {v(XF+2*q+1)}, 0xffff0000, {v(XX+q)}")
    A("s_waitcnt lgkmcnt(0)")
    for r in range(0, 32, 2): pk("add", ACC+r, ACC+r, PR+r)
    NG = 11 if TG else (4 if PB else 8)
    def poff(j, base):
        return f"{v(vPo if j % 8 < 4 else vPo2)}, {s(sP,4)}, {s(base if j < 8 else sT+3)} offen offset:{(j%4)*1024} sc1"
    def pload():
        for j in range(NG): A(f"buffer_load_dwordx4 {v(PR+j*4,4)}, {poff(j, sPr)}")
    A(f"s_add_u32 {s(sT+3)}, {s(sPr)}, 8192")
    def yproc(hf):
        for q in range(8):
            A(f"v_lshlrev_b32 {v(YF+2*q)}, 16, {v(YY+8*hf+q)}")
            A(f"v_and_b32 {v(YF+2*q+1)}, 0xffff0000, {v(YY+8*hf+q)}")
        for r in range(0, 16, 2): pk("add", YF+r, YF+r, vDw[0])
        for r in range(0, 16, 2): pk("add", XF+16*hf+r, XF+16*hf+r, YF+r)
        for q in range(8): A(f"v_cvt_pk_bf16_f32 {v(YY+8*hf+q)}, {v(XF+16*hf+2*q)}, {v(XF+16*hf+2*q+1)}")
        for q in range(8):
            A(f"v_lshlrev_b32 {v(XF+16*hf+2*q)}, 16, {v(YY+8*hf+q)}")
            A(f"v_and_b32 {v(XF+16*hf+2*q+1)}, 0xffff0000, {v(YY+8*hf+q)}")
    A(f"v_lshlrev_b32 {v(vDw[0])}, 16, {v(vDw[0])}")
    A(f"v_xor_b32 {v(vDw[1])}, 0x80000000, {v(vDw[0])}")
    yproc(0); yproc(1)
    po = A.newlabel("kb_pok"); pl = A.newlabel("kb_pl")
    if TG:
        for i in range(opts.get("xsl", 0)): A("s_sleep 8")
        A.label(pl)
        pload()
        A("s_waitcnt vmcnt(0)")
        tg = lambda g: v(PR+4*g+3)
        A(f"v_max3_u32 {v(t0)}, {tg(0)}, {tg(1)}, {tg(2)}")
        A(f"v_min3_u32 {v(t1)}, {tg(0)}, {tg(1)}, {tg(2)}")
        for g in range(3, 11, 2):
            A(f"v_max3_u32 {v(t0)}, {v(t0)}, {tg(g)}, {tg(g+1)}")
            A(f"v_min3_u32 {v(t1)}, {v(t1)}, {tg(g)}, {tg(g+1)}")
        A(f"v_cmp_eq_u32 vcc, {s(sTag)}, {v(t0)}")
        A(f"v_cmp_eq_u32 s[98:99], {s(sTag)}, {v(t1)}")
        A("s_nop 1")
        A("s_and_b64 vcc, vcc, s[98:99]")
        A("s_cmp_eq_u64 vcc, -1")
        A(f"s_cbranch_scc0 {pl}")
        pr = lambda r: PR + (r//3)*4 + r % 3
    else:
        A(f"v_mov_b32 {v(vZf)}, {s(sFr)}")
        poll_flags(A, sFb, vZf, 1, sTag, t0, 98, sleep=0)
        pload()
        pr = lambda r: PR + r
    dbg_mark(A, opts, 7, 254)
    for jp in range(4):
        P = (E, E+16)[jp % 2]; Tm = P + 4
        a0 = ACC + jp*8
        if PB:
            A(f"s_waitcnt vmcnt(3)")
            for p in range(4):
                A(f"v_lshlrev_b32 {v(Tm+2*p)}, 16, {v(PR+jp*4+p)}")
                A(f"v_and_b32 {v(Tm+2*p+1)}, 0xffff0000, {v(PR+jp*4+p)}")
            for r in range(0, 8, 2): pk("add", a0+r, a0+r, Tm+r)
        else:
            if not TG: A(f"s_waitcnt vmcnt({6-2*jp + jp})")
            for r in range(8): A(f"v_add_f32 {v(a0+r)}, {v(a0+r)}, {v(pr(jp*8+r))}")
        for p in range(4): A(f"v_cvt_pk_bf16_f32 {v(P+p)}, {v(a0+2*p)}, {v(a0+2*p+1)}")
        A("s_nop 1")
        A(f"v_permlane16_swap_b32 {v(P)}, {v(P+2)}")
        A(f"v_permlane16_swap_b32 {v(P+1)}, {v(P+3)}")
        A("s_nop 0")
        for p in range(4):
            A(f"v_lshlrev_b32 {v(Tm+2*p)}, 16, {v(P+p)}")
            A(f"v_and_b32 {v(Tm+2*p+1)}, 0xffff0000, {v(P+p)}")
        for r in range(0, 8, 2): pk("add", Tm+r, Tm+r, XF+jp*8+r)
        for p in range(4): A(f"v_cvt_pk_bf16_f32 {v(YY+jp*4+p)}, {v(Tm+2*p)}, {v(Tm+2*p+1)}")
        A(f"buffer_store_dwordx4 {v(YY+jp*4,4)}, {v(vSt)}, {s(sO,4)}, 0 offen offset:{jp*64} {opts.get('ofl','')}")
    if opts.get("tldbg"): A("s_waitcnt vmcnt(0)")
    dbg_mark(A, opts, 12, 254)
    A("s_endpgm")
    A.label(g1l)
    if opts.get("sprio", 1): A("s_setprio 3")
    for j in range(8): A(f"ds_write_b128 {v(vEx)}, {v(ACC+j*4,4)} offset:{j*1024}")
    A(f"v_subrev_u32 {v(vEx)}, 32768, {v(vEx)}")
    GR = XRG
    if TG:
        for g in range(11): A(f"v_mov_b32 {v(GR+4*g+3)}, {s(sTag)}")
        A(f"v_mov_b32 {v(GR+42)}, 0")
    A(f"s_add_u32 {s(sT+3)}, {s(sPs)}, 8192")
    A("s_waitcnt lgkmcnt(0)")
    A("s_barrier")
    for j in range(8): A(f"ds_read_b128 {v(PR+j*4,4)}, {v(vEx)} offset:{j*1024}")
    if TG:
        for g in range(11):
            last = min(3*g+2, 31)
            A(f"s_waitcnt lgkmcnt({7 - last//4})")
            for r in range(3*g, last+1): A(f"v_add_f32 {v(GR+4*g+r%3)}, {v(PR+r)}, {v(ACC+32+r)}")
            A(f"buffer_store_dwordx4 {v(GR+4*g,4)}, {poff(g, sPs)}")
    else:
        for j in range(8):
            A(f"s_waitcnt lgkmcnt({7-j})")
            for r in range(0, 4, 2): pk("add", PR+j*4+r, PR+j*4+r, ACC+32+j*4+r)
            if PB:
                for p in range(2): A(f"v_cvt_pk_bf16_f32 {v(GR+j*2+p)}, {v(PR+j*4+2*p)}, {v(PR+j*4+2*p+1)}")
                if j % 2: A(f"buffer_store_dwordx4 {v(GR+(j//2)*4,4)}, {poff(j//2, sPs)}")
            else:
                A(f"buffer_store_dwordx4 {v(PR+j*4,4)}, {poff(j, sPs)}")
        A("s_waitcnt vmcnt(0)")
        set_flag(A, sFb, sFs, sTag, t0)
    A("s_endpgm")
    yield None
```

```python
from asmlib import *
from layout import *
from dbgstamp import *
from sync import *
from fft2 import job_trig, job_tw, run_jobs, PI, EO, DR, pk2
MF = "v_mfma_f32_32x32x16_bf16"

def gen_role3(A, opts, sFid, sChunk):
    vL, vOff = 1, 2
    C32, S32, N32 = 8, 16, 24
    K64 = 32
    def k64(par, kind, it): return K64 + ((par*3 + 'csn'.index(kind))*2 + it)*4
    SX, SY, SZ = 80, 112, 144
    ACC = 176; TMP = 240
    accr = lambda t: ACC + 16*t
    acci = lambda t: ACC + 32 + 16*t
    TW1, TW2, CC, PA = 0, 16384, 32768, 32768
    sYT, sZT, sWT = 8, 12, 16
    sWS = 24; sWave = 40; sPass, sWo = 30, 34
    sM0, sPb, sT = 41, 43, 48
    A(f"v_lshlrev_b32 {v(vOff)}, 4, {v(vL)}")
    A("s_waitcnt vmcnt(0)")
    RPF = opts.get("rpf", -1)
    def pf(dst=1):
        if RPF < 0: return
        A(f"v_lshlrev_b32 v4, 3, {v(vOff)}")
        A(f"buffer_load_dword {v(dst)}, v4, s[72:75], s76 offen")
        A("s_add_u32 s76, s76, s77")
    if RPF >= 0:
        A("s_load_dwordx4 s[4:7], s[0:1], 32")
        A("s_load_dwordx2 s[78:79], s[0:1], 48")
        A(f"s_and_b32 s76, {s(sWave)}, 1")
        A(f"s_lshl_b32 s76, s76, 5")
        A(f"s_add_u32 s76, s76, {s(sFid)}")
        A(f"s_lshl_b32 s76, s76, 13")
        A(f"s_add_u32 s76, s76, {opts.get('rpk', 128)*7168}")
        A(f"s_bfe_u32 s77, {s(sWave)}, 0x10001")
        A(f"s_mul_i32 s77, s77, {512*7168}")
        A(f"s_add_u32 s76, s76, s77")
        A(f"s_mov_b32 s77, {1<<19}")
        A(f"s_cmp_ge_u32 {s(sWave)}, 4")
        A("s_waitcnt lgkmcnt(0)")
        A("s_cselect_b32 s4, s6, s4")
        A("s_cselect_b32 s5, s7, s5")
        make_srd(A, 72, 4, 5, 1024*3584*2)
        for i in range(RPF): pf(SX+31)
    RW = opts.get("rpw", 4)
    if RW >= 0:
        A("s_load_dwordx2 s[78:79], s[0:1], 48")
        A(f"s_lshl_b32 s76, {s(sWave)}, 5")
        A(f"s_add_u32 s76, s76, {s(sFid)}")
        A(f"s_lshl_b32 s76, s76, 13")
        A(f"s_mov_b32 s77, {2<<20}")
        A("s_waitcnt lgkmcnt(0)")
        make_srd(A, 72, 78, 79, 1024*3584*2)
        RPF = 0
        for i in range(RW): pf(SX+31)
        if RW >= 4: RPF = -1
    make_srd(A, sYT, sWS, sWS+1, 4 << 20, add=WS_YT)
    make_srd(A, sWT, sWS, sWS+1, 513*WP, add=WS_WT)
    make_srd(A, sZT, sWS, sWS+1, 4 << 20, add=WS_ZT)
    A(f"s_lshl_b32 {s(sT)}, {s(sFid)}, 3")
    A(f"s_add_u32 {s(sT)}, {s(sT)}, {s(sWave)}")
    A(f"s_mul_i32 {s(sWo)}, {s(sT)}, {WP}")
    A(f"s_add_u32 {s(sWo+1)}, {s(sWo)}, 4096")
    sSpec = 31
    A(f"s_cmp_eq_u32 {s(sT)}, 0")
    A(f"s_cselect_b32 {s(sSpec)}, 1, 0")
    A(f"s_mov_b32 {s(sPass)}, 0")
    vPdi = [SY, SY+1, SY+2, SY+3]
    A(f"v_lshrrev_b32 {v(SY+4)}, 4, {v(vL)}")
    A(f"v_and_b32 {v(SY+5)}, 15, {v(vL)}")
    A(f"v_xor_b32 {v(SY+5)}, {v(SY+5)}, {v(SY+4)}")
    A(f"v_lshlrev_b32 {v(SY+5)}, 4, {v(SY+5)}")
    A(f"v_lshl_add_u32 {v(vPdi[0])}, {v(SY+4)}, 14, {v(SY+5)}")
    for i in range(1, 4): A(f"v_xor_b32 {v(vPdi[i])}, {i*64}, {v(vPdi[0])}")
    A(f"s_lshl_b32 {s(sM0)}, {s(sWave)}, 13")
    A(f"s_add_u32 {s(sM0)}, {s(sM0)}, {PA}")
    A(f"s_lshl_b32 {s(sPb)}, {s(sWave)}, 19")
    A(f"s_lshl_b32 {s(sT)}, {s(sFid)}, 8")
    A(f"s_add_u32 {s(sPb)}, {s(sPb)}, {s(sT)}")
    A(f"s_lshl_b32 {s(sT)}, {s(sWave)}, 1")
    A(f"v_and_b32 v4, 15, {v(vL)}")
    A(f"v_xor_b32 v4, {s(sT)}, v4")
    A(f"v_lshlrev_b32 v4, 4, v4")
    A(f"v_lshl_add_u32 v4, {v(vL)}, 8, v4")
    A(f"v_add_u32 v3, {PA}, v4")
    A(f"v_xor_b32 v0, 16, v3")
    vPrd = [3, 0]
    W = ACC
    vI, vH4, vI2, vH42 = TMP, TMP+1, TMP+2, TMP+3
    t0 = TMP+6
    A(f"v_and_b32 {v(vI)}, 31, {v(vL)}")
    A(f"v_lshrrev_b32 {v(t0)}, 5, {v(vL)}")
    A(f"v_lshlrev_b32 {v(t0)}, 2, {v(t0)}")
    A(f"v_mul_u32_u24 {v(vH4)}, {v(t0)}, {v(vI)}")
    A(f"v_add_u32 {v(vI2)}, 32, {v(vI)}")
    A(f"v_mul_u32_u24 {v(vH42)}, {v(t0)}, {v(vI2)}")
    img = lambda reg: CC + ((reg - 8)//4)*1024
    jobs = []
    for u in range(2):
        jobs.append((60, lambda u=u: job_trig(A, PI(u), vI, vH4, 32, W, vOff, [('c', img(C32+4*u)), ('s', img(S32+4*u)), ('n', img(N32+4*u))])))
    for par in range(2):
        for it in range(2):
            jobs.append((60, lambda par=par, it=it: job_trig(A, EO(it, par), vI, vH4, 64, W, vOff, [(k, img(k64(par, k, it))) for k in 'csn'])))
    for t in range(2):
        for half in range(2):
            jobs.append((52, lambda t=t, half=half: job_tw(A, DR(half, 32*t), vI, vH4, 2048, W, vOff, TW1 + t*8192 + half*2048, TW1 + t*8192 + 4096 + half*2048, sign=-1.0)))
            jobs.append((68, lambda t=t, half=half: job_tw(A, DR(half), vI if t == 0 else vI2, vH4 if t == 0 else vH42, 2048, W, vOff, TW2 + t*8192 + half*2048, TW2 + t*8192 + 4096 + half*2048, scale=2.0**-20)))
    run_jobs(A, jobs, sWave, 8)
    A("s_waitcnt lgkmcnt(0)")
    A("s_barrier")
    yf = A.newlabel("r3_yf")
    A(f"s_cmp_lg_u32 {s(sWave)}, 4")
    A(f"s_cbranch_scc1 {yf}")
    A(f"s_add_u32 {s(sT)}, {s(sChunk)}, 1024")
    A(f"s_lshl_b32 {s(sT)}, {s(sT)}, 7")
    set_flag(A, 88, sT, 90, 4)
    A.label(yf)
    for g in range(18): A(f"ds_read_b128 {v(8+4*g,4)}, {v(vOff)} offset:{CC + g*1024}")
    ro = dict(tldbg=opts.get("tlrole"))
    A("s_waitcnt lgkmcnt(0)")
    A("s_barrier")
    A(f"s_lshl_b32 {s(sT)}, {s(sWave)}, 12")
    A(f"s_add_u32 {s(sT)}, {s(sT)}, {1024*128}")
    A(f"v_and_b32 v4, 31, {v(vL)}")
    A(f"v_lshl_add_u32 v4, v4, 7, {s(sT)}")
    poll_flags(A, 88, 4, 1, 90, SX, 92, sleep=opts.get('rsleep', 3))
    dbg_mark(A, ro, 1, 4)
    def dma_P(rnd):
        for i in range(8):
            A(f"s_add_u32 m0, {s(sM0)}, {rnd*65536 + i*1024}")
            A(f"s_add_u32 {s(sT)}, {s(sPb)}, {i*4*16384 + rnd*8192}")
            A(f"buffer_load_dwordx4 {v(vPdi[i%4])}, {s(sYT,4)}, {s(sT)} offen sc1 lds")
    def load_W():
        for q in range(8):
            A(f"buffer_load_dwordx4 {v(SZ+4*q,4)}, {v(vOff)}, {s(sWT,4)}, {s(sWo + (q//4))} offen offset:{(q%4)*1024} sc1")
    CNT = TW1 + 4096
    def cnt_add(k):
        A(f"v_mov_b32 v4, {CNT + 4*k}")
        A("v_mov_b32 v5, 1")
        A("s_mov_b64 exec, 1")
        A("ds_add_u32 v4, v5")
        A("s_mov_b64 exec, -1")
    def cnt_wait(k):
        w = A.newlabel("r3_cw")
        A(f"v_mov_b32 v4, {CNT + 4*k}")
        A.label(w)
        A("ds_read_b32 v5, v4")
        A("s_waitcnt lgkmcnt(0)")
        A(f"v_readfirstlane_b32 {s(sT)}, v5")
        A("s_nop 3")
        A(f"s_and_b32 {s(sT)}, {s(sT)}, 15")
        A(f"s_cmp_lt_u32 {s(sT)}, 8")
        A(f"s_cbranch_scc1 {w}")
    dma_P(0)
    A("s_waitcnt vmcnt(0)")
    A("s_barrier")
    load_W(); dma_P(1)
    dbg_mark(A, ro, 2, 4)
    Pr = lambda it, u: SX + (it*2+u)*4
    Pi = lambda it, u: SX + 16 + (it*2+u)*4
    Zr = lambda it, u: SZ + (it*2+u)*4
    Zi = lambda it, u: SZ + 16 + (it*2+u)*4
    Yo = lambda c, par, it: SY + ((c*2 + par)*2 + it)*4
    def tw_load(table, g):
        t, q = g >> 2, g & 3
        o = TMP + 8*(g & 1)
        A(f"ds_read_b128 {v(o,4)}, {v(vOff)} offset:{table + t*8192 + q*1024}")
        A(f"ds_read_b128 {v(o+4,4)}, {v(vOff)} offset:{table + t*8192 + (4+q)*1024}")
    def cmul4(g, eo):
        t, q = g >> 2, g & 3
        ar = accr(t) + 4*q; ai = acci(t) + 4*q; c = TMP + 8*(g & 1); sn = c + 4
        pk2(A, "mul", 4, 4, ar, c)
        pk2(A, "mul", 4, ar, ar, sn)
        pk2(A, "fma", 4, 4, ai, sn, 4, neg=[0])
        pk2(A, "fma", 4, ai, ai, c, ar)
        if eo:
            A(f"v_cvt_pk_bf16_f32 {v(Yo(0,0,t)+q)}, v4, v6")
            A(f"v_cvt_pk_bf16_f32 {v(Yo(0,1,t)+q)}, v5, v7")
            A(f"v_cvt_pk_bf16_f32 {v(Yo(1,0,t)+q)}, {v(ai)}, {v(ai+2)}")
            A(f"v_cvt_pk_bf16_f32 {v(Yo(1,1,t)+q)}, {v(ai+1)}, {v(ai+3)}")
        else:
            for p in range(2): A(f"v_cvt_pk_bf16_f32 {v(Zr(t,0)+2*q+p)}, {v(4+2*p)}, {v(5+2*p)}")
            for p in range(2): A(f"v_cvt_pk_bf16_f32 {v(Zi(t,0)+2*q+p)}, {v(ai+2*p)}, {v(ai+2*p+1)}")
    def tw_phase(table, eo):
        for g in range(8):
            A(f"s_waitcnt lgkmcnt({2 if g < 7 else 0})")
            cmul4(g, eo)
            if g+2 < 8: tw_load(table, g+2)
    def bfly():
        for c in range(2):
            e = ACC + 32*c; o = e + 16
            pk2(A, "add", 16, e, e, o)
            for r in range(16): A(f"v_fma_f32 {v(o+r)}, {v(o+r)}, -2.0, {v(e+r)}")
    def stage64(fwd):
        for par in range(2):
            for it in range(2):
                for c in range(2):
                    d = (accr if c == 0 else acci)(par)
                    cc = "0" if it == 0 else v(d,16)
                    x, y = v(k64(par,'c',it),4), v(Yo(c,par,it),4)
                    A(f"{MF} {v(d,16)}, {x}, {y}, {cc}" if fwd else f"{MF} {v(d,16)}, {y}, {x}, {cc}")
            for it in range(2):
                for c in range(2):
                    d = (accr if c == 0 else acci)(par)
                    kind = ('s' if c == 0 else 'n') if fwd else ('n' if c == 0 else 's')
                    x, y = v(k64(par,kind,it),4), v(Yo(1-c,par,it),4)
                    A(f"{MF} {v(d,16)}, {x}, {y}, {v(d,16)}" if fwd else f"{MF} {v(d,16)}, {y}, {x}, {v(d,16)}")
    def wunpack(g):
        t, q = g >> 2, g & 3
        wr = Zr(t,0) + 2*q; wi = Zi(t,0) + 2*q; o = TMP + 8*(g & 1)
        for p in range(2):
            A(f"v_lshlrev_b32 {v(o+2*p)}, 16, {v(wr+p)}")
            A(f"v_and_b32 {v(o+2*p+1)}, 0xffff0000, {v(wr+p)}")
            A(f"v_lshlrev_b32 {v(o+4+2*p)}, 16, {v(wi+p)}")
            A(f"v_and_b32 {v(o+4+2*p+1)}, 0xffff0000, {v(wi+p)}")
    sReal = 32
    lp = A.newlabel("r3_loop"); fin = A.newlabel("r3_fin")
    A.label(lp)
    A(f"s_cmp_lg_u32 {s(sPass)}, 1")
    A(f"s_cselect_b32 {s(sReal)}, {s(sSpec)}, 0")
    for c in range(2):
        for q in range(4): A(f"ds_read_b128 {v(SX + c*16 + q*4, 4)}, {v(vPrd[c])} offset:{q*16384}")
    tw_load(TW1, 0); tw_load(TW1, 1)
    A("s_waitcnt lgkmcnt(4)")
    z = A.newlabel("r3_z")
    A(f"s_cmp_eq_u32 {s(sReal)}, 0")
    A(f"s_cbranch_scc1 {z}")
    for r in range(16): A(f"v_mov_b32 {v(SX+16+r)}, 0")
    A("s_nop 1")
    A.label(z)
    for it in range(2):
        for u in range(2):
            c = "0" if u == 0 else v(accr(it),16)
            A(f"{MF} {v(accr(it),16)}, {v(Pr(it,u),4)}, {v(C32+4*u,4)}, {c}")
            c = "0" if u == 0 else v(acci(it),16)
            A(f"{MF} {v(acci(it),16)}, {v(Pi(it,u),4)}, {v(C32+4*u,4)}, {c}")
        for u in range(2):
            A(f"{MF} {v(accr(it),16)}, {v(Pi(it,u),4)}, {v(S32+4*u,4)}, {v(accr(it),16)}")
            A(f"{MF} {v(acci(it),16)}, {v(Pr(it,u),4)}, {v(N32+4*u,4)}, {v(acci(it),16)}")
    A("s_nop 3")
    tw_phase(TW1, True)
    A("s_nop 1")
    stage64(True)
    A("s_waitcnt vmcnt(0)")
    c0 = A.newlabel("r3_c0")
    A(f"s_cmp_lg_u32 {s(sPass)}, 0")
    A(f"s_cbranch_scc1 {c0}")
    cnt_add(0)
    A.label(c0)
    pf(); pf()
    wunpack(0); wunpack(1)
    bfly()
    for g in range(8):
        cmul4(g, True)
        if g+2 < 8: wunpack(g+2)
    tw_load(TW2, 0); tw_load(TW2, 1)
    stage64(False)
    pf(); pf()
    A("s_nop 7"); A("s_nop 3")
    bfly()
    tw_phase(TW2, False)
    A("s_nop 1")
    for jt in range(2):
        for u in range(2):
            c = "0" if u == 0 else v(accr(jt),16)
            A(f"{MF} {v(accr(jt),16)}, {v(C32+4*u,4)}, {v(Zr(jt,u),4)}, {c}")
            c = "0" if u == 0 else v(acci(jt),16)
            A(f"{MF} {v(acci(jt),16)}, {v(C32+4*u,4)}, {v(Zi(jt,u),4)}, {c}")
        for u in range(2):
            A(f"{MF} {v(accr(jt),16)}, {v(N32+4*u,4)}, {v(Zi(jt,u),4)}, {v(accr(jt),16)}")
            A(f"{MF} {v(acci(jt),16)}, {v(S32+4*u,4)}, {v(Zr(jt,u),4)}, {v(acci(jt),16)}")
    A(f"s_add_u32 {s(sWo)}, {s(sWo)}, {256*WP}")
    A(f"s_add_u32 {s(sWo+1)}, {s(sWo+1)}, {256*WP}")
    load_W()
    for jt in range(2):
        if jt == 1: A("s_nop 3")
        for c in range(2):
            base = (accr(jt) if c == 0 else acci(jt))
            for p in range(8): A(f"v_cvt_pk_bf16_f32 {v(SY + c*16 + jt*8 + p)}, {v(base+2*p)}, {v(base+2*p+1)}")
    l512 = A.newlabel("r3_l512")
    A(f"s_cmp_eq_u32 {s(sPass)}, 2")
    A(f"s_cbranch_scc1 {l512}")
    for q in range(4): A(f"ds_write_b128 {v(vPrd[0])}, {v(SY + q*4, 4)} offset:{q*16384}")
    ni = A.newlabel("r3_ni")
    A(f"s_cmp_eq_u32 {s(sReal)}, 1")
    A(f"s_cbranch_scc1 {ni}")
    for q in range(4): A(f"ds_write_b128 {v(vPrd[1])}, {v(SY + 16 + q*4, 4)} offset:{q*16384}")
    A.label(ni)
    A(f"s_add_u32 {s(sPass)}, {s(sPass)}, 1")
    p1 = A.newlabel("r3_p1")
    A(f"s_cmp_lg_u32 {s(sPass)}, 1")
    A(f"s_cbranch_scc1 {p1}")
    if RPF >= 0 and RW < 0:
        make_srd(A, 72, 78, 79, 1024*3584*2)
        A(f"s_lshl_b32 s76, {s(sWave)}, 5")
        A(f"s_add_u32 s76, s76, {s(sFid)}")
        A(f"s_lshl_b32 s76, s76, 13")
        A(f"s_mov_b32 s77, {2<<20}")
    dbg_mark(A, ro, 3, 4)
    A("s_waitcnt lgkmcnt(0)")
    cnt_add(1)
    cnt_wait(0)
    A("v_add_u32 v3, 0x10000, v3")
    A("v_add_u32 v0, 0x10000, v0")
    A(f"s_branch {lp}")
    A.label(p1)
    A("s_waitcnt vmcnt(0)")
    A(f"v_lshrrev_b32 {v(vL)}, 4, {v(vOff)}")
    za, zb = TMP, TMP+2
    A(f"v_add_u32 {v(za)}, {s(sM0)}, {v(vOff)}")
    A(f"v_add_u32 {v(za+1)}, 0x10000, {v(za)}")
    A(f"v_lshrrev_b32 {v(TMP+6)}, 4, {v(vL)}")
    A(f"v_and_b32 {v(TMP+7)}, 15, {v(vL)}")
    A(f"v_xor_b32 {v(TMP+7)}, {v(TMP+7)}, {v(TMP+6)}")
    A(f"v_and_b32 {v(TMP+8)}, 1, {v(TMP+7)}")
    A(f"v_lshrrev_b32 {v(TMP+7)}, 1, {v(TMP+7)}")
    A(f"v_lshlrev_b32 {v(TMP+7)}, 4, {v(TMP+7)}")
    A(f"v_lshl_add_u32 {v(TMP+7)}, {v(TMP+8)}, 13, {v(TMP+7)}")
    A(f"v_lshl_add_u32 {v(zb)}, {v(TMP+6)}, 14, {v(TMP+7)}")
    for i in range(1, 4): A(f"v_xor_b32 {v(zb+i)}, {i*32}, {v(zb)}")
    A(f"s_lshl_b32 {s(sT)}, {s(sFid)}, 7")
    A(f"s_lshl_b32 {s(sT+1)}, {s(sWave)}, 19")
    A(f"s_add_u32 {s(sT)}, {s(sT)}, {s(sT+1)}")
    def copy(rnd, extra):
        for i in range(8): A(f"ds_read_b128 {v(ACC+4*i,4)}, {v(za+rnd)} offset:{i*1024 + extra*8192}")
        for i in range(8):
            A(f"s_add_u32 {s(sT+1)}, {s(sT+2)}, {i*4*16384 + rnd*4096 + extra*(1<<19)}")
            A(f"s_waitcnt lgkmcnt({7-i})")
            A(f"buffer_store_dwordx4 {v(ACC+4*i,4)}, {v(zb+(i%4))}, {s(sZT,4)}, {s(sT+1)} offen sc1")
    A(f"s_mov_b32 {s(sT+2)}, {s(sT)}")
    ya = A.newlabel("r3_ya")
    A(f"s_cmp_ge_u32 {s(sWave)}, 4")
    A(f"s_cbranch_scc1 {ya}")
    cnt_wait(1)
    copy(0, 0)
    A("s_nop 1")
    copy(0, 4)
    A.label(ya)
    A("s_waitcnt lgkmcnt(0)")
    A("s_barrier")
    dbg_mark(A, ro, 10, 4)
    copy(1, 0)
    A("s_waitcnt vmcnt(0)")
    A("s_barrier")
    for i in range(opts.get("rdelay", 0)): A("s_sleep 30")
    zf1 = A.newlabel("r3_zf1")
    A(f"s_cmp_lg_u32 {s(sWave)}, 1")
    A(f"s_cbranch_scc1 {zf1}")
    A(f"s_add_u32 {s(sT)}, {s(sFid)}, 3840")
    A(f"s_lshl_b32 {s(sT)}, {s(sT)}, 7")
    set_flag(A, 88, sT, 90, 4)
    A.label(zf1)
    dbg_mark(A, opts, 8, 4)
    A(f"s_cmp_eq_u32 {s(sSpec)}, 0")
    A(f"s_cbranch_scc1 {fin}")
    A("v_subrev_u32 v3, 0x10000, v0")
    A(f"s_branch {lp}")
    A.label(l512)
    make_srd(A, sZT, sWS, sWS+1, 4096, add=WS_ZT + (4 << 20))
    for q in range(4): A(f"buffer_store_dwordx4 {v(SY+q*4,4)}, {v(vOff)}, {s(sZT,4)}, 0 offen offset:{q*1024} sc1")
    A("s_waitcnt vmcnt(0)")
    A(f"v_lshrrev_b32 {v(vL)}, 4, {v(vOff)}")
    A(f"s_mov_b32 {s(sT)}, {(3840+32)*128}")
    set_flag(A, 88, sT, 90, 4)
    A.label(fin)
    A("s_barrier")
```

```python
from asmlib import *
from layout import *
from dbgstamp import *
from sync import *
from gemm import stamp, stamp_store
from fft2 import job_trig, job_tw, run_jobs, PI, DR
from fftcommon import wave_allreduce_add2, round_bf16
import math
MF = "v_mfma_f32_16x16x32_bf16"
MF32 = "v_mfma_f32_32x32x16_bf16"

def gen_ka(A, name, opts):
    NS = 4; KS = 32; SLOT = 32768; XB = 16384
    FR = opts.get("freerun", 3)
    kernel_begin(A, name)
    sX, sW, sD, sH, sP = 8, 12, 16, 20, 44
    sWS = 24; sT = 26
    sWave, sWm, sWn = 30, 31, 32
    sM0x, sM0w, sKx, sKw = 33, 34, 35, 36
    sMt, sNt, sLoop, sPf = 37, 38, 39, 40
    sDbg, sTag, sFb = 48, 50, 52
    sIdx, sXcd = 54, 55
    sA, sB = 72, 76
    sS, sChunk, sN2, sU = 80, 81, 82, 83
    ACC = 0; R = [128, 176]
    acc = lambda i, j: ACC + (i*4+j)*4
    opX = lambda rs, i: R[rs] + i*4
    opW = lambda rs, j: R[rs] + 32 + j*4
    nsg = 2
    b = 224
    vDw = [b, b+1, b+2, b+3]; vDx = b+4; vL = 1
    vXa = [b+6+g for g in range(nsg)]
    vWa = [[b+9+g for g in range(nsg)], [b+12+g for g in range(nsg)]]
    t0, t1, t2, t3 = b+15, b+16, b+17, b+18
    vSt = b+19; vK = b+20
    vLL = b+5
    done = A.newlabel("ka_done"); fftl = A.newlabel("ka_fft"); pfl = A.newlabel("ka_pf"); epi = A.newlabel("ka_epi")
    A("s_load_dwordx2 s[94:95], s[0:1], 0")
    A(f"s_load_dwordx4 {s(sDbg,4)}, s[0:1], 64")
    A(f"s_load_dwordx4 s[4:7], s[0:1], 32")
    A(f"s_load_dwordx4 s[88:91], s[0:1], 8")
    A(f"s_load_dwordx2 s[92:93], s[0:1], 48")
    A(f"s_cmp_ge_u32 s2, 256")
    A(f"s_cbranch_scc1 {done}")
    dbg_init(A, opts, 0); dbg_mark(A, opts, 0, 254, neg=True)
    stamp(A, dict(stamp=opts.get("stamp") or opts.get("stamp0")), 0)
    vOff = 2
    A(f"v_lshrrev_b32 v2, 6, v0")
    A(f"v_and_b32 {v(vL)}, 63, v0")
    A(f"s_and_b32 {s(sXcd)}, s2, 7")
    A(f"v_readfirstlane_b32 {s(sWave)}, v2")
    A(f"s_lshr_b32 {s(sIdx)}, s2, 3")
    A(f"v_lshlrev_b32 {v(vOff)}, 4, {v(vL)}")
    A(f"v_mov_b32 {v(vLL)}, {v(vL)}")
    A(f"s_lshl_b32 {s(sChunk)}, {s(sXcd)}, 5")
    A(f"s_add_u32 {s(sChunk)}, {s(sChunk)}, {s(sIdx)}")
    A(f"s_lshr_b32 {s(sT)}, {s(sXcd)}, 2")
    A(f"s_lshl_b32 {s(sT)}, {s(sT)}, 5")
    A(f"s_add_u32 {s(sN2)}, {s(sIdx)}, {s(sT)}")
    A(f"s_and_b32 {s(sT)}, {s(sXcd)}, 2")
    A(f"s_lshl_b32 {s(sT)}, {s(sT)}, 1")
    A(f"s_and_b32 {s(sT+1)}, {s(sXcd)}, 1")
    A(f"s_add_u32 {s(sU)}, {s(sT)}, {s(sT+1)}")
    A(f"s_lshr_b32 {s(sT)}, {s(sWave)}, 2")
    A(f"s_lshl_b32 {s(sT)}, {s(sT)}, 1")
    A(f"s_add_u32 {s(sT)}, {s(sT)}, {s(sU)}")
    A(f"s_lshl_b32 {s(sS)}, {s(sT)}, 8")
    A(f"s_and_b32 {s(sWn)}, {s(sWave)}, 3")
    A(f"s_lshl_b32 {s(sT)}, {s(sWn)}, 6")
    A(f"s_add_u32 {s(sS)}, {s(sS)}, {s(sT)}")
    A(f"s_add_u32 {s(sS)}, {s(sS)}, {s(sN2)}")
    A(f"s_lshl_b32 {s(sT)}, {s(sS)}, 11")
    A(f"s_and_b32 {s(sMt)}, {s(sXcd)}, 1")
    A(f"s_lshl_b32 {s(sMt)}, {s(sMt)}, 2")
    A(f"s_and_b32 {s(sT+2)}, {s(sIdx)}, 3")
    A(f"s_add_u32 {s(sMt)}, {s(sMt)}, {s(sT+2)}")
    A(f"s_lshr_b32 {s(sNt)}, {s(sXcd)}, 1")
    A(f"s_mul_i32 {s(sNt)}, {s(sNt)}, 7")
    A(f"s_lshr_b32 {s(sT+2)}, {s(sIdx)}, 2")
    A(f"s_add_u32 {s(sNt)}, {s(sNt)}, {s(sT+2)}")
    sRot, sKwE, sKxE = 56, 57, 58
    GM = opts.get("g1map", 4)
    if GM == 2:
        A(f"s_and_b32 {s(sMt)}, {s(sXcd)}, 6")
        A(f"s_lshl_b32 {s(sRot)}, {s(sMt)}, 2")
        A(f"s_and_b32 {s(sT+2)}, {s(sIdx)}, 1")
        A(f"s_add_u32 {s(sMt)}, {s(sMt)}, {s(sT+2)}")
        A(f"s_and_b32 {s(sNt)}, {s(sXcd)}, 1")
        A(f"s_mul_i32 {s(sNt)}, {s(sNt)}, 14")
        A(f"s_lshr_b32 {s(sT+2)}, {s(sIdx)}, 1")
        A(f"s_add_u32 {s(sNt)}, {s(sNt)}, {s(sT+2)}")
    elif GM == 1:
        A(f"s_mov_b32 {s(sMt)}, {s(sXcd)}")
        A(f"s_lshl_b32 {s(sRot)}, {s(sXcd)}, 2")
        A(f"s_mov_b32 {s(sNt)}, {s(sIdx)}")
    else:
        A(f"s_and_b32 {s(sRot)}, {s(sXcd)}, 1")
        A(f"s_lshl_b32 {s(sRot)}, {s(sRot)}, 4")
    if not opts.get("rot", 1): A(f"s_mov_b32 {s(sRot)}, 0")
    A("s_waitcnt lgkmcnt(0)")
    make_srd(A, sA, 94, 95, 2048*1024*2)
    RAW = 4
    A(f"buffer_load_dwordx4 {v(RAW,4)}, {v(vOff)}, {s(sA,4)}, {s(sT)} offen")
    A(f"buffer_load_dwordx4 {v(RAW+4,4)}, {v(vOff)}, {s(sA,4)}, {s(sT)} offen offset:1024")
    A(f"s_mov_b64 {s(sWS,2)}, s[50:51]")
    A(f"s_add_u32 {s(sFb)}, {s(sWS)}, {hex(WS_TAG)}")
    A(f"s_addc_u32 {s(sFb+1)}, {s(sWS+1)}, 0")
    CT = 0
    nt_ = A.newlabel("ka_notag")
    sIsT = 59
    A(f"s_lshl_b32 {s(sT)}, s2, 3")
    A(f"s_add_u32 {s(sT)}, {s(sT)}, {s(sWave)}")
    A(f"s_cmp_eq_u32 {s(sT)}, 3")
    A(f"s_cselect_b32 s62, 1, 0")
    A(f"s_cbranch_scc0 {nt_}")
    A(f"s_memrealtime {s(sTag,2)}")
    A("s_waitcnt lgkmcnt(0)")
    A(f"s_or_b32 {s(sTag+1)}, {s(sTag+1)}, 0x80000000")
    A(f"s_mov_b32 {s(sT)}, 64")
    set_flag(A, sDbg, sT, sTag, 12)
    A.label(nt_)
    WR = 128
    LWR, LWI = 131072, 147456
    A(f"s_and_b32 {s(sT)}, s2, 63")
    A(f"s_lshl_b32 {s(sT)}, {s(sT)}, 3")
    A(f"s_add_u32 {s(sT)}, {s(sT)}, {s(sWave)}")
    A(f"s_bfe_u32 {s(sT+1)}, {s(sT)}, 0x20006")
    A(f"s_lshl_b32 {s(sT+1)}, {s(sT+1)}, 4")
    A(f"s_bfe_u32 {s(sT+2)}, {s(sT)}, 0x10005")
    A(f"s_lshl_b32 {s(sT+2)}, {s(sT+2)}, 2")
    A(f"s_add_u32 {s(sT+1)}, {s(sT+1)}, {s(sT+2)}")
    A(f"s_lshl_b32 {s(sT+1)}, {s(sT+1)}, 5")
    A(f"s_and_b32 {s(sT+2)}, {s(sT)}, 31")
    A(f"s_add_u32 {s(sT+1)}, {s(sT+1)}, {s(sT+2)}")
    A(f"s_mul_i32 {s(sT+1)}, {s(sT+1)}, 1026")
    A(f"s_lshr_b32 {s(sT+2)}, s2, 6")
    A(f"s_lshl_b32 {s(sT+2)}, {s(sT+2)}, 8")
    A(f"s_add_u32 {s(sT+2)}, {s(sT+2)}, {s(sT+1)}")
    A(f"s_add_u32 {s(sT+3)}, {s(sT+2)}, {32*8*1026}")
    A("s_bitcmp1_b32 s2, 5")
    A("s_cselect_b32 s88, s90, s88")
    A("s_cselect_b32 s89, s91, s89")
    make_srd(A, sB, 88, 89, 2048*513*2)
    A(f"v_lshrrev_b32 v192, 4, {v(vL)}")
    A(f"v_mul_u32_u24 v192, {32*1026}, v192")
    A(f"v_and_b32 v193, 15, {v(vL)}")
    A(f"v_lshl_add_u32 v192, v193, 4, v192")
    A(f"buffer_load_dwordx4 {v(WR,4)}, v192, {s(sB,4)}, {s(sT+2)} offen")
    A(f"buffer_load_dwordx4 {v(WR+4,4)}, v192, {s(sB,4)}, {s(sT+3)} offen")
    A(f"v_and_b32 v192, 3, {v(vL)}")
    A(f"v_bfe_u32 v193, {v(vL)}, 2, 1")
    A(f"v_lshl_add_u32 v192, v193, 3, v192")
    A(f"v_lshrrev_b32 v193, 3, {v(vL)}")
    A(f"v_lshl_add_u32 v192, v192, 5, v193")
    A(f"v_mul_u32_u24 v192, 1026, v192")
    A(f"v_lshlrev_b32 v195, 1, {v(vL)}")
    A(f"s_sub_u32 {s(sT+1)}, {s(sT+1)}, {4*1026 - 1024}")
    A("s_cmp_ge_u32 s2, 192")
    A(f"s_cselect_b32 {s(sT+1)}, {s(sT+1)}, 0x40000000")
    A(f"s_cmp_eq_u32 {s(sWave)}, 4")
    A(f"s_cselect_b32 {s(sT+1)}, {s(sT+1)}, 0x40000000")
    A(f"buffer_load_ushort v194, v192, {s(sB,4)}, {s(sT+1)} offen")
    A(f"s_bitcmp1_b32 {s(sWave)}, 1")
    A(f"s_cselect_b32 s4, s6, s4")
    A(f"s_cselect_b32 s5, s7, s5")
    make_srd(A, sW, 4, 5, 1024*3584*2)
    def dmaW(slot):
        o = [f"s_add_u32 m0, {s(sM0w)}, {hex(slot*SLOT)}", "s_nop 0"]
        for i in range(4): o.append(f"buffer_load_dwordx4 {v(vDw[i])}, {s(sW,4)}, {s(sKw)} offen offset:{1024*i} {opts.get('wfl','')} lds")
        o.append(f"s_add_u32 {s(sKw)}, {s(sKw)}, {32*7168}\n    s_cmp_eq_u32 {s(sKw)}, {s(sKwE)}\n    s_cselect_b32 {s(sKw)}, {s(sKwE+2)}, {s(sKw)}")
        return o
    def dmaX(slot):
        o = [f"s_add_u32 m0, {s(sM0x)}, {hex(slot*SLOT)}", "s_nop 0"]
        for rep in range(opts.get("xdup", 1)):
            for i in range(4): o.append(f"buffer_load_dwordx4 {v(vDx)}, {s(sX,4)}, {s(sKx)} offen offset:{1024*i} {opts.get('xfl','sc1').replace('_',' ')} lds")
        o.append(f"s_add_u32 {s(sKx)}, {s(sKx)}, {XB}\n    s_cmp_eq_u32 {s(sKx)}, {s(sKxE)}\n    s_cselect_b32 {s(sKx)}, {s(sKxE+2)}, {s(sKx)}")
        return o
    nd1 = A.newlabel("ka_nodma")
    A(f"v_lshrrev_b32 {v(t0)}, 4, {v(vL)}")
    A(f"v_and_b32 {v(t2)}, 15, {v(vL)}")
    A(f"v_lshlrev_b32 {v(t1)}, 1, {v(t0)}")
    A(f"v_xor_b32 {v(t2)}, {v(t2)}, {v(t1)}")
    A(f"v_mul_u32_u24 {v(t0)}, 7168, {v(t0)}")
    A(f"v_lshl_add_u32 {v(vDw[0])}, {v(t2)}, 4, {v(t0)}")
    A(f"v_xor_b32 {v(t1)}, 128, {v(vDw[0])}")
    for i in range(1, 4): A(f"v_add_u32 {v(vDw[i])}, {i*4*7168 - i*1024}, {v(t1 if i & 2 else vDw[0])}")
    A(f"s_and_b32 {s(sKw)}, {s(sWave)}, 1")
    A(f"s_mul_i32 {s(sKw)}, {s(sKw)}, {16*7168}")
    A(f"s_lshl_b32 {s(sT)}, {s(sNt)}, 8")
    A(f"s_add_u32 {s(sKwE+2)}, {s(sKw)}, {s(sT)}")
    A(f"s_add_u32 {s(sKwE)}, {s(sKwE+2)}, {1024*7168}")
    A(f"s_mul_i32 {s(sT)}, {s(sRot)}, {32*7168}")
    A(f"s_add_u32 {s(sKw)}, {s(sKwE+2)}, {s(sT)}")
    A(f"s_lshl_b32 {s(sM0x)}, {s(sWave)}, 12")
    A(f"s_add_u32 {s(sM0w)}, {s(sM0x)}, {XB}")
    DL = opts.get("pfd", 8); P0 = 6
    vP, vD = b+29, b+27; sPw = 87
    pw = [f"buffer_load_dword {v(vD)}, {v(vP)}, {s(sW,4)}, {s(sPw)} offen", f"s_add_u32 {s(sPw)}, {s(sPw)}, {32*7168}"]
    EW = opts.get('EW', 2)
    sIsD = 84
    A(f"s_cmp_lt_u32 {s(sIdx)}, 28")
    A(f"s_cselect_b32 {s(sIsD)}, 1, 0")
    A(f"s_cmp_lt_u32 {s(sWave)}, 4")
    A(f"s_cselect_b32 {s(sIsD)}, {s(sIsD)}, 0")
    LC, LS, LT = 65536, 98304, 131072
    B1C, B1S, A2R, A2I, TWC, TWS = 64, 72, 80, 88, 96, 112
    vK1, vIdx, vB, vPh, vC = 12, 13, 14, 15, 20
    A(f"v_and_b32 {v(vK1)}, 31, {v(vL)}")
    A(f"v_add_u32 {v(vC)}, {LC}, {v(vOff)}")
    jend = A.newlabel("ka_jend"); jtw = A.newlabel("ka_jtw")
    A(f"s_xor_b32 {s(sT+3)}, {s(sWave)}, 4")
    A(f"s_cmp_ge_u32 {s(sT+3)}, 6")
    A(f"s_cbranch_scc1 {jend}")
    A(f"s_lshr_b32 {s(sT)}, {s(sT+3)}, 1")
    A(f"s_cmp_eq_u32 {s(sT)}, 1")
    A(f"s_cselect_b32 {s(sT+1)}, 15, 31")
    A(f"s_mov_b32 {s(sT+2)}, {f32(-1/32)}")
    A(f"s_cselect_b32 {s(sT+2)}, {f32(1/32)}, {s(sT+2)}")
    A(f"s_cselect_b32 s85, {f32(0.25)}, 0")
    A(f"v_and_b32 {v(vIdx)}, {s(sT+1)}, {v(vL)}")
    A(f"v_bfe_u32 {v(vPh)}, {v(vL)}, 4, 1")
    A(f"v_cvt_f32_u32 {v(vPh)}, {v(vPh)}")
    A(f"v_mul_f32 {v(vPh)}, s85, {v(vPh)}")
    A(f"s_cmp_eq_u32 {s(sT)}, 2")
    A(f"s_cselect_b32 {s(sT+1)}, 1023, 31")
    A(f"s_cselect_b32 {s(sT+2)}, {f32(-1/1024)}, {s(sT+2)}")
    A(f"s_and_b32 s85, {s(sT+3)}, 1")
    A(f"s_lshl_b32 s86, s85, 4")
    A(f"v_lshrrev_b32 {v(vB)}, 5, {v(vL)}")
    A(f"v_lshl_add_u32 {v(vB)}, {v(vB)}, 2, s86")
    A(f"v_mul_u32_u24 {v(vB)}, {v(vB)}, {v(vIdx)}")
    JT, JC, JS, JO = 64, 72, 80, 88
    for e, c in enumerate((0, 1, 2, 3, 8, 9, 10, 11)): A(f"v_mad_u32_u24 {v(JT+e)}, {c}, {v(vIdx)}, {v(vB)}")
    for e in range(8): A(f"v_and_b32 {v(JT+e)}, {s(sT+1)}, {v(JT+e)}")
    for e in range(8): A(f"v_cvt_f32_u32 {v(JT+e)}, {v(JT+e)}")
    for e in range(8): A(f"v_fma_f32 {v(JT+e)}, {v(JT+e)}, {s(sT+2)}, {v(vPh)}")
    for e in range(8): A(f"v_cos_f32 {v(JC+e)}, {v(JT+e)}")
    for e in range(8): A(f"v_sin_f32 {v(JS+e)}, {v(JT+e)}")
    A(f"s_cbranch_scc1 {jtw}") if False else None
    A(f"s_cmp_eq_u32 {s(sT)}, 2")
    A(f"s_cbranch_scc1 {jtw}")
    A(f"s_lshl_b32 {s(sT)}, {s(sT)}, 12")
    A(f"s_lshl_b32 s85, s85, 10")
    A(f"s_add_u32 {s(sT)}, {s(sT)}, s85")
    A(f"v_add_u32 {v(vB)}, {s(sT)}, {v(vC)}")
    for p in range(8): A(f"v_cvt_pk_bf16_f32 {v(JO+p)}, {v(JC+2*p)}, {v(JC+2*p+1)}")
    A(f"ds_write_b128 {v(vB)}, {v(JO,4)}")
    A(f"ds_write_b128 {v(vB)}, {v(JO+4,4)} offset:2048")
    A(f"s_branch {jend}")
    A.label(jtw)
    A(f"s_lshl_b32 s85, s85, 11")
    A(f"v_add_u32 {v(vB)}, s85, {v(vC)}")
    for q in range(2):
        A(f"ds_write_b128 {v(vB)}, {v(JC+4*q,4)} offset:{8192 + q*1024}")
        A(f"ds_write_b128 {v(vB)}, {v(JS+4*q,4)} offset:{12288 + q*1024}")
    A.label(jend)
    q0, q1, q2 = 17, 18, 19
    vLw, vLr, vTw, vDC = 21, 22, 23, 24
    A(f"s_lshl_b32 {s(sT)}, {s(sWave)}, 11")
    A(f"s_add_u32 {s(sT)}, {s(sT)}, {LS}")
    A(f"s_lshl_b32 {s(sT+1)}, {s(sWn)}, 6")
    A(f"v_xor_b32 {v(vLw)}, {s(sT+1)}, {v(vOff)}")
    A(f"v_add_u32 {v(vLw)}, {s(sT)}, {v(vLw)}")
    A(f"v_lshrrev_b32 {v(q0)}, 5, {v(vL)}")
    A(f"v_lshlrev_b32 {v(vTw)}, 11, {v(q0)}")
    A(f"v_lshlrev_b32 {v(q0)}, 8, {v(q0)}")
    A(f"v_bfe_u32 {v(q1)}, {v(vL)}, 2, 2")
    A(f"v_lshl_add_u32 {v(q0)}, {v(q1)}, 6, {v(q0)}")
    A(f"v_and_b32 {v(q1)}, 16, {v(vL)}")
    A(f"v_lshl_add_u32 {v(q0)}, {v(q1)}, 1, {v(q0)}")
    A(f"v_and_b32 {v(q2)}, 3, {v(vL)}")
    A(f"v_lshl_add_u32 {v(q0)}, {v(q2)}, 3, {v(q0)}")
    A(f"v_xor_b32 {v(q0)}, {s(sT+1)}, {v(q0)}")
    A(f"v_add_u32 {v(vLr)}, {s(sT)}, {v(q0)}")
    A(f"v_lshl_add_u32 {v(vTw)}, {v(vK1)}, 4, {v(vTw)}")
    A(f"s_lshl_b32 {s(sT)}, {s(sWave)}, 1")
    A(f"s_add_u32 {s(sT)}, {s(sT)}, {LT}")
    A(f"v_add_u32 {v(vTw)}, {s(sT)}, {v(vTw)}")
    A(f"v_cmp_eq_u32 s[96:97], 0, {v(vL)}")
    A(f"v_mov_b32 {v(vDC)}, 1.0")
    make_srd(A, sX, sWS, sWS+1, 2048*1024*2, add=WS_XN)
    A(f"v_cndmask_b32 {v(vDC)}, {v(vDC)}, 0.5, s[96:97]")
    F = 32; D = 48
    SUM, SQ, T1, T2, MB, RS = 25, 26, 27, 28, 29, 30
    def common_setup():
        L = vLL
        A(f"s_lshr_b32 {s(sWm)}, {s(sWave)}, 2")
        A(f"v_and_b32 {v(t0)}, 15, {v(L)}")
        A(f"v_lshrrev_b32 {v(t1)}, 4, {v(L)}")
        A(f"v_lshrrev_b32 {v(t2)}, 2, {v(L)}")
        A(f"v_and_b32 {v(t3)}, 2, {v(t2)}")
        A(f"v_xor_b32 {v(t3)}, {v(t3)}, {v(t1)}")
        A(f"v_lshlrev_b32 {v(t3)}, 4, {v(t3)}")
        A(f"v_lshl_add_u32 {v(t3)}, {v(t0)}, 6, {v(t3)}")
        A(f"s_lshl_b32 {s(sT)}, {s(sWm)}, 13")
        A(f"v_add_u32 {v(vXa[0])}, {s(sT)}, {v(t3)}")
        for g in range(1, nsg): A(f"v_add_u32 {v(vXa[g])}, {hex(65536*g)}, {v(vXa[0])}")
        A(f"v_and_b32 {v(t2)}, 3, {v(t2)}")
        A(f"v_lshlrev_b32 {v(t3)}, 11, {v(t1)}")
        A(f"v_lshl_add_u32 {v(t3)}, {v(t2)}, 8, {v(t3)}")
        A(f"v_and_b32 {v(t1)}, 1, {v(t1)}")
        A(f"v_lshl_or_b32 {v(t2)}, {v(t1)}, 2, {v(t2)}")
        A(f"s_lshl_b32 {s(sT)}, {s(sWn)}, 1")
        A(f"v_xor_b32 {v(t2)}, {s(sT)}, {v(t2)}")
        A(f"v_lshl_add_u32 {v(t3)}, {v(t2)}, 5, {v(t3)}")
        A(f"v_and_b32 {v(t2)}, 3, {v(L)}")
        A(f"v_lshl_add_u32 {v(t3)}, {v(t2)}, 3, {v(t3)}")
        A(f"v_add_u32 {v(vWa[0][0])}, {XB}, {v(t3)}")
        A(f"v_xor_b32 {v(vWa[1][0])}, 32, {v(vWa[0][0])}")
        for jt in range(2):
            for g in range(1, nsg): A(f"v_add_u32 {v(vWa[jt][g])}, {hex(65536*g)}, {v(vWa[jt][0])}")
        A(f"v_lshrrev_b32 {v(t1)}, 5, {v(L)}")
        A(f"v_lshrrev_b32 {v(t2)}, 3, {v(L)}")
        A(f"v_and_b32 {v(t2)}, 2, {v(t2)}")
        A(f"v_or_b32 {v(t1)}, {v(t1)}, {v(t2)}")
        A(f"v_lshlrev_b32 {v(t1)}, 8, {v(t1)}")
        A(f"v_lshl_add_u32 {v(t1)}, {v(t0)}, 4, {v(t1)}")
        A(f"s_lshl_b32 {s(sT)}, {s(sMt)}, 1")
        A(f"s_add_u32 {s(sT)}, {s(sT)}, {s(sWm)}")
        A(f"s_mul_i32 {s(sT)}, {s(sT)}, 112")
        A(f"s_lshl_b32 {s(sT+1)}, {s(sNt)}, 2")
        A(f"s_add_u32 {s(sT)}, {s(sT)}, {s(sT+1)}")
        A(f"s_add_u32 {s(sT)}, {s(sT)}, {s(sWn)}")
        A(f"s_lshl_b32 {s(sT)}, {s(sT)}, 13")
        A(f"v_add_u32 {v(vSt)}, {s(sT)}, {v(t1)}")
        k0 = -2.0*math.log2(math.e)*math.sqrt(2.0/math.pi); k1 = k0*0.044715
        for i, c in enumerate((k0, k0, k1, k1, 1.0, 1.0)): A(f"v_mov_b32 {v(vK+i)}, {f32(c)}")
        make_srd(A, sH, sWS, sWS+1, 2048*3584*2, add=WS_H)
    if not opts.get("latesetup", 1):
        common_setup()
        A(f"v_lshlrev_b32 {v(vDx)}, 4, {v(vLL)}")
    CPF = opts.get("cpf", 0)
    if CPF:
        A("s_getpc_b64 s[60:61]")
        lbl = A.newlabel("ka_pc")
        A.label(lbl)
        A(f"s_sub_u32 s60, s60, {lbl}-{name}")
        A("s_subb_u32 s61, s61, 0")
        A(f"v_lshlrev_b32 v219, 7, v0")
        A(f"v_min_u32 v219, ka_code_end-{name}-4, v219")
        A("global_load_dword v220, v219, s[60:61]")
    if opts.get("tlbw"):
        tw_ = A.newlabel("ka_tlbw")
        A(f"s_cmp_lg_u32 {s(sWave)}, 2")
        A(f"s_cbranch_scc1 {tw_}")
        A(f"v_min_u32 v220, 34, {v(vL)}")
        A(f"v_lshlrev_b32 v220, 21, v220")
        A(f"v_add_u32 v220, 0x1000, v220")
        A(f"global_load_dword v221, v220, {s(sWS,2)} sc1")
        A.label(tw_)
    TE = opts.get("tagearly", 1)
    if TE: tag_issue(A, sDbg, 216)
    CPF += TE
    wd = A.newlabel("ka_wd")
    A(f"s_cmp_eq_u32 {s(sIsD)}, 0")
    A(f"s_cbranch_scc1 {nd1}")
    for t in range(EW):
        for ins in dmaW(t): A(ins)
    A(f"s_waitcnt vmcnt({3+4*EW+CPF})")
    A(f"s_branch {wd}")
    A.label(nd1)
    A(f"s_waitcnt vmcnt({3+CPF})")
    A.label(wd)
    stamp(A, dict(stamp=opts.get("stamp0")), 1)
    dbg_mark(A, opts, 1, 254)
    for i in range(8):
        A(f"v_lshlrev_b32 {v(F+2*i)}, 16, {v(RAW+i)}")
        A(f"v_and_b32 {v(F+2*i+1)}, 0xffff0000, {v(RAW+i)}")
    A(f"v_readfirstlane_b32 {s(sT+3)}, {v(F)}")
    A("s_nop 1")
    for i in range(16): A(f"v_subrev_f32 {v(D+i)}, {s(sT+3)}, {v(F+i)}")
    A(f"v_add_f32 {v(SUM)}, {v(D)}, {v(D+1)}")
    A(f"v_mul_f32 {v(SQ)}, {v(D)}, {v(D)}")
    A(f"v_add_f32 {v(T1)}, {v(D+2)}, {v(D+3)}")
    A(f"v_mul_f32 {v(T2)}, {v(D+1)}, {v(D+1)}")
    for i in range(2, 16, 2):
        if i >= 4:
            A(f"v_add_f32 {v(SUM)}, {v(SUM)}, {v(D+i)}")
            A(f"v_add_f32 {v(T1)}, {v(T1)}, {v(D+i+1)}")
        A(f"v_fmac_f32 {v(SQ)}, {v(D+i)}, {v(D+i)}")
        A(f"v_fmac_f32 {v(T2)}, {v(D+i+1)}, {v(D+i+1)}")
    A(f"v_add_f32 {v(SUM)}, {v(SUM)}, {v(T1)}")
    A(f"v_add_f32 {v(SQ)}, {v(SQ)}, {v(T2)}")
    wave_allreduce_add2(A, [SUM, SQ], [T1, T2])
    A(f"v_mul_f32 {v(MB)}, {f32(1/1024)}, {v(SUM)}")
    A(f"v_mul_f32 {v(RS)}, {f32(1/1024)}, {v(SQ)}")
    A(f"v_fma_f32 {v(RS)}, -{v(MB)}, {v(MB)}, {v(RS)}")
    A(f"v_add_f32 {v(MB)}, {s(sT+3)}, {v(MB)}")
    A(f"v_max_f32 {v(RS)}, 0, {v(RS)}")
    round_bf16(A, RS)
    round_bf16(A, MB)
    A(f"v_add_f32 {v(RS)}, {f32(1e-5)}, {v(RS)}")
    round_bf16(A, RS)
    A(f"v_sqrt_f32 {v(RS)}, {v(RS)}")
    for i in range(16): A(f"v_sub_f32 {v(D+i)}, {v(F+i)}, {v(MB)}")
    round_bf16(A, RS)
    A(f"v_rcp_f32 {v(RS)}, {v(RS)}")
    for i in range(8): A(f"v_cvt_pk_bf16_f32 {v(RAW+i)}, {v(D+2*i)}, {v(D+2*i+1)}")
    for i in range(8):
        A(f"v_lshlrev_b32 {v(D+2*i)}, 16, {v(RAW+i)}")
        A(f"v_and_b32 {v(D+2*i+1)}, 0xffff0000, {v(RAW+i)}")
    for i in range(16): A(f"v_mul_f32 {v(D+i)}, {v(D+i)}, {v(RS)}")
    for i in range(8): A(f"v_cvt_pk_bf16_f32 {v(RAW+i)}, {v(D+2*i)}, {v(D+2*i+1)}")
    A(f"ds_write_b128 {v(vLw)}, {v(RAW,4)}")
    A(f"ds_write_b128 {v(vLw)}, {v(RAW+4,4)} offset:1024")
    def wpart():
        A(f"s_lshl_b32 {s(sT)}, {s(sWave)}, 11")
        A(f"s_add_u32 {s(sT)}, {s(sT)}, {LWR}")
        A(f"v_add_u32 v136, {s(sT)}, {v(vOff)}")
        A(f"ds_write_b128 v136, {v(WR,4)}")
        A(f"ds_write_b128 v136, {v(WR+4,4)} offset:1024")
        A(f"v_bfe_u32 v137, {v(vL)}, 2, 2")
        A(f"v_lshlrev_b32 v137, 8, v137")
        A(f"v_lshrrev_b32 v138, 4, {v(vL)}")
        A(f"v_lshl_add_u32 v137, v138, 5, v137")
        A(f"v_and_b32 v138, 3, {v(vL)}")
        A(f"v_lshl_add_u32 v137, v138, 3, v137")
        A(f"v_add_u32 v137, {s(sT)}, v137")
        A(f"v_and_b32 v138, 7, {v(vL)}")
        A(f"v_xor_b32 v138, {s(sWave)}, v138")
        A(f"v_lshlrev_b32 v138, 4, v138")
        A(f"v_lshl_add_u32 v138, {v(vL)}, 7, v138")
        A(f"v_add_u32 v138, {LWI}, v138")
        A("s_waitcnt lgkmcnt(0)")
        for ps_ in range(2):
            for eh in range(2):
                A(f"ds_read_b64_tr_b16 {v(140+4*ps_+2*eh,2)}, v137 offset:{eh*1024 + ps_*128}")
        A("s_waitcnt lgkmcnt(0)")
        for ps_ in range(2):
            A(f"ds_write_b128 v138, {v(140+4*ps_,4)} offset:{ps_*8192}")
    w1 = A.newlabel("ka_w1"); w2 = A.newlabel("ka_w2")
    A(f"s_cmp_eq_u32 {s(sIsD)}, 0")
    A(f"s_cbranch_scc1 {w1}")
    A(f"s_waitcnt vmcnt({4*EW+CPF})")
    A(f"s_branch {w2}")
    A.label(w1)
    A(f"s_waitcnt vmcnt({CPF})")
    A.label(w2)
    wpart()
    if not TE: tag_issue(A, sDbg, 216)
    A("s_waitcnt lgkmcnt(0)")
    A("s_barrier")
    dbg_mark(A, opts, 2, 254)
    CO = 196
    nco = A.newlabel("ka_nco")
    A(f"s_cmp_lt_u32 {s(sWave)}, 4")
    A(f"s_cbranch_scc1 {nco}")
    if opts.get("pfprio", 1): A("s_setprio 2")
    A("v_and_b32 v212, 255, v0")
    A("v_bfe_u32 v213, v0, 2, 2")
    A("v_lshrrev_b32 v214, 4, v212")
    A("v_xor_b32 v215, v214, v213")
    A("v_lshlrev_b32 v215, 6, v215")
    A("v_lshl_add_u32 v215, v213, 11, v215")
    A(f"s_and_b32 {s(sT)}, {s(sN2)}, 2")
    A("v_and_b32 v213, 3, v0")
    A(f"v_xor_b32 v213, {s(sT)}, v213")
    A("v_lshl_add_u32 v215, v213, 4, v215")
    A(f"v_add_u32 v215, {LS}, v215")
    for i in range(4):
        A(f"ds_read_b128 {v(CO+4*i,4)}, v215 offset:{(i>>1)*8192 + (i&1)*1024}")
    A("v_and_b32 v213, 15, v0")
    A("v_lshlrev_b32 v213, 4, v213")
    A("v_lshl_add_u32 v213, v214, 14, v213")
    A(f"s_lshl_b32 {s(sT)}, {s(sU)}, 19")
    A(f"s_lshl_b32 {s(sT+1)}, {s(sN2)}, 8")
    A(f"s_add_u32 {s(sT)}, {s(sT)}, {s(sT+1)}")
    for i in range(4):
        A(f"s_add_u32 {s(sT+1)}, {s(sT)}, {(i>>1)*(2<<19) + (i&1)*16*16384}")
        A(f"s_waitcnt lgkmcnt({3-i})")
        A(f"buffer_store_dwordx4 {v(CO+4*i,4)}, v213, {s(sX,4)}, {s(sT+1)} offen sc1")
    def signal(cnt_off, calc, va=40):
        calc()
        A(f"s_lshl_b32 {s(sT)}, {s(sT)}, 2")
        A(f"s_add_u32 {s(sT)}, {s(sT)}, {s(sWn)}")
        A(f"s_lshl_b32 {s(sT)}, {s(sT)}, 7")
        set_flag(A, sFb, sT, sTag, va)
    def calc_xf():
        A(f"s_and_b32 {s(sT)}, {s(sXcd)}, 3")
        A(f"s_lshl_b32 {s(sT)}, {s(sT)}, 6")
        A(f"s_add_u32 {s(sT)}, {s(sT)}, {s(sN2)}")
    def yf_set(va):
        nf = A.newlabel("ka_yf")
        A(f"s_cmp_lg_u32 {s(sWave)}, 4")
        A(f"s_cbranch_scc1 {nf}")
        A(f"s_add_u32 {s(sT)}, {s(sChunk)}, 1024")
        A(f"s_lshl_b32 {s(sT)}, {s(sT)}, 7")
        set_flag(A, sFb, sT, sTag, va)
        dbg_mark(A, opts, 15, 254)
        A.label(nf)
    if opts.get("xfearly"):
        A("s_waitcnt vmcnt(0)")
        signal(0, calc_xf)
        dbg_mark(A, opts, 3, 254)
    A.label(nco)
    OP = 12
    for u in range(2):
        for e in range(2):
            A(f"ds_read_b64_tr_b16 {v(OP+4*u+2*e,2)}, {v(vLr)} offset:{(16*u+8*e)*64}")
    for g in range(16):
        A(f"ds_read_b128 {v(64+4*g,4)}, {v(vC)} offset:{g*1024}")
    TR, TI = 32, 48
    A("s_waitcnt lgkmcnt(12)")
    A(f"{MF32} {v(TR,16)}, {v(OP,4)}, {v(B1C,4)}, 0")
    A(f"{MF32} {v(TI,16)}, {v(OP,4)}, {v(B1S,4)}, 0")
    A(f"{MF32} {v(TR,16)}, {v(OP+4,4)}, {v(B1C+4,4)}, {v(TR,16)}")
    A(f"{MF32} {v(TI,16)}, {v(OP+4,4)}, {v(B1S+4,4)}, {v(TI,16)}")
    make_srd(A, sA, sWS, sWS+1, 4 << 20, add=WS_YT)
    if opts.get("latesetup", 1):
        common_setup()
        A(f"v_lshlrev_b32 {v(vDx)}, 4, {v(vLL)}")
    ng = A.newlabel("ka_ng")
    A(f"s_cmp_eq_u32 {s(sIsD)}, 0")
    A(f"s_cbranch_scc1 {ng}")
    WL = opts.get("wlate", 0)
    for t in range(EW, NS if not WL else EW):
        for ins in dmaW(t): A(ins)
    A.label(ng)
    A("s_waitcnt lgkmcnt(0)")
    A("s_nop 5")
    NY, NT = 27, 28
    WK = B1C
    A(f"v_sub_f32 {v(NY)}, {v(TR)}, {v(TR+1)}")
    A(f"v_sub_f32 {v(NT)}, {v(TR+2)}, {v(TR+3)}")
    for r in range(4, 16, 4):
        A(f"v_add_f32 {v(NY)}, {v(NY)}, {v(TR+r)}")
        A(f"v_add_f32 {v(NT)}, {v(NT)}, {v(TR+r+2)}")
        A(f"v_sub_f32 {v(NY)}, {v(NY)}, {v(TR+r+1)}")
        A(f"v_sub_f32 {v(NT)}, {v(NT)}, {v(TR+r+3)}")
    A(f"v_add_f32 {v(NY)}, {v(NY)}, {v(NT)}")
    A(f"v_mov_b32 {v(NT)}, {v(NY)}")
    def pk(op, d, *srcs, neg=None):
        m = ""
        if neg:
            bits = ",".join("1" if i in neg else "0" for i in range(len(srcs)))
            m = f" neg_lo:[{bits}] neg_hi:[{bits}]"
        A(f"v_pk_{op}_f32 {v(d,2)}, " + ", ".join(v(x,2) for x in srcs) + m)
    for r in range(0, 16, 2): pk("mul", WK+r, TR+r, TWC+r)
    for r in range(0, 16, 2): pk("mul", TR+r, TR+r, TWS+r)
    for r in range(0, 16, 2): pk("fma", WK+r, TI+r, TWS+r, WK+r, neg=[0])
    UR, UI = 4, 12
    for p in range(8): A(f"v_cvt_pk_bf16_f32 {v(UR+p)}, {v(WK+2*p)}, {v(WK+2*p+1)}")
    Y = WK
    for r in range(0, 16, 2): pk("fma", TR+r, TI+r, TWC+r, TR+r)
    A(f"{MF32} {v(Y,16)}, {v(A2R,4)}, {v(UR,4)}, 0")
    A(f"{MF32} {v(Y,16)}, {v(A2R+4,4)}, {v(UR+4,4)}, {v(Y,16)}")
    for p in range(8): A(f"v_cvt_pk_bf16_f32 {v(UI+p)}, {v(TR+2*p)}, {v(TR+2*p+1)}")
    A(f"v_permlane32_swap_b32 {v(NY)}, {v(NT)}")
    A("s_nop 0")
    A(f"{MF32} {v(Y,16)}, {v(A2I,4)}, {v(UI,4)}, {v(Y,16)}")
    A(f"{MF32} {v(Y,16)}, {v(A2I+4,4)}, {v(UI+4,4)}, {v(Y,16)}")
    A(f"v_add_f32 {v(NY)}, {v(NY)}, {v(NT)}")
    A(f"v_mul_f32 {v(NY)}, 0.5, {v(NY)}")
    A("s_nop 9")
    A(f"v_mul_f32 {v(Y)}, {v(Y)}, {v(vDC)}")
    A(f"v_cndmask_b32 {v(Y+8)}, {v(Y+8)}, {v(NY)}, s[96:97]")
    for p in range(8): A(f"v_cvt_pk_bf16_f32 {v(32+p)}, {v(Y+2*p)}, {v(Y+2*p+1)}")
    for r in range(16):
        c = r >> 3; k2 = 8*((r >> 2) & 1) + (r & 3)
        A(f"ds_write_b16{'_d16_hi' if r & 1 else ''} {v(vTw)}, {v(32+r//2)} offset:{(c*16+k2)*512}")
    if not opts.get("xfearly"):
        nx2 = A.newlabel("ka_nx2")
        A(f"s_cmp_lt_u32 {s(sWave)}, 4")
        A(f"s_cbranch_scc1 {nx2}")
        A("s_waitcnt vmcnt(0)")
        tag_check(A, sDbg, sTag, 216)
        if CT:
            calc_xf()
            A(f"s_lshr_b32 {s(sT)}, {s(sT)}, 4")
            A(f"s_add_u32 {s(sT)}, {s(sT)}, {CN0}")
            A(f"s_lshl_b32 {s(sT)}, {s(sT)}, 7")
            cnt_arrive(A, sFb, sT, 40)
        elif not opts.get("xfwg", 0):
            signal(0, calc_xf)
        dbg_mark(A, opts, 3, 254)
        A.label(nx2)
    A("s_waitcnt lgkmcnt(0)")
    A("s_barrier")
    stamp(A, dict(stamp=opts.get("stamp0")), 2)
    dbg_mark(A, opts, 10, 254)
    ny = A.newlabel("ka_ny"); ny0 = A.newlabel("ka_ny0")
    A(f"s_cmp_ge_u32 {s(sWave)}, 4")
    A(f"s_cbranch_scc1 {ny0}")
    A(f"s_waitcnt vmcnt({4*(NS-EW) if not opts.get('wlate') else 0})")
    tg2 = A.newlabel("ka_tg2")
    A(f"s_cmp_eq_u32 {s(sIsD)}, 1")
    A(f"s_cbranch_scc1 {tg2}")
    A("s_waitcnt vmcnt(0)")
    A.label(tg2)
    tag_check(A, sDbg, sTag, 216)
    A(f"s_branch {ny}")
    A.label(ny0)
    if opts.get("xfwg", 0):
        xw = A.newlabel("ka_xw")
        A(f"s_cmp_lg_u32 {s(sWave)}, 4")
        A(f"s_cbranch_scc1 {xw}")
        signal(0, calc_xf)
        A.label(xw)
    for i in range(opts.get("ydelay", 0)): A("s_sleep 16")
    A("v_lshrrev_b32 v213, 1, v212")
    A("v_and_b32 v214, 1, v212")
    A("v_lshlrev_b32 v213, 4, v213")
    A("v_lshl_add_u32 v213, v214, 13, v213")
    A(f"v_add_u32 v213, {LT}, v213")
    for i in range(4): A(f"ds_read_b128 {v(CO+4*i,4)}, v213 offset:{i*2048}")
    A("v_lshlrev_b32 v214, 4, v212")
    A(f"s_lshl_b32 {s(sT)}, {s(sChunk)}, 14")
    for i in range(4):
        A(f"s_add_u32 {s(sT+1)}, {s(sT)}, {i*4096}")
        A(f"s_waitcnt lgkmcnt({3-i})")
        A(f"buffer_store_dwordx4 {v(CO+4*i,4)}, v214, {s(sA,4)}, {s(sT+1)} offen sc1")
    make_srd(A, sB, sWS, sWS+1, 513*WP, add=WS_WT)
    A("v_and_b32 v40, 7, v212")
    A("v_lshrrev_b32 v41, 3, v212")
    A("v_xor_b32 v42, v41, v40")
    A("v_and_b32 v42, 7, v42")
    A("v_lshlrev_b32 v42, 4, v42")
    A("v_lshl_add_u32 v42, v41, 7, v42")
    A(f"v_add_u32 v42, {LWI}, v42")
    for i in range(4): A(f"ds_read_b128 {v(128+4*i,4)}, v42 offset:{i*4096}")
    A(f"v_mul_u32_u24 v41, {WP}, v41")
    A("v_lshl_add_u32 v41, v40, 4, v41")
    A(f"s_and_b32 {s(sT)}, s2, 63")
    A(f"s_lshl_b32 {s(sT)}, {s(sT)}, 7")
    A(f"s_add_u32 {s(sT+2)}, {s(sT)}, {512*WP}")
    A(f"s_lshr_b32 {s(sT+1)}, s2, 6")
    A(f"s_mul_i32 {s(sT+1)}, {s(sT+1)}, {128*WP}")
    A(f"s_add_u32 {s(sT)}, {s(sT)}, {s(sT+1)}")
    for i in range(4):
        A(f"s_add_u32 {s(sT+1)}, {s(sT)}, {i*32*WP}")
        A(f"s_waitcnt lgkmcnt({3-i})")
        A(f"buffer_store_dwordx4 {v(128+4*i,4)}, v41, {s(sB,4)}, {s(sT+1)} offen sc1")
    A(f"s_cmp_eq_u32 {s(sWave)}, 4")
    A(f"s_cselect_b32 {s(sT+2)}, {s(sT+2)}, 0x40000000")
    A("s_cmp_ge_u32 s2, 192")
    A(f"s_cselect_b32 {s(sT+2)}, {s(sT+2)}, 0x40000000")
    A(f"buffer_store_short v194, v195, {s(sB,4)}, {s(sT+2)} offen sc1")
    A("s_setprio 0")
    A.label(ny)
    A(f"s_cmp_ge_u32 {s(sIdx)}, 28")
    A(f"s_cbranch_scc1 {fftl}")

    def reads(slot, rs):
        sg, so = divmod(slot*SLOT, 65536)
        X = [f"ds_read_b128 {v(opX(rs,i),4)}, {v(vXa[sg])} offset:{so + i*1024}" for i in range(8)]
        Wr = [f"ds_read_b64_tr_b16 {v(opW(rs,j)+2*e,2)}, {v(vWa[j%2][sg])} offset:{so + (j//2)*8192 + e*1024}" for j in range(4) for e in range(2)]
        return Wr + X + X[:opts.get("rdup", 0)]
    def mfmas(rs, first):
        od = opts.get("order", "xs")
        if od == "xs": ij = [(i, j) for i in range(8) for j in range(4)]
        elif od == "snake": ij = [(i, j if i % 2 == 0 else 3-j) for i in range(8) for j in range(4)]
        elif od == "ws": ij = [(i, j) for j in range(4) for i in range(8)]
        elif od == "wsnake": ij = [(i if j % 2 == 0 else 7-i, j) for j in range(4) for i in range(8)]
        return [f"{MF} {v(acc(i,j),4)}, {v(opW(rs,j),4)}, {v(opX(rs,i),4)}, {'0' if first else v(acc(i,j),4)}" for i, j in ij]
    VM = [8, 12]
    def mainloop(isd, hook=None, pfs=()):
        A("s_barrier")
        stamp(A, opts, 1)
        if not isd: dbg_mark(A, opts, 4, 254)
        for ins in reads(0, 0): A(ins)
        YS = opts.get("ys", 1)
        if YS < 0 and hook: hook()
        def step(t, do_dma=True, vm=None, bar=True):
            slot = t % NS; rs = t % 2
            mf = mfmas(rs, t == 0); n = 32
            if opts.get("xdup", 1) > 1 and vm in (8, 16) and t > 1: vm = vm*3//2
            A(f"s_waitcnt vmcnt({vm}) lgkmcnt(0)" if (isd and bar) else "s_waitcnt lgkmcnt(0)")
            if bar: A("s_barrier")
            if t == YS+1 and hook: yf_set(t1)
            fl = []; sl = []
            if t+1 < KS:
                rd = reads((t+1) % NS, 1-rs)
                r0, r1 = opts.get("rspan", (0.0, 0.6))
                for q, ins in enumerate(rd): fl.append(ins); sl.append(int((r0 + (r1-r0)*q/len(rd))*n))
            dm = ((dmaW(slot) + dmaX(slot)) if do_dma else []) if isd else (pfs if YS < t < KS-1 else [])
            d0, d1 = opts.get("dspan", (0.1, 0.9))
            for q, ins in enumerate(dm): fl.append(ins); sl.append(int((d0 + (d1-d0)*q/len(dm))*n))
            for ins in interleave(mf, fl, sl): A(ins)
            if t == YS and hook: hook()
        ndma = KS - NS
        step(0, vm=VM[0]); step(1, vm=VM[1]); step(2, vm=16)
        step(3, vm=16); step(4, vm=16)
        t = 5
        nl = (ndma - t)//NS
        lp = A.newlabel("loop")
        A(f"s_mov_b32 {s(sLoop)}, {nl}")
        A.label(lp)
        for j in range(NS): step(t+j, vm=16)
        A(f"s_sub_u32 {s(sLoop)}, {s(sLoop)}, 1")
        A(f"s_cmp_lg_u32 {s(sLoop)}, 0")
        A(f"s_cbranch_scc1 {lp}")
        t += nl*NS
        while t < KS:
            lastissued = min(t+NS-1, KS-1)
            vm = 8*max(0, lastissued-(t+1))
            if t == KS - FR: vm = 0
            step(t, do_dma=(t < ndma), vm=vm, bar=(t <= KS - FR and t < KS-1) or (FR == 0 and t < KS-1))
            t += 1
    A(f"s_cmp_ge_u32 {s(sWave)}, 4")
    A(f"s_cbranch_scc1 {pfl}")
    A(f"s_lshl_b32 {s(sKx)}, {s(sMt)}, 19")
    A(f"s_add_u32 {s(sKxE+2)}, {s(sKx)}, {s(sM0x)}")
    A(f"s_add_u32 {s(sKxE)}, {s(sKxE+2)}, {1<<19}")
    A(f"s_lshl_b32 {s(sT)}, {s(sRot)}, 14")
    A(f"s_add_u32 {s(sKx)}, {s(sKxE+2)}, {s(sT)}")
    A(f"s_lshr_b32 {s(sT)}, {s(sMt)}, 2")
    A(f"s_lshl_b32 {s(sT)}, {s(sT)}, 1")
    A(f"s_and_b32 {s(sT+1)}, {s(sMt)}, 1")
    A(f"s_add_u32 {s(sT)}, {s(sT)}, {s(sT+1)}")
    if CT:
        A(f"s_lshl_b32 {s(sT)}, {s(sT)}, 2")
        A(f"s_add_u32 {s(sT)}, {s(sT)}, {s(sWave)}")
        A(f"s_add_u32 {s(sT)}, {s(sT)}, {CN0}")
        A(f"s_lshl_b32 {s(sT)}, {s(sT)}, 7")
        cnt_poll(A, sFb, sT, 64, 40, sT+1, sleep=opts.get("psleep", 2))
    else:
        A(f"s_lshl_b32 {s(sT)}, {s(sT)}, 15")
        A(f"v_and_b32 v44, 15, {v(vLL)}")
        A(f"s_lshl_b32 {s(sT+1)}, {s(sWave)}, 13")
        A(f"s_add_u32 {s(sT)}, {s(sT)}, {s(sT+1)}")
        if opts.get("xfwg", 0): A(f"v_lshlrev_b32 v44, 9, v44")
        else: A(f"v_lshlrev_b32 v44, 7, {v(vLL)}")
        A(f"v_add_u32 v44, {s(sT)}, v44")
        poll_flags(A, sFb, 44, 1, sTag, 40, 96, sleep=opts.get("psleep", 2))
    dbg_mark(A, opts, 13, 254)
    grp = []
    for t in range(NS):
        g_ = (dmaW(t) if (WL and t >= EW) else []) + dmaX(t)
        grp.append(sum(i_.startswith("buffer") for i_ in g_))
        for ins in g_: A(ins)
    A(f"s_waitcnt vmcnt({sum(grp[1:])})")
    VM[:] = [grp[2]+grp[3], grp[3]+8]
    mainloop(True)
    A(f"s_branch {epi}")
    A.label(pfl)
    pw = []; pd = []; ps = []
    def zero_flags(va, L):
        make_srd(A, sB, sWS, sWS+1, 131072, add=WS_FLAG)
        A(f"s_lshl_b32 {s(sT)}, s2, 9")
        A(f"s_cmp_eq_u32 {s(sWave)}, 5")
        A(f"s_cselect_b32 {s(sT)}, {s(sT)}, 0x100000")
        A(f"v_lshlrev_b32 {v(va+2)}, 3, {v(L)}")
        A(f"v_mov_b32 {v(va)}, 0")
        A(f"v_mov_b32 {v(va+1)}, 0")
        A(f"buffer_store_dwordx2 {v(va,2)}, {v(va+2)}, {s(sB,4)}, {s(sT)} offen")
    def hook():
        A("s_waitcnt vmcnt(0)")
        if not opts.get("fuseall"): zero_flags(t1, vLL)
        for ins in pw*DL + pd*(opts.get("ys", 1)+2): A(ins)
    mainloop(False, hook, pw + pd + ps)
    A.label(epi)
    dbg_mark(A, opts, 5, 254)
    A("s_nop 7")
    FZ = opts.get("fuseall")
    wp = []
    if FZ:
        from kf import gen_kf
        gen = gen_kf(A, opts, done)
        part1, wpre, part1b, zcheck = next(gen)
        nv = 0; zy = 0
        A(f"s_lshl_b32 s83, {s(sMt)}, 1")
        A(f"s_add_u32 s83, s83, {s(sWm)}")
        A(f"s_mul_i32 s83, s83, 112")
        A(f"s_lshl_b32 {s(sT)}, {s(sNt)}, 2")
        A(f"s_add_u32 s83, s83, {s(sT)}")
        A(f"s_add_u32 s83, s83, {s(sWn)}")
        if opts.get("hfwg", 0):
            A(f"s_mul_i32 s83, {s(sMt)}, 28")
            A(f"s_add_u32 s83, s83, {s(sNt)}")
        A(f"s_add_u32 s83, s83, 2048")
        if CT:
            A(f"s_lshl_b32 s83, {s(sMt)}, 1")
            A(f"s_add_u32 s83, s83, {s(sWm)}")
            A(f"s_lshl_b32 s83, s83, 1")
            A(f"s_cmp_ge_u32 {s(sNt)}, 14")
            A(f"s_addc_u32 s83, s83, {CN0+16}")
        A(f"s_lshl_b32 s83, s83, 7")
        A(f"s_mov_b64 s[94:95], {s(sTag,2)}")
        A(f"s_mov_b64 s[96:97], {s(sFb,2)}")
        A("s_nop 4")
        part1(vLL)
        wp = wpre()
    stamp(A, opts, 2)
    E = R[0]; sRow = 41
    for i in range(8):
        Tm = E + (i % 2)*16; P = Tm + 8
        g = acc(i, 0); u = acc(i, 2)
        for r in range(0, 8, 2): pk("mul", Tm+r, g+r, g+r)
        for r in range(0, 8, 2): pk("fma", Tm+r, Tm+r, vK+2, vK)
        for r in range(0, 8, 2): pk("mul", Tm+r, Tm+r, g+r)
        for r in range(8): A(f"v_exp_f32 {v(Tm+r)}, {v(Tm+r)}")
        for r in range(0, 8, 2): pk("mul", u+r, u+r, g+r)
        for r in range(0, 8, 2): pk("add", Tm+r, Tm+r, vK+4)
        for r in range(8): A(f"v_rcp_f32 {v(Tm+r)}, {v(Tm+r)}")
        A(f"s_mov_b32 {s(sRow)}, {i*1024}")
        for r in range(0, 8, 2): pk("mul", Tm+r, Tm+r, u+r)
        for r in range(4): A(f"v_cvt_pk_bf16_f32 {v(P+r)}, {v(Tm+2*r)}, {v(Tm+2*r+1)}")
        A("s_nop 1")
        A(f"v_permlane16_swap_b32 {v(P)}, {v(P+2)}")
        A(f"v_permlane16_swap_b32 {v(P+1)}, {v(P+3)}")
        A(f"buffer_store_dwordx4 {v(P,4)}, {v(vSt)}, {s(sH,4)}, {s(sRow)} offen {opts.get('hst','sc1')}")
        if FZ:
            nv += 1; zy += 1
            wb = opts.get("wbar", 3)
            if i == opts.get("zat", 3):
                zcheck(nv); zy = 0
            if i == wb:
                part1b()
                if wp: A("s_barrier")
            if i >= wb:
                for ins in wp[:7]:
                    A(ins); nv += ins.startswith("buffer"); zy += ins.startswith("buffer")
                wp = wp[7:]
    if FZ: assert not wp
    if FZ:
        p2 = A.newlabel("ka_p2")
        A.label(p2)
        gen.send(zy)
    else:
        if opts.get("tldbg"): A("s_waitcnt vmcnt(0)")
        dbg_mark(A, opts, 6, 254)
    A.label(done)
    A("s_endpgm")
    from fft2 import gen_fft_role2
    A.label(fftl)
    A(f"s_sub_u32 s42, {s(sIdx)}, 28")
    A(f"s_lshl_b32 {s(sT)}, {s(sXcd)}, 2")
    A(f"s_add_u32 s42, s42, {s(sT)}")
    A(f"s_mov_b32 s40, {s(sWave)}")
    A(f"s_mov_b64 s[26:27], {s(sDbg,2)}")
    A(f"s_mov_b64 s[88:89], {s(sFb,2)}")
    A(f"s_mov_b64 s[90:91], {s(sTag,2)}")
    assert FZ
    from role3 import gen_role3
    gen_role3(A, opts, 42, sChunk)
    if FZ:
        A("s_mov_b32 s30, s40")
        A("s_mov_b32 s83, -1")
        A("s_mov_b64 s[94:95], s[90:91]")
        A("s_mov_b64 s[96:97], s[88:89]")
        part1(1)
        part1b()
        for ins in wpre(): A(ins)
        A(f"s_branch {p2}")
        A.label("ka_code_end")
    return 163840
```

```python
from asmlib import *
from layout import *
from dbgstamp import *
from gemm import stamp, stamp_store
from sync import *
MF = "v_mfma_f32_16x16x32_bf16"
MF32 = "v_mfma_f32_32x32x16_bf16"

def gen_kf(A, opts, done):
    NS = 4; XR = 4
    NT = 14; SLOT = 32768
    HF0, ZF0, Y2F0, EF0 = 2048, 3840, 3904, 4160
    sX, sW, sO, sY, sP, sXin, sZ = 8, 12, 16, 20, 44, 88, 84
    sTag, sFb = 94, 96
    sWS = 24; sT = 26
    sWave = 30; sMt, sNt, sHk = 31, 32, 33
    sM0 = 34; sKx, sKw, sKx2 = 35, 36, 37
    sG, sWr = 38, 39
    sFl = 42
    sPs, sPr, sFs, sFr, sYf, sRow = 48, 49, 50, 51, 52, 53
    ACC = 0; WOP = [64, 96]; XRG = 128
    b = XRG + XR*16
    nsg = (NS*SLOT + 65535)//65536
    vL, vSt, vXo = b, b+1, b+31
    vDw = [b+4, b+5, b+6, b+7]
    t0, t1, t2, t3 = b+8, b+9, b+10, b+11
    vPo, vPo2, vEx = b+12, b+13, b+14
    vWa = [list(range(b+15+8*g, b+23+8*g)) for g in range(nsg)]
    def xr(t, kk, i): return v(XRG + (t % XR)*16 + (kk*2+i)*4, 4)
    ZW = opts.get('zw', 1)
    vZf = b+3; sZok = 82; WE = opts.get('WE', 2)
    LZ, LC = 131072, 147456
    def part1(vLane):
        A(f"s_load_dwordx4 s[4:7], s[0:1], 48")
        A(f"s_load_dwordx2 s[92:93], s[0:1], 0")
        A(f"v_mov_b32 {v(vL)}, {v(vLane)}")
        A(f"s_and_b32 {s(sT)}, s2, 7")
        A(f"s_lshr_b32 {s(sT+1)}, s2, 3")
        A(f"s_and_b32 {s(sHk)}, {s(sT)}, 1")
        A(f"s_lshr_b32 {s(sMt)}, {s(sT)}, 1")
        A(f"s_lshl_b32 {s(sMt)}, {s(sMt)}, 2")
        A(f"s_and_b32 {s(sT+2)}, {s(sT+1)}, 3")
        A(f"s_add_u32 {s(sMt)}, {s(sMt)}, {s(sT+2)}")
        A(f"s_lshr_b32 {s(sNt)}, {s(sT+1)}, 2")
        A(f"s_lshr_b32 {s(sG)}, {s(sWave)}, 2")
        A(f"s_and_b32 {s(sWr)}, {s(sWave)}, 3")
        A(f"s_mul_i32 {s(sKw)}, {s(sHk)}, {14<<18}")
        A(f"s_mul_i32 {s(sKx)}, {s(sHk)}, {14<<15}")
        A(f"s_add_u32 {s(sKx2)}, {s(sKx)}, 8192")
        A(f"v_lshlrev_b32 {v(vPo)}, 4, {v(vL)}")
        A(f"v_lshrrev_b32 {v(t0)}, 4, {v(vL)}")
        A(f"v_lshlrev_b32 {v(t1)}, 1, {v(t0)}")
        A(f"v_and_b32 {v(t2)}, 15, {v(vL)}")
        A(f"v_xor_b32 {v(t2)}, {v(t2)}, {v(t1)}")
        A(f"v_lshlrev_b32 {v(t2)}, 4, {v(t2)}")
        A(f"s_lshl_b32 {s(sT)}, {s(sWave)}, 4")
        A(f"v_add_u32 {v(t0)}, {s(sT)}, {v(t0)}")
        A(f"v_lshlrev_b32 {v(t0)}, 11, {v(t0)}")
        A(f"s_lshl_b32 {s(sT)}, {s(sNt)}, 8")
        A(f"v_add3_u32 {v(vDw[0])}, {v(t0)}, {v(t2)}, {s(sT)}")
        A(f"v_xor_b32 {v(t1)}, 128, {v(vDw[0])}")
        for i in range(1, 4):
            A(f"v_add_u32 {v(vDw[i])}, {i*4*2048 - i*1024}, {v(t1 if i & 2 else vDw[0])}")
        A(f"s_lshl_b32 {s(sM0)}, {s(sWave)}, 12")
        A(f"s_mul_i32 {s(sT)}, {s(sMt)}, {112*8192}")
        A(f"s_lshl_b32 {s(sT+1)}, {s(sWr)}, 10")
        A(f"s_add_u32 {s(sT)}, {s(sT)}, {s(sT+1)}")
        A(f"s_lshl_b32 {s(sT+1)}, {s(sHk)}, 12")
        A(f"s_add_u32 {s(sT)}, {s(sT)}, {s(sT+1)}")
        A(f"s_lshl_b32 {s(sT+1)}, {s(sG)}, 14")
        A(f"s_add_u32 {s(sT)}, {s(sT)}, {s(sT+1)}")
        A(f"v_add_u32 {v(vXo)}, {s(sT)}, {v(vPo)}")
        A(f"v_xor_b32 {v(vXo+1)}, 0x1000, {v(vXo)}")
        A(f"v_min_u32 {v(t0)}, 31, {v(vL)}")
        A(f"v_lshlrev_b32 {v(t0)}, 7, {v(t0)}")
        A(f"v_add_u32 {v(vZf)}, {ZF0*128}, {v(t0)}")
        make_srd(A, sZ, sWS, sWS+1, 4 << 20, add=WS_ZT)
        A(f"s_mov_b32 {s(sZok)}, 1")
        z0 = A.newlabel("kf_z0")
        A(f"s_cmp_ge_u32 {s(sWave)}, {ZW}")
        A(f"s_cbranch_scc1 {z0}")
        A(f"global_load_dwordx2 {v(t0,2)}, {v(vZf)}, {s(sFb,2)} sc1")
        A(f"s_mov_b32 {s(sZok)}, 0")
        A.label(z0)
    LZ, LC = 131072, 147456
    log = []
    def emit(ins, tag=None):
        A(ins)
        if ins.startswith("buffer_") or ins.startswith("global_"): log.append(tag)
    def cnt_after(tags):
        tags = [tg for tg in tags if not (tg[0] == 'w' and tg[1] < (NS if FA else WE))]
        for tg in tags: assert tg in log and not any(x[1] == tg for x in pending), tg
        last = max(i for i, t in enumerate(log) if t in tags)
        return min(63, len(log) - 1 - last)
    pending = []
    def dma(t):
        o = [f"s_add_u32 m0, {s(sM0)}, {(t % NS)*SLOT}", "s_nop 0"]
        for i in range(4): o.append(f"buffer_load_dwordx4 {v(vDw[i])}, {s(sW,4)}, {s(sKw)} offen offset:{1024*i} {opts.get('wfl2','')} lds")
        o.append(f"s_add_u32 {s(sKw)}, {s(sKw)}, {1<<18}")
        return [(x, ('w', t)) for x in o]
    def xload(t, kk):
        r = sKx if kk == 0 else sKx2
        o = [f"buffer_load_dwordx4 {xr(t,kk,i)}, {v(vXo+i)}, {s(sX,4)}, {s(r)} offen sc1" for i in range(2)]
        o.append(f"s_add_u32 {s(r)}, {s(r)}, {1<<15}")
        return [(x, ('x', t, kk)) for x in o]
    def wreads(t, kk):
        sg, so = divmod((t % NS)*SLOT, 65536)
        return [f"ds_read_b64_tr_b16 {v(WOP[kk] + j*4 + 2*e, 2)}, {v(vWa[sg][j])} offset:{so + (32*kk + 4*e)*256}" for j in range(8) for e in range(2)]
    def wpre():
        return [x for t in range(WE) for x, _ in dma(t)]
    def zdma():
        per = 16 // ZW
        A(f"s_mul_i32 {s(sT)}, {s(sWave)}, {per*1024}")
        A(f"s_lshl_b32 {s(sT+1)}, s2, 14")
        A(f"s_add_u32 {s(sT+1)}, {s(sT)}, {s(sT+1)}")
        for g in range(0, per, 4):
            A(f"s_add_u32 m0, {s(sT)}, {LZ + g*1024}")
            A(f"s_add_u32 {s(sT+2)}, {s(sT+1)}, {g*1024}")
            for i in range(min(4, per)): A(f"buffer_load_dwordx4 {v(vPo)}, {s(sZ,4)}, {s(sT+2)} offen offset:{i*1024} sc1 lds")
    def zcheck(younger):
        nz = A.newlabel("kf_nz")
        A(f"s_cmp_eq_u32 {s(sZok)}, 1")
        A(f"s_cbranch_scc1 {nz}")
        A(f"s_waitcnt vmcnt({younger})")
        A(f"v_cmp_eq_u64 vcc, {s(sTag,2)}, {v(t0,2)}")
        A("s_nop 1")
        A("s_cmp_eq_u64 vcc, -1")
        A(f"s_cbranch_scc0 {nz}")
        zdma()
        A(f"s_mov_b32 {s(sZok)}, 1")
        A.label(nz)
    def part1b():
        A(f"s_waitcnt lgkmcnt(0)")
        make_srd(A, sW, 4, 5, 3584*1024*2)
    ZY = yield part1, wpre, part1b, zcheck
    sHF = 83
    dbg_mark(A, opts, 9, 254)
    def hflag():
        nh = A.newlabel("kf_nh")
        A("s_waitcnt vmcnt(0)")
        A(f"s_cmp_eq_u32 {s(sHF)}, -1")
        A(f"s_cbranch_scc1 {nh}")
        if opts.get("cnt", 1): cnt_arrive(A, sFb, sHF, 0)
        else: set_flag(A, sFb, sHF, sTag, 0)
        A(f"s_mov_b32 {s(sHF)}, -1")
        A.label(nh)
    zk = A.newlabel("kf_zok")
    A(f"s_cmp_eq_u32 {s(sZok)}, 1")
    A(f"s_cbranch_scc1 {zk}")
    if not opts.get("hfwg", 0): hflag()
    poll_flags(A, sFb, vZf, 1, sTag, 0, 98, sleep=opts.get('zsleep', 4))
    zdma()
    A("s_waitcnt vmcnt(0)")
    A.label(zk)
    make_srd(A, sX, sWS, sWS+1, 2048*3584*2, add=WS_H)
    B1R, B1I, B2C, B2N, TWC, TWS = 64, 72, 80, 88, 96, 112
    vN2, vIdx, vB, vC = 4, 5, 6, 7
    A(f"v_bfe_u32 {v(t1)}, {v(vL)}, 2, 1")
    A(f"v_lshlrev_b32 {v(t1)}, 4, {v(t1)}")
    A(f"v_bfe_u32 {v(t2)}, {v(vL)}, 3, 2")
    A(f"v_lshl_add_u32 {v(t1)}, {v(t2)}, 2, {v(t1)}")
    A(f"v_and_b32 {v(t2)}, 3, {v(vL)}")
    A(f"v_add_u32 {v(vN2)}, {v(t1)}, {v(t2)}")
    A(f"v_add_u32 {v(vC)}, {LC}, {v(vPo)}")
    jend = A.newlabel("kb_jend"); jtw = A.newlabel("kb_jtw"); jb1 = A.newlabel("kb_jb1"); jn = A.newlabel("kb_jn")
    A(f"s_cmp_ge_u32 {s(sWave)}, 5")
    A(f"s_cbranch_scc1 {jend}")
    A(f"v_mov_b32 {v(vIdx)}, {v(vN2)}")
    A(f"s_add_u32 {s(sT)}, {s(sWave)}, 1")
    A(f"s_lshr_b32 {s(sT)}, {s(sT)}, 1")
    A(f"s_cmp_lg_u32 {s(sT)}, 1")
    A(f"s_cbranch_scc1 {jn}")
    A(f"v_and_b32 {v(vIdx)}, 31, {v(vL)}")
    A.label(jn)
    A(f"s_cmp_eq_u32 {s(sT)}, 2")
    A(f"s_cselect_b32 {s(sT+1)}, 1023, 31")
    A(f"s_mov_b32 {s(sT+2)}, {f32(1/32)}")
    A(f"s_cselect_b32 {s(sT+2)}, {f32(1/1024)}, {s(sT+2)}")
    A(f"s_add_u32 {s(sT+3)}, {s(sWave)}, 1")
    A(f"s_and_b32 {s(sT+3)}, {s(sT+3)}, 1")
    A(f"s_cmp_eq_u32 {s(sWave)}, 0")
    A(f"s_cselect_b32 {s(sT+3)}, 0, {s(sT+3)}")
    A(f"s_lshl_b32 s40, {s(sT+3)}, 4")
    A(f"v_lshrrev_b32 {v(vB)}, 5, {v(vL)}")
    A(f"v_lshl_add_u32 {v(vB)}, {v(vB)}, 2, s40")
    A(f"v_mul_u32_u24 {v(vB)}, {v(vB)}, {v(vIdx)}")
    JT, JC, JS, JO = 64, 72, 80, 88
    for e, c in enumerate((0, 1, 2, 3, 8, 9, 10, 11)): A(f"v_mad_u32_u24 {v(JT+e)}, {c}, {v(vIdx)}, {v(vB)}")
    for e in range(8): A(f"v_and_b32 {v(JT+e)}, {s(sT+1)}, {v(JT+e)}")
    for e in range(8): A(f"v_cvt_f32_u32 {v(JT+e)}, {v(JT+e)}")
    for e in range(8): A(f"v_mul_f32 {v(JT+e)}, {s(sT+2)}, {v(JT+e)}")
    for e in range(8): A(f"v_cos_f32 {v(JC+e)}, {v(JT+e)}")
    for e in range(8): A(f"v_sin_f32 {v(JS+e)}, {v(JT+e)}")
    A(f"s_cmp_eq_u32 {s(sT)}, 2")
    A(f"s_cbranch_scc1 {jtw}")
    for p in range(4): A(f"v_cvt_pk_bf16_f32 {v(JO+p)}, {v(JC+2*p)}, {v(JC+2*p+1)}")
    for p in range(4): A(f"v_cvt_pk_bf16_f32 {v(JO+4+p)}, -{v(JS+2*p)}, -{v(JS+2*p+1)}")
    A(f"s_cmp_eq_u32 {s(sT)}, 0")
    A(f"s_cbranch_scc1 {jb1}")
    A(f"s_lshl_b32 {s(sT+3)}, {s(sT+3)}, 10")
    A(f"v_add_u32 {v(vB)}, {s(sT+3)}, {v(vC)}")
    A(f"ds_write_b128 {v(vB)}, {v(JO,4)} offset:4096")
    A(f"ds_write_b128 {v(vB)}, {v(JO+4,4)} offset:6144")
    A(f"s_branch {jend}")
    A.label(jb1)
    for p in range(4): A(f"v_cvt_pk_bf16_f32 {v(JO+8+p)}, {v(JS+2*p)}, {v(JS+2*p+1)}")
    A(f"ds_write_b128 {v(vC)}, {v(JO,4)}")
    A(f"ds_write_b128 {v(vC)}, {v(JO+4,4)} offset:1024")
    A(f"ds_write_b128 {v(vC)}, {v(JO+8,4)} offset:2048")
    A(f"ds_write_b128 {v(vC)}, {v(JO,4)} offset:3072")
    A(f"s_branch {jend}")
    A.label(jtw)
    A(f"s_lshl_b32 {s(sT+3)}, {s(sT+3)}, 11")
    A(f"v_add_u32 {v(vB)}, {s(sT+3)}, {v(vC)}")
    for q in range(2):
        A(f"ds_write_b128 {v(vB)}, {v(JC+4*q,4)} offset:{8192 + q*1024}")
        A(f"ds_write_b128 {v(vB)}, {v(JS+4*q,4)} offset:{12288 + q*1024}")
    A.label(jend)
    make_srd(A, sO, 6, 7, 2048*1024*2)
    make_srd(A, sXin, 92, 93, 2048*1024*2)
    make_srd(A, sY, sWS, sWS+1, 2048*1024*2, add=WS_XY)
    make_srd(A, sP, sWS, sWS+1, 256*49152, add=WS_PART)
    A(f"v_lshrrev_b32 {v(t0)}, 4, {v(vL)}")
    A(f"v_bfe_u32 {v(t1)}, {v(vL)}, 2, 2")
    A(f"v_lshlrev_b32 {v(t2)}, 11, {v(t0)}")
    A(f"v_lshlrev_b32 {v(t3)}, 8, {v(t1)}")
    A(f"s_lshl_b32 {s(sT)}, {s(sG)}, 14")
    A(f"v_add3_u32 {v(t2)}, {v(t2)}, {v(t3)}, {s(sT)}")
    A(f"v_and_b32 {v(t0)}, 1, {v(t0)}")
    A(f"v_lshl_or_b32 {v(t1)}, {v(t0)}, 2, {v(t1)}")
    A(f"v_lshlrev_b32 {v(t1)}, 5, {v(t1)}")
    A(f"v_and_b32 {v(t3)}, 3, {v(vL)}")
    A(f"v_lshlrev_b32 {v(t3)}, 3, {v(t3)}")
    A(f"v_add3_u32 {v(vWa[0][0])}, {v(t2)}, {v(t1)}, {v(t3)}")
    for j in range(1, 8): A(f"v_xor_b32 {v(vWa[0][j])}, {32*j}, {v(vWa[0][0])}")
    for g in range(1, nsg):
        for j in range(8): A(f"v_add_u32 {v(vWa[g][j])}, {hex(0x10000*g)}, {v(vWa[0][j])}")
    A(f"v_and_b32 {v(t0)}, 3, {v(vL)}")
    A(f"v_bfe_u32 {v(t1)}, {v(vL)}, 2, 2")
    A(f"v_lshl_add_u32 {v(t0)}, {v(t0)}, 6, {v(t1)}")
    A(f"s_lshl_b32 {s(sT+1)}, {s(sWr)}, 2")
    A(f"s_lshl_b32 {s(sT+2)}, {s(sHk)}, 4")
    A(f"s_add_u32 {s(sT+1)}, {s(sT+1)}, {s(sT+2)}")
    A(f"s_lshr_b32 {s(sT)}, {s(sMt)}, 1")
    A(f"s_and_b32 {s(sT+2)}, {s(sMt)}, 1")
    A(f"s_lshl_b32 {s(sYf)}, {s(sT+2)}, 1")
    A(f"s_lshr_b32 {s(sT+3)}, {s(sT)}, 2")
    A(f"s_add_u32 {s(sYf)}, {s(sYf)}, {s(sT+3)}")
    A(f"s_lshl_b32 {s(sYf)}, {s(sYf)}, 1")
    A(f"s_and_b32 {s(sT+3)}, {s(sT)}, 1")
    A(f"s_add_u32 {s(sYf)}, {s(sYf)}, {s(sT+3)}")
    A(f"s_lshl_b32 {s(sYf)}, {s(sYf)}, 5")
    A(f"s_add_u32 {s(sYf)}, {s(sYf)}, {s(sT+1)}")
    A(f"s_add_u32 {s(sYf)}, {s(sYf)}, {Y2F0}")
    A(f"s_lshl_b32 {s(sYf)}, {s(sYf)}, 7")
    A(f"s_lshl_b32 {s(sT)}, {s(sT)}, 8")
    A(f"s_lshl_b32 {s(sT+2)}, {s(sT+2)}, 5")
    A(f"s_add_u32 {s(sT)}, {s(sT)}, {s(sT+2)}")
    A(f"s_add_u32 {s(sT)}, {s(sT)}, {s(sT+1)}")
    A(f"v_add_u32 {v(t0)}, {s(sT)}, {v(t0)}")
    A(f"v_lshlrev_b32 {v(t0)}, 11, {v(t0)}")
    A(f"v_lshrrev_b32 {v(t1)}, 5, {v(vL)}")
    A(f"v_lshlrev_b32 {v(t1)}, 4, {v(t1)}")
    A(f"v_and_b32 {v(t2)}, 16, {v(vL)}")
    A(f"v_lshlrev_b32 {v(t2)}, 1, {v(t2)}")
    A(f"v_add3_u32 {v(t0)}, {v(t0)}, {v(t1)}, {v(t2)}")
    A(f"s_lshl_b32 {s(sT)}, {s(sNt)}, 8")
    A(f"v_add_u32 {v(vSt)}, {s(sT)}, {v(t0)}")
    A(f"s_lshl_b32 {s(sT)}, {s(sMt)}, 3")
    A(f"s_add_u32 {s(sT)}, {s(sT)}, {s(sNt)}")
    A(f"s_lshl_b32 {s(sT)}, {s(sT)}, 1")
    A(f"s_add_u32 {s(sT)}, {s(sT)}, {s(sHk)}")
    A(f"s_xor_b32 {s(sT+1)}, {s(sT)}, 1")
    A(f"s_mul_i32 {s(sT+2)}, {s(sWr)}, 12288")
    A(f"s_mul_i32 {s(sPs)}, {s(sT)}, 49152")
    A(f"s_add_u32 {s(sPs)}, {s(sPs)}, {s(sT+2)}")
    A(f"s_mul_i32 {s(sPr)}, {s(sT+1)}, 49152")
    A(f"s_add_u32 {s(sPr)}, {s(sPr)}, {s(sT+2)}")
    A(f"s_lshl_b32 {s(sT+2)}, {s(sWr)}, 7")
    A(f"s_add_u32 {s(sT+2)}, {s(sT+2)}, {EF0*128}")
    A(f"s_lshl_b32 {s(sFs)}, {s(sT)}, 9")
    A(f"s_add_u32 {s(sFs)}, {s(sFs)}, {s(sT+2)}")
    A(f"s_lshl_b32 {s(sFr)}, {s(sT+1)}, 9")
    A(f"s_add_u32 {s(sFr)}, {s(sFr)}, {s(sT+2)}")
    A(f"v_add_u32 {v(vPo2)}, 4096, {v(vPo)}")
    A(f"s_lshl_b32 {s(sT)}, {s(sWave)}, 13")
    A(f"v_add_u32 {v(vEx)}, {s(sT)}, {v(vPo)}")
    A(f"s_and_b32 {s(sRow)}, s2, 31")
    A(f"s_lshr_b32 {s(sT)}, s2, 7")
    A(f"s_lshl_b32 {s(sT)}, {s(sT)}, 5")
    A(f"s_add_u32 {s(sRow)}, {s(sRow)}, {s(sT)}")
    A(f"s_bfe_u32 {s(sT)}, s2, 0x10006")
    A(f"s_lshl_b32 {s(sT)}, {s(sT)}, 10")
    A(f"s_add_u32 {s(sRow)}, {s(sRow)}, {s(sT)}")
    A(f"s_bfe_u32 {s(sT)}, s2, 0x10005")
    A(f"s_lshl_b32 {s(sT)}, {s(sT)}, 8")
    A(f"s_add_u32 {s(sRow)}, {s(sRow)}, {s(sT)}")
    A(f"s_lshl_b32 {s(sT)}, {s(sG)}, 9")
    A(f"s_add_u32 {s(sRow)}, {s(sRow)}, {s(sT)}")
    A(f"s_lshl_b32 {s(sT)}, {s(sWr)}, 6")
    A(f"s_add_u32 {s(sRow)}, {s(sRow)}, {s(sT)}")
    A(f"s_lshl_b32 {s(sRow)}, {s(sRow)}, 11")
    vRd, vNy, vYo = 8, 9, 10
    A(f"v_lshrrev_b32 {v(t0)}, 5, {v(vL)}")
    A(f"v_and_b32 {v(t1)}, 31, {v(vL)}")
    A(f"v_lshlrev_b32 {v(vRd)}, 11, {v(t0)}")
    A(f"v_lshl_add_u32 {v(vRd)}, {v(t1)}, 4, {v(vRd)}")
    A(f"s_lshl_b32 {s(sT)}, {s(sWave)}, 1")
    A(f"s_add_u32 {s(sT)}, {s(sT)}, {LZ}")
    A(f"v_add_u32 {v(vRd)}, {s(sT)}, {v(vRd)}")
    A(f"v_mov_b32 {v(vNy)}, {s(sT)}")
    if opts.get("hfwg", 0):
        A(f"s_lshr_b32 {s(sT)}, {s(sMt)}, 1")
        A(f"s_mul_i32 {s(sT)}, {s(sT)}, 28")
        A(f"s_mul_i32 {s(sT+1)}, {s(sHk)}, 14")
    else:
        A(f"s_mul_i32 {s(sT)}, {s(sMt)}, 112")
        A(f"s_mul_i32 {s(sT+1)}, {s(sHk)}, 56")
    A(f"s_add_u32 {s(sT)}, {s(sT)}, {s(sT+1)}")
    A(f"s_add_u32 {s(sT)}, {s(sT)}, {HF0}")
    A(f"v_min_u32 {v(t0)}, {13 if opts.get('hfwg', 0) else 55}, {v(vL)}")
    A(f"v_add_u32 {v(t0)}, {s(sT)}, {v(t0)}")
    A(f"v_lshlrev_b32 {v(vZf)}, 7, {v(t0)}")
    HW = opts.get("hfwg", 0)
    if HW:
        A(f"s_waitcnt vmcnt(0) lgkmcnt(0)")
        A("s_barrier")
        hw = A.newlabel("kf_hw")
        A(f"s_cmp_lg_u32 {s(sWave)}, 6")
        A(f"s_cbranch_scc1 {hw}")
        hflag()
        A.label(hw)
        dbg_mark(A, opts, 6, 254)
    else:
        hflag()
        dbg_mark(A, opts, 6, 254)
        A(f"s_waitcnt lgkmcnt(0)")
        A("s_barrier")
    WM = opts.get("WM", 0)
    for t in range(WE, WM):
        for ins, tg in dma(t): emit(ins, tg)
    def l2pf():
        A(f"s_lshr_b32 {s(sT)}, s2, 3")
        A(f"s_lshl_b32 {s(sT)}, {s(sT)}, 3")
        A(f"s_add_u32 {s(sT)}, {s(sT)}, {s(sWave)}")
        A(f"s_lshl_b32 {s(sT)}, {s(sT)}, 13")
        A(f"s_mul_i32 {s(sT+1)}, {s(sHk)}, {14<<18}")
        A(f"s_add_u32 {s(sT+1)}, {s(sT+1)}, {4<<18}")
        A(f"s_add_u32 {s(sT+1)}, {s(sT+1)}, {s(sT)}")
        A(f"v_lshlrev_b32 v1, 3, {v(vPo)}")
        A(f"buffer_load_dword v0, v1, {s(sW,4)}, {s(sT+1)} offen")
        if opts.get("l2pf") == 2:
            A(f"s_add_u32 {s(sT+1)}, {s(sT+1)}, {2<<20}")
            A(f"s_cmp_lt_u32 {s(sT)}, {(10<<18) - (2<<20)}")
            A(f"s_cselect_b32 {s(sT+1)}, {s(sT+1)}, 0x40000000")
            A(f"buffer_load_dword v0, v1, {s(sW,4)}, {s(sT+1)} offen")
    if opts.get("l2pf"): l2pf()
    RD = 32; NYQ = 11; OP = 12; TR, TI = 32, 48; WK = 64
    for r in range(16):
        c = r >> 3; k2 = 8*((r >> 2) & 1) + (r & 3)
        A(f"ds_read_u16 {v(RD+r)}, {v(vRd)} offset:{(c*16+k2)*512}")
    for g in range(16): A(f"ds_read_b128 {v(64+4*g,4)}, {v(vC)} offset:{g*1024}")
    A("s_waitcnt lgkmcnt(12)")
    for q in range(8): A(f"v_lshl_or_b32 {v(OP+q)}, {v(RD+2*q+1)}, 16, {v(RD+2*q)}")
    A("s_nop 1")
    A(f"{MF32} {v(TR,16)}, {v(OP,4)}, {v(B1R,4)}, 0")
    A(f"{MF32} {v(TI,16)}, {v(OP,4)}, {v(B1I,4)}, 0")
    A(f"{MF32} {v(TR,16)}, {v(OP+4,4)}, {v(B1R+4,4)}, {v(TR,16)}")
    A(f"{MF32} {v(TI,16)}, {v(OP+4,4)}, {v(B1I+4,4)}, {v(TI,16)}")
    A("s_nop 5")
    A("s_waitcnt lgkmcnt(0)")
    A("s_nop 7")
    def pk(op, d, *srcs, neg=None):
        m = ""
        if neg:
            bits = ",".join("1" if i in neg else "0" for i in range(len(srcs)))
            m = f" neg_lo:[{bits}] neg_hi:[{bits}]"
        A(f"v_pk_{op}_f32 {v(d,2)}, " + ", ".join(v(x,2) for x in srcs) + m)
    for r in range(0, 16, 2): pk("mul", WK+r, TR+r, TWC+r)
    for r in range(0, 16, 2): pk("mul", TR+r, TR+r, TWS+r)
    for r in range(0, 16, 2): pk("fma", WK+r, TI+r, TWS+r, WK+r, neg=[0])
    UR, UI = 12, 24
    for p in range(8): A(f"v_cvt_pk_bf16_f32 {v(UR+p)}, {v(WK+2*p)}, {v(WK+2*p+1)}")
    Y = WK
    for r in range(0, 16, 2): pk("fma", TR+r, TI+r, TWC+r, TR+r)
    A(f"{MF32} {v(Y,16)}, {v(UR,4)}, {v(B2C,4)}, 0")
    A(f"{MF32} {v(Y,16)}, {v(UR+4,4)}, {v(B2C+4,4)}, {v(Y,16)}")
    for p in range(8): A(f"v_cvt_pk_bf16_f32 {v(UI+p)}, {v(TR+2*p)}, {v(TR+2*p+1)}")
    A("s_nop 1")
    A(f"{MF32} {v(Y,16)}, {v(UI,4)}, {v(B2N,4)}, {v(Y,16)}")
    A(f"{MF32} {v(Y,16)}, {v(UI+4,4)}, {v(B2N+4,4)}, {v(Y,16)}")
    FA = opts.get("flow", "A") == "A"
    if not FA: A(f"global_load_dwordx2 v[2:3], {v(vZf)}, {s(sFb,2)} sc1")
    A("s_nop 11")
    for q in range(8): A(f"v_cvt_pk_bf16_f32 {v(32+q)}, {v(Y+2*q)}, {v(Y+2*q+1)}")
    def yflag():
        nf = A.newlabel("kb_nf")
        A(f"s_cmp_lg_u32 {s(sWave)}, 7")
        A(f"s_cbranch_scc1 {nf}")
        A(f"s_add_u32 {s(sT)}, s2, {Y2F0}")
        A(f"s_lshl_b32 {s(sT)}, {s(sT)}, 7")
        set_flag(A, sFb, sT, sTag, t0)
        A.label(nf)
    if FA:
        A(f"buffer_store_dwordx4 v[32:35], {v(vPo)}, {s(sY,4)}, {s(sRow)} offen sc1")
        A(f"buffer_store_dwordx4 v[36:39], {v(vPo)}, {s(sY,4)}, {s(sRow)} offen offset:1024 sc1")
        for t in range(max(WE, WM), NS):
            for ins, tg in dma(t): A(ins)
        if opts.get("cnt", 1):
            A(f"s_lshl_b32 {s(sT)}, {s(sMt)}, 1")
            A(f"s_add_u32 {s(sT)}, {s(sT)}, {s(sHk)}")
            A(f"s_add_u32 {s(sT)}, {s(sT)}, {CN0+16}")
            A(f"s_lshl_b32 {s(sT)}, {s(sT)}, 7")
            cnt_poll(A, sFb, sT, 56, 2, sT+1, sleep=opts.get("hsleep", 1))
        elif opts.get("hp1", 0):
            hp = A.newlabel("kf_hp")
            A(f"s_cmp_lg_u32 {s(sWave)}, 0")
            A(f"s_cbranch_scc1 {hp}")
            poll_flags(A, sFb, vZf, 1, sTag, 2, 98, sleep=opts.get("hsleep", 1))
            A.label(hp)
            A("s_waitcnt vmcnt(0)")
            A("s_barrier")
        else:
            poll_flags(A, sFb, vZf, 1, sTag, 2, 98, sleep=opts.get("hsleep", 1))
        dbg_mark(A, opts, 14, 254)
        PRO = opts.get("PRO", 2)
        for t in range(PRO):
            for ins, tg in xload(t, 0) + xload(t, 1): emit(ins, tg)
        for t in range(PRO, XR): pending += xload(t, 0) + xload(t, 1)
        if not opts.get("hp1", 0): A("s_barrier")
        yflag()
    else:
        hok = A.newlabel("kf_hok")
        A("s_waitcnt vmcnt(0)")
        A(f"v_cmp_eq_u64 vcc, {s(sTag,2)}, v[2:3]")
        A("s_nop 1")
        A("s_cmp_eq_u64 vcc, -1")
        A(f"s_cbranch_scc1 {hok}")
        poll_flags(A, sFb, vZf, 1, sTag, 2, 98, sleep=opts.get("hsleep", 1))
        A.label(hok)
        dbg_mark(A, opts, 14, 254)
        PRO = opts.get("PRO", 2)
        for t in range(PRO):
            for ins, tg in xload(t, 0) + xload(t, 1): emit(ins, tg)
        emit(f"buffer_store_dwordx4 v[32:35], {v(vPo)}, {s(sY,4)}, {s(sRow)} offen sc1", 'y')
        emit(f"buffer_store_dwordx4 v[36:39], {v(vPo)}, {s(sY,4)}, {s(sRow)} offen offset:1024 sc1", 'y')
        for t in range(XR):
            if t >= max(WE, WM): pending += dma(t)
            if t >= PRO: pending += xload(t, 0) + xload(t, 1)
        if WE == 0: A("s_barrier")
    for ins in wreads(0, 0): A(ins)
    r0, r1 = opts.get("rspan2", (0.0, 0.7))
    YT_ = NT - opts.get('ytb', 2)
    for t in range(NT):
        for kk in range(2):
            if kk == 0:
                A(f"s_waitcnt vmcnt({cnt_after([('x',t,0)])}) lgkmcnt(0)" if t <= YT_ else "s_waitcnt lgkmcnt(0)")
            else:
                need = [('x', t, 1)] + ([('w', t+1)] if t+1 < NT else [])
                cnt = cnt_after(need)
                if t == YT_:
                    assert not pending
                    cnt = 0
                A(f"s_waitcnt vmcnt({cnt}) lgkmcnt(0)" if t <= YT_ else "s_waitcnt lgkmcnt(0)")
                A("s_barrier")
                if t == YT_ and not FA: yflag()
            XX = XRG + 32; YY = XRG + 48; E = XRG
            if kk == 1 and t in (YT_-1, YT_):
                assert FA and YT_ == NT-2
                sk = A.newlabel("kb_sk")
                A(f"s_cmp_lg_u32 {s(sG)}, 0")
                A(f"s_cbranch_scc1 {sk}")
                if t == YT_-1:
                    A(f"v_and_b32 {v(t0)}, 3, {v(vL)}")
                    A(f"v_lshlrev_b32 {v(t0)}, 7, {v(t0)}")
                    A(f"v_add_u32 {v(vZf)}, {s(sYf)}, {v(t0)}")
                    A(f"v_mov_b32 {v(t1)}, {(ZF0+32)*128}")
                    A(f"v_cmp_gt_u32 vcc, 4, {v(vL)}")
                    A(f"v_and_b32 {v(t2)}, 0xfffff800, {v(vSt)}")
                    A(f"v_lshrrev_b32 {v(t3)}, 5, {v(vL)}")
                    A(f"v_cndmask_b32 {v(vZf)}, {v(t1)}, {v(vZf)}, vcc")
                    A(f"global_load_dwordx2 {v(t0,2)}, {v(vZf)}, {s(sFb,2)} sc1")
                    A(f"v_lshl_add_u32 {v(t2)}, {v(t3)}, 10, {v(t2)}")
                    A(f"v_and_b32 {v(t3)}, 16, {v(vL)}")
                    A(f"v_lshl_add_u32 {v(t2)}, {v(t3)}, 5, {v(t2)}")
                    A(f"s_lshl_b32 {s(sT)}, {s(sNt)}, 6")
                    A(f"v_add_u32 {v(t2)}, {s(sT)}, {v(t2)}")
                    make_srd(A, sZ, sWS, sWS+1, 4096, add=WS_ZT + (4 << 20))
                    A(f"s_lshr_b32 {s(sT)}, {s(sYf)}, 7")
                    A(f"s_sub_u32 {s(sT)}, {s(sT)}, {Y2F0}")
                    A(f"s_lshl_b32 {s(sT)}, {s(sT)}, 4")
                    A(f"s_bfe_u32 {s(sT+1)}, {s(sMt)}, 0x10002")
                    A(f"s_lshl_b32 {s(sT+1)}, {s(sT+1)}, 3")
                    A(f"s_add_u32 {s(sYf)}, {s(sT)}, {s(sT+1)}")
                    A(f"v_bfe_u32 {v(t3)}, {v(vL)}, 2, 2")
                    A(f"v_and_b32 {v(vDw[2])}, 3, {v(vL)}")
                    A(f"v_lshlrev_b32 {v(vDw[2])}, 1, {v(vDw[2])}")
                    A(f"v_lshl_add_u32 {v(t3)}, {v(t3)}, 4, {v(vDw[2])}")
                else:
                    yo = A.newlabel("kb_yo")
                    A(f"v_cmp_eq_u64 vcc, {s(sTag,2)}, {v(t0,2)}")
                    A("s_nop 1")
                    A("s_cmp_eq_u64 vcc, -1")
                    A(f"s_cbranch_scc1 {yo}")
                    poll_flags(A, sFb, vZf, 1, sTag, t0, 98, sleep=0)
                    A.label(yo)
                    for jp in range(4): A(f"buffer_load_dwordx4 {v(XX + jp*4, 4)}, {v(vSt)}, {s(sXin,4)}, 0 offen offset:{jp*64}")
                    for jp in range(4): A(f"buffer_load_dwordx4 {v(YY + jp*4, 4)}, {v(t2)}, {s(sY,4)}, 0 offen offset:{jp*16} sc1")
                    A(f"buffer_load_ushort {v(vDw[0])}, {v(t3)}, {s(sZ,4)}, {s(sYf)} offen sc1")
                A.label(sk)
            mf = []; fl = []; sl = []
            od2 = opts.get("order2", "xs")
            ij = [(i, j) for i in range(2) for j in range(8)] if od2 == "xs" else [(i if j % 2 == 0 else 1-i, j) for j in range(8) for i in range(2)]
            for i, j in ij:
                if True:
                    c = "0" if (t == 0 and kk == 0) else v(ACC+(i*8+j)*4, 4)
                    mf.append(f"{MF} {v(ACC+(i*8+j)*4,4)}, {v(WOP[kk]+j*4,4)}, {xr(t, kk, i)}, {c}")
            n = 16
            def add(ins, pos, tag=None): fl.append((ins, tag)); sl.append(pos)
            rd = wreads(t, 1) if kk == 0 else (wreads(t+1, 0) if t+1 < NT else [])
            for q, ins in enumerate(rd): add(ins, int((r0 + (r1-r0)*q/len(rd))*n))
            if kk == 1 and t+NS < NT: pending += dma(t+NS)
            npop = min(len(pending), 14)
            for k in range(npop):
                ins, tg = pending.pop(0); add(ins, 1 + (k*14)//npop, tg)
            if t+XR < NT: pending += xload(t+XR, kk)
            for item in interleave(mf, fl, sl):
                if isinstance(item, tuple): emit(item[0], item[1])
                else: A(item)
    dbg_mark(A, opts, 11, 254)
    A("s_nop 7")
    g1l = A.newlabel("kb_g1")
    A(f"s_cmp_lg_u32 {s(sG)}, 0")
    A(f"s_cbranch_scc1 {g1l}")
    TG = opts.get("tagx", 0); PB = opts.get("pbf", 1)
    for j in range(8): A(f"ds_write_b128 {v(vEx)}, {v(ACC+(8+j)*4,4)} offset:{j*1024}")
    A("s_waitcnt lgkmcnt(0)")
    A("s_barrier")
    PR = WOP[0]
    for j in range(8): A(f"ds_read_b128 {v(PR+j*4,4)}, {v(vEx)} offset:{32768 + j*1024}")
    XF = ACC + 32; YF = 112
    A("s_waitcnt vmcnt(0)")
    for q in range(16):
        A(f"v_lshlrev_b32 {v(XF+2*q)}, 16, {v(XX+q)}")
        A(f"v_and_b32 {v(XF+2*q+1)}, 0xffff0000, {v(XX+q)}")
    A("s_waitcnt lgkmcnt(0)")
    for r in range(0, 32, 2): pk("add", ACC+r, ACC+r, PR+r)
    NG = 11 if TG else (4 if PB else 8)
    def poff(j, base):
        return f"{v(vPo if j % 8 < 4 else vPo2)}, {s(sP,4)}, {s(base if j < 8 else sT+3)} offen offset:{(j%4)*1024} sc1"
    def pload():
        for j in range(NG): A(f"buffer_load_dwordx4 {v(PR+j*4,4)}, {poff(j, sPr)}")
    A(f"s_add_u32 {s(sT+3)}, {s(sPr)}, 8192")
    def yproc(hf):
        for q in range(8):
            A(f"v_lshlrev_b32 {v(YF+2*q)}, 16, {v(YY+8*hf+q)}")
            A(f"v_and_b32 {v(YF+2*q+1)}, 0xffff0000, {v(YY+8*hf+q)}")
        for r in range(0, 16, 2): pk("add", YF+r, YF+r, vDw[0])
        for r in range(0, 16, 2): pk("add", XF+16*hf+r, XF+16*hf+r, YF+r)
        for q in range(8): A(f"v_cvt_pk_bf16_f32 {v(YY+8*hf+q)}, {v(XF+16*hf+2*q)}, {v(XF+16*hf+2*q+1)}")
        for q in range(8):
            A(f"v_lshlrev_b32 {v(XF+16*hf+2*q)}, 16, {v(YY+8*hf+q)}")
            A(f"v_and_b32 {v(XF+16*hf+2*q+1)}, 0xffff0000, {v(YY+8*hf+q)}")
    A(f"v_lshlrev_b32 {v(vDw[0])}, 16, {v(vDw[0])}")
    A(f"v_xor_b32 {v(vDw[1])}, 0x80000000, {v(vDw[0])}")
    yproc(0); yproc(1)
    po = A.newlabel("kb_pok"); pl = A.newlabel("kb_pl")
    if TG:
        for i in range(opts.get("xsl", 0)): A("s_sleep 8")
        A.label(pl)
        pload()
        A("s_waitcnt vmcnt(0)")
        tg = lambda g: v(PR+4*g+3)
        A(f"v_max3_u32 {v(t0)}, {tg(0)}, {tg(1)}, {tg(2)}")
        A(f"v_min3_u32 {v(t1)}, {tg(0)}, {tg(1)}, {tg(2)}")
        for g in range(3, 11, 2):
            A(f"v_max3_u32 {v(t0)}, {v(t0)}, {tg(g)}, {tg(g+1)}")
            A(f"v_min3_u32 {v(t1)}, {v(t1)}, {tg(g)}, {tg(g+1)}")
        A(f"v_cmp_eq_u32 vcc, {s(sTag)}, {v(t0)}")
        A(f"v_cmp_eq_u32 s[98:99], {s(sTag)}, {v(t1)}")
        A("s_nop 1")
        A("s_and_b64 vcc, vcc, s[98:99]")
        A("s_cmp_eq_u64 vcc, -1")
        A(f"s_cbranch_scc0 {pl}")
        pr = lambda r: PR + (r//3)*4 + r % 3
    else:
        A(f"v_mov_b32 {v(vZf)}, {s(sFr)}")
        poll_flags(A, sFb, vZf, 1, sTag, t0, 98, sleep=0)
        pload()
        pr = lambda r: PR + r
    dbg_mark(A, opts, 7, 254)
    for jp in range(4):
        P = (E, E+16)[jp % 2]; Tm = P + 4
        a0 = ACC + jp*8
        if PB:
            A(f"s_waitcnt vmcnt(3)")
            for p in range(4):
                A(f"v_lshlrev_b32 {v(Tm+2*p)}, 16, {v(PR+jp*4+p)}")
                A(f"v_and_b32 {v(Tm+2*p+1)}, 0xffff0000, {v(PR+jp*4+p)}")
            for r in range(0, 8, 2): pk("add", a0+r, a0+r, Tm+r)
        else:
            if not TG: A(f"s_waitcnt vmcnt({6-2*jp + jp})")
            for r in range(8): A(f"v_add_f32 {v(a0+r)}, {v(a0+r)}, {v(pr(jp*8+r))}")
        for p in range(4): A(f"v_cvt_pk_bf16_f32 {v(P+p)}, {v(a0+2*p)}, {v(a0+2*p+1)}")
        A("s_nop 1")
        A(f"v_permlane16_swap_b32 {v(P)}, {v(P+2)}")
        A(f"v_permlane16_swap_b32 {v(P+1)}, {v(P+3)}")
        A("s_nop 0")
        for p in range(4):
            A(f"v_lshlrev_b32 {v(Tm+2*p)}, 16, {v(P+p)}")
            A(f"v_and_b32 {v(Tm+2*p+1)}, 0xffff0000, {v(P+p)}")
        for r in range(0, 8, 2): pk("add", Tm+r, Tm+r, XF+jp*8+r)
        for p in range(4): A(f"v_cvt_pk_bf16_f32 {v(YY+jp*4+p)}, {v(Tm+2*p)}, {v(Tm+2*p+1)}")
        A(f"buffer_store_dwordx4 {v(YY+jp*4,4)}, {v(vSt)}, {s(sO,4)}, 0 offen offset:{jp*64} {opts.get('ofl','')}")
    if opts.get("tldbg"): A("s_waitcnt vmcnt(0)")
    dbg_mark(A, opts, 12, 254)
    if opts.get("tfix"):
        tf = A.newlabel("kf_tfix")
        A.label(tf)
        A("s_memrealtime s[98:99]")
        A("s_waitcnt lgkmcnt(0)")
        A(f"s_sub_u32 s98, s98, {s(sTag)}")
        A(f"s_cmp_lt_u32 s98, {opts.get('tfix')}")
        A(f"s_cbranch_scc1 {tf}")
    A("s_endpgm")
    A.label(g1l)
    if opts.get("sprio", 1): A("s_setprio 3")
    for j in range(8): A(f"ds_write_b128 {v(vEx)}, {v(ACC+j*4,4)} offset:{j*1024}")
    A(f"v_subrev_u32 {v(vEx)}, 32768, {v(vEx)}")
    GR = XRG
    if TG:
        for g in range(11): A(f"v_mov_b32 {v(GR+4*g+3)}, {s(sTag)}")
        A(f"v_mov_b32 {v(GR+42)}, 0")
    A(f"s_add_u32 {s(sT+3)}, {s(sPs)}, 8192")
    A("s_waitcnt lgkmcnt(0)")
    A("s_barrier")
    for j in range(8): A(f"ds_read_b128 {v(PR+j*4,4)}, {v(vEx)} offset:{j*1024}")
    if TG:
        for g in range(11):
            last = min(3*g+2, 31)
            A(f"s_waitcnt lgkmcnt({7 - last//4})")
            for r in range(3*g, last+1): A(f"v_add_f32 {v(GR+4*g+r%3)}, {v(PR+r)}, {v(ACC+32+r)}")
            A(f"buffer_store_dwordx4 {v(GR+4*g,4)}, {poff(g, sPs)}")
    else:
        for j in range(8):
            A(f"s_waitcnt lgkmcnt({7-j})")
            for r in range(0, 4, 2): pk("add", PR+j*4+r, PR+j*4+r, ACC+32+j*4+r)
            if PB:
                for p in range(2): A(f"v_cvt_pk_bf16_f32 {v(GR+j*2+p)}, {v(PR+j*4+2*p)}, {v(PR+j*4+2*p+1)}")
                if j % 2: A(f"buffer_store_dwordx4 {v(GR+(j//2)*4,4)}, {poff(j//2, sPs)}")
            else:
                A(f"buffer_store_dwordx4 {v(PR+j*4,4)}, {poff(j, sPs)}")
        A("s_waitcnt vmcnt(0)")
        set_flag(A, sFb, sFs, sTag, t0)
    A("s_endpgm")
    yield None
```
